```python
import torch

def _softmax(x, axis=-1):
    return torch.softmax(x, dim=axis)
def _gelu(x):
    return torch.nn.functional.gelu(x, approximate="tanh")
def _silu(x):
    return torch.nn.functional.silu(x)
def _sigmoid(x):
    return torch.sigmoid(x)
def _layernorm(x, axis=-1, eps=1e-5):
    m = x.mean(dim=axis, keepdim=True)
    v = x.var(dim=axis, keepdim=True, unbiased=False)
    return (x - m) / torch.sqrt(v + eps)
def _scatter_add(tgt, idx, src, axis=0):
    return tgt.clone().index_add_(axis, idx, src)
def _segment_sum(src, seg, n):
    out = torch.zeros((n,) + src.shape[1:], dtype=src.dtype)
    return out.index_add_(0, seg, src)
def _pad(x, pw):
    flat = tuple(v for pair in reversed(pw) for v in pair)
    return torch.nn.functional.pad(x, flat)

kernel_name = 'recurrent_scan__spectral_gfnet__glu_gated_reglu__prompt'

def setup_inputs():

    _w = (lambda a: (lambda t: t.to(torch.bfloat16) if t.is_floating_point() else t)(torch.as_tensor(a)))
    def _A_setup():
        B, S, D = 1, 2048, 512
        Df = D // 2 + 1
        return {
            "x": _w((lambda *s: torch.randn(*s, dtype=torch.bfloat16) * 0.2)(B, S, D)),
            "w_r": _w((lambda *s: torch.randn(*s, dtype=torch.bfloat16) * 1.6)(S, Df) * 0.02),
            "w_i": _w((lambda *s: torch.randn(*s, dtype=torch.bfloat16) * 1.6)(S, Df) * 0.02),
        }
    _A_in = _A_setup()

    def _B_setup():
        B, S, D, F = 1, 2048, 512, 1792
        return {
            "x": _w((lambda *s: torch.randn(*s, dtype=torch.bfloat16) * 0.2)(B, S, D)),
            "W_gate": _w((lambda *s: torch.randn(*s, dtype=torch.bfloat16) * 0.8)(D, F) * (2.0 / D) ** 0.5),
            "W_up": _w((lambda *s: torch.randn(*s, dtype=torch.bfloat16) * 0.8)(D, F) * (2.0 / D) ** 0.5),
            "W_down": _w((lambda *s: torch.randn(*s, dtype=torch.bfloat16) * 0.8)(F, D) * (1.0 / F) ** 0.5),
        }
    _B_in = _B_setup()

    return {
        "A_x": _A_in["x"],
        "A_w_r": _A_in["w_r"],
        "A_w_i": _A_in["w_i"],
        "B_x": _B_in["x"],
        "B_W_gate": _B_in["W_gate"],
        "B_W_up": _B_in["W_up"],
        "B_W_down": _B_in["W_down"],
    }

def reference(A_x, A_w_r, A_w_i, B_x, B_W_gate, B_W_up, B_W_down):
    def _A_ref(x, w_r, w_i):
        B, S, D = x.shape
        X = (lambda x, axes=(-2,-1): torch.fft.rfft2(x.float(), dim=axes))(x, axes=(-2, -1))
        W = w_r + 1j * w_i
        X = X * W
        y = (lambda x, s, axes=(-2,-1): torch.fft.irfft2(x, s=s, dim=axes).to(torch.bfloat16))(X, (S, D), axes=(-2, -1))
        return y

    def _B_ref(x, W_gate, W_up, W_down):
        gate = torch.einsum("bsd,df->bsf", x, W_gate)
        up = torch.einsum("bsd,df->bsf", x, W_up)
        gate = gate * (lambda x, dt: x.to(dt))(gate > 0, gate.dtype)
        h = gate * up
        return torch.einsum("bsf,fd->bsd", h, W_down)

    x = A_x
    xn = _layernorm(x, axis=-1)
    s = _A_ref(xn, A_w_r, A_w_i)
    g = _silu(_B_ref(xn, B_W_gate, B_W_up, B_W_down))
    return x + s * g
```

```python
import numpy as np, sys, math

OUT = sys.argv[1] if len(sys.argv) > 1 else "recurrent_scan__spectral_gfnet__glu_gated_reglu__prompt.s"

WS_H = 0
WS_Y = 8 << 20
WS_Z = 10 << 20
WS_W = 12 << 20
WS_SIZE = 268435456

def bf16(x):
    u = np.asarray(x, np.float32).view(np.uint32).astype(np.uint64)
    r = ((u + 0x7fff + ((u >> 16) & 1)) >> 16).astype(np.uint16)
    return r
def f16(x):
    return np.asarray(x, np.float64).astype(np.float16).view(np.uint16)

class Asm:
    def __init__(self):
        self.lines = []
        self.vm = []
    def __call__(self, s):
        for ln in s.strip("\n").split("\n"):
            self.lines.append("  " + ln.strip() if not ln.strip().endswith(":") else ln.strip())
    def raw(self, s):
        self.lines.append(s)
    def vmem(self, s, tag):
        self(s); self.vm.append(tag)
        assert len(self.vm) <= 63, "vmcnt overflow"
    def wait_vm(self, tag):
        idx = max(i for i, t in enumerate(self.vm) if t == tag)
        n = len(self.vm) - 1 - idx
        self(f"s_waitcnt vmcnt({n})")
        self.vm = self.vm[idx + 1:]
    def wait_vm_all(self):
        self("s_waitcnt vmcnt(0)"); self.vm = []
    def text(self):
        return "\n".join(self.lines) + "\n"

def srd(a, s, lo, hi, nbytes):
    a(f"s_mov_b32 s{s}, {lo}")
    a(f"s_mov_b32 s{s+1}, {hi}")
    a(f"s_mov_b32 s{s+2}, {nbytes}")
    a(f"s_mov_b32 s{s+3}, 0x20000")

def getpc_tab(a, s, sym):
    a(f"s_getpc_b64 s[{s}:{s+1}]")
    a(f"s_add_u32 s{s}, s{s}, {sym}@rel32@lo+4")
    a(f"s_addc_u32 s{s+1}, s{s+1}, {sym}@rel32@hi+12")

def kd(name, vgpr, sgpr=102):
    acc = (vgpr + 3) // 4 * 4
    return f""".amdhsa_kernel {name}
  .amdhsa_next_free_vgpr {vgpr}
  .amdhsa_next_free_sgpr {sgpr}
  .amdhsa_accum_offset {acc}
  .amdhsa_group_segment_fixed_size 0
  .amdhsa_kernarg_size 80
  .amdhsa_user_sgpr_count 2
  .amdhsa_user_sgpr_kernarg_segment_ptr 1
  .amdhsa_system_sgpr_workgroup_id_x 1
.end_amdhsa_kernel
"""

K1_NS = 4
def gen_k1():
    a = Asm()
    A0 = 128
    ACC = 64
    BF = 32
    a.raw(".p2align 8\nk1_kernel:")
    a("""
    s_cmp_ge_u32 s2, 256
    s_cbranch_scc1 k1_end
    s_load_dwordx2 s[4:5], s[0:1], 0
    s_load_dwordx4 s[8:11], s[0:1], 8
    s_load_dwordx4 s[12:15], s[0:1], 32
    s_load_dwordx2 s[6:7], s[0:1], 72
    v_lshrrev_b32 v1, 6, v0
    v_and_b32 v2, 63, v0
    s_nop 0
    v_readfirstlane_b32 s3, v1
    """)
    a("""
    s_and_b32 s16, s2, 7
    s_lshr_b32 s17, s2, 3
    s_and_b32 s18, s16, 1
    s_lshl_b32 s18, s18, 3
    s_and_b32 s19, s17, 7
    s_add_u32 s18, s18, s19
    s_lshr_b32 s19, s16, 1
    s_lshl_b32 s19, s19, 2
    s_lshr_b32 s20, s17, 3
    s_add_u32 s19, s19, s20
    s_and_b32 s20, s3, 3
    s_lshr_b32 s21, s3, 2
    s_lshl_b32 s22, s18, 2
    s_add_u32 s22, s22, s20
    """)
    getpc_tab(a, 24, "tab_F")
    a("s_waitcnt lgkmcnt(0)")
    srd(a, 28, "s4", "s5", 2048*1024)
    srd(a, 32, "s8", "s9", 2048*514)
    srd(a, 36, "s10", "s11", 2048*514)
    srd(a, 40, "s6", "s7", WS_SIZE)
    a("""
    s_and_b32 s23, s3, 1
    s_cmp_eq_u32 s23, 0
    s_cselect_b32 s44, s12, s14
    s_cselect_b32 s45, s13, s15
    s_mov_b32 s46, 1835008
    s_mov_b32 s47, 0x20000
    s_movk_i32 s48, 3584
    s_lshl_b32 s49, s19, 8
    s_cmp_lt_u32 s19, 14
    s_cbranch_scc1 k1_isglu
    s_mov_b32 s44, s24
    s_mov_b32 s45, s25
    s_mov_b32 s46, 524288
    s_movk_i32 s48, 1024
    s_sub_u32 s49, s19, 14
    s_lshl_b32 s49, s49, 9
    s_lshl_b32 s50, s23, 8
    s_add_u32 s49, s49, s50
    k1_isglu:
    """)
    a("""
    s_lshr_b32 s50, s2, 4
    s_and_b32 s51, s2, 15
    s_lshl_b32 s50, s50, 7
    s_add_u32 s50, s50, s51
    s_mul_i32 s50, s50, 514
    v_lshlrev_b32 v3, 1, v0
    v_mov_b32 v4, 0x7fffff00
    v_cmp_gt_u32 vcc, 257, v0
    s_nop 1
    v_cndmask_b32 v3, v4, v3, vcc
    """)
    for t in range(2):
        for i in range(4):
            off = (32*i + 16*t) * 514
            a(f"s_add_u32 s51, s50, {off}")
            a.vmem(f"buffer_load_ushort v{ACC+4*t+i}, v3, s[32:35], s51 offen", "w")
            a.vmem(f"buffer_load_ushort v{ACC+8+4*t+i}, v3, s[36:39], s51 offen", "w")
    a(f"""
    s_mul_i32 s51, s2, 8224
    s_add_u32 s51, s51, {WS_W}
    v_lshlrev_b32 v5, 5, v0
    v_add_u32 v5, s51, v5
    v_mov_b32 v4, 0xffffff00
    v_cndmask_b32 v5, v4, v5, vcc
    """)
    a("""
    v_and_b32 v6, 31, v2
    v_lshlrev_b32 v6, 16, v6
    v_lshrrev_b32 v7, 5, v2
    v_lshlrev_b32 v8, 4, v7
    v_add_u32 v6, v6, v8
    s_lshl_b32 s51, s22, 10
    v_add_u32 v6, s51, v6
    """)
    for t in range(32):
        a.vmem(f"buffer_load_dwordx4 v[{A0+4*t}:{A0+4*t+3}], v6, s[28:31], 0 offen offset:{32*t}", f"x{t//4}")
    a("""
    v_lshrrev_b32 v8, 4, v2
    v_and_b32 v9, 15, v2
    v_lshrrev_b32 v9, 1, v9
    v_lshlrev_b32 v10, 1, v8
    v_xor_b32 v9, v9, v10
    v_lshlrev_b32 v9, 5, v9
    v_and_b32 v10, 1, v2
    v_lshlrev_b32 v10, 4, v10
    v_add_u32 v9, v9, v10
    v_mul_lo_u32 v8, v8, s48
    v_add_u32 v9, v9, v8
    v_add_u32 v9, s49, v9
    """)
    a("""
    s_lshr_b32 s50, s3, 1
    s_lshl_b32 s50, s50, 4
    s_mul_i32 s52, s50, s48
    s_lshl_b32 s53, s50, 8
    s_lshl_b32 s54, s23, 14
    s_add_u32 s53, s53, s54
    s_lshl_b32 s54, s48, 2
    s_lshl_b32 s55, s48, 6
    """)
    def dma_chunk(c):
        st = c % K1_NS
        for u in range(4):
            a(f"s_add_u32 m0, s53, {st*32768 + u*1024}")
            if u == 0:
                a("s_mov_b32 s56, s52")
            else:
                a("s_add_u32 s56, s56, s54")
            a.vmem("buffer_load_dwordx4 v9, s[44:47], s56 offen lds", f"c{c}")
        a("s_add_u32 s52, s52, s55")
    for c in range(3):
        dma_chunk(c)
    a("""
    v_lshrrev_b32 v10, 4, v2
    v_and_b32 v11, 15, v2
    v_lshrrev_b32 v12, 2, v11
    v_and_b32 v11, 3, v11
    v_lshrrev_b32 v13, 1, v10
    v_lshlrev_b32 v13, 3, v13
    v_add_u32 v13, v13, v12
    v_lshlrev_b32 v13, 8, v13
    v_lshlrev_b32 v11, 3, v11
    v_add_u32 v13, v13, v11
    v_and_b32 v10, 1, v10
    v_lshlrev_b32 v10, 5, v10
    v_add_u32 v13, v13, v10
    s_lshl_b32 s57, s21, 1
    v_xor_b32 v10, s57, v12
    v_lshlrev_b32 v10, 6, v10
    v_add_u32 v16, v13, v10
    s_add_u32 s57, s57, 1
    v_xor_b32 v10, s57, v12
    v_lshlrev_b32 v10, 6, v10
    v_add_u32 v17, v13, v10
    v_add_u32 v18, 0x10000, v16
    v_add_u32 v19, 0x10000, v17
    """)
    a.wait_vm("w")
    for idx in range(8):
        a(f"v_lshl_or_b32 v{ACC+16+idx}, v{ACC+8+idx}, 16, v{ACC+idx}")
    a.vmem(f"buffer_store_dwordx4 v[{ACC+16}:{ACC+19}], v5, s[40:43], 0 offen", "ws")
    a.vmem(f"buffer_store_dwordx4 v[{ACC+20}:{ACC+23}], v5, s[40:43], 0 offen offset:16", "ws")
    a("""
    v_mov_b32 v20, 0x3f803f80
    v_mov_b32 v21, 0x00003f80
    v_mov_b32 v22, 0x3f800000
    v_mov_b32 v24, 0
    v_mov_b32 v25, 0
    v_mov_b32 v26, 0
    v_mov_b32 v27, 0
    """)
    for grp in range(8):
        a.wait_vm(f"x{grp}")
        for r in range(16):
            reg = A0 + grp*16 + r
            a(f"v_dot2_f32_bf16 v{24 + r%4}, v{reg}, v20, v{24 + r%4}")
    dma_chunk(3)
    a("""
    s_nop 2
    v_add_f32 v24, v24, v25
    v_add_f32 v26, v26, v27
    v_add_f32 v24, v24, v26
    v_mov_b32 v25, v24
    s_nop 1
    v_permlane32_swap_b32 v24, v25
    v_add_f32 v24, v24, v25
    v_mul_f32 v24, 0x3b000000, v24
    v_cvt_pk_bf16_f32 v25, v24, v24
    v_lshlrev_b32 v25, 16, v25
    v_sub_f32 v26, v24, v25
    v_sub_f32 v23, 0, v25
    v_mov_b32 v28, 0
    v_mov_b32 v29, 0
    v_mov_b32 v30, 0
    v_mov_b32 v31, 0
    """)
    def p2_issue(b):
        T = ACC + 32 + (b % 2) * 8
        for r in range(4):
            reg = A0 + b*4 + r
            a(f"v_dot2_f32_bf16 v{T+2*r}, v{reg}, v21, v23")
            a(f"v_dot2_f32_bf16 v{T+2*r+1}, v{reg}, v22, v23")
    def p2_use(b):
        T = ACC + 32 + (b % 2) * 8
        for r in range(4):
            reg = A0 + b*4 + r
            acc = 28 + 2*(r % 2)
            a(f"v_pk_fma_f32 v[{acc}:{acc+1}], v[{T+2*r}:{T+2*r+1}], v[{T+2*r}:{T+2*r+1}], v[{acc}:{acc+1}]")
            a(f"v_cvt_pk_bf16_f32 v{reg}, v{T+2*r}, v{T+2*r+1}")
    p2_issue(0)
    for b in range(32):
        if b + 1 < 32:
            p2_issue(b + 1)
        else:
            a("s_nop 3")
        p2_use(b)
    a("""
    v_add_f32 v28, v28, v29
    v_add_f32 v30, v30, v31
    v_add_f32 v28, v28, v30
    v_mov_b32 v29, v28
    s_nop 1
    v_permlane32_swap_b32 v28, v29
    v_add_f32 v28, v28, v29
    v_mul_f32 v28, 0x3b000000, v28
    v_fma_f32 v28, -v26, v26, v28
    v_max_f32 v28, 0, v28
    v_cvt_pk_bf16_f32 v28, v28, v28
    v_lshlrev_b32 v28, 16, v28
    v_add_f32 v28, 0x3727c5ac, v28
    v_cvt_pk_bf16_f32 v28, v28, v28
    v_lshlrev_b32 v28, 16, v28
    v_sqrt_f32 v28, v28
    s_nop 0
    v_cvt_pk_bf16_f32 v28, v28, v28
    v_lshlrev_b32 v28, 16, v28
    v_rcp_f32 v15, v28
    """)
    vm_save = list(a.vm)

    def mainloop(dft):
        a.vm = list(vm_save)
        def reads(c, s, buf):
            st = c % K1_NS
            base = (st & 1) * 32768
            ra = (16, 17) if st < 2 else (18, 19)
            for P in range(2):
                for T in range(2):
                    fr = BF + buf*16 + (P*2+T)*4
                    for t in range(2):
                        off = base + P*16384 + (16*s + 4*t)*256
                        a(f"ds_read_b64_tr_b16 v[{fr+2*t}:{fr+2*t+1}], v{ra[T]} offset:{off}")
        def mfmas(c, s, buf, first):
            areg = A0 + (c*4 + s)*4
            for tile in range(4):
                fr = BF + buf*16 + tile*4
                acc = ACC + tile*16
                cin = "0" if first else f"v[{acc}:{acc+15}]"
                if dft:
                    a(f"v_mfma_f32_32x32x16_bf16 v[{acc}:{acc+15}], v[{areg}:{areg+3}], v[{fr}:{fr+3}], {cin}")
                else:
                    a(f"v_mfma_f32_32x32x16_bf16 v[{acc}:{acc+15}], v[{fr}:{fr+3}], v[{areg}:{areg+3}], {cin}")
        a.wait_vm("c0")
        a("s_barrier")
        reads(0, 0, 0)
        step = 0
        for c in range(8):
            for s in range(4):
                buf = step & 1
                if s < 3:
                    reads(c, s+1, buf ^ 1)
                    a("s_waitcnt lgkmcnt(8)")
                elif c < 7:
                    a.wait_vm(f"c{c+1}")
                    a("s_waitcnt lgkmcnt(0)")
                    a("s_barrier")
                    if c + 4 < 8:
                        dma_chunk(c + 4)
                    reads(c+1, 0, buf ^ 1)
                else:
                    a("s_waitcnt lgkmcnt(0)")
                mfmas(c, s, buf, step == 0)
                step += 1
        a("s_nop 15")
    a("""
    s_cmp_lt_u32 s19, 14
    s_cbranch_scc0 k1_dft
    """)
    mainloop(False)
    a(f"""
    s_mul_i32 s50, s22, 112
    s_lshl_b32 s51, s19, 3
    s_add_u32 s50, s50, s51
    s_lshl_b32 s51, s21, 2
    s_add_u32 s50, s50, s51
    s_lshl_b32 s50, s50, 10
    s_add_u32 s50, s50, {WS_H}
    v_lshlrev_b32 v3, 4, v2
    v_mov_b32 v14, v15
    s_mov_b32 s52, 0xffff0000
    """)
    for T in range(2):
        G = ACC + T*16; U = ACC + 32 + T*16
        O = BF + T*8
        for p in range(8):
            g = G + 2*p; u = U + 2*p
            a(f"""
            v_pk_mul_f32 v[{g}:{g+1}], v[{g}:{g+1}], v[14:15]
            v_pk_mul_f32 v[{u}:{u+1}], v[{u}:{u+1}], v[14:15]
            v_max_f32 v{g}, 0, v{g}
            v_max_f32 v{g+1}, 0, v{g+1}
            v_cvt_pk_bf16_f32 v4, v{g}, v{g+1}
            v_cvt_pk_bf16_f32 v5, v{u}, v{u+1}
            v_lshlrev_b32 v{g}, 16, v4
            v_and_b32 v{g+1}, s52, v4
            v_lshlrev_b32 v{u}, 16, v5
            v_and_b32 v{u+1}, s52, v5
            v_pk_mul_f32 v[{g}:{g+1}], v[{g}:{g+1}], v[{u}:{u+1}]
            v_cvt_pk_bf16_f32 v{O+p}, v{g}, v{g+1}
            """)
        a(f"buffer_store_dwordx4 v[{O}:{O+3}], v3, s[40:43], s50 offen offset:{T*2048}")
        a(f"buffer_store_dwordx4 v[{O+4}:{O+7}], v3, s[40:43], s50 offen offset:{T*2048+1024}")
    a("s_endpgm")
    a.raw("k1_dft:")
    mainloop(True)
    a("""
    v_lshrrev_b32 v3, 5, v2
    v_lshlrev_b32 v3, 4, v3
    """)
    for i in range(16):
        a(f"v_add_u32 v4, {4*(8*(i>>2) + (i&3))}, v3")
        a(f"ds_bpermute_b32 v{BF+i}, v4, v15")
    a(f"""
    s_sub_u32 s50, s19, 14
    s_lshl_b32 s50, s50, 8
    s_lshl_b32 s51, s21, 6
    s_add_u32 s50, s50, s51
    s_lshl_b32 s50, s50, 12
    s_lshl_b32 s51, s22, 6
    s_add_u32 s50, s50, s51
    s_add_u32 s50, s50, {WS_Y}
    v_and_b32 v4, 31, v2
    v_lshlrev_b32 v4, 12, v4
    v_add_u32 v3, v3, v4
    s_waitcnt lgkmcnt(0)
    """)
    for P in range(2):
        for T in range(2):
            acc = ACC + (P*2+T)*16
            for p in range(8):
                a(f"v_pk_mul_f32 v[{acc+2*p}:{acc+2*p+1}], v[{acc+2*p}:{acc+2*p+1}], v[{BF+2*p}:{BF+2*p+1}]")
            O = A0 + (P*2+T)*8
            for p in range(8):
                a(f"v_cvt_pk_f16_f32 v{O+p}, v{acc+2*p}, v{acc+2*p+1}")
            a("s_nop 1")
            for q in (0, 2):
                a(f"v_permlane32_swap_b32 v{O+2*q}, v{O+2*q+2}")
                a(f"v_permlane32_swap_b32 v{O+2*q+1}, v{O+2*q+3}")
            a(f"s_add_u32 s51, s50, {(128*P + 32*T)*4096}")
            a(f"buffer_store_dwordx4 v[{O}:{O+3}], v3, s[40:43], s51 offen")
            a(f"buffer_store_dwordx4 v[{O+4}:{O+7}], v3, s[40:43], s51 offen offset:32")
    a.raw("k1_end:")
    a("s_endpgm")
    return a.text()

TE1, TE2, TE3, TE4, TT1, TT2, TSZ = 0, 4096, 20480, 36864, 40960, 57344, 73728
def small_tables():
    buf = np.zeros(TSZ // 2, np.uint16)
    l = np.arange(64); c = l % 16; g = l // 16; j = np.arange(8)
    for t in range(2):
        ang = -2*np.pi*((8*g[:,None]+j[None,:])*(16*t+c)[:,None] % 32)/32
        buf[(TE1 + (0*2+t)*1024)//2:][:512] = f16(np.cos(ang)/8).ravel()
        buf[(TE1 + (1*2+t)*1024)//2:][:512] = f16(np.sin(ang)/8).ravel()
    for w in range(4):
        for st in range(2):
            ang = -2*np.pi*((32*st+8*g[:,None]+j[None,:])*(16*w+c)[:,None] % 64)/64
            buf[(TE2 + ((w*2+0)*2+st)*1024)//2:][:512] = f16(np.cos(ang)/8).ravel()
            buf[(TE2 + ((w*2+1)*2+st)*1024)//2:][:512] = f16(np.sin(ang)/8).ravel()
            buf[(TE3 + ((w*2+0)*2+st)*1024)//2:][:512] = bf16(np.cos(-ang)/8).ravel()
            buf[(TE3 + ((w*2+1)*2+st)*1024)//2:][:512] = bf16(np.sin(-ang)/8).ravel()
    sig = 16*(j[None,:]//4) + 4*g[:,None] + (j[None,:] % 4)
    for tp in range(2):
        ang = 2*np.pi*((sig*(16*tp+c)[:,None]) % 32)/32
        buf[(TE4 + (0*2+tp)*1024)//2:][:512] = bf16(np.cos(ang)/8).ravel()
        buf[(TE4 + (1*2+tp)*1024)//2:][:512] = bf16(np.sin(ang)/8).ravel()
    f32 = buf.view(np.float32)
    for w in range(4):
        for e in range(8):
            t, i = e // 4, e % 4
            a1 = -2*np.pi*(((16*w+4*g+i)*(16*t+c)) % 2048)/2048
            a2 = 2*np.pi*(((16*w+c)*(16*t+4*g+i)) % 2048)/2048
            for (base, an) in ((TT1, a1), (TT2, a2)):
                o = (base + (w*4 + e//2)*1024)//4 + l*4 + (e % 2)*2
                f32[o] = np.cos(an); f32[o+1] = np.sin(an)
    return buf

def gen_k2():
    a = Asm()
    a.raw(".p2align 8\nk2_kernel:")
    a("""
    s_cmp_ge_u32 s2, 256
    s_cbranch_scc1 k2_end
    s_load_dwordx2 s[6:7], s[0:1], 72
    v_lshrrev_b32 v1, 6, v0
    v_and_b32 v2, 63, v0
    s_nop 0
    v_readfirstlane_b32 s3, v1
    """)
    getpc_tab(a, 24, "tab_S")
    srd(a, 28, "s24", "s25", TSZ)
    a("s_waitcnt lgkmcnt(0)")
    srd(a, 40, "s6", "s7", WS_SIZE)
    YR, YI = 8, 12
    E1 = 16
    T1 = 32
    E2 = 48
    WW = 64
    E3 = 80
    T2 = 96
    E4 = 112
    D = 128
    F = 144
    N = 176
    TMP = 184
    a(f"""
    v_and_b32 v3, 15, v2
    v_lshrrev_b32 v4, 4, v2
    v_lshlrev_b32 v5, 6, v3
    v_lshl_add_u32 v5, v4, 4, v5
    s_lshl_b32 s8, s2, 13
    s_lshl_b32 s9, s3, 10
    s_add_u32 s8, s8, s9
    s_add_u32 s8, s8, {WS_Y}
    s_add_u32 s9, s8, 4096
    v_lshlrev_b32 v6, 4, v2
    s_lshl_b32 s10, s3, 12
    """)
    a.vmem(f"buffer_load_dwordx4 v[{YR}:{YR+3}], v5, s[40:43], s8 offen", "y")
    a.vmem(f"buffer_load_dwordx4 v[{YI}:{YI+3}], v5, s[40:43], s9 offen", "y")
    for q in range(4):
        a.vmem(f"buffer_load_dwordx4 v[{E1+4*q}:{E1+4*q+3}], v6, s[28:31], 0 offen offset:{TE1+q*1024}", "e1")
    a(f"s_add_u32 s11, s10, {TT1}")
    for q in range(4):
        a.vmem(f"buffer_load_dwordx4 v[{T1+4*q}:{T1+4*q+3}], v6, s[28:31], s11 offen offset:{q*1024}", "t1")
    a(f"s_add_u32 s11, s10, {TE2}")
    for q in range(4):
        a.vmem(f"buffer_load_dwordx4 v[{E2+4*q}:{E2+4*q+3}], v6, s[28:31], s11 offen offset:{q*1024}", "e2")
    a(f"""
    s_movk_i32 s12, 8224
    v_mul_lo_u32 v7, v0, s12
    s_lshl_b32 s12, s2, 5
    s_add_u32 s12, s12, {WS_W}
    s_add_u32 s13, s12, 8192
    """)
    a.vmem(f"buffer_load_dwordx4 v[{WW}:{WW+3}], v7, s[40:43], s12 offen", "w")
    a.vmem(f"buffer_load_dwordx4 v[{WW+4}:{WW+7}], v7, s[40:43], s12 offen offset:16", "w")
    a.vmem(f"buffer_load_dwordx4 v[{WW+8}:{WW+11}], v7, s[40:43], s13 offen", "w")
    a.vmem(f"buffer_load_dwordx4 v[{WW+12}:{WW+15}], v7, s[40:43], s13 offen offset:16", "w")
    a(f"s_add_u32 s11, s10, {TE3}")
    for q in range(4):
        a.vmem(f"buffer_load_dwordx4 v[{E3+4*q}:{E3+4*q+3}], v6, s[28:31], s11 offen offset:{q*1024}", "e3")
    a(f"s_add_u32 s11, s10, {TT2}")
    for q in range(4):
        a.vmem(f"buffer_load_dwordx4 v[{T2+4*q}:{T2+4*q+3}], v6, s[28:31], s11 offen offset:{q*1024}", "t2")
    a(f"s_mov_b32 s11, {TE4}")
    for q in range(4):
        a.vmem(f"buffer_load_dwordx4 v[{E4+4*q}:{E4+4*q+3}], v6, s[28:31], s11 offen offset:{q*1024}", "e4")
    a(f"""
    s_movk_i32 s12, 144
    v_mul_lo_u32 v1, v3, s12
    v_lshl_add_u32 v5, v4, 3, v1
    s_lshl_b32 s12, s3, 5
    v_add_u32 v5, s12, v5
    v_lshl_add_u32 v6, v4, 4, v1
    s_mov_b32 s14, 0x80008000
    """)
    UB, XB, MB = 0, 9216, 18432
    PL = 4608
    def cmul_tw(tw):
        for e in range(8):
            r = D + e; im = D + 8 + e; tr = tw + 2*e; ti = tw + 2*e + 1
            a(f"""
            v_mul_f32 v{TMP}, v{im}, v{ti}
            v_mul_f32 v{TMP+1}, v{r}, v{ti}
            v_fma_f32 v{r}, v{r}, v{tr}, -v{TMP}
            v_fma_f32 v{im}, v{im}, v{tr}, v{TMP+1}
            """)
    def pack(cvt, dst):
        for e in range(8):
            a(f"{cvt} v{dst+e}, v{D+2*e}, v{D+2*e+1}")
    def lds_write(base, src):
        for pl in range(2):
            for t in range(2):
                a(f"ds_write_b64 v5, v[{src+pl*4+t*2}:{src+pl*4+t*2+1}] offset:{base + pl*PL + t*16*144}")
    def lds_read(base):
        for pl in range(2):
            for t in range(2):
                for st in range(2):
                    fr = F + ((pl*2+t)*2+st)*4
                    a(f"ds_read_b128 v[{fr}:{fr+3}], v6 offset:{base + pl*PL + t*16*144 + st*64}")
    a.wait_vm("e1")
    for r in range(4):
        a(f"v_xor_b32 v{N+r}, s14, v{YI+r}")
    a("s_nop 1")
    for t in range(2):
        er = E1 + 4*t; ei = E1 + 8 + 4*t
        a(f"v_mfma_f32_16x16x32_f16 v[{D+4*t}:{D+4*t+3}], v[{YR}:{YR+3}], v[{er}:{er+3}], 0")
        a(f"v_mfma_f32_16x16x32_f16 v[{D+8+4*t}:{D+8+4*t+3}], v[{YR}:{YR+3}], v[{ei}:{ei+3}], 0")
    for t in range(2):
        er = E1 + 4*t; ei = E1 + 8 + 4*t
        a(f"v_mfma_f32_16x16x32_f16 v[{D+4*t}:{D+4*t+3}], v[{N}:{N+3}], v[{ei}:{ei+3}], v[{D+4*t}:{D+4*t+3}]")
        a(f"v_mfma_f32_16x16x32_f16 v[{D+8+4*t}:{D+8+4*t+3}], v[{YI}:{YI+3}], v[{er}:{er+3}], v[{D+8+4*t}:{D+8+4*t+3}]")
    a.wait_vm("t1")
    a("s_nop 7")
    cmul_tw(T1)
    pack("v_cvt_pk_f16_f32", TMP + 8)
    lds_write(UB, TMP + 8)
    a("s_waitcnt lgkmcnt(0)")
    a("s_barrier")
    lds_read(UB)
    a.wait_vm("e2")
    for r in range(8):
        a(f"v_xor_b32 v{N+r}, s14, v{E2+8+r}")
    a("s_waitcnt lgkmcnt(0)")
    def fr(pl, t, st): return F + ((pl*2+t)*2+st)*4
    def R(x): return f"v[{x}:{x+3}]"
    for st in range(2):
        for t in range(2):
            cr = "0" if st == 0 else R(D+4*t); ci = "0" if st == 0 else R(D+8+4*t)
            a(f"v_mfma_f32_16x16x32_f16 {R(D+4*t)}, {R(E2+4*st)}, {R(fr(0,t,st))}, {cr}")
            a(f"v_mfma_f32_16x16x32_f16 {R(D+8+4*t)}, {R(E2+8+4*st)}, {R(fr(0,t,st))}, {ci}")
        for t in range(2):
            a(f"v_mfma_f32_16x16x32_f16 {R(D+4*t)}, {R(N+4*st)}, {R(fr(1,t,st))}, {R(D+4*t)}")
            a(f"v_mfma_f32_16x16x32_f16 {R(D+8+4*t)}, {R(E2+4*st)}, {R(fr(1,t,st))}, {R(D+8+4*t)}")
    a.wait_vm("w")
    a("""
    s_nop 7
    s_mov_b32 s15, 0xffff0000
    s_cmp_eq_u32 s2, 0
    s_cbranch_scc1 k2_special
    """)
    for e in range(8):
        r = D + e; im = D + 8 + e
        a(f"""
        v_lshlrev_b32 v{TMP+2}, 16, v{WW+e}
        v_and_b32 v{TMP+3}, s15, v{WW+e}
        v_mul_f32 v{TMP}, v{im}, v{TMP+3}
        v_mul_f32 v{TMP+1}, v{r}, v{TMP+3}
        v_fma_f32 v{r}, v{r}, v{TMP+2}, -v{TMP}
        v_fma_f32 v{im}, v{im}, v{TMP+2}, v{TMP+1}
        """)
    a("s_branch k2_join")
    a.raw("k2_special:")
    a(f"""
    s_lshl_b32 s12, s3, 9
    v_lshlrev_b32 v1, 7, v4
    v_add3_u32 v1, v1, v3, s12
    """)
    for e in range(8):
        t, i = e // 4, e % 4
        a(f"""
        v_mov_b32 v{TMP}, v{D+e}
        v_mov_b32 v{TMP+1}, v{D+8+e}
        v_mov_b32 v{TMP+2}, v{WW+e}
        v_mov_b32 v{TMP+3}, v{WW+8+e}
        v_add_u32 v{TMP+4}, {32*i+16*t}, v1
        v_lshlrev_b32 v{TMP+4}, 4, v{TMP+4}
        ds_write_b128 v{TMP+4}, v[{TMP}:{TMP+3}] offset:{MB}
        s_nop 1
        """)
    a("s_waitcnt lgkmcnt(0)")
    a("s_barrier")
    for e in range(8):
        t, i = e // 4, e % 4
        a(f"""
        v_add_u32 v{TMP+4}, {32*i+16*t}, v1
        v_sub_u32 v{TMP+4}, 2048, v{TMP+4}
        v_and_b32 v{TMP+4}, 2047, v{TMP+4}
        v_lshlrev_b32 v{TMP+4}, 4, v{TMP+4}
        ds_read_b128 v[{F+4*e}:{F+4*e+3}], v{TMP+4} offset:{MB}
        """)
    a("s_waitcnt lgkmcnt(0)")
    for e in range(8):
        r = D + e; im = D + 8 + e
        xr, xi, w0m, w2m = F+4*e, F+4*e+1, F+4*e+2, F+4*e+3
        t = TMP
        a(f"""
        v_lshlrev_b32 v{t}, 16, v{WW+e}
        v_and_b32 v{t+1}, s15, v{WW+e}
        v_lshlrev_b32 v{t+2}, 16, v{w0m}
        v_and_b32 v{t+3}, s15, v{w0m}
        v_add_f32 v{t}, v{t}, v{t+2}
        v_sub_f32 v{t+1}, v{t+1}, v{t+3}
        v_lshlrev_b32 v{t+2}, 16, v{WW+8+e}
        v_and_b32 v{t+3}, s15, v{WW+8+e}
        v_lshlrev_b32 v{t+4}, 16, v{w2m}
        v_and_b32 v{t+5}, s15, v{w2m}
        v_add_f32 v{t+2}, v{t+2}, v{t+4}
        v_sub_f32 v{t+3}, v{t+3}, v{t+5}
        v_add_f32 v{t+4}, v{t}, v{t+2}
        v_add_f32 v{t+5}, v{t+1}, v{t+3}
        v_sub_f32 v{t+6}, v{t}, v{t+2}
        v_sub_f32 v{t+7}, v{t+1}, v{t+3}
        v_mul_f32 v{t+4}, 0x3e800000, v{t+4}
        v_mul_f32 v{t+5}, 0x3e800000, v{t+5}
        v_mul_f32 v{t+6}, 0x3e800000, v{t+6}
        v_mul_f32 v{t+7}, 0x3e800000, v{t+7}
        v_mul_f32 v{t}, v{r}, v{t+4}
        v_fma_f32 v{t}, -v{im}, v{t+5}, v{t}
        v_mul_f32 v{t+1}, v{r}, v{t+5}
        v_fma_f32 v{t+1}, v{im}, v{t+4}, v{t+1}
        v_fma_f32 v{t}, v{xr}, v{t+6}, v{t}
        v_fma_f32 v{r}, v{xi}, v{t+7}, v{t}
        v_fma_f32 v{t+1}, v{xr}, v{t+7}, v{t+1}
        v_fma_f32 v{im}, -v{xi}, v{t+6}, v{t+1}
        """)
    a.raw("k2_join:")
    pack("v_cvt_pk_bf16_f32", TMP + 8)
    lds_write(XB, TMP + 8)
    a("s_waitcnt lgkmcnt(0)")
    a("s_barrier")
    lds_read(XB)
    a.wait_vm("e3")
    for r in range(8):
        a(f"v_xor_b32 v{N+r}, s14, v{E3+8+r}")
    a("s_waitcnt lgkmcnt(0)")
    for st in range(2):
        for t in range(2):
            cr = "0" if st == 0 else R(D+4*t); ci = "0" if st == 0 else R(D+8+4*t)
            a(f"v_mfma_f32_16x16x32_bf16 {R(D+4*t)}, {R(fr(0,t,st))}, {R(E3+4*st)}, {cr}")
            a(f"v_mfma_f32_16x16x32_bf16 {R(D+8+4*t)}, {R(fr(0,t,st))}, {R(E3+8+4*st)}, {ci}")
        for t in range(2):
            a(f"v_mfma_f32_16x16x32_bf16 {R(D+4*t)}, {R(fr(1,t,st))}, {R(N+4*st)}, {R(D+4*t)}")
            a(f"v_mfma_f32_16x16x32_bf16 {R(D+8+4*t)}, {R(fr(1,t,st))}, {R(E3+4*st)}, {R(D+8+4*t)}")
    a.wait_vm("t2")
    a("s_nop 7")
    cmul_tw(T2)
    pack("v_cvt_pk_bf16_f32", TMP + 8)
    VR, VI = TMP + 8, TMP + 12
    for r in range(4):
        a(f"v_xor_b32 v{N+r}, s14, v{VI+r}")
    a.wait_vm("e4")
    a("s_nop 1")
    for tp in range(2):
        a(f"v_mfma_f32_16x16x32_bf16 {R(D+4*tp)}, {R(E4+4*tp)}, {R(VR)}, 0")
        a(f"v_mfma_f32_16x16x32_bf16 {R(D+8+4*tp)}, {R(E4+8+4*tp)}, {R(VR)}, 0")
    for tp in range(2):
        a(f"v_mfma_f32_16x16x32_bf16 {R(D+4*tp)}, {R(E4+8+4*tp)}, {R(N)}, {R(D+4*tp)}")
        a(f"v_mfma_f32_16x16x32_bf16 {R(D+8+4*tp)}, {R(E4+4*tp)}, {R(VI)}, {R(D+8+4*tp)}")
    a(f"""
    v_lshlrev_b32 v5, 6, v3
    v_lshl_add_u32 v5, v4, 3, v5
    s_add_u32 s8, s8, {WS_Z - WS_Y}
    s_add_u32 s9, s9, {WS_Z - WS_Y}
    s_nop 7
    """)
    pack("v_cvt_pk_bf16_f32", TMP + 8)
    for pl in range(2):
        for tp in range(2):
            s = 8 + pl
            a(f"buffer_store_dwordx2 v[{TMP+8+pl*4+tp*2}:{TMP+8+pl*4+tp*2+1}], v5, s[40:43], s{s} offen offset:{tp*32}")
    a.raw("k2_end:")
    a("s_endpgm")
    return a.text()

K3_NS = 4
def gen_k3():
    a = Asm()
    a.raw(".p2align 8\nk3_kernel:")
    a("""
    s_cmp_ge_u32 s2, 256
    s_cbranch_scc1 k3_end
    s_load_dwordx2 s[4:5], s[0:1], 0
    s_load_dwordx4 s[8:11], s[0:1], 48
    s_load_dwordx2 s[6:7], s[0:1], 72
    v_lshrrev_b32 v1, 6, v0
    v_and_b32 v2, 63, v0
    s_nop 0
    v_readfirstlane_b32 s3, v1
    """)
    a("""
    s_and_b32 s16, s2, 7
    s_lshr_b32 s17, s2, 3
    s_lshr_b32 s18, s16, 1
    s_lshl_b32 s18, s18, 3
    s_and_b32 s19, s17, 7
    s_add_u32 s18, s18, s19
    s_and_b32 s19, s16, 1
    s_lshl_b32 s19, s19, 2
    s_lshr_b32 s20, s17, 3
    s_add_u32 s19, s19, s20
    s_and_b32 s20, s3, 1
    s_lshr_b32 s21, s3, 1
    """)
    getpc_tab(a, 24, "tab_G")
    a("s_waitcnt lgkmcnt(0)")
    srd(a, 28, "s4", "s5", 2048*1024)
    srd(a, 32, "s8", "s9", 1792*1024)
    srd(a, 36, "s10", "s11", 2048*1024)
    srd(a, 40, "s6", "s7", WS_SIZE)
    srd(a, 44, "s24", "s25", 524288)
    XR = 8
    a("""
    v_and_b32 v3, 31, v2
    v_lshlrev_b32 v3, 16, v3
    v_lshrrev_b32 v4, 5, v2
    v_lshl_add_u32 v3, v4, 3, v3
    s_lshl_b32 s22, s18, 1
    s_add_u32 s22, s22, s21
    s_lshl_b32 s23, s22, 10
    s_lshl_b32 s26, s19, 7
    s_add_u32 s23, s23, s26
    s_lshl_b32 s26, s20, 6
    s_add_u32 s23, s23, s26
    v_add_u32 v3, s23, v3
    """)
    for q in range(4):
        a.vmem(f"buffer_load_dwordx2 v[{XR+2*q}:{XR+2*q+1}], v3, s[28:31], 0 offen offset:{16*q}", "x")
    a(f"""
    v_lshlrev_b32 v5, 4, v2
    v_lshrrev_b32 v6, 3, v2
    v_and_b32 v7, 7, v2
    v_lshrrev_b32 v7, 1, v7
    v_and_b32 v1, 2, v6
    v_xor_b32 v7, v7, v1
    v_lshlrev_b32 v7, 5, v7
    v_and_b32 v1, 1, v2
    v_lshl_add_u32 v7, v1, 4, v7
    v_lshl_add_u32 v16, v6, 10, v7
    v_lshl_add_u32 v17, v6, 12, v7
    s_lshl_b32 s26, s19, 7
    v_add_u32 v16, s26, v16
    s_lshl_b32 s26, s18, 7
    s_add_u32 s26, s26, {WS_Z}
    v_add_u32 v17, s26, v17
    s_mul_i32 s50, s22, 112
    s_lshl_b32 s26, s20, 2
    s_add_u32 s50, s50, s26
    s_lshl_b32 s50, s50, 10
    s_add_u32 s50, s50, {WS_H}
    s_lshl_b32 s51, s19, 1
    s_add_u32 s51, s51, s21
    s_lshl_b32 s51, s51, 5
    s_add_u32 s51, s51, s26
    s_lshl_b32 s51, s51, 10
    s_lshl_b32 s52, s3, 12
    s_lshl_b32 s53, s3, 12
    s_add_u32 s53, s53, 16384
    s_lshl_b32 s54, s3, 15
    s_lshl_b32 s55, s3, 17
    """)
    def dma_chunk(c):
        st = c % K3_NS
        a(f"s_add_u32 m0, s52, {st*32768}")
        if c < 14:
            a(f"s_add_u32 s56, s50, {c*8192}")
            for u in range(4):
                a.vmem(f"buffer_load_dwordx4 v5, s[40:43], s56 offen offset:{u*1024} lds", f"c{c}")
        else:
            a(f"s_add_u32 s56, s51, {(c-14)*8192}")
            for u in range(4):
                a.vmem(f"buffer_load_dwordx4 v5, s[44:47], s56 offen offset:{u*1024} lds", f"c{c}")
        for u in range(4):
            a(f"s_add_u32 m0, s53, {st*32768 + u*1024}")
            if c < 14:
                a(f"s_add_u32 s56, s54, {(c*128 + 8*u)*1024}")
                a.vmem("buffer_load_dwordx4 v16, s[32:35], s56 offen lds", f"c{c}")
            else:
                a(f"s_add_u32 s56, s55, {((c-14)*128 + 8*u)*4096}")
                a.vmem("buffer_load_dwordx4 v17, s[40:43], s56 offen lds", f"c{c}")
    for c in range(K3_NS):
        dma_chunk(c)
    a("""
    v_lshrrev_b32 v6, 4, v2
    v_and_b32 v7, 15, v2
    v_lshrrev_b32 v1, 2, v7
    v_and_b32 v7, 3, v7
    v_lshrrev_b32 v18, 1, v6
    v_lshl_add_u32 v18, v18, 2, v1
    v_lshlrev_b32 v18, 7, v18
    v_lshl_add_u32 v18, v7, 3, v18
    v_add_u32 v18, 16384, v18
    v_and_b32 v6, 1, v6
    v_and_b32 v1, 2, v1
    s_lshl_b32 s26, s20, 1
    v_add_u32 v7, s26, v6
    v_xor_b32 v7, v7, v1
    v_lshl_add_u32 v20, v7, 5, v18
    s_lshl_b32 s26, s21, 1
    v_add_u32 v7, s26, v6
    v_xor_b32 v7, v7, v1
    v_lshl_add_u32 v21, v7, 5, v18
    s_lshl_b32 s26, s21, 13
    v_add_u32 v22, s26, v5
    s_lshl_b32 s26, s20, 13
    v_add_u32 v23, s26, v5
    v_add_u32 v24, 0x10000, v20
    v_add_u32 v25, 0x10000, v21
    v_add_u32 v26, 0x10000, v22
    v_add_u32 v27, 0x10000, v23
    """)
    ACG, ACS = 32, 48
    FB = 64
    DEPTH = 4
    steps = [(c, s) for c in range(18) for s in range(8)]
    def reads(i):
        c, s = steps[i]
        st = c % K3_NS
        base = (st & 1) * 32768
        hi = 4 if st >= 2 else 0
        dn = c < 14
        fb = FB + (i % DEPTH) * 8
        a(f"ds_read_b128 v[{fb}:{fb+3}], v{(22 if dn else 23)+hi} offset:{base + s*1024}")
        for t in range(2):
            a(f"ds_read_b64_tr_b16 v[{fb+4+2*t}:{fb+5+2*t}], v{(20 if dn else 21)+hi} offset:{base + (16*s + 8*t)*128}")
    def mfma(i):
        c, s = steps[i]
        fb = FB + (i % DEPTH) * 8
        if c < 14:
            cin = "0" if i == 0 else f"v[{ACG}:{ACG+15}]"
            a(f"v_mfma_f32_32x32x16_bf16 v[{ACG}:{ACG+15}], v[{fb+4}:{fb+7}], v[{fb}:{fb+3}], {cin}")
        else:
            cin = "0" if (c == 14 and s == 0) else f"v[{ACS}:{ACS+15}]"
            a(f"v_mfma_f32_32x32x16_bf16 v[{ACS}:{ACS+15}], v[{fb}:{fb+3}], v[{fb+4}:{fb+7}], {cin}")
    for c in range(18):
        a.wait_vm(f"c{c}")
        a("s_barrier")
        if c >= 1 and c - 1 + K3_NS < 18:
            dma_chunk(c - 1 + K3_NS)
        i0 = c * 8
        for k in range(DEPTH - 1):
            reads(i0 + k)
        for s in range(8):
            if s + DEPTH - 1 < 8:
                reads(i0 + s + DEPTH - 1)
                a(f"s_waitcnt lgkmcnt({3*(DEPTH-1)})")
            else:
                a(f"s_waitcnt lgkmcnt({3*(7-s)})")
            mfma(i0 + s)
    a("s_nop 15")
    a.wait_vm_all()
    O = 96
    a("s_mov_b32 s52, 0xffff0000")
    for p in range(8):
        g = ACG + 2*p; s = ACS + 2*p; x = XR + p
        a(f"""
        v_cvt_pk_bf16_f32 v4, v{g}, v{g+1}
        v_cvt_pk_bf16_f32 v5, v{s}, v{s+1}
        v_lshlrev_b32 v{g}, 16, v4
        v_and_b32 v{g+1}, s52, v4
        v_lshlrev_b32 v{s}, 16, v5
        v_and_b32 v{s+1}, s52, v5
        v_mul_f32 v4, 0xbfb8aa3b, v{g}
        v_mul_f32 v5, 0xbfb8aa3b, v{g+1}
        v_exp_f32 v4, v4
        v_exp_f32 v5, v5
        s_nop 0
        v_add_f32 v4, 1.0, v4
        v_add_f32 v5, 1.0, v5
        v_rcp_f32 v4, v4
        v_rcp_f32 v5, v5
        s_nop 0
        v_mul_f32 v{g}, v{g}, v4
        v_mul_f32 v{g+1}, v{g+1}, v5
        v_cvt_pk_bf16_f32 v4, v{g}, v{g+1}
        v_lshlrev_b32 v{g}, 16, v4
        v_and_b32 v{g+1}, s52, v4
        v_mul_f32 v{g}, v{g}, v{s}
        v_mul_f32 v{g+1}, v{g+1}, v{s+1}
        v_cvt_pk_bf16_f32 v4, v{g}, v{g+1}
        v_lshlrev_b32 v{g}, 16, v4
        v_and_b32 v{g+1}, s52, v4
        v_lshlrev_b32 v{s}, 16, v{x}
        v_and_b32 v{s+1}, s52, v{x}
        v_add_f32 v{g}, v{g}, v{s}
        v_add_f32 v{g+1}, v{g+1}, v{s+1}
        v_cvt_pk_bf16_f32 v{O+p}, v{g}, v{g+1}
        """)
    a("s_nop 1")
    for q in (0, 2):
        a(f"v_permlane32_swap_b32 v{O+2*q}, v{O+2*q+2}")
        a(f"v_permlane32_swap_b32 v{O+2*q+1}, v{O+2*q+3}")
    a("""
    v_lshrrev_b32 v4, 5, v2
    v_lshl_add_u32 v3, v4, 3, v3
    """)
    a(f"buffer_store_dwordx4 v[{O}:{O+3}], v3, s[36:39], 0 offen")
    a(f"buffer_store_dwordx4 v[{O+4}:{O+7}], v3, s[36:39], 0 offen offset:32")
    a.raw("k3_end:")
    a("s_endpgm")
    return a.text()

def tables_asm():
    o = []
    j = np.arange(512)
    c1 = bf16(np.cos(2*np.pi*j/512) / 16); c2 = bf16(np.cos(2*np.pi*j/512) / 8)
    c1[np.abs(np.cos(2*np.pi*j/512)) < 1e-9] = 0; c2[np.abs(np.cos(2*np.pi*j/512)) < 1e-9] = 0
    for i in range(512):
        o.append(f".set CA{i}, 0x{c1[i]:04x}")
        o.append(f".set CB{i}, 0x{c2[i]:04x}")
    o.append(".altmacro")
    o.append(""".macro f8 a,b,c,d,e,f,g,h
.short CA\\a, CA\\b, CA\\c, CA\\d, CA\\e, CA\\f, CA\\g, CA\\h
.endm
.macro g8 a,b,c,d,e,f,g,h
.short CB\\a, CB\\b, CB\\c, CB\\d, CB\\e, CB\\f, CB\\g, CB\\h
.endm
.macro g8s a,b,c,d,e,f,g,h
.short CA\\a, CA\\b, CB\\c, CB\\d, CB\\e, CB\\f, CB\\g, CB\\h
.endm
.macro frow d
f8 0, %((\\d*256)&511), %((\\d*1)&511), %((\\d+128)&511), %((\\d*2)&511), %((\\d*2+128)&511), %((\\d*3)&511), %((\\d*3+128)&511)
.set kk, 4
.rept 63
f8 %((\\d*kk)&511), %((\\d*kk+128)&511), %((\\d*(kk+1))&511), %((\\d*(kk+1)+128)&511), %((\\d*(kk+2))&511), %((\\d*(kk+2)+128)&511), %((\\d*(kk+3))&511), %((\\d*(kk+3)+128)&511)
.set kk, kk+4
.endr
.endm
.section .rodata,"a"
.p2align 8
tab_F:
.set dd, 0
.rept 512
frow %dd
.set dd, dd+1
.endr
""")
    o.append(""".macro glane d, k
g8 %((\\d*\\k)&511), %((\\d*\\k+128)&511), %((\\d*(\\k+1))&511), %((\\d*(\\k+1)+128)&511), %((\\d*(\\k+4))&511), %((\\d*(\\k+4)+128)&511), %((\\d*(\\k+5))&511), %((\\d*(\\k+5)+128)&511)
.endm
.macro glane0 d
g8s 0, %((\\d*256)&511), %((\\d*1)&511), %((\\d+128)&511), %((\\d*4)&511), %((\\d*4+128)&511), %((\\d*5)&511), %((\\d*5+128)&511)
.endm
.macro ghalf d0, k
.set ll, 0
.rept 32
glane %(\\d0+ll), \\k
.set ll, ll+1
.endr
.endm
.macro ghalf0 d0
.set ll, 0
.rept 32
glane0 %(\\d0+ll)
.set ll, ll+1
.endr
.endm
.macro gtile d0
ghalf0 \\d0
ghalf \\d0, 2
.set gg, 1
.rept 31
ghalf \\d0, %(8*gg)
ghalf \\d0, %(8*gg+2)
.set gg, gg+1
.endr
.endm
.p2align 8
tab_G:
.set tt, 0
.rept 16
gtile %(32*tt)
.set tt, tt+1
.endr
.noaltmacro
.p2align 8
tab_S:
""")
    st = small_tables().view(np.uint64)
    for i in range(0, len(st), 8):
        o.append(".quad " + ",".join(f"0x{v:x}" for v in st[i:i+8]))
    return "\n".join(o) + "\n"

hdr = """; fused LN + GFNet spectral filter + ReGLU, 3 launches
; @launch kernel=k1_kernel grid=(256,1,1) block=(512,1,1) lds=131072
; @launch kernel=k2_kernel grid=(256,1,1) block=(256,1,1) lds=51200
; @launch kernel=k3_kernel grid=(256,1,1) block=(256,1,1) lds=131072
.amdgcn_target "amdgcn-amd-amdhsa--gfx950"
.text
.globl k1_kernel
.type k1_kernel,@function
.globl k2_kernel
.type k2_kernel,@function
.globl k3_kernel
.type k3_kernel,@function
"""
src = hdr + gen_k1() + gen_k2() + gen_k3() + tables_asm()
src += '.section .rodata,"a"\n.p2align 6\n' + kd("k1_kernel", 256) + ".p2align 6\n" + kd("k2_kernel", 208) + ".p2align 6\n" + kd("k3_kernel", 128)
open(OUT, "w").write(src)
print("wrote", OUT, len(src))
```

```python
import numpy as np, sys, math

OUT = sys.argv[1] if len(sys.argv) > 1 else "recurrent_scan__spectral_gfnet__glu_gated_reglu__prompt.s"

WS_H = 0
WS_Y = 8 << 20
WS_Z = 10 << 20
WS_W = 12 << 20
WS_SIZE = 268435456
WS_FL = 15 << 20

def bf16(x):
    u = np.asarray(x, np.float32).view(np.uint32).astype(np.uint64)
    r = ((u + 0x7fff + ((u >> 16) & 1)) >> 16).astype(np.uint16)
    return r
def f16(x):
    return np.asarray(x, np.float64).astype(np.float16).view(np.uint16)

import os
STAMP = os.environ.get("STAMP", "0") == "1"
WS_ST = 16 << 20
class Asm:
    def __init__(self):
        self.lines = []
        self.vm = []
        self.nst = 0
        self.issued = set()
        self.lq = []
    def stamp(self):
        if not STAMP: return
        self(f"s_memtime s[{64+2*self.nst}:{65+2*self.nst}]")
        self("s_waitcnt lgkmcnt(0)")
        self.lq = []
        self.nst += 1
    def stamp_store(self, kidx, wavereg="s3"):
        if not STAMP: return
        self("s_waitcnt lgkmcnt(0)")
        self(f"s_lshl_b32 s62, s2, 4")
        self(f"s_add_u32 s62, s62, {wavereg}")
        self(f"s_lshl_b32 s62, s62, 7")
        self(f"s_add_u32 s62, s62, {WS_ST + kidx*(1<<20)}")
        self("v_mov_b32 v0, 0")
        for i in range(self.nst):
            self(f"v_mov_b32 v1, s{64+2*i}")
            self(f"buffer_store_dword v1, v0, s[40:43], s62 offen offset:{4*i}")
    def __call__(self, s):
        for ln in s.strip("\n").split("\n"):
            self.lines.append("  " + ln.strip() if not ln.strip().endswith(":") else ln.strip())
    def raw(self, s):
        self.lines.append(s)
    def vmem(self, s, tag):
        self(s); self.vm.append(tag); self.issued.add(tag)
        assert len(self.vm) <= 63, "vmcnt overflow"
    def wait_vm(self, tag):
        assert tag in self.issued, tag
        if tag not in self.vm: return
        idx = max(i for i, t in enumerate(self.vm) if t == tag)
        n = len(self.vm) - 1 - idx
        self(f"s_waitcnt vmcnt({n})")
        self.vm = self.vm[idx + 1:]
    def lds(self, s, tag):
        self(s); self.lq.append(tag)
    def wait_lds(self, tag):
        if tag not in self.lq: return
        idx = max(i for i, t in enumerate(self.lq) if t == tag)
        n = min(len(self.lq) - 1 - idx, 15)
        self(f"s_waitcnt lgkmcnt({n})")
        self.lq = self.lq[len(self.lq) - n:] if n else []
    def wait_lds_all(self):
        self("s_waitcnt lgkmcnt(0)"); self.lq = []
    def wait_vm_all(self):
        self("s_waitcnt vmcnt(0)"); self.vm = []
    def text(self):
        return "\n".join(self.lines) + "\n"

def srd(a, s, lo, hi, nbytes):
    a(f"s_mov_b32 s{s}, {lo}")
    a(f"s_mov_b32 s{s+1}, {hi}")
    a(f"s_mov_b32 s{s+2}, {nbytes}")
    a(f"s_mov_b32 s{s+3}, 0x20000")

def getpc_tab(a, s, sym):
    a(f"s_getpc_b64 s[{s}:{s+1}]")
    a(f"s_add_u32 s{s}, s{s}, {sym}@rel32@lo+4")
    a(f"s_addc_u32 s{s+1}, s{s+1}, {sym}@rel32@hi+12")

def kd(name, vgpr, sgpr=102):
    acc = min((vgpr + 3) // 4 * 4, 256)
    return f""".amdhsa_kernel {name}
  .amdhsa_next_free_vgpr {vgpr}
  .amdhsa_next_free_sgpr {sgpr}
  .amdhsa_accum_offset {acc}
  .amdhsa_group_segment_fixed_size 0
  .amdhsa_kernarg_size 80
  .amdhsa_user_sgpr_count 2
  .amdhsa_user_sgpr_kernarg_segment_ptr 1
  .amdhsa_system_sgpr_workgroup_id_x 1
.end_amdhsa_kernel
"""

K1_NS = 5
PREF = os.environ.get('PREF','1') == '1'
def gen_k1():
    a = Asm()
    A0 = 128
    ACC = 64
    BF = 32
    a.raw(".p2align 8\nk1_kernel:")
    a("""
    s_cmp_ge_u32 s2, 256
    s_cbranch_scc1 k1_end
    s_load_dwordx2 s[4:5], s[0:1], 0
    s_load_dwordx4 s[8:11], s[0:1], 8
    s_load_dwordx4 s[12:15], s[0:1], 32
    s_load_dwordx2 s[6:7], s[0:1], 72
    s_load_dwordx2 s[60:61], s[0:1], 48
    v_lshrrev_b32 v1, 6, v0
    v_and_b32 v2, 63, v0
    s_nop 0
    v_readfirstlane_b32 s3, v1
    """)
    XM = int(os.environ.get("K1_XM", "8"))
    lg = {8: 3, 4: 2, 2: 1}[XM]
    nxm = 16 // XM
    lgx = {2: 1, 4: 2, 8: 3}[nxm]
    a(f"""
    s_and_b32 s16, s2, 7
    s_lshr_b32 s17, s2, 3
    s_and_b32 s18, s16, {nxm-1}
    s_lshl_b32 s18, s18, {lg}
    s_and_b32 s58, s17, {XM-1}
    s_add_u32 s18, s18, s58
    s_lshr_b32 s19, s16, {lgx}
    s_lshl_b32 s19, s19, {5-lg}
    s_lshr_b32 s20, s17, {lg}
    s_add_u32 s19, s19, s20
    s_and_b32 s58, s18, 7
    s_and_b32 s20, s3, 3
    s_lshr_b32 s21, s3, 2
    s_lshl_b32 s22, s18, 2
    s_add_u32 s22, s22, s20
    """)
    getpc_tab(a, 24, "tab_F")
    a("""
    s_lshl_b32 s50, s21, 4
    s_lshl_b32 s51, s50, 6
    s_add_u32 s51, s51, s22
    s_lshl_b32 s51, s51, 10
    s_lshl_b32 s52, s20, 5
    s_add_u32 s52, s52, s50
    s_lshl_b32 s52, s52, 10
    s_lshl_b32 s53, s58, 3
    v_xor_b32 v3, s53, v2
    s_waitcnt lgkmcnt(0)
    """)
    a.stamp()
    srd(a, 28, "s4", "s5", 2048*1024)
    for u in range(16):
        a(f"""
        v_xor_b32 v4, {u}, v3
        v_lshlrev_b32 v4, 4, v4
        s_add_u32 m0, s52, {u*1024}
        s_add_u32 s53, s51, {u*65536}
        """)
        a.vmem("buffer_load_dwordx4 v4, s[28:31], s53 offen lds", "x")
    srd(a, 32, "s8", "s9", 2048*514)
    srd(a, 36, "s10", "s11", 2048*514)
    srd(a, 40, "s6", "s7", WS_SIZE)
    a("""
    s_and_b32 s23, s3, 1
    s_cmp_eq_u32 s23, 0
    s_cselect_b32 s44, s12, s14
    s_cselect_b32 s45, s13, s15
    s_mov_b32 s46, 1835008
    s_mov_b32 s47, 0x20000
    s_movk_i32 s48, 3584
    s_lshl_b32 s49, s19, 8
    s_cmp_lt_u32 s19, 14
    s_cbranch_scc1 k1_isglu
    s_mov_b32 s44, s24
    s_mov_b32 s45, s25
    s_mov_b32 s46, 524288
    s_movk_i32 s48, 1024
    s_sub_u32 s49, s19, 14
    s_lshl_b32 s49, s49, 9
    s_lshl_b32 s50, s23, 8
    s_add_u32 s49, s49, s50
    k1_isglu:
    """)
    a("""
    v_lshrrev_b32 v8, 4, v2
    v_and_b32 v9, 15, v2
    v_lshrrev_b32 v9, 1, v9
    v_lshlrev_b32 v10, 1, v8
    v_xor_b32 v9, v9, v10
    v_lshlrev_b32 v9, 5, v9
    v_and_b32 v10, 1, v2
    v_lshlrev_b32 v10, 4, v10
    v_add_u32 v9, v9, v10
    v_mul_lo_u32 v8, v8, s48
    v_add_u32 v9, v9, v8
    v_add_u32 v9, s49, v9
    s_lshr_b32 s50, s3, 1
    s_lshl_b32 s50, s50, 4
    s_mul_i32 s52, s50, s48
    s_lshl_b32 s53, s50, 8
    s_lshl_b32 s54, s23, 14
    s_add_u32 s53, s53, s54
    s_lshl_b32 s54, s48, 2
    s_lshl_b32 s55, s48, 6
    """)
    def slot(c): return (c + 4) % K1_NS
    def dma_one(c, u):
        if u == 0:
            a(f"s_xor_b32 s56, s58, {c}")
            a("s_mul_i32 s56, s56, s55")
            a("s_add_u32 s56, s56, s52")
        else:
            a("s_add_u32 s56, s56, s54")
        a(f"s_add_u32 m0, s53, {slot(c)*32768 + u*1024}")
        a("s_nop 0")
        a.vmem("buffer_load_dwordx4 v9, s[44:47], s56 offen lds", f"c{c}")
    for u in range(4):
        dma_one(0, u)
    a("""
    v_lshrrev_b32 v10, 4, v2
    v_and_b32 v11, 15, v2
    v_lshrrev_b32 v12, 2, v11
    v_and_b32 v11, 3, v11
    v_lshrrev_b32 v13, 1, v10
    v_lshlrev_b32 v13, 3, v13
    v_add_u32 v13, v13, v12
    v_lshlrev_b32 v13, 8, v13
    v_lshlrev_b32 v11, 3, v11
    v_add_u32 v13, v13, v11
    v_and_b32 v10, 1, v10
    v_lshlrev_b32 v10, 5, v10
    v_add_u32 v13, v13, v10
    s_lshl_b32 s57, s21, 1
    v_xor_b32 v10, s57, v12
    v_lshlrev_b32 v10, 6, v10
    v_add_u32 v16, v13, v10
    s_add_u32 s57, s57, 1
    v_xor_b32 v10, s57, v12
    v_lshlrev_b32 v10, 6, v10
    v_add_u32 v17, v13, v10
    v_add_u32 v18, 0x10000, v16
    v_add_u32 v19, 0x10000, v17
    v_add_u32 v6, 0x20000, v16
    v_add_u32 v7, 0x20000, v17
    """)
    TRA = {0: (16, 17), 1: (16, 17), 2: (18, 19), 3: (18, 19), 4: (6, 7)}
    a("""
    v_and_b32 v10, 31, v2
    v_lshrrev_b32 v11, 5, v2
    v_and_b32 v12, 15, v2
    v_xor_b32 v11, v11, v12
    s_lshl_b32 s57, s20, 15
    v_lshlrev_b32 v10, 10, v10
    v_add_u32 v10, s57, v10
    """)
    for tt in range(8):
        a(f"v_xor_b32 v12, {2*tt}, v11")
        a(f"v_lshl_add_u32 v{ACC+tt}, v12, 4, v10")
    a("""
    v_mov_b32 v20, 0x3f803f80
    v_mov_b32 v21, 0x00003f80
    v_mov_b32 v22, 0x3f800000
    v_mov_b32 v24, 0
    v_mov_b32 v25, 0
    v_mov_b32 v26, 0
    v_mov_b32 v27, 0
    """)
    a.stamp()
    a.wait_vm("x")
    a("s_barrier")
    a.stamp()
    for t in range(32):
        a(f"ds_read_b128 v[{A0+4*t}:{A0+4*t+3}], v{ACC + t%8} offset:{(t//8)*256}")
    def pass1(sq):
        for t in range(32):
            rem = 31 - t
            if rem <= 15 and t % 2 == 0:
                a(f"s_waitcnt lgkmcnt({max(rem-1,0)})")
            elif t == 0:
                a("s_waitcnt lgkmcnt(15)")
            for r in range(4):
                reg = A0+4*t+r
                a(f"v_dot2_f32_bf16 v{24 + r}, v{reg}, v{reg if sq else 20}, v{24 + r}")
    a("s_cmp_eq_u32 s21, 0")
    a("s_cbranch_scc0 k1_p1sq")
    pass1(False)
    a("s_branch k1_p1done")
    a.raw("k1_p1sq:")
    pass1(True)
    a.raw("k1_p1done:")
    a("""
    s_waitcnt lgkmcnt(0)
    s_barrier
    v_add_f32 v24, v24, v25
    v_add_f32 v26, v26, v27
    v_add_f32 v24, v24, v26
    v_mov_b32 v25, v24
    s_lshl_b32 s57, s3, 8
    s_add_u32 s57, s57, 0x1f800
    v_lshlrev_b32 v10, 2, v2
    v_permlane32_swap_b32 v24, v25
    v_add_u32 v10, s57, v10
    v_add_f32 v24, v24, v25
    v_xor_b32 v11, 0x400, v10
    ds_write_b32 v10, v24
    """)
    a.stamp()
    pend = [(c, u) for c in range(1, 8) for u in range(4)]
    for k in range(4):
        dma_one(*pend.pop(0))
    PT = [10, 11, 12, 13]
    def p2(i, r):
        reg = A0 + i*4 + r
        t0, t1 = PT[2*(r%2)], PT[2*(r%2)+1]
        a(f"""
        v_lshlrev_b32 v{t0}, 16, v{reg}
        v_and_b32 v{t1}, s59, v{reg}
        v_add_f32 v{t0}, v23, v{t0}
        v_add_f32 v{t1}, v23, v{t1}
        v_cvt_pk_bf16_f32 v{reg}, v{t0}, v{t1}
        """)
    a("s_mov_b32 s59, 0xffff0000")
    a(f"""
    s_lshr_b32 s50, s2, 4
    s_and_b32 s51, s2, 15
    s_lshl_b32 s50, s50, 7
    s_add_u32 s50, s50, s51
    s_mul_i32 s50, s50, 514
    v_lshlrev_b32 v3, 1, v0
    v_mov_b32 v4, 0x7fffff00
    v_cmp_gt_u32 vcc, 257, v0
    s_lshl_b32 s51, s2, 5
    s_add_u32 s51, s51, {WS_W}
    v_cndmask_b32 v3, v4, v3, vcc
    v_lshlrev_b32 v5, 13, v0
    v_add_u32 v5, s51, v5
    v_mov_b32 v4, 0xffffff00
    v_cndmask_b32 v5, v4, v5, vcc
    """)
    a.stamp()
    vm_save = list(a.vm)
    nst_save = a.nst
    pend_save = list(pend)

    def mainloop(dft):
        a.vm = list(vm_save)
        a.nst = nst_save
        pend = list(pend_save)
        def reads(c, s, buf):
            st = slot(c)
            base = (st & 1) * 32768
            ra = TRA[st]
            for P in range(2):
                for T in range(2):
                    fr = BF + buf*16 + (P*2+T)*4
                    for t in range(2):
                        off = base + P*16384 + (16*s + 4*t)*256
                        a(f"ds_read_b64_tr_b16 v[{fr+2*t}:{fr+2*t+1}], v{ra[T]} offset:{off}")
        def mfma(c, s, buf, first, tile):
            areg = A0 + (c*4 + s)*4
            fr = BF + buf*16 + tile*4
            acc = ACC + tile*16
            cin = "0" if first else f"v[{acc}:{acc+15}]"
            if dft:
                a(f"v_mfma_f32_32x32x16_bf16 v[{acc}:{acc+15}], v[{areg}:{areg+3}], v[{fr}:{fr+3}], {cin}")
            else:
                a(f"v_mfma_f32_32x32x16_bf16 v[{acc}:{acc+15}], v[{fr}:{fr+3}], v[{areg}:{areg+3}], {cin}")
        a.wait_vm("c0")
        a("s_waitcnt lgkmcnt(0)")
        a("s_barrier")
        a.stamp()
        a("ds_read_b32 v25, v11")
        reads(0, 0, 0)
        lab = "d" if dft else "g"
        a(f"""
        s_waitcnt lgkmcnt(8)
        s_cmp_eq_u32 s21, 0
        s_cbranch_scc1 k1_sw{lab}
        v_swap_b32 v24, v25
        k1_sw{lab}:
        v_mul_f32 v24, 0x3b000000, v24
        v_mul_f32 v25, 0x3b000000, v25
        v_fma_f32 v28, -v24, v24, v25
        v_cvt_pk_bf16_f32 v27, v24, v24
        v_lshlrev_b32 v27, 16, v27
        v_sub_f32 v23, 0, v27
        v_mul_f32 v29, v24, v24
        v_mul_f32 v30, 0x43800000, v28
        v_cmp_gt_f32 vcc, v29, v30
        s_cbranch_vccz k1_fast{lab}
        """)
        a("""
        v_mov_b32 v28, 0
        v_mov_b32 v29, 0
        """)
        for i in range(128):
            a(f"""
            v_lshlrev_b32 v10, 16, v{A0+i}
            v_and_b32 v11, s59, v{A0+i}
            v_add_f32 v10, v23, v10
            v_add_f32 v11, v23, v11
            v_fma_f32 v28, v10, v10, v28
            v_fma_f32 v29, v11, v11, v29
            """)
        a(f"""
        v_add_f32 v28, v28, v29
        v_mov_b32 v29, v28
        v_sub_f32 v26, v24, v27
        s_nop 0
        v_permlane32_swap_b32 v28, v29
        v_add_f32 v28, v28, v29
        v_mul_f32 v28, 0x3b000000, v28
        v_fma_f32 v28, -v26, v26, v28
        k1_fast{lab}:
        """)
        for r in range(4): p2(0, r)
        step = 0
        freed = 4
        for c in range(8):
            for s in range(4):
                buf = step & 1
                if s < 3:
                    reads(c, s+1, buf ^ 1)
                    a("s_waitcnt lgkmcnt(8)")
                elif c < 7:
                    a.wait_vm(f"c{c+1}")
                    a("s_waitcnt lgkmcnt(0)")
                    a("s_barrier")
                    if c % 2 == 1: a.stamp()
                    freed = c + 5
                    reads(c+1, 0, buf ^ 1)
                else:
                    a("s_waitcnt lgkmcnt(0)")
                nx = step + 1
                for tile in range(4):
                    mfma(c, s, buf, step == 0, tile)
                    if nx < 32:
                        p2(nx, tile)
                    if tile in (1, 3) and pend and pend[0][0] <= freed:
                        dma_one(*pend.pop(0))
                if step == 12:
                    for t in range(2):
                        for i in range(4):
                            off = (32*i + 16*t) * 514
                            a(f"s_add_u32 s51, s50, {off}")
                            a.vmem(f"buffer_load_ushort v{A0+4*t+i}, v3, s[32:35], s51 offen", "w")
                            a.vmem(f"buffer_load_ushort v{A0+8+4*t+i}, v3, s[36:39], s51 offen", "w")
                if PREF and step == 16:
                    a(f"""
                    s_lshr_b32 s62, s2, 3
                    s_lshl_b32 s62, s62, 3
                    s_add_u32 s62, s62, s3
                    s_mul_i32 s63, s62, 7168
                    v_lshlrev_b32 v4, 4, v2
                    s_mov_b32 s28, s60
                    s_mov_b32 s29, s61
                    s_mov_b32 s30, {1792*1024}
                    """)
                if PREF and 17 <= step < 24:
                    a.vmem(f"buffer_load_dwordx4 v[{A0+64+4*(step-17)}:{A0+67+4*(step-17)}], v4, s[28:31], s63 offen offset:{(step-17)*1024 if (step-17) < 4 else 0}", "pf")
                    if step == 20:
                        a("s_add_u32 s63, s63, 4096")
                    if step > 20:
                        a("s_add_u32 s63, s63, 1024")
                if PREF and step == 25:
                    getpc_tab(a, 28, "tab_G")
                    a(f"""
                    s_mov_b32 s30, {524288 + TSZ}
                    s_lshl_b32 s63, s62, 11
                    """)
                    a.vmem(f"buffer_load_dwordx4 v[{A0+92}:{A0+95}], v4, s[28:31], s63 offen", "pf")
                    a.vmem(f"buffer_load_dwordx4 v[{A0+96}:{A0+99}], v4, s[28:31], s63 offen offset:1024", "pf")
                if PREF and step == 26:
                    a(f"""
                    s_lshl_b32 s63, s62, 10
                    s_add_u32 s63, s63, 524288
                    """)
                    a.vmem(f"buffer_load_dwordx4 v[{A0+100}:{A0+103}], v4, s[28:31], s63 offen", "pf")
                if step == 24:
                    a.wait_vm("w")
                    for idx in range(8):
                        a(f"v_lshl_or_b32 v{A0+16+idx}, v{A0+8+idx}, 16, v{A0+idx}")
                    a.vmem(f"buffer_store_dwordx4 v[{A0+16}:{A0+19}], v5, s[40:43], 0 offen", "ws")
                    a.vmem(f"buffer_store_dwordx4 v[{A0+20}:{A0+23}], v5, s[40:43], 0 offen offset:16", "ws")
                    a(f"""
                    v_mov_b32 v3, {WS_W + 257*8192}
                    v_mov_b32 v5, 0x7fffff00
                    v_cmp_eq_u32 vcc, 0, v0
                    s_lshr_b32 s51, s2, 4
                    s_lshl_b32 s51, s51, 7
                    v_cndmask_b32 v5, v5, v3, vcc
                    v_mov_b32 v3, {WS_W + 258*8192}
                    v_cmp_eq_u32 vcc, 0x100, v0
                    s_and_b32 s57, s2, 15
                    s_add_u32 s51, s51, s57
                    v_cndmask_b32 v5, v5, v3, vcc
                    s_and_b32 s57, s3, 3
                    s_cmp_eq_u32 s57, 0
                    s_cbranch_scc0 k1_nomir{lab}
                    """)
                    for e in range(8):
                        t, i = e // 4, e % 4
                        a(f"""
                        s_sub_u32 s56, {2048 - 32*i - 16*t}, s51
                        s_and_b32 s56, s56, 2047
                        s_lshr_b32 s57, s56, 7
                        s_lshl_b32 s57, s57, 9
                        s_and_b32 s26, s56, 15
                        s_lshl_b32 s26, s26, 5
                        s_add_u32 s57, s57, s26
                        s_and_b32 s26, s56, 16
                        s_add_u32 s57, s57, s26
                        s_bfe_u32 s26, s56, 0x20005
                        s_lshl_b32 s26, s26, 2
                        s_add_u32 s57, s57, s26
                        buffer_store_dword v{A0+16+e}, v5, s[40:43], s57 offen
                        """)
                    a(f"""
                    k1_nomir{lab}:
                    v_mov_b32 v3, 0
                    v_mov_b32 v5, 0x7fffff00
                    v_cmp_eq_u32 vcc, 0, v0
                    s_lshl_b32 s51, s2, 4
                    s_add_u32 s51, s51, {WS_FL}
                    v_cndmask_b32 v5, v5, v3, vcc
                    """)
                    a.vmem(f"buffer_store_dword v3, v5, s[40:43], s51 offen", "ws")
                step += 1
        assert not pend
        a("""
        v_max_f32 v28, 0, v28
        v_cvt_pk_bf16_f32 v28, v28, v28
        v_lshlrev_b32 v28, 16, v28
        v_add_f32 v28, 0x3727c5ac, v28
        v_cvt_pk_bf16_f32 v28, v28, v28
        v_lshlrev_b32 v28, 16, v28
        v_sqrt_f32 v28, v28
        s_nop 0
        v_cvt_pk_bf16_f32 v28, v28, v28
        v_lshlrev_b32 v28, 16, v28
        v_rcp_f32 v15, v28
        s_nop 1
        """)
        a.stamp()
    a("""
    s_cmp_lt_u32 s19, 14
    s_cbranch_scc0 k1_dft
    """)
    mainloop(False)
    a(f"""
    s_mul_i32 s50, s22, 112
    s_lshl_b32 s51, s19, 3
    s_add_u32 s50, s50, s51
    s_lshl_b32 s51, s21, 2
    s_add_u32 s50, s50, s51
    s_lshl_b32 s50, s50, 10
    s_add_u32 s50, s50, {WS_H}
    v_lshlrev_b32 v3, 4, v2
    v_mov_b32 v14, v15
    s_mov_b32 s52, 0xffff0000
    """)
    for T in range(2):
        G = ACC + T*16; U = ACC + 32 + T*16
        O = BF + T*8
        for p in range(8):
            g = G + 2*p; u = U + 2*p
            a(f"""
            v_pk_mul_f32 v[{g}:{g+1}], v[{g}:{g+1}], v[14:15]
            v_pk_mul_f32 v[{u}:{u+1}], v[{u}:{u+1}], v[14:15]
            v_max_f32 v{g}, 0, v{g}
            v_max_f32 v{g+1}, 0, v{g+1}
            v_cvt_pk_bf16_f32 v4, v{g}, v{g+1}
            v_cvt_pk_bf16_f32 v5, v{u}, v{u+1}
            v_lshlrev_b32 v{g}, 16, v4
            v_and_b32 v{g+1}, s52, v4
            v_lshlrev_b32 v{u}, 16, v5
            v_and_b32 v{u+1}, s52, v5
            v_pk_mul_f32 v[{g}:{g+1}], v[{g}:{g+1}], v[{u}:{u+1}]
            v_cvt_pk_bf16_f32 v{O+p}, v{g}, v{g+1}
            """)
        a(f"buffer_store_dwordx4 v[{O}:{O+3}], v3, s[40:43], s50 offen offset:{T*2048}")
        a(f"buffer_store_dwordx4 v[{O+4}:{O+7}], v3, s[40:43], s50 offen offset:{T*2048+1024}")
    a.stamp()
    if STAMP: a("s_waitcnt vmcnt(0)")
    a.stamp()
    a.stamp_store(0)
    a("s_endpgm")
    a.raw("k1_dft:")
    mainloop(True)
    a("""
    v_lshrrev_b32 v3, 5, v2
    v_lshlrev_b32 v3, 4, v3
    """)
    for i in range(16):
        a(f"v_add_u32 v4, {4*(8*(i>>2) + (i&3))}, v3")
        a(f"ds_bpermute_b32 v{BF+i}, v4, v15")
    a(f"""
    s_sub_u32 s50, s19, 14
    s_lshl_b32 s50, s50, 8
    s_lshl_b32 s51, s21, 6
    s_add_u32 s50, s50, s51
    s_lshl_b32 s50, s50, 12
    s_lshl_b32 s51, s22, 6
    s_add_u32 s50, s50, s51
    s_add_u32 s50, s50, {WS_Y}
    v_and_b32 v4, 31, v2
    v_lshlrev_b32 v4, 12, v4
    v_add_u32 v3, v3, v4
    s_waitcnt lgkmcnt(0)
    """)
    for P in range(2):
        for T in range(2):
            acc = ACC + (P*2+T)*16
            for p in range(8):
                a(f"v_pk_mul_f32 v[{acc+2*p}:{acc+2*p+1}], v[{acc+2*p}:{acc+2*p+1}], v[{BF+2*p}:{BF+2*p+1}]")
            O = A0 + 32 + (P*2+T)*8
            for p in range(8):
                a(f"v_cvt_pk_f16_f32 v{O+p}, v{acc+2*p}, v{acc+2*p+1}")
            a("s_nop 1")
            for q in (0, 2):
                a(f"v_permlane32_swap_b32 v{O+2*q}, v{O+2*q+2}")
                a(f"v_permlane32_swap_b32 v{O+2*q+1}, v{O+2*q+3}")
            a(f"s_add_u32 s51, s50, {(128*P + 32*T)*4096}")
            a(f"buffer_store_dwordx4 v[{O}:{O+3}], v3, s[40:43], s51 offen")
            a(f"buffer_store_dwordx4 v[{O+4}:{O+7}], v3, s[40:43], s51 offen offset:32")
    a.stamp()
    if STAMP: a("s_waitcnt vmcnt(0)")
    a.stamp()
    a.stamp_store(0)
    a.raw("k1_end:")
    a("s_endpgm")
    return a.text()

TE1, TE2, TE3, TE4, TT1, TT2, TSZ = 0, 4096, 20480, 36864, 40960, 49152, 57344
def small_tables():
    buf = np.zeros(TSZ // 2, np.uint16)
    l = np.arange(64); c = l % 16; g = l // 16; j = np.arange(8)
    for t in range(2):
        ang = -2*np.pi*((8*g[:,None]+j[None,:])*(16*t+c)[:,None] % 32)/32
        buf[(TE1 + (0*2+t)*1024)//2:][:512] = f16(np.cos(ang)/8).ravel()
        buf[(TE1 + (1*2+t)*1024)//2:][:512] = f16(np.sin(ang)/8).ravel()
    for w in range(4):
        for st in range(2):
            ang = -2*np.pi*((32*st+8*g[:,None]+j[None,:])*(16*w+c)[:,None] % 64)/64
            buf[(TE2 + ((w*2+0)*2+st)*1024)//2:][:512] = f16(np.cos(ang)/8).ravel()
            buf[(TE2 + ((w*2+1)*2+st)*1024)//2:][:512] = f16(np.sin(ang)/8).ravel()
            buf[(TE3 + ((w*2+0)*2+st)*1024)//2:][:512] = bf16(np.cos(-ang)/8).ravel()
            buf[(TE3 + ((w*2+1)*2+st)*1024)//2:][:512] = bf16(np.sin(-ang)/8).ravel()
    sig = 16*(j[None,:]//4) + 4*g[:,None] + (j[None,:] % 4)
    for tp in range(2):
        ang = 2*np.pi*((sig*(16*tp+c)[:,None]) % 32)/32
        buf[(TE4 + (0*2+tp)*1024)//2:][:512] = bf16(np.cos(ang)/8).ravel()
        buf[(TE4 + (1*2+tp)*1024)//2:][:512] = bf16(np.sin(ang)/8).ravel()
    for w in range(4):
        for e in range(8):
            t, i = e // 4, e % 4
            a1 = -2*np.pi*(((16*w+4*g+i)*(16*t+c)) % 2048)/2048
            a2 = 2*np.pi*(((16*w+c)*(16*t+4*g+i)) % 2048)/2048
            for (base, an) in ((TT1, a1), (TT2, a2)):
                o = (base + (w*2 + e//4)*1024)//2 + l*8 + (e % 4)*2
                buf[o] = f16(np.cos(an)); buf[o+1] = f16(np.sin(an))
    return buf

K3_NS = 5
CSTR = int(os.environ.get('CSTR','2'))
NUP = int(os.environ.get('NUP','16'))
POLLC = int(os.environ.get('POLLC','13'))
NIDLE = int(os.environ.get('NIDLE','2'))
NZB = int(os.environ.get('NZB','1'))
LOADALL = os.environ.get('LOADALL','1') == '1'
CPRIO = int(os.environ.get('CPRIO','2'))
LATEC = int(os.environ.get('LATEC','1'))
def gen_k23_main():
    a = Asm()
    a.raw(".p2align 8\nk23_kernel:")
    a("""
    s_cmp_ge_u32 s2, 256
    s_cbranch_scc1 k23_end
    s_load_dwordx2 s[4:5], s[0:1], 0
    s_load_dwordx4 s[8:11], s[0:1], 48
    s_load_dwordx2 s[14:15], s[0:1], 72
    v_lshrrev_b32 v1, 6, v0
    v_and_b32 v2, 63, v0
    s_nop 0
    v_readfirstlane_b32 s3, v1
    v_and_b32 v3, 15, v2
    v_lshrrev_b32 v4, 4, v2
    s_mov_b32 s48, 0x80008000
    s_mov_b32 s49, 0xffff0000
    s_cmp_ge_u32 s3, 4
    s_cbranch_scc1 k23_conv
    """)
    SB = 131072
    NCB = 5 + NIDLE + NZB
    getpc_tab(a, 24, "tab_G")
    srd(a, 44, "s24", "s25", 524288)
    if os.environ.get("K3_MAP", "0") == "0":
        a("""
    s_and_b32 s16, s2, 7
    s_lshr_b32 s17, s2, 3
    s_lshr_b32 s18, s16, 1
    s_lshl_b32 s18, s18, 3
    s_and_b32 s19, s17, 7
    s_add_u32 s18, s18, s19
    s_lshl_b32 s58, s19, 1
    s_and_b32 s19, s16, 1
    s_lshl_b32 s19, s19, 2
    s_lshr_b32 s20, s17, 3
    s_add_u32 s19, s19, s20
    s_lshl_b32 s20, s20, 2
    s_add_u32 s58, s58, s20
    """)
    else:
        a("""
    s_and_b32 s16, s2, 7
    s_lshr_b32 s17, s2, 3
    s_lshl_b32 s18, s16, 2
    s_and_b32 s19, s17, 3
    s_add_u32 s18, s18, s19
    s_lshl_b32 s58, s19, 2
    s_lshr_b32 s19, s17, 2
    s_lshl_b32 s20, s19, 1
    s_add_u32 s58, s58, s20
    """)
    GA = 16; XR = 32; PV = 40; VO = 44; VF, VW, VZ = 45, 46, 47
    ACG, ACS, FB = 64, 80, 96
    a(f"""
    s_cmp_ge_u32 s58, 14
    s_cselect_b32 s20, 14, 0
    s_sub_u32 s58, s58, s20
    s_add_u32 s12, s18, s19
    s_and_b32 s12, s12, 3
    s_and_b32 s20, s3, 1
    s_lshr_b32 s21, s3, 1
    s_lshl_b32 s22, s18, 1
    s_add_u32 s22, s22, s21
    v_lshlrev_b32 v{VF}, 4, v2
    v_lshrrev_b32 v6, 3, v2
    v_and_b32 v5, 7, v2
    v_lshrrev_b32 v5, 1, v5
    v_and_b32 v1, 2, v6
    v_xor_b32 v5, v5, v1
    v_lshlrev_b32 v5, 5, v5
    v_and_b32 v1, 1, v2
    v_lshl_add_u32 v5, v1, 4, v5
    v_lshl_add_u32 v{VW}, v6, 10, v5
    v_lshl_add_u32 v{VZ}, v6, 12, v5
    s_lshl_b32 s27, s19, 7
    v_add_u32 v{VW}, s27, v{VW}
    s_lshl_b32 s27, s18, 7
    s_add_u32 s27, s27, {WS_Z}
    v_add_u32 v{VZ}, s27, v{VZ}
    s_mul_i32 s50, s22, 112
    s_lshl_b32 s27, s20, 2
    s_add_u32 s50, s50, s27
    s_lshl_b32 s50, s50, 10
    s_add_u32 s50, s50, {WS_H}
    s_lshl_b32 s51, s19, 1
    s_add_u32 s51, s51, s21
    s_lshl_b32 s51, s51, 5
    s_add_u32 s51, s51, s27
    s_lshl_b32 s51, s51, 10
    s_lshl_b32 s52, s3, 12
    s_add_u32 s53, s52, 16384
    s_lshl_b32 s54, s3, 15
    s_lshl_b32 s55, s3, 17
    s_mov_b32 s59, {WS_FL}
    s_waitcnt lgkmcnt(0)
    """)
    a.stamp()
    srd(a, 40, "s14", "s15", WS_SIZE)
    srd(a, 32, "s8", "s9", 1792*1024)
    slot_of = {}
    free_slots = [0, 1, 2, 3]
    def dma_one(c, u):
        if u == 0:
            slot_of[c] = free_slots.pop(0)
            if c < 14:
                a(f"s_add_u32 s57, s58, {c}")
                a("s_cmp_ge_u32 s57, 14")
                a("s_cselect_b32 s56, 14, 0")
                a("s_sub_u32 s57, s57, s56")
                a("s_lshl_b32 s62, s57, 13")
                a("s_add_u32 s62, s62, s50")
                a("s_lshl_b32 s63, s57, 17")
                a("s_add_u32 s63, s63, s54")
            else:
                a(f"s_xor_b32 s57, s12, {c-14}")
                a("s_lshl_b32 s62, s57, 13")
                a("s_add_u32 s62, s62, s51")
                a("s_lshl_b32 s63, s57, 19")
                a("s_add_u32 s63, s63, s55")
        st = slot_of[c]
        uu = u // 2
        if u % 2 == 0:
            a(f"s_add_u32 m0, s52, {st*32768}")
            a("s_nop 0")
            sr = "s[40:43]" if c < 14 else "s[44:47]"
            a.vmem(f"buffer_load_dwordx4 v{VF}, {sr}, s62 offen offset:{uu*1024} lds", f"c{c}")
        else:
            a(f"s_add_u32 m0, s53, {st*32768 + uu*1024}")
            if c < 14:
                a(f"s_add_u32 s56, s63, {8*uu*1024}")
                a.vmem(f"buffer_load_dwordx4 v{VW}, s[32:35], s56 offen lds", f"c{c}")
            else:
                a(f"s_add_u32 s56, s63, {8*uu*4096}")
                a.vmem(f"buffer_load_dwordx4 v{VZ}, s[40:43], s56 offen sc1 lds", f"c{c}")
    pend = [(c, u) for c in range(18) for u in range(8)]
    for _ in range(NUP): dma_one(*pend.pop(0))
    srd(a, 36, "s10", "s11", 2048*1024)
    srd(a, 28, "s4", "s5", 2048*1024)
    a(f"""
    v_lshrrev_b32 v{PV}, 2, v3
    v_and_b32 v{PV+1}, 3, v3
    v_lshrrev_b32 v{PV+2}, 1, v4
    v_lshl_add_u32 v{PV+2}, v{PV+2}, 2, v{PV}
    v_lshlrev_b32 v{PV+2}, 7, v{PV+2}
    v_lshl_add_u32 v{PV+2}, v{PV+1}, 3, v{PV+2}
    v_add_u32 v{PV+2}, 16384, v{PV+2}
    v_and_b32 v{PV+3}, 1, v4
    v_and_b32 v{PV}, 2, v{PV}
    s_lshl_b32 s26, s20, 1
    v_add_u32 v{PV+1}, s26, v{PV+3}
    v_xor_b32 v{PV+1}, v{PV+1}, v{PV}
    v_lshl_add_u32 v{GA}, v{PV+1}, 5, v{PV+2}
    s_lshl_b32 s26, s21, 1
    v_add_u32 v{PV+1}, s26, v{PV+3}
    v_xor_b32 v{PV+1}, v{PV+1}, v{PV}
    v_lshl_add_u32 v{GA+1}, v{PV+1}, 5, v{PV+2}
    s_lshl_b32 s26, s21, 13
    v_add_u32 v{GA+2}, s26, v{VF}
    s_lshl_b32 s26, s20, 13
    v_add_u32 v{GA+3}, s26, v{VF}
    """)
    for k in range(4):
        a(f"v_add_u32 v{GA+4+k}, 0x10000, v{GA+k}")
        a(f"v_add_u32 v{GA+8+k}, 0x20000, v{GA+k}")
    a(f"""
    v_and_b32 v{VO}, 31, v2
    v_lshlrev_b32 v{VO}, 16, v{VO}
    v_lshrrev_b32 v1, 5, v2
    v_lshl_add_u32 v{VO}, v1, 3, v{VO}
    s_lshl_b32 s23, s22, 10
    s_lshl_b32 s26, s19, 7
    s_add_u32 s23, s23, s26
    s_lshl_b32 s26, s20, 6
    s_add_u32 s23, s23, s26
    v_add_u32 v{VO}, s23, v{VO}
    """)
    a.stamp()
    DEPTH = 4
    steps = [(c, s) for c in range(18) for s in range(8)]
    def reads(i):
        c, s = steps[i]
        if s == 0:
            a.wait_vm(f"c{c}")
            a("s_barrier")
            if c >= 2: free_slots.append(slot_of[c-2])
            if c == NCB - 2 - NZB: free_slots.append(4)
            if c == NCB - 1:
                a(f"""
                s_cmp_eq_u32 s3, 0
                s_cbranch_scc0 k23_nosig
                s_lshl_b32 s26, s2, 4
                s_add_u32 s26, s26, {WS_FL}
                v_mov_b32 v1, 1
                v_mov_b32 v7, 0
                s_mov_b64 exec, 1
                buffer_store_dword v1, v7, s[40:43], s26 offen sc1
                s_mov_b64 exec, -1
                k23_nosig:
                """)
                print("flag at barrier", c, file=sys.stderr)
            if c % 3 == 0: a.stamp()
        st = slot_of[c]
        base = (st & 1) * 32768
        hi = 4 * (st // 2)
        dn = c < 14
        fb = FB + (i % DEPTH) * 8
        a.lds(f"ds_read_b128 v[{fb}:{fb+3}], v{GA+(2 if dn else 3)+hi} offset:{base + s*1024}", f"g{i}")
        for t in range(2):
            a.lds(f"ds_read_b64_tr_b16 v[{fb+4+2*t}:{fb+5+2*t}], v{GA+(0 if dn else 1)+hi} offset:{base + (16*s + 8*t)*128}", f"g{i}")
    def mfma(i):
        c, s = steps[i]
        fb = FB + (i % DEPTH) * 8
        if c < 14:
            cin = "0" if i == 0 else f"v[{ACG}:{ACG+15}]"
            a(f"v_mfma_f32_32x32x16_bf16 v[{ACG}:{ACG+15}], v[{fb+4}:{fb+7}], v[{fb}:{fb+3}], {cin}")
        else:
            cin = "0" if (c == 14 and s == 0) else f"v[{ACS}:{ACS+15}]"
            a(f"v_mfma_f32_32x32x16_bf16 v[{ACS}:{ACS+15}], v[{fb}:{fb+3}], v[{fb+4}:{fb+7}], {cin}")
    def silu():
        for p in range(8):
            g = ACG + 2*p
            t4, t5 = 8 + 2*(p % 2), 9 + 2*(p % 2)
            a(f"""
            v_cvt_pk_bf16_f32 v{t4}, v{g}, v{g+1}
            v_lshlrev_b32 v{g}, 16, v{t4}
            v_and_b32 v{g+1}, s49, v{t4}
            v_mul_f32 v{t4}, 0xbfb8aa3b, v{g}
            v_mul_f32 v{t5}, 0xbfb8aa3b, v{g+1}
            v_exp_f32 v{t4}, v{t4}
            v_exp_f32 v{t5}, v{t5}
            """)
            yield
            a(f"""
            v_add_f32 v{t4}, 1.0, v{t4}
            v_add_f32 v{t5}, 1.0, v{t5}
            v_rcp_f32 v{t4}, v{t4}
            v_rcp_f32 v{t5}, v{t5}
            """)
            yield
            a(f"""
            v_mul_f32 v{g}, v{g}, v{t4}
            v_mul_f32 v{g+1}, v{g+1}, v{t5}
            v_cvt_pk_bf16_f32 v{t4}, v{g}, v{g+1}
            v_lshlrev_b32 v{g}, 16, v{t4}
            v_and_b32 v{g+1}, s49, v{t4}
            """)
            yield
    sl = silu()
    polled = False
    for k in range(DEPTH - 1): reads(k)
    for i in range(144):
        c, s = steps[i]
        if i + DEPTH - 1 < 144: reads(i + DEPTH - 1)
        a.wait_lds(f"g{i}")
        mfma(i)
        nd = 2 if len(free_slots) > 0 else 1
        for _ in range(nd):
            if pend and (pend[0][1] > 0 or free_slots):
                if pend[0] == (14, 1):
                    a.wait_vm("poll")
                    a(f"""
                    s_mov_b32 s27, 0
                    k23_spin:
                    v_and_b32 v{PV}, v{PV}, v{PV+1}
                    v_and_b32 v{PV+2}, v{PV+2}, v{PV+3}
                    v_and_b32 v{PV}, v{PV}, v{PV+2}
                    v_cmp_ne_u32 vcc, 1, v{PV}
                    s_cbranch_vccz k23_go
                    s_add_u32 s27, s27, 1
                    s_cmp_ge_u32 s27, 0x4000
                    s_cbranch_scc1 k23_go
                    s_sleep 8
                    buffer_load_dword v{PV}, v{VF}, s[40:43], s59 offen sc1
                    buffer_load_dword v{PV+1}, v{VF}, s[40:43], s59 offen offset:1024 sc1
                    buffer_load_dword v{PV+2}, v{VF}, s[40:43], s59 offen offset:2048 sc1
                    buffer_load_dword v{PV+3}, v{VF}, s[40:43], s59 offen offset:3072 sc1
                    s_waitcnt vmcnt(0)
                    s_branch k23_spin
                    k23_go:
                    """)
                    print("Z issue at step", i, file=sys.stderr)
                dma_one(*pend.pop(0))
                if pend and pend[0] == (POLLC, 0) and not polled:
                    polled = True
                    print("poll issue at step", i, file=sys.stderr)
                    for q in range(4):
                        a.vmem(f"buffer_load_dword v{PV+q}, v{VF}, s[40:43], s59 offen offset:{q*1024} sc1", "poll")
        if i >= 14*8 + 3:
            next(sl, None)
        if i == 12*8:
            for q in range(4):
                a.vmem(f"buffer_load_dwordx2 v[{XR+2*q}:{XR+2*q+1}], v{VO}, s[28:31], 0 offen offset:{16*q}", "x")
    assert not pend
    for _ in sl: a("s_nop 0")
    a("s_nop 15")
    a.stamp()
    a.wait_vm_all()
    O = 96; SV = ACS; GV = ACG; Q = 104
    for p in range(8):
        a(f"v_cvt_pk_bf16_f32 v{Q+p}, v{SV+2*p}, v{SV+2*p+1}")
    for p in range(8):
        a(f"v_lshlrev_b32 v{SV+2*p}, 16, v{Q+p}")
        a(f"v_and_b32 v{SV+2*p+1}, s49, v{Q+p}")
    for p in range(16):
        a(f"v_mul_f32 v{SV+p}, v{SV+p}, v{GV+p}")
    for p in range(8):
        a(f"v_cvt_pk_bf16_f32 v{Q+p}, v{SV+2*p}, v{SV+2*p+1}")
    for p in range(8):
        a(f"v_lshlrev_b32 v{SV+2*p}, 16, v{Q+p}")
        a(f"v_and_b32 v{SV+2*p+1}, s49, v{Q+p}")
        a(f"v_lshlrev_b32 v{GV+2*p}, 16, v{XR+p}")
        a(f"v_and_b32 v{GV+2*p+1}, s49, v{XR+p}")
    for p in range(16):
        a(f"v_add_f32 v{SV+p}, v{SV+p}, v{GV+p}")
    for p in range(8):
        a(f"v_cvt_pk_bf16_f32 v{O+p}, v{SV+2*p}, v{SV+2*p+1}")
    a(f"""
    v_lshrrev_b32 v4, 5, v2
    v_lshl_add_u32 v{VO}, v4, 3, v{VO}
    """)
    for q in (0, 2):
        a(f"v_permlane32_swap_b32 v{O+2*q}, v{O+2*q+2}")
        a(f"v_permlane32_swap_b32 v{O+2*q+1}, v{O+2*q+3}")
    a(f"buffer_store_dwordx4 v[{O}:{O+3}], v{VO}, s[36:39], 0 offen")
    a(f"buffer_store_dwordx4 v[{O+4}:{O+7}], v{VO}, s[36:39], 0 offen offset:32")
    a.stamp()
    if STAMP: a("s_waitcnt vmcnt(0)")
    a.stamp()
    a.stamp_store(1)
    a("s_endpgm")

    a.raw("k23_conv:")
    a.vm = []; a.lq = []; a.nst = 0
    YR, YI = 8, 12
    E1 = 16; T1 = 32; E2 = 48; WW = 64; E3 = 80; T2 = 96; E4 = 112
    D = 128; F = 144; N = 176; TMP = 184; WM = 200; VL = 7
    getpc_tab(a, 24, "tab_S")
    srd(a, 28, "s24", "s25", TSZ)
    a(f"""
    s_sub_u32 s13, s3, 4
    v_lshlrev_b32 v5, 6, v3
    v_lshl_add_u32 v5, v4, 4, v5
    s_lshl_b32 s60, s2, 13
    s_lshl_b32 s61, s13, 10
    s_add_u32 s60, s60, s61
    s_add_u32 s60, s60, {WS_Y}
    s_add_u32 s61, s60, 4096
    v_lshlrev_b32 v{VL}, 4, v2
    s_lshl_b32 s26, s13, 12
    s_lshl_b32 s12, s13, 11
    v_subrev_u32 v6, 256, v0
    v_lshlrev_b32 v6, 5, v6
    s_waitcnt lgkmcnt(0)
    """)
    a.stamp()
    srd(a, 40, "s14", "s15", WS_SIZE)
    def tload(dst, n, soff, base, tag):
        for q in range(n):
            a.vmem(f"buffer_load_dwordx4 v[{dst+4*q}:{dst+4*q+3}], v{VL}, s[28:31], {soff} offen offset:{base+q*1024}", tag)
    a.vmem(f"buffer_load_dwordx4 v[{YR}:{YR+3}], v5, s[40:43], s60 offen", "y")
    a.vmem(f"buffer_load_dwordx4 v[{YI}:{YI+3}], v5, s[40:43], s61 offen", "y")
    tload(E1, 4, "0", TE1, "e1")
    a(f"s_add_u32 s27, s12, {TT1}")
    tload(T1, 2, "s27", 0, "t1")
    def loads2():
        a(f"s_add_u32 s27, s26, {TE2}")
        tload(E2, 4, "s27", 0, "e2")
        a(f"""
        s_lshl_b32 s27, s2, 13
        s_add_u32 s27, s27, {WS_W}
        s_cmp_eq_u32 s2, 0
        s_cbranch_scc0 k23_now256
        s_mov_b32 s56, {WS_W + 256*8192}
        buffer_load_dwordx4 v[{WW+8}:{WW+11}], v{VWT}, s[40:43], s56 offen
        buffer_load_dwordx4 v[{WW+12}:{WW+15}], v{VWT}, s[40:43], s56 offen offset:16
        s_add_u32 s56, s56, 8192
        buffer_load_dwordx4 v[{WM}:{WM+3}], v{VWT}, s[40:43], s56 offen
        buffer_load_dwordx4 v[{WM+4}:{WM+7}], v{VWT}, s[40:43], s56 offen offset:16
        s_add_u32 s56, s56, 8192
        buffer_load_dwordx4 v[{WM+8}:{WM+11}], v{VWT}, s[40:43], s56 offen
        buffer_load_dwordx4 v[{WM+12}:{WM+15}], v{VWT}, s[40:43], s56 offen offset:16
        k23_now256:
        """)
        a.vmem(f"buffer_load_dwordx4 v[{WW}:{WW+3}], v{VWT}, s[40:43], s27 offen", "w")
        a.vmem(f"buffer_load_dwordx4 v[{WW+4}:{WW+7}], v{VWT}, s[40:43], s27 offen offset:16", "w")
    def loads3():
        a(f"s_add_u32 s27, s26, {TE3}")
        tload(E3, 4, "s27", 0, "e3")
        a(f"s_add_u32 s27, s12, {TT2}")
        tload(T2, 2, "s27", 0, "t2")
        a(f"s_mov_b32 s27, {TE4}")
        tload(E4, 4, "s27", 0, "e4")
    VWT = 216; PQ = 220
    a(f"""
    v_mov_b32 v{VWT}, v6
    s_lshl_b32 s27, s13, 9
    v_lshlrev_b32 v1, 7, v4
    v_add3_u32 v1, v1, v3, s27
    s_movk_i32 s27, 144
    v_mul_lo_u32 v6, v3, s27
    v_add_u32 v6, {SB}, v6
    v_lshl_add_u32 v5, v4, 3, v6
    s_lshl_b32 s27, s13, 5
    v_add_u32 v5, s27, v5
    v_lshl_add_u32 v6, v4, 4, v6
    """)
    UB, XB, MB = 0, 9216, 18432
    PL = 4608
    def R(x): return f"v[{x}:{x+3}]"
    def fr(pl, t, st): return F + ((pl*2+t)*2+st)*4
    def cmul_tw(tw):
        for e in range(8):
            r = D + e; im = D + 8 + e; tq = tw + e
            t = TMP + 2*(e % 4)
            a(f"""
            v_fma_mix_f32 v{t}, v{im}, v{tq}, 0 op_sel:[0,1,0] op_sel_hi:[0,1,0]
            v_fma_mix_f32 v{t+1}, v{r}, v{tq}, 0 op_sel:[0,1,0] op_sel_hi:[0,1,0]
            """)
            if e % 4 == 3:
                for e2 in range(e-3, e+1):
                    r = D + e2; im = D + 8 + e2; tq = tw + e2
                    t = TMP + 2*(e2 % 4)
                    a(f"""
                    v_fma_mix_f32 v{r}, v{r}, v{tq}, -v{t} op_sel:[0,0,0] op_sel_hi:[0,1,0]
                    v_fma_mix_f32 v{im}, v{im}, v{tq}, v{t+1} op_sel:[0,0,0] op_sel_hi:[0,1,0]
                    """)
    def pack(cvt, dst):
        for e in range(8):
            a(f"{cvt} v{dst+e}, v{D+2*e}, v{D+2*e+1}")
    def lds_write(base, src):
        for pl in range(2):
            for t in range(2):
                a(f"ds_write_b64 v5, v[{src+pl*4+t*2}:{src+pl*4+t*2+1}] offset:{base + pl*PL + t*16*144}")
    def lds_read(base):
        for pl in range(2):
            for t in range(2):
                for st in range(2):
                    f_ = fr(pl, t, st)
                    a(f"ds_read_b128 v[{f_}:{f_+3}], v6 offset:{base + pl*PL + t*16*144 + st*64}")
    nbar = [0]
    def bar():
        a("s_waitcnt lgkmcnt(0)"); a("s_barrier"); nbar[0] += 1; a.stamp()
    a(f"""
    s_setprio {CPRIO}
    """)
    if LOADALL:
        loads2(); loads3()
        for _ in range(NIDLE): bar()
    else:
        bar()
        loads2()
        for _ in range(NIDLE - 1): bar()
    a.wait_vm("e1")
    for r in range(4):
        a(f"v_xor_b32 v{N+r}, s48, v{YI+r}")
    a("s_nop 1")
    for t in range(2):
        er = E1 + 4*t; ei = E1 + 8 + 4*t
        a(f"v_mfma_f32_16x16x32_f16 {R(D+4*t)}, {R(YR)}, {R(er)}, 0")
        a(f"v_mfma_f32_16x16x32_f16 {R(D+8+4*t)}, {R(YR)}, {R(ei)}, 0")
    for t in range(2):
        er = E1 + 4*t; ei = E1 + 8 + 4*t
        a(f"v_mfma_f32_16x16x32_f16 {R(D+4*t)}, {R(N)}, {R(ei)}, {R(D+4*t)}")
        a(f"v_mfma_f32_16x16x32_f16 {R(D+8+4*t)}, {R(YI)}, {R(er)}, {R(D+8+4*t)}")
    a.wait_vm("t1")
    a("s_nop 7")
    cmul_tw(T1)
    pack("v_cvt_pk_f16_f32", TMP + 8)
    lds_write(UB, TMP + 8)
    if not LOADALL: loads3()
    bar()
    lds_read(UB)
    a.wait_vm("e2")
    for r in range(8):
        a(f"v_xor_b32 v{N+r}, s48, v{E2+8+r}")
    a("s_waitcnt lgkmcnt(0)")
    for st in range(2):
        for t in range(2):
            cr = "0" if st == 0 else R(D+4*t); ci = "0" if st == 0 else R(D+8+4*t)
            a(f"v_mfma_f32_16x16x32_f16 {R(D+4*t)}, {R(E2+4*st)}, {R(fr(0,t,st))}, {cr}")
            a(f"v_mfma_f32_16x16x32_f16 {R(D+8+4*t)}, {R(E2+8+4*st)}, {R(fr(0,t,st))}, {ci}")
        for t in range(2):
            a(f"v_mfma_f32_16x16x32_f16 {R(D+4*t)}, {R(N+4*st)}, {R(fr(1,t,st))}, {R(D+4*t)}")
            a(f"v_mfma_f32_16x16x32_f16 {R(D+8+4*t)}, {R(E2+4*st)}, {R(fr(1,t,st))}, {R(D+8+4*t)}")
    a("""
    s_cmp_eq_u32 s2, 0
    s_cbranch_scc1 k2_special
    s_barrier
    """)
    vm_keep = list(a.vm)
    a.wait_vm("w")
    a("s_nop 7")
    for e in range(8):
        r = D + e; im = D + 8 + e
        t = TMP + 4*(e % 2)
        a(f"""
        v_lshlrev_b32 v{t+2}, 16, v{WW+e}
        v_and_b32 v{t+3}, s49, v{WW+e}
        v_mul_f32 v{t}, v{im}, v{t+3}
        v_mul_f32 v{t+1}, v{r}, v{t+3}
        v_fma_f32 v{r}, v{r}, v{t+2}, -v{t}
        v_fma_f32 v{im}, v{im}, v{t+2}, v{t+1}
        """)
    a("s_branch k2_join")
    a.raw("k2_special:")
    a.vm = vm_keep
    a.wait_vm("w")
    TA_ = 8
    for e in range(8):
        q = PQ + 4*e; t = TA_ + 4*e
        a(f"""
        v_lshlrev_b32 v{q}, 16, v{WW+e}
        v_and_b32 v{q+1}, s49, v{WW+e}
        v_lshlrev_b32 v{q+2}, 16, v{WM+e}
        v_and_b32 v{q+3}, s49, v{WM+e}
        v_lshlrev_b32 v{t}, 16, v{WW+8+e}
        v_and_b32 v{t+1}, s49, v{WW+8+e}
        v_lshlrev_b32 v{t+2}, 16, v{WM+8+e}
        v_and_b32 v{t+3}, s49, v{WM+8+e}
        """)
    for e in range(8):
        q = PQ + 4*e; t = TA_ + 4*e
        a(f"""
        v_add_f32 v{q}, v{q}, v{q+2}
        v_sub_f32 v{q+1}, v{q+1}, v{q+3}
        v_add_f32 v{t}, v{t}, v{t+2}
        v_sub_f32 v{t+1}, v{t+1}, v{t+3}
        """)
    for e in range(8):
        q = PQ + 4*e; t = TA_ + 4*e
        a(f"""
        v_sub_f32 v{q+2}, v{q}, v{t}
        v_sub_f32 v{q+3}, v{q+1}, v{t+1}
        v_add_f32 v{q}, v{q}, v{t}
        v_add_f32 v{q+1}, v{q+1}, v{t+1}
        """)
    for e in range(32):
        a(f"v_mul_f32 v{PQ+e}, 0x3e800000, v{PQ+e}")
    for e in range(8):
        t, i = e // 4, e % 4
        q = TMP + 2*(e % 2)
        a(f"""
        v_cvt_pk_f16_f32 v{q}, v{D+e}, v{D+8+e}
        v_add_u32 v{q+1}, {32*i+16*t+(SB+MB)//4}, v1
        v_lshlrev_b32 v{q+1}, 2, v{q+1}
        ds_write_b32 v{q+1}, v{q}
        """)
    for e in range(8):
        r = D + e; q = PQ + 4*e; t = F + 8 + 2*e
        a(f"v_mul_f32 v{t}, v{r}, v{q}")
        a(f"v_mul_f32 v{t+1}, v{r}, v{q+1}")
    for e in range(8):
        im = D + 8 + e; q = PQ + 4*e; t = F + 8 + 2*e
        a(f"v_fma_f32 v{t}, -v{im}, v{q+1}, v{t}")
        a(f"v_fma_f32 v{t+1}, v{im}, v{q}, v{t+1}")
    a("s_waitcnt lgkmcnt(0)")
    a("s_barrier")
    for e in range(8):
        t, i = e // 4, e % 4
        a(f"""
        v_add_u32 v{TMP+4}, {32*i+16*t}, v1
        v_sub_u32 v{TMP+4}, 2048, v{TMP+4}
        v_and_b32 v{TMP+4}, 2047, v{TMP+4}
        v_lshlrev_b32 v{TMP+4}, 2, v{TMP+4}
        v_add_u32 v{TMP+4}, {SB+MB}, v{TMP+4}
        ds_read_b32 v{F+e}, v{TMP+4}
        """)
    a("s_waitcnt lgkmcnt(0)")
    for e in range(8):
        xm = F + e; q = PQ + 4*e; t = F + 8 + 2*e
        a(f"""
        v_fma_mix_f32 v{t}, v{q+2}, v{xm}, v{t} op_sel:[0,0,0] op_sel_hi:[0,1,0]
        v_fma_mix_f32 v{t+1}, v{q+3}, v{xm}, v{t+1} op_sel:[0,0,0] op_sel_hi:[0,1,0]
        """)
    for e in range(8):
        r = D + e; im = D + 8 + e
        xm = F + e; q = PQ + 4*e; t = F + 8 + 2*e
        a(f"""
        v_fma_mix_f32 v{r}, v{q+3}, v{xm}, v{t} op_sel:[0,1,0] op_sel_hi:[0,1,0]
        v_fma_mix_f32 v{im}, -v{q+2}, v{xm}, v{t+1} op_sel:[0,1,0] op_sel_hi:[0,1,0]
        """)
    a.raw("k2_join:")
    a.stamp()
    pack("v_cvt_pk_bf16_f32", TMP + 8)
    lds_write(XB, TMP + 8)
    nbar[0] += 1
    bar()
    lds_read(XB)
    a.wait_vm("e3")
    for r in range(8):
        a(f"v_xor_b32 v{N+r}, s48, v{E3+8+r}")
    a("s_waitcnt lgkmcnt(0)")
    for st in range(2):
        for t in range(2):
            cr = "0" if st == 0 else R(D+4*t); ci = "0" if st == 0 else R(D+8+4*t)
            a(f"v_mfma_f32_16x16x32_bf16 {R(D+4*t)}, {R(fr(0,t,st))}, {R(E3+4*st)}, {cr}")
            a(f"v_mfma_f32_16x16x32_bf16 {R(D+8+4*t)}, {R(fr(0,t,st))}, {R(E3+8+4*st)}, {ci}")
        for t in range(2):
            a(f"v_mfma_f32_16x16x32_bf16 {R(D+4*t)}, {R(fr(1,t,st))}, {R(N+4*st)}, {R(D+4*t)}")
            a(f"v_mfma_f32_16x16x32_bf16 {R(D+8+4*t)}, {R(fr(1,t,st))}, {R(E3+4*st)}, {R(D+8+4*t)}")
    bar()
    a.wait_vm("t2")
    a("s_nop 7")
    cmul_tw(T2)
    pack("v_cvt_pk_bf16_f32", TMP + 8)
    VR, VI = TMP + 8, TMP + 12
    for r in range(4):
        a(f"v_xor_b32 v{N+r}, s48, v{VI+r}")
    a.wait_vm("e4")
    a("s_nop 1")
    for tp in range(2):
        a(f"v_mfma_f32_16x16x32_bf16 {R(D+4*tp)}, {R(E4+4*tp)}, {R(VR)}, 0")
        a(f"v_mfma_f32_16x16x32_bf16 {R(D+8+4*tp)}, {R(E4+8+4*tp)}, {R(VR)}, 0")
    for tp in range(2):
        a(f"v_mfma_f32_16x16x32_bf16 {R(D+4*tp)}, {R(E4+8+4*tp)}, {R(N)}, {R(D+4*tp)}")
        a(f"v_mfma_f32_16x16x32_bf16 {R(D+8+4*tp)}, {R(E4+4*tp)}, {R(VI)}, {R(D+8+4*tp)}")
    a(f"""
    v_lshlrev_b32 v5, 6, v3
    v_and_b32 v1, 1, v4
    v_lshl_add_u32 v5, v1, 5, v5
    v_lshrrev_b32 v1, 1, v4
    v_lshl_add_u32 v5, v1, 4, v5
    s_add_u32 s60, s60, {WS_Z - WS_Y}
    s_add_u32 s61, s61, {WS_Z - WS_Y}
    s_nop 3
    """)
    pack("v_cvt_pk_bf16_f32", TMP + 8)
    a("s_nop 1")
    for pl in range(2):
        b = TMP + 8 + pl*4
        a(f"v_permlane16_swap_b32 v{b}, v{b+2}")
        a(f"v_permlane16_swap_b32 v{b+1}, v{b+3}")
    for pl in range(2):
        b = TMP + 8 + pl*4
        a.vmem(f"buffer_store_dwordx4 v[{b}:{b+3}], v5, s[40:43], s{60+pl} offen sc1", "z")
    for _ in range(NZB): bar()
    a.wait_vm_all()
    bar()
    assert nbar[0] == NCB, nbar
    if os.environ.get("CSTAMP", "0") == "1": a.stamp_store(1)
    a.raw("k23_end:")
    a("s_endpgm")
    return a.text()

def tables_asm():
    o = []
    j = np.arange(512)
    c1 = bf16(np.cos(2*np.pi*j/512) / 16); c2 = bf16(np.cos(2*np.pi*j/512) / 8)
    c1[np.abs(np.cos(2*np.pi*j/512)) < 1e-9] = 0; c2[np.abs(np.cos(2*np.pi*j/512)) < 1e-9] = 0
    for i in range(512):
        o.append(f".set CA{i}, 0x{c1[i]:04x}")
        o.append(f".set CB{i}, 0x{c2[i]:04x}")
    o.append(".altmacro")
    o.append(""".macro f8 a,b,c,d,e,f,g,h
.short CA\\a, CA\\b, CA\\c, CA\\d, CA\\e, CA\\f, CA\\g, CA\\h
.endm
.macro g8 a,b,c,d,e,f,g,h
.short CB\\a, CB\\b, CB\\c, CB\\d, CB\\e, CB\\f, CB\\g, CB\\h
.endm
.macro g8s a,b,c,d,e,f,g,h
.short CA\\a, CA\\b, CB\\c, CB\\d, CB\\e, CB\\f, CB\\g, CB\\h
.endm
.macro frow d
f8 0, %((\\d*256)&511), %((\\d*1)&511), %((\\d+128)&511), %((\\d*2)&511), %((\\d*2+128)&511), %((\\d*3)&511), %((\\d*3+128)&511)
.set kk, 4
.rept 63
f8 %((\\d*kk)&511), %((\\d*kk+128)&511), %((\\d*(kk+1))&511), %((\\d*(kk+1)+128)&511), %((\\d*(kk+2))&511), %((\\d*(kk+2)+128)&511), %((\\d*(kk+3))&511), %((\\d*(kk+3)+128)&511)
.set kk, kk+4
.endr
.endm
.section .rodata,"a"
.p2align 8
tab_F:
.set dd, 0
.rept 512
frow %dd
.set dd, dd+1
.endr
""")
    o.append(""".macro glane d, k
g8 %((\\d*\\k)&511), %((\\d*\\k+128)&511), %((\\d*(\\k+1))&511), %((\\d*(\\k+1)+128)&511), %((\\d*(\\k+4))&511), %((\\d*(\\k+4)+128)&511), %((\\d*(\\k+5))&511), %((\\d*(\\k+5)+128)&511)
.endm
.macro glane0 d
g8s 0, %((\\d*256)&511), %((\\d*1)&511), %((\\d+128)&511), %((\\d*4)&511), %((\\d*4+128)&511), %((\\d*5)&511), %((\\d*5+128)&511)
.endm
.macro ghalf d0, k
.set ll, 0
.rept 32
glane %(\\d0+ll), \\k
.set ll, ll+1
.endr
.endm
.macro ghalf0 d0
.set ll, 0
.rept 32
glane0 %(\\d0+ll)
.set ll, ll+1
.endr
.endm
.macro gtile d0
ghalf0 \\d0
ghalf \\d0, 2
.set gg, 1
.rept 31
ghalf \\d0, %(8*gg)
ghalf \\d0, %(8*gg+2)
.set gg, gg+1
.endr
.endm
.p2align 8
tab_G:
.set tt, 0
.rept 16
gtile %(32*tt)
.set tt, tt+1
.endr
.noaltmacro
.p2align 8
tab_S:
""")
    st = small_tables().view(np.uint64)
    for i in range(0, len(st), 8):
        o.append(".quad " + ",".join(f"0x{v:x}" for v in st[i:i+8]))
    return "\n".join(o) + "\n"

hdr = """; fused LN + GFNet spectral filter + ReGLU, 2 launches
; @launch kernel=k1_kernel grid=(256,1,1) block=(512,1,1) lds=163840
; @launch kernel=k23_kernel grid=(256,1,1) block=(512,1,1) lds=163840
.amdgcn_target "amdgcn-amd-amdhsa--gfx950"
.text
.globl k1_kernel
.type k1_kernel,@function
.globl k23_kernel
.type k23_kernel,@function
"""
src = hdr + gen_k1() + gen_k23_main() + tables_asm()
src += '.section .rodata,"a"\n.p2align 6\n' + kd("k1_kernel", 256) + ".p2align 6\n" + kd("k23_kernel", 256)
open(OUT, "w").write(src)
print("wrote", OUT, len(src))
```

```python
import numpy as np, sys, math

OUT = sys.argv[1] if len(sys.argv) > 1 else "recurrent_scan__spectral_gfnet__glu_gated_reglu__prompt.s"

WS_H = 0
WS_Y = 8 << 20
WS_Z = 10 << 20
WS_W = 12 << 20
WS_SIZE = 268435456
WS_FL = 15 << 20

def bf16(x):
    u = np.asarray(x, np.float32).view(np.uint32).astype(np.uint64)
    r = ((u + 0x7fff + ((u >> 16) & 1)) >> 16).astype(np.uint16)
    return r
def f16(x):
    return np.asarray(x, np.float64).astype(np.float16).view(np.uint16)

import os
STAMP = os.environ.get("STAMP", "0") == "1"
WS_ST = 16 << 20
class Asm:
    def __init__(self):
        self.lines = []
        self.vm = []
        self.nst = 0
        self.issued = set()
        self.lq = []
    def stamp(self):
        if not STAMP: return
        self(f"s_memtime s[{74+2*self.nst}:{75+2*self.nst}]")
        self("s_waitcnt lgkmcnt(0)")
        self.lq = []
        self.nst += 1
    def stamp_store(self, kidx, wavereg="s3"):
        if not STAMP: return
        self("s_waitcnt lgkmcnt(0)")
        self(f"s_lshl_b32 s62, s2, 4")
        self(f"s_add_u32 s62, s62, {wavereg}")
        self(f"s_lshl_b32 s62, s62, 7")
        self(f"s_add_u32 s62, s62, {WS_ST + kidx*(1<<20)}")
        self("v_mov_b32 v0, 0")
        for i in range(self.nst):
            self(f"v_mov_b32 v1, s{74+2*i}")
            self(f"buffer_store_dword v1, v0, s[40:43], s62 offen offset:{4*i}")
    def __call__(self, s):
        for ln in s.strip("\n").split("\n"):
            self.lines.append("  " + ln.strip() if not ln.strip().endswith(":") else ln.strip())
    def raw(self, s):
        self.lines.append(s)
    def vmem(self, s, tag):
        self(s); self.vm.append(tag); self.issued.add(tag)
        assert len(self.vm) <= 63, "vmcnt overflow"
    def wait_vm(self, tag):
        assert tag in self.issued, tag
        if tag not in self.vm: return
        idx = max(i for i, t in enumerate(self.vm) if t == tag)
        n = len(self.vm) - 1 - idx
        self(f"s_waitcnt vmcnt({n})")
        self.vm = self.vm[idx + 1:]
    def lds(self, s, tag):
        self(s); self.lq.append(tag)
    def wait_lds(self, tag):
        if tag not in self.lq: return
        idx = max(i for i, t in enumerate(self.lq) if t == tag)
        n = min(len(self.lq) - 1 - idx, 15)
        self(f"s_waitcnt lgkmcnt({n})")
        self.lq = self.lq[len(self.lq) - n:] if n else []
    def wait_lds_all(self):
        self("s_waitcnt lgkmcnt(0)"); self.lq = []
    def wait_vm_all(self):
        self("s_waitcnt vmcnt(0)"); self.vm = []
    def text(self):
        return "\n".join(self.lines) + "\n"

def srd(a, s, lo, hi, nbytes):
    a(f"s_mov_b32 s{s}, {lo}")
    a(f"s_mov_b32 s{s+1}, {hi}")
    a(f"s_mov_b32 s{s+2}, {nbytes}")
    a(f"s_mov_b32 s{s+3}, 0x20000")

def getpc_tab(a, s, sym):
    a(f"s_getpc_b64 s[{s}:{s+1}]")
    a(f"s_add_u32 s{s}, s{s}, {sym}@rel32@lo+4")
    a(f"s_addc_u32 s{s+1}, s{s+1}, {sym}@rel32@hi+12")

def kd(name, vgpr, sgpr=102):
    acc = min((vgpr + 3) // 4 * 4, 256)
    return f""".amdhsa_kernel {name}
  .amdhsa_next_free_vgpr {vgpr}
  .amdhsa_next_free_sgpr {sgpr}
  .amdhsa_accum_offset {acc}
  .amdhsa_group_segment_fixed_size 0
  .amdhsa_kernarg_size 80
  .amdhsa_user_sgpr_count 2
  .amdhsa_user_sgpr_kernarg_segment_ptr 1
  .amdhsa_system_sgpr_workgroup_id_x 1
.end_amdhsa_kernel
"""

K1_NS = 5
PREF = os.environ.get('PREF','1') == '1'
K1_PRE = int(os.environ.get('K1_PRE','2'))
CODEPF = int(os.environ.get('CODEPF','5'))
PFS = int(os.environ.get('PFS','16'))
BWARM = int(os.environ.get('BWARM','2'))
X_NOP2 = os.environ.get('X_NOP2','0')=='1'
X_NODMA = os.environ.get('X_NODMA','0')=='1'
X_NOBAR = os.environ.get('X_NOBAR','0')=='1'
def gen_k1():
    a = Asm()
    A0 = 128; ACC = 64; BF = 32
    PT = 24
    VD, VNM, VVAR, VPF, VPG, VFA, VFL = 1, 7, 8, 9, 10, 11, 3
    TR = 16
    PFD = 12
    a.raw(".p2align 8\nk1_kernel:")
    a("""
    s_cmp_ge_u32 s2, 256
    s_cbranch_scc1 k1_end
    s_load_dwordx2 s[4:5], s[0:1], 0
    s_load_dwordx4 s[8:11], s[0:1], 8
    s_load_dwordx4 s[12:15], s[0:1], 32
    s_load_dwordx2 s[6:7], s[0:1], 72
    s_load_dwordx2 s[60:61], s[0:1], 48
    v_lshrrev_b32 v1, 6, v0
    v_and_b32 v2, 63, v0
    s_nop 0
    v_readfirstlane_b32 s3, v1
    """)
    XM = int(os.environ.get("K1_XM", "4"))
    lg = {8: 3, 4: 2, 2: 1}[XM]
    nxm = 16 // XM
    lgx = {2: 1, 4: 2, 8: 3}[nxm]
    a(f"""
    s_and_b32 s16, s2, 7
    s_lshr_b32 s17, s2, 3
    s_and_b32 s18, s16, {nxm-1}
    s_lshl_b32 s18, s18, {lg}
    s_and_b32 s58, s17, {XM-1}
    s_add_u32 s18, s18, s58
    s_lshr_b32 s19, s16, {lgx}
    s_lshl_b32 s19, s19, {5-lg}
    s_lshr_b32 s20, s17, {lg}
    s_add_u32 s19, s19, s20
    s_lshl_b32 s59, s20, {lg-1}
    s_lshl_b32 s58, s58, {3-lg}
    s_and_b32 s20, s3, 3
    s_lshr_b32 s21, s3, 2
    s_lshl_b32 s22, s18, 2
    s_add_u32 s22, s22, s20
    v_lshlrev_b32 v{VPF}, 4, v2
    """)
    if CODEPF:
        getpc_tab(a, 64, "k1_kernel")
        a(f"""
        s_mov_b32 s66, code_end-k1_kernel
        s_mov_b32 s67, 0x20000
        s_lshl_b32 s57, s17, 1
        s_add_u32 s57, s57, s3
        s_lshl_b32 s57, s57, 10
        s_cmp_lt_u32 s3, 2
        s_cselect_b32 s57, s57, 0x7f000000
        """)
        a.vmem(f"buffer_load_dwordx4 v[{PFD}:{PFD+3}], v{VPF}, s[64:67], s57 offen", "cpf")
    getpc_tab(a, 24, "tab_F")
    a("""
    s_lshl_b32 s50, s21, 4
    s_lshl_b32 s51, s50, 6
    s_add_u32 s51, s51, s22
    s_lshl_b32 s51, s51, 10
    s_lshl_b32 s52, s20, 5
    s_add_u32 s52, s52, s50
    s_lshl_b32 s52, s52, 10
    s_lshl_b32 s53, s58, 3
    v_xor_b32 v3, s53, v2
    s_waitcnt lgkmcnt(0)
    """)
    a.stamp()
    srd(a, 28, "s4", "s5", 2048*1024)
    for u in range(16):
        a(f"""
        s_xor_b32 s54, s59, {u}
        v_xor_b32 v4, s54, v3
        v_lshlrev_b32 v4, 4, v4
        s_lshl_b32 s55, s54, 10
        s_add_u32 m0, s52, s55
        s_lshl_b32 s55, s54, 16
        s_add_u32 s53, s51, s55
        """)
        a.vmem("buffer_load_dwordx4 v4, s[28:31], s53 offen lds", "x")
    srd(a, 32, "s8", "s9", 2048*514)
    srd(a, 36, "s10", "s11", 2048*514)
    WL = ACC + 16
    a(f"""
    s_lshr_b32 s62, s2, 2
    s_lshl_b32 s62, s62, 2
    s_lshr_b32 s63, s3, 1
    s_add_u32 s62, s62, s63
    s_lshr_b32 s63, s62, 4
    s_lshl_b32 s63, s63, 7
    s_and_b32 s62, s62, 15
    s_add_u32 s63, s63, s62
    s_and_b32 s62, s3, 1
    s_lshl_b32 s62, s62, 4
    s_add_u32 s63, s63, s62
    s_mul_i32 s63, s63, 514
    s_and_b32 s62, s2, 3
    s_lshl_b32 s62, s62, 7
    s_add_u32 s63, s63, s62
    v_lshlrev_b32 v5, 1, v2
    """)
    for i in range(4):
        if i: a(f"s_add_u32 s63, s63, {32*514}")
        a.vmem(f"buffer_load_ushort v{WL+i}, v5, s[32:35], s63 offen", "w")
        a.vmem(f"buffer_load_ushort v{WL+4+i}, v5, s[36:39], s63 offen", "w")
    a(f"""
    v_mov_b32 v{WL+10}, 0x7fffff00
    s_cmp_eq_u32 s3, 7
    s_cbranch_scc0 k1_nosp1
    s_lshr_b32 s62, s2, 4
    s_lshl_b32 s62, s62, 7
    s_and_b32 s63, s2, 15
    s_add_u32 s62, s62, s63
    v_and_b32 v4, 3, v2
    v_lshlrev_b32 v4, 5, v4
    v_and_b32 v5, 4, v2
    v_lshl_add_u32 v4, v5, 2, v4
    v_add_u32 v4, s62, v4
    s_movk_i32 s63, 514
    v_mul_lo_u32 v5, v4, s63
    v_lshrrev_b32 v6, 3, v2
    v_cmp_eq_u32 vcc, 1, v6
    v_add_u32 v30, 512, v5
    s_nop 0
    v_cndmask_b32 v5, v30, v5, vcc
    v_mov_b32 v30, 0x7fffff00
    v_cmp_gt_u32 vcc, 24, v2
    s_nop 1
    v_cndmask_b32 v5, v30, v5, vcc
    buffer_load_ushort v{WL+8}, v5, s[32:35], 0 offen
    buffer_load_ushort v{WL+9}, v5, s[36:39], 0 offen
    v_sub_u32 v5, 2048, v4
    v_and_b32 v5, 2047, v5
    v_cmp_eq_u32 s[62:63], 0, v6
    s_nop 1
    v_cndmask_b32 v4, v5, v4, s[62:63]
    v_lshrrev_b32 v5, 7, v4
    v_lshlrev_b32 v5, 9, v5
    v_and_b32 v31, 15, v4
    v_lshl_add_u32 v5, v31, 5, v5
    v_and_b32 v31, 16, v4
    v_add_u32 v5, v5, v31
    v_bfe_u32 v31, v4, 5, 2
    v_lshl_add_u32 v5, v31, 2, v5
    v_lshl_add_u32 v5, v6, 13, v5
    v_add_u32 v5, {WS_W + 256*8192}, v5
    v_cndmask_b32 v{WL+10}, v30, v5, vcc
    k1_nosp1:
    """)
    srd(a, 40, "s6", "s7", WS_SIZE)
    a("""
    s_and_b32 s23, s3, 1
    s_cmp_eq_u32 s23, 0
    s_cselect_b32 s44, s12, s14
    s_cselect_b32 s45, s13, s15
    s_mov_b32 s46, 1835008
    s_mov_b32 s47, 0x20000
    s_movk_i32 s48, 3584
    s_lshl_b32 s49, s19, 8
    s_cmp_lt_u32 s19, 14
    s_cbranch_scc1 k1_isglu
    s_mov_b32 s44, s24
    s_mov_b32 s45, s25
    s_mov_b32 s46, 524288
    s_movk_i32 s48, 1024
    s_sub_u32 s49, s19, 14
    s_lshl_b32 s49, s49, 9
    s_lshl_b32 s50, s23, 8
    s_add_u32 s49, s49, s50
    k1_isglu:
    """)
    a(f"""
    v_lshrrev_b32 v8, 4, v2
    v_and_b32 v6, 15, v2
    v_lshrrev_b32 v6, 1, v6
    v_lshlrev_b32 v10, 1, v8
    v_xor_b32 v6, v6, v10
    v_lshlrev_b32 v6, 5, v6
    v_and_b32 v10, 1, v2
    v_lshlrev_b32 v10, 4, v10
    v_add_u32 v6, v6, v10
    v_mul_lo_u32 v8, v8, s48
    v_add_u32 v6, v6, v8
    v_add_u32 v{VD}, s49, v6
    s_lshr_b32 s50, s3, 1
    s_lshl_b32 s50, s50, 3
    s_mul_i32 s52, s50, s48
    s_lshl_b32 s53, s50, 8
    s_lshl_b32 s54, s23, 13
    s_add_u32 s53, s53, s54
    s_lshl_b32 s54, s48, 2
    s_lshl_b32 s55, s48, 5
    s_lshl_b32 s58, s58, 1
    """)
    RING = [8, 9, 0, 1, 2, 3, 4, 5, 6]
    SPARE = 7 * 16384
    a(f"v_add_u32 v22, s54, v{VD}")
    def dma_one(c, u):
        if u == 0:
            a(f"s_xor_b32 s56, s58, {c}")
            a("s_mul_i32 s56, s56, s55")
        a(f"s_add_u32 m0, s53, {RING[c % 9]*16384 + u*1024}")
        if u == 0: a("s_add_u32 s56, s56, s52")
        else: a("s_nop 0")
        a.vmem(f"buffer_load_dwordx4 v{VD if u == 0 else 22}, s[44:47], s56 offen lds", f"c{c}")
    a(f"""
    v_lshrrev_b32 v10, 4, v2
    v_and_b32 v6, 15, v2
    v_lshrrev_b32 v31, 2, v6
    v_and_b32 v6, 3, v6
    v_lshrrev_b32 v30, 1, v10
    v_lshlrev_b32 v30, 3, v30
    v_add_u32 v30, v30, v31
    v_lshlrev_b32 v30, 8, v30
    v_lshlrev_b32 v6, 3, v6
    v_add_u32 v30, v30, v6
    v_and_b32 v10, 1, v10
    v_lshlrev_b32 v10, 5, v10
    v_add_u32 v30, v30, v10
    s_lshl_b32 s57, s21, 1
    v_xor_b32 v10, s57, v31
    v_lshlrev_b32 v10, 6, v10
    v_add_u32 v{TR}, v30, v10
    s_add_u32 s57, s57, 1
    v_xor_b32 v10, s57, v31
    v_lshlrev_b32 v10, 6, v10
    v_add_u32 v{TR+1}, v30, v10
    v_add_u32 v{TR+2}, 0x10000, v{TR}
    v_add_u32 v{TR+3}, 0x10000, v{TR+1}
    v_add_u32 v{TR+4}, 0x20000, v{TR}
    v_add_u32 v{TR+5}, 0x20000, v{TR+1}
    v_and_b32 v10, 31, v2
    v_lshrrev_b32 v6, 5, v2
    v_and_b32 v31, 15, v2
    v_xor_b32 v6, v6, v31
    s_lshl_b32 s57, s20, 15
    v_lshlrev_b32 v10, 10, v10
    v_add_u32 v10, s57, v10
    """)
    for tt in range(8):
        a(f"v_xor_b32 v31, {2*tt}, v6")
        a(f"v_lshl_add_u32 v{ACC+tt}, v31, 4, v10")
    a(f"""
    s_mov_b32 s26, 0x3f803f80
    s_mov_b32 s27, 0xffff0000
    v_mov_b32 v24, 0
    v_mov_b32 v25, 0
    v_mov_b32 v26, 0
    v_mov_b32 v27, 0
    s_lshl_b32 s57, s21, 6
    """)
    a.stamp()
    a.wait_vm("x")
    a("s_barrier")
    a.stamp()
    for c in (0, 1):
        for u in range(2): dma_one(c, u)
    for c in range(2, 2 + BWARM):
        a(f"s_xor_b32 s56, s58, {c}")
        a("s_mul_i32 s56, s56, s55")
        a("s_add_u32 s56, s56, s52")
        a.vmem(f"buffer_load_dwordx4 v[{PFD}:{PFD+3}], v{VD}, s[44:47], s56 offen", "bw")
        a.vmem(f"buffer_load_dwordx4 v[{PFD}:{PFD+3}], v22, s[44:47], s56 offen", "bw")
    for t in range(32):
        a(f"ds_read_b128 v[{A0+4*t}:{A0+4*t+3}], v{ACC + t%8} offset:{(t//8)*256}")
    a.wait_vm("w")
    for i in range(4):
        a(f"v_lshl_or_b32 v{WL+12+i}, v{WL+4+i}, 16, v{WL+i}")
    a(f"""
    s_cmp_eq_u32 s3, 7
    s_cbranch_scc0 k1_nosp2
    v_lshl_or_b32 v{WL+8}, v{WL+9}, 16, v{WL+8}
    buffer_store_dword v{WL+8}, v{WL+10}, s[40:43], 0 offen
    v_mov_b32 v4, 0
    v_mov_b32 v5, 0x7fffff00
    v_cmp_eq_u32 vcc, 0, v2
    s_lshl_b32 s51, s2, 4
    s_add_u32 s51, s51, {WS_FL}
    v_cndmask_b32 v5, v5, v4, vcc
    buffer_store_dword v4, v5, s[40:43], s51 offen
    k1_nosp2:
    """)
    a("s_waitcnt lgkmcnt(14)")
    a("s_set_gpr_idx_on s57, gpr_idx(SRC0,SRC1)")
    for t in range(16):
        if t % 2 == 0 and t > 0:
            a(f"s_waitcnt lgkmcnt({max(14 - t, 0)})")
        for r in range(4):
            reg = A0 + 4*t + r
            a(f"v_dot2_f32_bf16 v{24 + r%2}, v{reg}, s26, v{24 + r%2}")
            a(f"v_dot2_f32_bf16 v{26 + r%2}, v{reg}, v{reg}, v{26 + r%2}")
    a("s_set_gpr_idx_off")
    a(f"""
    s_waitcnt lgkmcnt(0)
    s_barrier
    v_add_f32 v24, v24, v25
    v_add_f32 v25, v26, v27
    v_mov_b32 v26, v24
    v_mov_b32 v27, v25
    s_lshl_b32 s57, s3, 9
    s_add_u32 s57, s57, {SPARE + 4096}
    v_lshlrev_b32 v10, 3, v2
    v_permlane32_swap_b32 v24, v26
    v_permlane32_swap_b32 v25, v27
    v_add_u32 v10, s57, v10
    v_add_f32 v24, v24, v26
    v_add_f32 v25, v25, v27
    v_xor_b32 v6, 0x800, v10
    ds_write_b64 v10, v[24:25]
    s_lshl_b32 s57, s3, 2
    s_add_u32 s57, s57, {SPARE}
    v_mov_b32 v{VFA}, s57
    v_mov_b32 v{VPG}, 0
    ds_write_b32 v{VFA}, v{VPG}
    v_and_b32 v{VFL}, 7, v2
    v_xor_b32 v4, s3, v{VFL}
    v_lshlrev_b32 v4, 4, v4
    v_lshl_add_u32 v4, v2, 7, v4
    v_add_u32 v4, {SPARE + 8192}, v4
    ds_write_b128 v4, v[{WL+12}:{WL+15}]
    v_lshlrev_b32 v{VFL}, 2, v{VFL}
    v_add_u32 v{VFL}, {SPARE}, v{VFL}
    """)
    a.stamp()
    pend = [(c, u) for c in range(2, 16) for u in range(2)]
    for _ in range(2*K1_PRE): dma_one(*pend.pop(0))
    getpc_tab(a, 32, "tab_G")
    a(f"""
    s_mov_b32 s34, {524288 + TSZ}
    s_mov_b32 s28, s60
    s_mov_b32 s29, s61
    s_mov_b32 s30, {1792*1024}
    s_lshr_b32 s50, s2, 3
    s_lshl_b32 s50, s50, 3
    s_add_u32 s50, s50, s3
    s_mul_i32 s62, s50, 7168
    s_mul_i32 s63, s50, 3072
    v_lshrrev_b32 v4, 3, v2
    v_and_b32 v5, 7, v2
    v_xor_b32 v30, v4, v5
    v_lshlrev_b32 v30, 4, v30
    v_lshl_add_u32 v30, v4, 7, v30
    s_lshl_b32 s57, s3, 10
    s_add_u32 s57, s57, {SPARE + 8192}
    v_add_u32 v30, s57, v30
    v_lshlrev_b32 v5, 4, v5
    v_lshl_add_u32 v5, v4, 13, v5
    s_and_b32 s57, s2, 3
    s_lshl_b32 s57, s57, 3
    s_add_u32 s57, s57, s3
    s_lshl_b32 s57, s57, 16
    s_lshr_b32 s51, s2, 2
    s_lshl_b32 s51, s51, 7
    s_add_u32 s57, s57, s51
    s_add_u32 s51, s57, {WS_W}
    """)
    a.stamp()
    vm_save = list(a.vm); nst_save = a.nst; pend_save = list(pend)

    def p2(i, r):
        reg = A0 + i*4 + r
        t0, t1 = PT + 2*r, PT + 2*r + 1
        return [f"v_lshlrev_b32 v{t0}, 16, v{reg}", f"v_and_b32 v{t1}, s27, v{reg}",
                f"v_add_f32 v{t0}, v{VNM}, v{t0}", f"v_add_f32 v{t1}, v{VNM}, v{t1}",
                f"v_cvt_pk_bf16_f32 v{reg}, v{t0}, v{t1}"]
    def p2_sched(i):
        o = [p2(i, r) for r in range(4)]
        seq = [o[0][0], o[0][1], o[1][0], o[1][1], o[2][0],
               o[2][1], o[3][0], o[3][1], o[0][2], o[0][3],
               o[1][2], o[1][3], o[2][2], o[2][3], o[3][2],
               o[3][3], o[0][4], o[1][4], o[2][4], o[3][4]]
        return [seq[5*g:5*g+5] for g in range(4)]

    def mainloop(dft):
        a.vm = list(vm_save); a.nst = nst_save
        pend = list(pend_save)
        lab = "d" if dft else "g"
        def reads(i, buf):
            c, s_ = i // 2, i % 2
            pos = RING[c % 9] * 16384
            win, base = pos >> 16, pos & 0xffff
            for P in range(2):
                for T in range(2):
                    fr = BF + buf*16 + (P*2+T)*4
                    for t in range(2):
                        off = base + P*8192 + (16*s_ + 4*t)*256
                        a(f"ds_read_b64_tr_b16 v[{fr+2*t}:{fr+2*t+1}], v{TR+2*win+T} offset:{off}")
        def mfma(i, buf, tile):
            areg = A0 + 4*i
            fr = BF + buf*16 + tile*4
            acc = ACC + tile*16
            cin = "0" if i == 0 else f"v[{acc}:{acc+15}]"
            if dft:
                a(f"v_mfma_f32_32x32x16_bf16 v[{acc}:{acc+15}], v[{areg}:{areg+3}], v[{fr}:{fr+3}], {cin}")
            else:
                a(f"v_mfma_f32_32x32x16_bf16 v[{acc}:{acc+15}], v[{fr}:{fr+3}], v[{areg}:{areg+3}], {cin}")
        a.wait_vm("c1")
        a("s_waitcnt lgkmcnt(0)")
        a("s_barrier")
        a.stamp()
        a("ds_read_b64 v[26:27], v6")
        a(f"ds_read_b128 v[{WL}:{WL+3}], v30")
        reads(0, 0)
        a(f"""
        s_waitcnt lgkmcnt(8)
        v_add_f32 v24, v24, v26
        v_add_f32 v25, v25, v27
        v_mul_f32 v24, 0x3b000000, v24
        v_mul_f32 v25, 0x3b000000, v25
        v_fma_f32 v{VVAR}, -v24, v24, v25
        v_cvt_pk_bf16_f32 v27, v24, v24
        v_lshlrev_b32 v27, 16, v27
        v_sub_f32 v{VNM}, 0, v27
        v_mul_f32 v29, v24, v24
        v_mul_f32 v30, 0x43800000, v{VVAR}
        v_cmp_gt_f32 vcc, v29, v30
        """)
        a.vmem(f"buffer_store_dwordx4 v[{WL}:{WL+3}], v5, s[40:43], s51 offen", "ws")
        a(f"""
        s_cbranch_vccz k1_fast{lab}
        v_mov_b32 v28, 0
        v_mov_b32 v29, 0
        s_mov_b32 s56, 0
        k1_slow{lab}:
        s_set_gpr_idx_on s56, gpr_idx(SRC1)
        v_lshlrev_b32 v30, 16, v{A0}
        v_and_b32 v31, s27, v{A0}
        s_set_gpr_idx_off
        v_add_f32 v30, v{VNM}, v30
        v_add_f32 v31, v{VNM}, v31
        v_fma_f32 v28, v30, v30, v28
        v_fma_f32 v29, v31, v31, v29
        s_add_u32 s56, s56, 1
        s_cmp_lt_u32 s56, 128
        s_cbranch_scc1 k1_slow{lab}
        v_add_f32 v28, v28, v29
        v_mov_b32 v29, v28
        v_sub_f32 v26, v24, v27
        s_nop 0
        v_permlane32_swap_b32 v28, v29
        v_add_f32 v28, v28, v29
        v_mul_f32 v28, 0x3b000000, v28
        v_fma_f32 v{VVAR}, -v26, v26, v28
        k1_fast{lab}:
        """)
        for g in p2_sched(0):
            for ins in g: a(ins)
        a.stamp()
        limit = 8
        npf = 0
        for i in range(32):
            c, s_ = i // 2, i % 2
            buf = i & 1
            if s_ == 0:
                if c >= 1 and c < 15: a(f"ds_read_b32 v0, v{VFL}")
                reads(i + 1, buf ^ 1)
                a("s_waitcnt lgkmcnt(8)")
                if c + 2 < 16:
                    a.wait_vm(f"c{c+2}")
                    a(f"v_mov_b32 v{VPG}, {c+1}")
                    a(f"ds_write_b32 v{VFA}, v{VPG}")
            else:
                if i + 1 < 32:
                    if c >= 1:
                        a(f"""
                        k1_spin{lab}{c}:
                        v_cmp_gt_u32 vcc, {c}, v0
                        s_cbranch_vccz k1_ok{lab}{c}
                        ds_read_b32 v0, v{VFL}
                        s_waitcnt lgkmcnt(0)
                        s_branch k1_spin{lab}{c}
                        k1_ok{lab}{c}:
                        """)
                        limit = c + 7
                    reads(i + 1, buf ^ 1)
                    a("s_waitcnt lgkmcnt(8)")
                else:
                    a("s_waitcnt lgkmcnt(0)")
            groups = p2_sched(i + 1) if (i + 1 < 32 and not X_NOP2) else [[], [], [], []]
            for tile in range(4):
                mfma(i, buf, tile)
                for ins in groups[tile]: a(ins)
                if tile in (0, 2) and pend and pend[0][0] <= limit:
                    dma_one(*pend.pop(0))
                if PREF and tile == 1 and i >= PFS and npf < 10:
                    if npf < 7:
                        a.vmem(f"buffer_load_dwordx4 v[{PFD}:{PFD+3}], v{VPF}, s[28:31], s62 offen offset:{(npf % 4)*1024}", "pf")
                        if npf == 3: a("s_add_u32 s62, s62, 4096")
                    else:
                        a.vmem(f"buffer_load_dwordx4 v[{PFD}:{PFD+3}], v{VPF}, s[32:35], s63 offen offset:{(npf-7)*1024}", "pf")
                    npf += 1
            if i % 8 == 7 and i < 31: a.stamp()
        assert not pend
        a(f"""
        v_max_f32 v28, 0, v{VVAR}
        v_cvt_pk_bf16_f32 v28, v28, v28
        v_lshlrev_b32 v28, 16, v28
        v_add_f32 v28, 0x3727c5ac, v28
        v_cvt_pk_bf16_f32 v28, v28, v28
        v_lshlrev_b32 v28, 16, v28
        v_sqrt_f32 v28, v28
        s_nop 0
        v_cvt_pk_bf16_f32 v28, v28, v28
        v_lshlrev_b32 v28, 16, v28
        v_rcp_f32 v11, v28
        s_nop 4
        """)
        a.stamp()
    a("""
    s_cmp_lt_u32 s19, 14
    s_cbranch_scc0 k1_dft
    """)
    mainloop(False)
    a(f"""
    s_mul_i32 s50, s22, 112
    s_lshl_b32 s51, s19, 3
    s_add_u32 s50, s50, s51
    s_lshl_b32 s51, s21, 2
    s_add_u32 s50, s50, s51
    s_lshl_b32 s50, s50, 10
    s_add_u32 s50, s50, {WS_H}
    v_lshlrev_b32 v3, 4, v2
    v_mov_b32 v10, v11
    """)
    for T in range(2):
        G = ACC + T*16; U = ACC + 32 + T*16
        O = BF + T*8; Q = A0 + T*16
        for p in range(8):
            a(f"v_pk_mul_f32 v[{G+2*p}:{G+2*p+1}], v[{G+2*p}:{G+2*p+1}], v[10:11]")
            a(f"v_pk_mul_f32 v[{U+2*p}:{U+2*p+1}], v[{U+2*p}:{U+2*p+1}], v[10:11]")
        for p in range(16):
            a(f"v_max_f32 v{G+p}, 0, v{G+p}")
        for p in range(8):
            a(f"v_cvt_pk_bf16_f32 v{Q+p}, v{G+2*p}, v{G+2*p+1}")
            a(f"v_cvt_pk_bf16_f32 v{Q+8+p}, v{U+2*p}, v{U+2*p+1}")
        for p in range(8):
            a(f"v_lshlrev_b32 v{G+2*p}, 16, v{Q+p}")
            a(f"v_and_b32 v{G+2*p+1}, s27, v{Q+p}")
            a(f"v_lshlrev_b32 v{U+2*p}, 16, v{Q+8+p}")
            a(f"v_and_b32 v{U+2*p+1}, s27, v{Q+8+p}")
        for p in range(8):
            a(f"v_pk_mul_f32 v[{G+2*p}:{G+2*p+1}], v[{G+2*p}:{G+2*p+1}], v[{U+2*p}:{U+2*p+1}]")
        for p in range(8):
            a(f"v_cvt_pk_bf16_f32 v{O+p}, v{G+2*p}, v{G+2*p+1}")
        a(f"buffer_store_dwordx4 v[{O}:{O+3}], v3, s[40:43], s50 offen offset:{T*2048}")
        a(f"buffer_store_dwordx4 v[{O+4}:{O+7}], v3, s[40:43], s50 offen offset:{T*2048+1024}")
    a.stamp()
    if STAMP: a("s_waitcnt vmcnt(0)")
    a.stamp()
    a.stamp_store(0)
    a("s_endpgm")
    a.raw("k1_dft:")
    mainloop(True)
    a("""
    v_lshrrev_b32 v3, 5, v2
    v_lshlrev_b32 v3, 4, v3
    """)
    for i in range(16):
        a(f"v_add_u32 v4, {4*(8*(i>>2) + (i&3))}, v3")
        a(f"ds_bpermute_b32 v{BF+i}, v4, v11")
    a(f"""
    v_and_b32 v4, 31, v2
    v_lshrrev_b32 v5, 5, v2
    s_lshl_b32 s50, s20, 2
    v_add_u32 v5, s50, v5
    v_and_b32 v6, 15, v2
    v_xor_b32 v5, v5, v6
    v_lshlrev_b32 v5, 4, v5
    v_lshl_add_u32 v5, v4, 8, v5
    s_lshl_b32 s50, s21, 14
    v_add_u32 v5, s50, v5
    v_xor_b32 v6, 32, v5
    s_waitcnt lgkmcnt(0)
    s_barrier
    """)
    for P in range(2):
        for T in range(2):
            acc = ACC + (P*2+T)*16
            for p in range(8):
                a(f"v_pk_mul_f32 v[{acc+2*p}:{acc+2*p+1}], v[{acc+2*p}:{acc+2*p+1}], v[{BF+2*p}:{BF+2*p+1}]")
            O = A0 + 32 + (P*2+T)*8
            for p in range(8):
                a(f"v_cvt_pk_f16_f32 v{O+p}, v{acc+2*p}, v{acc+2*p+1}")
            a("s_nop 1")
            for q in (0, 2):
                a(f"v_permlane32_swap_b32 v{O+2*q}, v{O+2*q+2}")
                a(f"v_permlane32_swap_b32 v{O+2*q+1}, v{O+2*q+3}")
            a(f"ds_write_b128 v5, v[{O}:{O+3}] offset:{(128*P + 32*T)*256}")
            a(f"ds_write_b128 v6, v[{O+4}:{O+7}] offset:{(128*P + 32*T)*256}")
    a(f"""
    v_lshrrev_b32 v4, 4, v2
    v_and_b32 v5, 15, v2
    s_lshl_b32 s50, s3, 13
    v_lshlrev_b32 v3, 4, v5
    v_lshl_add_u32 v3, v4, 12, v3
    v_xor_b32 v5, v5, v4
    v_lshlrev_b32 v4, 8, v4
    v_add_u32 v4, s50, v4
    s_sub_u32 s50, s19, 14
    s_lshl_b32 s50, s50, 8
    s_lshl_b32 s51, s3, 5
    s_add_u32 s50, s50, s51
    s_lshl_b32 s50, s50, 12
    s_lshl_b32 s51, s18, 8
    s_add_u32 s50, s50, s51
    s_add_u32 s50, s50, {WS_Y}
    """)
    for j in range(4):
        a(f"v_xor_b32 v6, {4*j}, v5")
        a(f"v_lshl_add_u32 v{16+j}, v6, 4, v4")
    a("s_waitcnt lgkmcnt(0)")
    a("s_barrier")
    for j in range(8):
        a(f"ds_read_b128 v[{ACC+4*j}:{ACC+4*j+3}], v{16 + j%4} offset:{j*1024}")
    for j in range(8):
        a(f"s_waitcnt lgkmcnt({7-j})")
        a(f"buffer_store_dwordx4 v[{ACC+4*j}:{ACC+4*j+3}], v3, s[40:43], s50 offen")
        a("s_add_u32 s50, s50, 16384")
    a.stamp()
    if STAMP: a("s_waitcnt vmcnt(0)")
    a.stamp()
    a.stamp_store(0)
    a.raw("k1_end:")
    a("s_endpgm")
    return a.text()

TE1, TE2, TE3, TE4, TT1, TT2, TSZ = 0, 4096, 20480, 36864, 40960, 49152, 57344
def small_tables():
    buf = np.zeros(TSZ // 2, np.uint16)
    l = np.arange(64); c = l % 16; g = l // 16; j = np.arange(8)
    for t in range(2):
        ang = -2*np.pi*((8*g[:,None]+j[None,:])*(16*t+c)[:,None] % 32)/32
        buf[(TE1 + (0*2+t)*1024)//2:][:512] = f16(np.cos(ang)/8).ravel()
        buf[(TE1 + (1*2+t)*1024)//2:][:512] = f16(np.sin(ang)/8).ravel()
    for w in range(4):
        for st in range(2):
            ang = -2*np.pi*((32*st+8*g[:,None]+j[None,:])*(16*w+c)[:,None] % 64)/64
            buf[(TE2 + ((w*2+0)*2+st)*1024)//2:][:512] = f16(np.cos(ang)/8).ravel()
            buf[(TE2 + ((w*2+1)*2+st)*1024)//2:][:512] = f16(np.sin(ang)/8).ravel()
            buf[(TE3 + ((w*2+0)*2+st)*1024)//2:][:512] = bf16(np.cos(-ang)/8).ravel()
            buf[(TE3 + ((w*2+1)*2+st)*1024)//2:][:512] = bf16(np.sin(-ang)/8).ravel()
    sig = 16*(j[None,:]//4) + 4*g[:,None] + (j[None,:] % 4)
    for tp in range(2):
        ang = 2*np.pi*((sig*(16*tp+c)[:,None]) % 32)/32
        buf[(TE4 + (0*2+tp)*1024)//2:][:512] = bf16(np.cos(ang)/8).ravel()
        buf[(TE4 + (1*2+tp)*1024)//2:][:512] = bf16(np.sin(ang)/8).ravel()
    for w in range(4):
        for e in range(8):
            t, i = e // 4, e % 4
            a1 = -2*np.pi*(((16*w+4*g+i)*(16*t+c)) % 2048)/2048
            a2 = 2*np.pi*(((16*w+c)*(16*t+4*g+i)) % 2048)/2048
            for (base, an) in ((TT1, a1), (TT2, a2)):
                o = (base + (w*2 + e//4)*1024)//2 + l*8 + (e % 4)*2
                buf[o] = f16(np.cos(an)); buf[o+1] = f16(np.sin(an))
    return buf

K3_NS = 5
CSTR = int(os.environ.get('CSTR','2'))
NUP = int(os.environ.get('NUP','16'))
POLLC = int(os.environ.get('POLLC','13'))
NIDLE = int(os.environ.get('NIDLE','2'))
NZB = int(os.environ.get('NZB','1'))
LOADALL = os.environ.get('LOADALL','1') == '1'
CPRIO = int(os.environ.get('CPRIO','2'))
LATEC = int(os.environ.get('LATEC','1'))
def gen_k23_main():
    a = Asm()
    a.raw(".p2align 8\nk23_kernel:")
    a("""
    s_cmp_ge_u32 s2, 256
    s_cbranch_scc1 k23_end
    s_load_dwordx2 s[4:5], s[0:1], 0
    s_load_dwordx4 s[8:11], s[0:1], 48
    s_load_dwordx2 s[14:15], s[0:1], 72
    v_lshrrev_b32 v1, 6, v0
    v_and_b32 v2, 63, v0
    s_nop 0
    v_readfirstlane_b32 s3, v1
    v_and_b32 v3, 15, v2
    v_lshrrev_b32 v4, 4, v2
    s_mov_b32 s48, 0x80008000
    s_mov_b32 s49, 0xffff0000
    s_cmp_ge_u32 s3, 4
    s_cbranch_scc1 k23_conv
    """)
    SB = 131072
    NCB = 5 + NIDLE + NZB
    getpc_tab(a, 24, "tab_G")
    srd(a, 44, "s24", "s25", 524288)
    if os.environ.get("K3_MAP", "0") == "0":
        a("""
    s_and_b32 s16, s2, 7
    s_lshr_b32 s17, s2, 3
    s_lshr_b32 s18, s16, 1
    s_lshl_b32 s18, s18, 3
    s_and_b32 s19, s17, 7
    s_add_u32 s18, s18, s19
    s_lshl_b32 s58, s19, 1
    s_and_b32 s19, s16, 1
    s_lshl_b32 s19, s19, 2
    s_lshr_b32 s20, s17, 3
    s_add_u32 s19, s19, s20
    s_lshl_b32 s20, s20, 2
    s_add_u32 s58, s58, s20
    """)
    else:
        a("""
    s_and_b32 s16, s2, 7
    s_lshr_b32 s17, s2, 3
    s_lshl_b32 s18, s16, 2
    s_and_b32 s19, s17, 3
    s_add_u32 s18, s18, s19
    s_lshl_b32 s58, s19, 2
    s_lshr_b32 s19, s17, 2
    s_lshl_b32 s20, s19, 1
    s_add_u32 s58, s58, s20
    """)
    GA = 16; XR = 32; PV = 40; VO = 44; VF, VW, VZ = 45, 46, 47
    ACG, ACS, FB = 64, 80, 96
    a(f"""
    s_cmp_ge_u32 s58, 14
    s_cselect_b32 s20, 14, 0
    s_sub_u32 s58, s58, s20
    s_add_u32 s12, s18, s19
    s_and_b32 s12, s12, 3
    s_and_b32 s20, s3, 1
    s_lshr_b32 s21, s3, 1
    s_lshl_b32 s22, s18, 1
    s_add_u32 s22, s22, s21
    v_lshlrev_b32 v{VF}, 4, v2
    v_lshrrev_b32 v6, 3, v2
    v_and_b32 v5, 7, v2
    v_lshrrev_b32 v5, 1, v5
    v_and_b32 v1, 2, v6
    v_xor_b32 v5, v5, v1
    v_lshlrev_b32 v5, 5, v5
    v_and_b32 v1, 1, v2
    v_lshl_add_u32 v5, v1, 4, v5
    v_lshl_add_u32 v{VW}, v6, 10, v5
    v_lshl_add_u32 v{VZ}, v6, 12, v5
    s_lshl_b32 s27, s19, 7
    v_add_u32 v{VW}, s27, v{VW}
    s_lshl_b32 s27, s18, 7
    s_add_u32 s27, s27, {WS_Z}
    v_add_u32 v{VZ}, s27, v{VZ}
    s_mul_i32 s50, s22, 112
    s_lshl_b32 s27, s20, 2
    s_add_u32 s50, s50, s27
    s_lshl_b32 s50, s50, 10
    s_add_u32 s50, s50, {WS_H}
    s_lshl_b32 s51, s19, 1
    s_add_u32 s51, s51, s21
    s_lshl_b32 s51, s51, 5
    s_add_u32 s51, s51, s27
    s_lshl_b32 s51, s51, 10
    s_lshl_b32 s52, s3, 12
    s_add_u32 s53, s52, 16384
    s_lshl_b32 s54, s3, 15
    s_lshl_b32 s55, s3, 17
    s_mov_b32 s59, {WS_FL}
    s_waitcnt lgkmcnt(0)
    """)
    a.stamp()
    srd(a, 40, "s14", "s15", WS_SIZE)
    srd(a, 32, "s8", "s9", 1792*1024)
    slot_of = {}
    free_slots = [0, 1, 2, 3]
    def dma_one(c, u):
        if u == 0:
            slot_of[c] = free_slots.pop(0)
            if c < 14:
                a(f"s_add_u32 s57, s58, {c}")
                a("s_cmp_ge_u32 s57, 14")
                a("s_cselect_b32 s56, 14, 0")
                a("s_sub_u32 s57, s57, s56")
                a("s_lshl_b32 s62, s57, 13")
                a("s_add_u32 s62, s62, s50")
                a("s_lshl_b32 s63, s57, 17")
                a("s_add_u32 s63, s63, s54")
            else:
                a(f"s_xor_b32 s57, s12, {c-14}")
                a("s_lshl_b32 s62, s57, 13")
                a("s_add_u32 s62, s62, s51")
                a("s_lshl_b32 s63, s57, 19")
                a("s_add_u32 s63, s63, s55")
        st = slot_of[c]
        uu = u // 2
        if u % 2 == 0:
            a(f"s_add_u32 m0, s52, {st*32768}")
            a("s_nop 0")
            sr = "s[40:43]" if c < 14 else "s[44:47]"
            a.vmem(f"buffer_load_dwordx4 v{VF}, {sr}, s62 offen offset:{uu*1024} lds", f"c{c}")
        else:
            a(f"s_add_u32 m0, s53, {st*32768 + uu*1024}")
            if c < 14:
                a(f"s_add_u32 s56, s63, {8*uu*1024}")
                a.vmem(f"buffer_load_dwordx4 v{VW}, s[32:35], s56 offen lds", f"c{c}")
            else:
                a(f"s_add_u32 s56, s63, {8*uu*4096}")
                a.vmem(f"buffer_load_dwordx4 v{VZ}, s[40:43], s56 offen sc1 lds", f"c{c}")
    pend = [(c, u) for c in range(18) for u in range(8)]
    for _ in range(8): dma_one(*pend.pop(0))
    a("s_barrier")
    for _ in range(NUP): dma_one(*pend.pop(0))
    srd(a, 36, "s10", "s11", 2048*1024)
    srd(a, 28, "s4", "s5", 2048*1024)
    a(f"""
    v_lshrrev_b32 v{PV}, 2, v3
    v_and_b32 v{PV+1}, 3, v3
    v_lshrrev_b32 v{PV+2}, 1, v4
    v_lshl_add_u32 v{PV+2}, v{PV+2}, 2, v{PV}
    v_lshlrev_b32 v{PV+2}, 7, v{PV+2}
    v_lshl_add_u32 v{PV+2}, v{PV+1}, 3, v{PV+2}
    v_add_u32 v{PV+2}, 16384, v{PV+2}
    v_and_b32 v{PV+3}, 1, v4
    v_and_b32 v{PV}, 2, v{PV}
    s_lshl_b32 s26, s20, 1
    v_add_u32 v{PV+1}, s26, v{PV+3}
    v_xor_b32 v{PV+1}, v{PV+1}, v{PV}
    v_lshl_add_u32 v{GA}, v{PV+1}, 5, v{PV+2}
    s_lshl_b32 s26, s21, 1
    v_add_u32 v{PV+1}, s26, v{PV+3}
    v_xor_b32 v{PV+1}, v{PV+1}, v{PV}
    v_lshl_add_u32 v{GA+1}, v{PV+1}, 5, v{PV+2}
    s_lshl_b32 s26, s21, 13
    v_add_u32 v{GA+2}, s26, v{VF}
    s_lshl_b32 s26, s20, 13
    v_add_u32 v{GA+3}, s26, v{VF}
    """)
    for k in range(4):
        a(f"v_add_u32 v{GA+4+k}, 0x10000, v{GA+k}")
        a(f"v_add_u32 v{GA+8+k}, 0x20000, v{GA+k}")
    a(f"""
    v_and_b32 v{VO}, 31, v2
    v_lshlrev_b32 v{VO}, 16, v{VO}
    v_lshrrev_b32 v1, 5, v2
    v_lshl_add_u32 v{VO}, v1, 3, v{VO}
    s_lshl_b32 s23, s22, 10
    s_lshl_b32 s26, s19, 7
    s_add_u32 s23, s23, s26
    s_lshl_b32 s26, s20, 6
    s_add_u32 s23, s23, s26
    v_add_u32 v{VO}, s23, v{VO}
    """)
    a.stamp()
    DEPTH = 4
    steps = [(c, s) for c in range(18) for s in range(8)]
    def reads(i):
        c, s = steps[i]
        if s == 0:
            a.wait_vm(f"c{c}")
            a("s_barrier")
            if c >= 2: free_slots.append(slot_of[c-2])
            if c == NCB - 2 - NZB: free_slots.append(4)
            if c == NCB - 1:
                a(f"""
                s_cmp_eq_u32 s3, 0
                s_cbranch_scc0 k23_nosig
                s_lshl_b32 s26, s2, 4
                s_add_u32 s26, s26, {WS_FL}
                v_mov_b32 v1, 1
                v_mov_b32 v7, 0
                s_mov_b64 exec, 1
                buffer_store_dword v1, v7, s[40:43], s26 offen sc1
                s_mov_b64 exec, -1
                k23_nosig:
                """)
                print("flag at barrier", c, file=sys.stderr)
            if c % 3 == 0: a.stamp()
        st = slot_of[c]
        base = (st & 1) * 32768
        hi = 4 * (st // 2)
        dn = c < 14
        fb = FB + (i % DEPTH) * 8
        a.lds(f"ds_read_b128 v[{fb}:{fb+3}], v{GA+(2 if dn else 3)+hi} offset:{base + s*1024}", f"g{i}")
        for t in range(2):
            a.lds(f"ds_read_b64_tr_b16 v[{fb+4+2*t}:{fb+5+2*t}], v{GA+(0 if dn else 1)+hi} offset:{base + (16*s + 8*t)*128}", f"g{i}")
    def mfma(i):
        c, s = steps[i]
        fb = FB + (i % DEPTH) * 8
        if c < 14:
            cin = "0" if i == 0 else f"v[{ACG}:{ACG+15}]"
            a(f"v_mfma_f32_32x32x16_bf16 v[{ACG}:{ACG+15}], v[{fb+4}:{fb+7}], v[{fb}:{fb+3}], {cin}")
        else:
            cin = "0" if (c == 14 and s == 0) else f"v[{ACS}:{ACS+15}]"
            a(f"v_mfma_f32_32x32x16_bf16 v[{ACS}:{ACS+15}], v[{fb}:{fb+3}], v[{fb+4}:{fb+7}], {cin}")
    def silu():
        for p in range(8):
            g = ACG + 2*p
            t4, t5 = 8 + 2*(p % 2), 9 + 2*(p % 2)
            a(f"""
            v_cvt_pk_bf16_f32 v{t4}, v{g}, v{g+1}
            v_lshlrev_b32 v{g}, 16, v{t4}
            v_and_b32 v{g+1}, s49, v{t4}
            v_mul_f32 v{t4}, 0xbfb8aa3b, v{g}
            v_mul_f32 v{t5}, 0xbfb8aa3b, v{g+1}
            v_exp_f32 v{t4}, v{t4}
            v_exp_f32 v{t5}, v{t5}
            """)
            yield
            a(f"""
            v_add_f32 v{t4}, 1.0, v{t4}
            v_add_f32 v{t5}, 1.0, v{t5}
            v_rcp_f32 v{t4}, v{t4}
            v_rcp_f32 v{t5}, v{t5}
            """)
            yield
            a(f"""
            v_mul_f32 v{g}, v{g}, v{t4}
            v_mul_f32 v{g+1}, v{g+1}, v{t5}
            v_cvt_pk_bf16_f32 v{t4}, v{g}, v{g+1}
            v_lshlrev_b32 v{g}, 16, v{t4}
            v_and_b32 v{g+1}, s49, v{t4}
            """)
            yield
    sl = silu()
    polled = False
    for k in range(DEPTH - 1): reads(k)
    for i in range(144):
        c, s = steps[i]
        if i + DEPTH - 1 < 144: reads(i + DEPTH - 1)
        a.wait_lds(f"g{i}")
        mfma(i)
        nd = 2 if len(free_slots) > 0 else 1
        for _ in range(nd):
            if pend and (pend[0][1] > 0 or free_slots):
                if pend[0] == (14, 1):
                    a.wait_vm("poll")
                    a(f"""
                    s_mov_b32 s27, 0
                    k23_spin:
                    v_and_b32 v{PV}, v{PV}, v{PV+1}
                    v_and_b32 v{PV+2}, v{PV+2}, v{PV+3}
                    v_and_b32 v{PV}, v{PV}, v{PV+2}
                    v_cmp_ne_u32 vcc, 1, v{PV}
                    s_cbranch_vccz k23_go
                    s_add_u32 s27, s27, 1
                    s_cmp_ge_u32 s27, 0x4000
                    s_cbranch_scc1 k23_go
                    s_sleep 8
                    buffer_load_dword v{PV}, v{VF}, s[40:43], s59 offen sc1
                    buffer_load_dword v{PV+1}, v{VF}, s[40:43], s59 offen offset:1024 sc1
                    buffer_load_dword v{PV+2}, v{VF}, s[40:43], s59 offen offset:2048 sc1
                    buffer_load_dword v{PV+3}, v{VF}, s[40:43], s59 offen offset:3072 sc1
                    s_waitcnt vmcnt(0)
                    s_branch k23_spin
                    k23_go:
                    """)
                    print("Z issue at step", i, file=sys.stderr)
                dma_one(*pend.pop(0))
                if pend and pend[0] == (POLLC, 0) and not polled:
                    polled = True
                    print("poll issue at step", i, file=sys.stderr)
                    for q in range(4):
                        a.vmem(f"buffer_load_dword v{PV+q}, v{VF}, s[40:43], s59 offen offset:{q*1024} sc1", "poll")
        if i >= 14*8 + 3:
            next(sl, None)
        if i == 12*8:
            for q in range(4):
                a.vmem(f"buffer_load_dwordx2 v[{XR+2*q}:{XR+2*q+1}], v{VO}, s[28:31], 0 offen offset:{16*q}", "x")
    assert not pend
    for _ in sl: a("s_nop 0")
    a("s_nop 15")
    a.stamp()
    a.wait_vm_all()
    O = 96; SV = ACS; GV = ACG; Q = 104
    for p in range(8):
        a(f"v_cvt_pk_bf16_f32 v{Q+p}, v{SV+2*p}, v{SV+2*p+1}")
    for p in range(8):
        a(f"v_lshlrev_b32 v{SV+2*p}, 16, v{Q+p}")
        a(f"v_and_b32 v{SV+2*p+1}, s49, v{Q+p}")
    for p in range(16):
        a(f"v_mul_f32 v{SV+p}, v{SV+p}, v{GV+p}")
    for p in range(8):
        a(f"v_cvt_pk_bf16_f32 v{Q+p}, v{SV+2*p}, v{SV+2*p+1}")
    for p in range(8):
        a(f"v_lshlrev_b32 v{SV+2*p}, 16, v{Q+p}")
        a(f"v_and_b32 v{SV+2*p+1}, s49, v{Q+p}")
        a(f"v_lshlrev_b32 v{GV+2*p}, 16, v{XR+p}")
        a(f"v_and_b32 v{GV+2*p+1}, s49, v{XR+p}")
    for p in range(16):
        a(f"v_add_f32 v{SV+p}, v{SV+p}, v{GV+p}")
    for p in range(8):
        a(f"v_cvt_pk_bf16_f32 v{O+p}, v{SV+2*p}, v{SV+2*p+1}")
    a(f"""
    v_lshrrev_b32 v4, 5, v2
    v_lshl_add_u32 v{VO}, v4, 3, v{VO}
    """)
    for q in (0, 2):
        a(f"v_permlane32_swap_b32 v{O+2*q}, v{O+2*q+2}")
        a(f"v_permlane32_swap_b32 v{O+2*q+1}, v{O+2*q+3}")
    a(f"buffer_store_dwordx4 v[{O}:{O+3}], v{VO}, s[36:39], 0 offen")
    a(f"buffer_store_dwordx4 v[{O+4}:{O+7}], v{VO}, s[36:39], 0 offen offset:32")
    a.stamp()
    if STAMP: a("s_waitcnt vmcnt(0)")
    a.stamp()
    a.stamp_store(1)
    a("s_endpgm")

    a.raw("k23_conv:")
    a.vm = []; a.lq = []; a.nst = 0
    YR, YI = 8, 12
    E1 = 16; T1 = 32; E2 = 48; WW = 64; E3 = 80; T2 = 96; E4 = 112
    D = 128; F = 144; N = 176; TMP = 184; WM = 200; VL = 7
    getpc_tab(a, 24, "tab_S")
    srd(a, 28, "s24", "s25", TSZ)
    a(f"""
    s_sub_u32 s13, s3, 4
    v_lshlrev_b32 v5, 6, v3
    v_lshl_add_u32 v5, v4, 4, v5
    s_lshl_b32 s60, s2, 13
    s_lshl_b32 s61, s13, 10
    s_add_u32 s60, s60, s61
    s_add_u32 s60, s60, {WS_Y}
    s_add_u32 s61, s60, 4096
    v_lshlrev_b32 v{VL}, 4, v2
    s_lshl_b32 s26, s13, 12
    s_lshl_b32 s12, s13, 11
    v_subrev_u32 v6, 256, v0
    v_lshlrev_b32 v6, 5, v6
    s_waitcnt lgkmcnt(0)
    """)
    a.stamp()
    srd(a, 40, "s14", "s15", WS_SIZE)
    def tload(dst, n, soff, base, tag):
        for q in range(n):
            a.vmem(f"buffer_load_dwordx4 v[{dst+4*q}:{dst+4*q+3}], v{VL}, s[28:31], {soff} offen offset:{base+q*1024}", tag)
    a.vmem(f"buffer_load_dwordx4 v[{YR}:{YR+3}], v5, s[40:43], s60 offen", "y")
    a.vmem(f"buffer_load_dwordx4 v[{YI}:{YI+3}], v5, s[40:43], s61 offen", "y")
    tload(E1, 4, "0", TE1, "e1")
    a(f"s_add_u32 s27, s12, {TT1}")
    tload(T1, 2, "s27", 0, "t1")
    def loads2():
        a(f"s_add_u32 s27, s26, {TE2}")
        tload(E2, 4, "s27", 0, "e2")
        a(f"""
        s_lshl_b32 s27, s2, 13
        s_add_u32 s27, s27, {WS_W}
        s_cmp_eq_u32 s2, 0
        s_cbranch_scc0 k23_now256
        s_mov_b32 s56, {WS_W + 256*8192}
        buffer_load_dwordx4 v[{WW+8}:{WW+11}], v{VWT}, s[40:43], s56 offen
        buffer_load_dwordx4 v[{WW+12}:{WW+15}], v{VWT}, s[40:43], s56 offen offset:16
        s_add_u32 s56, s56, 8192
        buffer_load_dwordx4 v[{WM}:{WM+3}], v{VWT}, s[40:43], s56 offen
        buffer_load_dwordx4 v[{WM+4}:{WM+7}], v{VWT}, s[40:43], s56 offen offset:16
        s_add_u32 s56, s56, 8192
        buffer_load_dwordx4 v[{WM+8}:{WM+11}], v{VWT}, s[40:43], s56 offen
        buffer_load_dwordx4 v[{WM+12}:{WM+15}], v{VWT}, s[40:43], s56 offen offset:16
        k23_now256:
        """)
        a.vmem(f"buffer_load_dwordx4 v[{WW}:{WW+3}], v{VWT}, s[40:43], s27 offen", "w")
        a.vmem(f"buffer_load_dwordx4 v[{WW+4}:{WW+7}], v{VWT}, s[40:43], s27 offen offset:16", "w")
    def loads3():
        a(f"s_add_u32 s27, s26, {TE3}")
        tload(E3, 4, "s27", 0, "e3")
        a(f"s_add_u32 s27, s12, {TT2}")
        tload(T2, 2, "s27", 0, "t2")
        a(f"s_mov_b32 s27, {TE4}")
        tload(E4, 4, "s27", 0, "e4")
    VWT = 216; PQ = 220
    a(f"""
    v_mov_b32 v{VWT}, v6
    s_lshl_b32 s27, s13, 9
    v_lshlrev_b32 v1, 7, v4
    v_add3_u32 v1, v1, v3, s27
    s_movk_i32 s27, 144
    v_mul_lo_u32 v6, v3, s27
    v_add_u32 v6, {SB}, v6
    v_lshl_add_u32 v5, v4, 3, v6
    s_lshl_b32 s27, s13, 5
    v_add_u32 v5, s27, v5
    v_lshl_add_u32 v6, v4, 4, v6
    """)
    UB, XB, MB = 0, 9216, 18432
    PL = 4608
    def R(x): return f"v[{x}:{x+3}]"
    def fr(pl, t, st): return F + ((pl*2+t)*2+st)*4
    def cmul_tw(tw):
        for e in range(8):
            r = D + e; im = D + 8 + e; tq = tw + e
            t = TMP + 2*(e % 4)
            a(f"""
            v_fma_mix_f32 v{t}, v{im}, v{tq}, 0 op_sel:[0,1,0] op_sel_hi:[0,1,0]
            v_fma_mix_f32 v{t+1}, v{r}, v{tq}, 0 op_sel:[0,1,0] op_sel_hi:[0,1,0]
            """)
            if e % 4 == 3:
                for e2 in range(e-3, e+1):
                    r = D + e2; im = D + 8 + e2; tq = tw + e2
                    t = TMP + 2*(e2 % 4)
                    a(f"""
                    v_fma_mix_f32 v{r}, v{r}, v{tq}, -v{t} op_sel:[0,0,0] op_sel_hi:[0,1,0]
                    v_fma_mix_f32 v{im}, v{im}, v{tq}, v{t+1} op_sel:[0,0,0] op_sel_hi:[0,1,0]
                    """)
    def pack(cvt, dst):
        for e in range(8):
            a(f"{cvt} v{dst+e}, v{D+2*e}, v{D+2*e+1}")
    def lds_write(base, src):
        for pl in range(2):
            for t in range(2):
                a(f"ds_write_b64 v5, v[{src+pl*4+t*2}:{src+pl*4+t*2+1}] offset:{base + pl*PL + t*16*144}")
    def lds_read(base):
        for pl in range(2):
            for t in range(2):
                for st in range(2):
                    f_ = fr(pl, t, st)
                    a(f"ds_read_b128 v[{f_}:{f_+3}], v6 offset:{base + pl*PL + t*16*144 + st*64}")
    nbar = [0]
    def bar():
        a("s_waitcnt lgkmcnt(0)"); a("s_barrier"); nbar[0] += 1; a.stamp()
    a(f"""
    s_setprio {CPRIO}
    """)
    if LOADALL:
        loads2(); loads3()
        a("s_barrier")
        a.stamp()
        for _ in range(NIDLE): bar()
    else:
        bar()
        loads2()
        for _ in range(NIDLE - 1): bar()
    a.wait_vm("e1")
    for r in range(4):
        a(f"v_xor_b32 v{N+r}, s48, v{YI+r}")
    a("s_nop 1")
    for t in range(2):
        er = E1 + 4*t; ei = E1 + 8 + 4*t
        a(f"v_mfma_f32_16x16x32_f16 {R(D+4*t)}, {R(YR)}, {R(er)}, 0")
        a(f"v_mfma_f32_16x16x32_f16 {R(D+8+4*t)}, {R(YR)}, {R(ei)}, 0")
    for t in range(2):
        er = E1 + 4*t; ei = E1 + 8 + 4*t
        a(f"v_mfma_f32_16x16x32_f16 {R(D+4*t)}, {R(N)}, {R(ei)}, {R(D+4*t)}")
        a(f"v_mfma_f32_16x16x32_f16 {R(D+8+4*t)}, {R(YI)}, {R(er)}, {R(D+8+4*t)}")
    a.wait_vm("t1")
    a("s_nop 7")
    cmul_tw(T1)
    pack("v_cvt_pk_f16_f32", TMP + 8)
    lds_write(UB, TMP + 8)
    if not LOADALL: loads3()
    bar()
    lds_read(UB)
    a.wait_vm("e2")
    for r in range(8):
        a(f"v_xor_b32 v{N+r}, s48, v{E2+8+r}")
    a("s_waitcnt lgkmcnt(0)")
    for st in range(2):
        for t in range(2):
            cr = "0" if st == 0 else R(D+4*t); ci = "0" if st == 0 else R(D+8+4*t)
            a(f"v_mfma_f32_16x16x32_f16 {R(D+4*t)}, {R(E2+4*st)}, {R(fr(0,t,st))}, {cr}")
            a(f"v_mfma_f32_16x16x32_f16 {R(D+8+4*t)}, {R(E2+8+4*st)}, {R(fr(0,t,st))}, {ci}")
        for t in range(2):
            a(f"v_mfma_f32_16x16x32_f16 {R(D+4*t)}, {R(N+4*st)}, {R(fr(1,t,st))}, {R(D+4*t)}")
            a(f"v_mfma_f32_16x16x32_f16 {R(D+8+4*t)}, {R(E2+4*st)}, {R(fr(1,t,st))}, {R(D+8+4*t)}")
    a("""
    s_cmp_eq_u32 s2, 0
    s_cbranch_scc1 k2_special
    s_barrier
    """)
    vm_keep = list(a.vm)
    a.wait_vm("w")
    a("s_nop 7")
    for e in range(8):
        r = D + e; im = D + 8 + e
        t = TMP + 4*(e % 2)
        a(f"""
        v_lshlrev_b32 v{t+2}, 16, v{WW+e}
        v_and_b32 v{t+3}, s49, v{WW+e}
        v_mul_f32 v{t}, v{im}, v{t+3}
        v_mul_f32 v{t+1}, v{r}, v{t+3}
        v_fma_f32 v{r}, v{r}, v{t+2}, -v{t}
        v_fma_f32 v{im}, v{im}, v{t+2}, v{t+1}
        """)
    a("s_branch k2_join")
    a.raw("k2_special:")
    a.vm = vm_keep
    a.wait_vm("w")
    TA_ = 8
    for e in range(8):
        q = PQ + 4*e; t = TA_ + 4*e
        a(f"""
        v_lshlrev_b32 v{q}, 16, v{WW+e}
        v_and_b32 v{q+1}, s49, v{WW+e}
        v_lshlrev_b32 v{q+2}, 16, v{WM+e}
        v_and_b32 v{q+3}, s49, v{WM+e}
        v_lshlrev_b32 v{t}, 16, v{WW+8+e}
        v_and_b32 v{t+1}, s49, v{WW+8+e}
        v_lshlrev_b32 v{t+2}, 16, v{WM+8+e}
        v_and_b32 v{t+3}, s49, v{WM+8+e}
        """)
    for e in range(8):
        q = PQ + 4*e; t = TA_ + 4*e
        a(f"""
        v_add_f32 v{q}, v{q}, v{q+2}
        v_sub_f32 v{q+1}, v{q+1}, v{q+3}
        v_add_f32 v{t}, v{t}, v{t+2}
        v_sub_f32 v{t+1}, v{t+1}, v{t+3}
        """)
    for e in range(8):
        q = PQ + 4*e; t = TA_ + 4*e
        a(f"""
        v_sub_f32 v{q+2}, v{q}, v{t}
        v_sub_f32 v{q+3}, v{q+1}, v{t+1}
        v_add_f32 v{q}, v{q}, v{t}
        v_add_f32 v{q+1}, v{q+1}, v{t+1}
        """)
    for e in range(32):
        a(f"v_mul_f32 v{PQ+e}, 0x3e800000, v{PQ+e}")
    for e in range(8):
        t, i = e // 4, e % 4
        q = TMP + 2*(e % 2)
        a(f"""
        v_cvt_pk_f16_f32 v{q}, v{D+e}, v{D+8+e}
        v_add_u32 v{q+1}, {32*i+16*t+(SB+MB)//4}, v1
        v_lshlrev_b32 v{q+1}, 2, v{q+1}
        ds_write_b32 v{q+1}, v{q}
        """)
    for e in range(8):
        r = D + e; q = PQ + 4*e; t = F + 8 + 2*e
        a(f"v_mul_f32 v{t}, v{r}, v{q}")
        a(f"v_mul_f32 v{t+1}, v{r}, v{q+1}")
    for e in range(8):
        im = D + 8 + e; q = PQ + 4*e; t = F + 8 + 2*e
        a(f"v_fma_f32 v{t}, -v{im}, v{q+1}, v{t}")
        a(f"v_fma_f32 v{t+1}, v{im}, v{q}, v{t+1}")
    a("s_waitcnt lgkmcnt(0)")
    a("s_barrier")
    for e in range(8):
        t, i = e // 4, e % 4
        a(f"""
        v_add_u32 v{TMP+4}, {32*i+16*t}, v1
        v_sub_u32 v{TMP+4}, 2048, v{TMP+4}
        v_and_b32 v{TMP+4}, 2047, v{TMP+4}
        v_lshlrev_b32 v{TMP+4}, 2, v{TMP+4}
        v_add_u32 v{TMP+4}, {SB+MB}, v{TMP+4}
        ds_read_b32 v{F+e}, v{TMP+4}
        """)
    a("s_waitcnt lgkmcnt(0)")
    for e in range(8):
        xm = F + e; q = PQ + 4*e; t = F + 8 + 2*e
        a(f"""
        v_fma_mix_f32 v{t}, v{q+2}, v{xm}, v{t} op_sel:[0,0,0] op_sel_hi:[0,1,0]
        v_fma_mix_f32 v{t+1}, v{q+3}, v{xm}, v{t+1} op_sel:[0,0,0] op_sel_hi:[0,1,0]
        """)
    for e in range(8):
        r = D + e; im = D + 8 + e
        xm = F + e; q = PQ + 4*e; t = F + 8 + 2*e
        a(f"""
        v_fma_mix_f32 v{r}, v{q+3}, v{xm}, v{t} op_sel:[0,1,0] op_sel_hi:[0,1,0]
        v_fma_mix_f32 v{im}, -v{q+2}, v{xm}, v{t+1} op_sel:[0,1,0] op_sel_hi:[0,1,0]
        """)
    a.raw("k2_join:")
    a.stamp()
    pack("v_cvt_pk_bf16_f32", TMP + 8)
    lds_write(XB, TMP + 8)
    nbar[0] += 1
    bar()
    lds_read(XB)
    a.wait_vm("e3")
    for r in range(8):
        a(f"v_xor_b32 v{N+r}, s48, v{E3+8+r}")
    a("s_waitcnt lgkmcnt(0)")
    for st in range(2):
        for t in range(2):
            cr = "0" if st == 0 else R(D+4*t); ci = "0" if st == 0 else R(D+8+4*t)
            a(f"v_mfma_f32_16x16x32_bf16 {R(D+4*t)}, {R(fr(0,t,st))}, {R(E3+4*st)}, {cr}")
            a(f"v_mfma_f32_16x16x32_bf16 {R(D+8+4*t)}, {R(fr(0,t,st))}, {R(E3+8+4*st)}, {ci}")
        for t in range(2):
            a(f"v_mfma_f32_16x16x32_bf16 {R(D+4*t)}, {R(fr(1,t,st))}, {R(N+4*st)}, {R(D+4*t)}")
            a(f"v_mfma_f32_16x16x32_bf16 {R(D+8+4*t)}, {R(fr(1,t,st))}, {R(E3+4*st)}, {R(D+8+4*t)}")
    bar()
    a.wait_vm("t2")
    a("s_nop 7")
    cmul_tw(T2)
    pack("v_cvt_pk_bf16_f32", TMP + 8)
    VR, VI = TMP + 8, TMP + 12
    for r in range(4):
        a(f"v_xor_b32 v{N+r}, s48, v{VI+r}")
    a.wait_vm("e4")
    a("s_nop 1")
    for tp in range(2):
        a(f"v_mfma_f32_16x16x32_bf16 {R(D+4*tp)}, {R(E4+4*tp)}, {R(VR)}, 0")
        a(f"v_mfma_f32_16x16x32_bf16 {R(D+8+4*tp)}, {R(E4+8+4*tp)}, {R(VR)}, 0")
    for tp in range(2):
        a(f"v_mfma_f32_16x16x32_bf16 {R(D+4*tp)}, {R(E4+8+4*tp)}, {R(N)}, {R(D+4*tp)}")
        a(f"v_mfma_f32_16x16x32_bf16 {R(D+8+4*tp)}, {R(E4+4*tp)}, {R(VI)}, {R(D+8+4*tp)}")
    a(f"""
    v_lshlrev_b32 v5, 6, v3
    v_and_b32 v1, 1, v4
    v_lshl_add_u32 v5, v1, 5, v5
    v_lshrrev_b32 v1, 1, v4
    v_lshl_add_u32 v5, v1, 4, v5
    s_add_u32 s60, s60, {WS_Z - WS_Y}
    s_add_u32 s61, s61, {WS_Z - WS_Y}
    s_nop 3
    """)
    pack("v_cvt_pk_bf16_f32", TMP + 8)
    a("s_nop 1")
    for pl in range(2):
        b = TMP + 8 + pl*4
        a(f"v_permlane16_swap_b32 v{b}, v{b+2}")
        a(f"v_permlane16_swap_b32 v{b+1}, v{b+3}")
    for pl in range(2):
        b = TMP + 8 + pl*4
        a.vmem(f"buffer_store_dwordx4 v[{b}:{b+3}], v5, s[40:43], s{60+pl} offen sc1", "z")
    for _ in range(NZB): bar()
    a.wait_vm_all()
    bar()
    assert nbar[0] == NCB, nbar
    if os.environ.get("CSTAMP", "0") == "1": a.stamp_store(1)
    a.raw("k23_end:")
    a("s_endpgm")
    return a.text()

def tables_asm():
    o = []
    j = np.arange(512)
    c1 = bf16(np.cos(2*np.pi*j/512) / 16); c2 = bf16(np.cos(2*np.pi*j/512) / 8)
    c1[np.abs(np.cos(2*np.pi*j/512)) < 1e-9] = 0; c2[np.abs(np.cos(2*np.pi*j/512)) < 1e-9] = 0
    for i in range(512):
        o.append(f".set CA{i}, 0x{c1[i]:04x}")
        o.append(f".set CB{i}, 0x{c2[i]:04x}")
    o.append(".altmacro")
    o.append(""".macro f8 a,b,c,d,e,f,g,h
.short CA\\a, CA\\b, CA\\c, CA\\d, CA\\e, CA\\f, CA\\g, CA\\h
.endm
.macro g8 a,b,c,d,e,f,g,h
.short CB\\a, CB\\b, CB\\c, CB\\d, CB\\e, CB\\f, CB\\g, CB\\h
.endm
.macro g8s a,b,c,d,e,f,g,h
.short CA\\a, CA\\b, CB\\c, CB\\d, CB\\e, CB\\f, CB\\g, CB\\h
.endm
.macro frow d
f8 0, %((\\d*256)&511), %((\\d*1)&511), %((\\d+128)&511), %((\\d*2)&511), %((\\d*2+128)&511), %((\\d*3)&511), %((\\d*3+128)&511)
.set kk, 4
.rept 63
f8 %((\\d*kk)&511), %((\\d*kk+128)&511), %((\\d*(kk+1))&511), %((\\d*(kk+1)+128)&511), %((\\d*(kk+2))&511), %((\\d*(kk+2)+128)&511), %((\\d*(kk+3))&511), %((\\d*(kk+3)+128)&511)
.set kk, kk+4
.endr
.endm
.section .rodata,"a"
.p2align 8
tab_F:
.set dd, 0
.rept 512
frow %dd
.set dd, dd+1
.endr
""")
    o.append(""".macro glane d, k
g8 %((\\d*\\k)&511), %((\\d*\\k+128)&511), %((\\d*(\\k+1))&511), %((\\d*(\\k+1)+128)&511), %((\\d*(\\k+4))&511), %((\\d*(\\k+4)+128)&511), %((\\d*(\\k+5))&511), %((\\d*(\\k+5)+128)&511)
.endm
.macro glane0 d
g8s 0, %((\\d*256)&511), %((\\d*1)&511), %((\\d+128)&511), %((\\d*4)&511), %((\\d*4+128)&511), %((\\d*5)&511), %((\\d*5+128)&511)
.endm
.macro ghalf d0, k
.set ll, 0
.rept 32
glane %(\\d0+ll), \\k
.set ll, ll+1
.endr
.endm
.macro ghalf0 d0
.set ll, 0
.rept 32
glane0 %(\\d0+ll)
.set ll, ll+1
.endr
.endm
.macro gtile d0
ghalf0 \\d0
ghalf \\d0, 2
.set gg, 1
.rept 31
ghalf \\d0, %(8*gg)
ghalf \\d0, %(8*gg+2)
.set gg, gg+1
.endr
.endm
.p2align 8
tab_G:
.set tt, 0
.rept 16
gtile %(32*tt)
.set tt, tt+1
.endr
.noaltmacro
.p2align 8
tab_S:
""")
    st = small_tables().view(np.uint64)
    for i in range(0, len(st), 8):
        o.append(".quad " + ",".join(f"0x{v:x}" for v in st[i:i+8]))
    return "\n".join(o) + "\n"

hdr = """; fused LN + GFNet spectral filter + ReGLU, 2 launches
; @launch kernel=k1_kernel grid=(256,1,1) block=(512,1,1) lds=163840
; @launch kernel=k23_kernel grid=(256,1,1) block=(512,1,1) lds=163840
.amdgcn_target "amdgcn-amd-amdhsa--gfx950"
.text
.globl k1_kernel
.type k1_kernel,@function
.globl k23_kernel
.type k23_kernel,@function
"""
src = hdr + gen_k1() + gen_k23_main() + "code_end:\n" + tables_asm()
src += '.section .rodata,"a"\n.p2align 6\n' + kd("k1_kernel", 256) + ".p2align 6\n" + kd("k23_kernel", 256)
open(OUT, "w").write(src)
print("wrote", OUT, len(src))
```

```python
import numpy as np, sys, math

OUT = sys.argv[1] if len(sys.argv) > 1 else "recurrent_scan__spectral_gfnet__glu_gated_reglu__prompt.s"

WS_H = 0
WS_Y = 8 << 20
WS_Z = 10 << 20
WS_W = 12 << 20
WS_SIZE = 268435456
WS_FL = 15 << 20

def bf16(x):
    u = np.asarray(x, np.float32).view(np.uint32).astype(np.uint64)
    r = ((u + 0x7fff + ((u >> 16) & 1)) >> 16).astype(np.uint16)
    return r
def f16(x):
    return np.asarray(x, np.float64).astype(np.float16).view(np.uint16)

import os
STAMP = os.environ.get("STAMP", "0") == "1"
WS_ST = 16 << 20
class Asm:
    def __init__(self):
        self.lines = []
        self.vm = []
        self.nst = 0
        self.issued = set()
        self.lq = []
        self.sb = 74
        self.maxst = 14
    def stamp(self):
        if not STAMP or self.nst >= self.maxst: return
        self(f"s_memtime s[{self.sb+2*self.nst}:{self.sb+1+2*self.nst}]")
        self("s_waitcnt lgkmcnt(0)")
        self.lq = []
        self.nst += 1
    def stamp_store(self, kidx, wavereg="s3"):
        if not STAMP: return
        self("s_waitcnt lgkmcnt(0)")
        self(f"s_lshl_b32 s62, s2, 4")
        self(f"s_add_u32 s62, s62, {wavereg}")
        self(f"s_lshl_b32 s62, s62, 7")
        self(f"s_add_u32 s62, s62, {WS_ST + kidx*(1<<20)}")
        self("v_mov_b32 v0, 0")
        for i in range(self.nst):
            self(f"v_mov_b32 v1, s{self.sb+2*i}")
            self(f"buffer_store_dword v1, v0, s[40:43], s62 offen offset:{4*i}")
    def __call__(self, s):
        for ln in s.strip("\n").split("\n"):
            self.lines.append("  " + ln.strip() if not ln.strip().endswith(":") else ln.strip())
    def raw(self, s):
        self.lines.append(s)
    def vmem(self, s, tag):
        self(s); self.vm.append(tag); self.issued.add(tag)
        assert len(self.vm) <= 63, "vmcnt overflow"
    def wait_vm(self, tag):
        assert tag in self.issued, tag
        if tag not in self.vm: return
        idx = max(i for i, t in enumerate(self.vm) if t == tag)
        n = len(self.vm) - 1 - idx
        self(f"s_waitcnt vmcnt({n})")
        self.vm = self.vm[idx + 1:]
    def lds(self, s, tag):
        self(s); self.lq.append(tag)
    def wait_lds(self, tag):
        if tag not in self.lq: return
        idx = max(i for i, t in enumerate(self.lq) if t == tag)
        n = min(len(self.lq) - 1 - idx, 15)
        self(f"s_waitcnt lgkmcnt({n})")
        self.lq = self.lq[len(self.lq) - n:] if n else []
    def wait_lds_all(self):
        self("s_waitcnt lgkmcnt(0)"); self.lq = []
    def wait_vm_all(self):
        self("s_waitcnt vmcnt(0)"); self.vm = []
    def text(self):
        return "\n".join(self.lines) + "\n"

def srd(a, s, lo, hi, nbytes):
    a(f"s_mov_b32 s{s}, {lo}")
    a(f"s_mov_b32 s{s+1}, {hi}")
    a(f"s_mov_b32 s{s+2}, {nbytes}")
    a(f"s_mov_b32 s{s+3}, 0x20000")

def getpc_tab(a, s, sym):
    a(f"s_getpc_b64 s[{s}:{s+1}]")
    a(f"s_add_u32 s{s}, s{s}, {sym}@rel32@lo+4")
    a(f"s_addc_u32 s{s+1}, s{s+1}, {sym}@rel32@hi+12")

def kd(name, vgpr, sgpr=102):
    acc = min((vgpr + 3) // 4 * 4, 256)
    return f""".amdhsa_kernel {name}
  .amdhsa_next_free_vgpr {vgpr}
  .amdhsa_next_free_sgpr {sgpr}
  .amdhsa_accum_offset {acc}
  .amdhsa_group_segment_fixed_size 0
  .amdhsa_kernarg_size 80
  .amdhsa_user_sgpr_count 2
  .amdhsa_user_sgpr_kernarg_segment_ptr 1
  .amdhsa_system_sgpr_workgroup_id_x 1
.end_amdhsa_kernel
"""

K1_NS = 5
PREF = os.environ.get('PREF','1') == '1'
K1_PRE = int(os.environ.get('K1_PRE','2'))
CODEPF = int(os.environ.get('CODEPF','5'))
PFS = int(os.environ.get('PFS','16'))
BWARM = int(os.environ.get('BWARM','2'))
X_NOP2 = os.environ.get('X_NOP2','0')=='1'
X_NODMA = os.environ.get('X_NODMA','0')=='1'
X_NOBAR = os.environ.get('X_NOBAR','0')=='1'
def gen_k1():
    a = Asm()
    A0 = 128; ACC = 64; BF = 32
    PT = 24
    VD, VNM, VVAR, VPF, VPG, VFA, VFL = 1, 7, 8, 9, 10, 11, 3
    TR = 16
    PFD = 12
    a.raw(".p2align 8\nk1_kernel:")
    a("""
    s_cmp_ge_u32 s2, 256
    s_cbranch_scc1 k1_end
    s_load_dwordx2 s[4:5], s[0:1], 0
    s_load_dwordx4 s[8:11], s[0:1], 8
    s_load_dwordx4 s[12:15], s[0:1], 32
    s_load_dwordx2 s[6:7], s[0:1], 72
    s_load_dwordx2 s[60:61], s[0:1], 48
    v_lshrrev_b32 v1, 6, v0
    v_and_b32 v2, 63, v0
    s_nop 0
    v_readfirstlane_b32 s3, v1
    """)
    XM = int(os.environ.get("K1_XM", "4"))
    lg = {8: 3, 4: 2, 2: 1}[XM]
    nxm = 16 // XM
    lgx = {2: 1, 4: 2, 8: 3}[nxm]
    a(f"""
    s_and_b32 s16, s2, 7
    s_lshr_b32 s17, s2, 3
    s_and_b32 s18, s16, {nxm-1}
    s_lshl_b32 s18, s18, {lg}
    s_and_b32 s58, s17, {XM-1}
    s_add_u32 s18, s18, s58
    s_lshr_b32 s19, s16, {lgx}
    s_lshl_b32 s19, s19, {5-lg}
    s_lshr_b32 s20, s17, {lg}
    s_add_u32 s19, s19, s20
    s_lshl_b32 s59, s20, {lg-1}
    s_lshl_b32 s58, s58, {3-lg}
    s_and_b32 s20, s3, 3
    s_lshr_b32 s21, s3, 2
    s_lshl_b32 s22, s18, 2
    s_add_u32 s22, s22, s20
    v_lshlrev_b32 v{VPF}, 4, v2
    """)
    if CODEPF:
        getpc_tab(a, 64, "k1_kernel")
        a(f"""
        s_mov_b32 s66, code_end-k1_kernel
        s_mov_b32 s67, 0x20000
        s_lshl_b32 s57, s17, 1
        s_add_u32 s57, s57, s3
        s_lshl_b32 s57, s57, 10
        s_cmp_lt_u32 s3, 2
        s_cselect_b32 s57, s57, 0x7f000000
        """)
        a.vmem(f"buffer_load_dwordx4 v[{PFD}:{PFD+3}], v{VPF}, s[64:67], s57 offen", "cpf")
    getpc_tab(a, 24, "tab_F")
    a("""
    s_lshl_b32 s50, s21, 4
    s_lshl_b32 s51, s50, 6
    s_add_u32 s51, s51, s22
    s_lshl_b32 s51, s51, 10
    s_lshl_b32 s52, s20, 5
    s_add_u32 s52, s52, s50
    s_lshl_b32 s52, s52, 10
    s_lshl_b32 s53, s58, 3
    v_xor_b32 v3, s53, v2
    s_waitcnt lgkmcnt(0)
    """)
    a.stamp()
    srd(a, 28, "s4", "s5", 2048*1024)
    for u in range(16):
        a(f"""
        s_xor_b32 s54, s59, {u}
        v_xor_b32 v4, s54, v3
        v_lshlrev_b32 v4, 4, v4
        s_lshl_b32 s55, s54, 10
        s_add_u32 m0, s52, s55
        s_lshl_b32 s55, s54, 16
        s_add_u32 s53, s51, s55
        """)
        a.vmem("buffer_load_dwordx4 v4, s[28:31], s53 offen lds", "x")
    srd(a, 32, "s8", "s9", 2048*514)
    srd(a, 36, "s10", "s11", 2048*514)
    WL = ACC + 16
    a(f"""
    s_lshr_b32 s62, s2, 2
    s_lshl_b32 s62, s62, 2
    s_lshr_b32 s63, s3, 1
    s_add_u32 s62, s62, s63
    s_lshr_b32 s63, s62, 4
    s_lshl_b32 s63, s63, 7
    s_and_b32 s62, s62, 15
    s_add_u32 s63, s63, s62
    s_and_b32 s62, s3, 1
    s_lshl_b32 s62, s62, 4
    s_add_u32 s63, s63, s62
    s_mul_i32 s63, s63, 514
    s_and_b32 s62, s2, 3
    s_lshl_b32 s62, s62, 7
    s_add_u32 s63, s63, s62
    v_lshlrev_b32 v5, 1, v2
    """)
    for i in range(4):
        if i: a(f"s_add_u32 s63, s63, {32*514}")
        a.vmem(f"buffer_load_ushort v{WL+i}, v5, s[32:35], s63 offen", "w")
        a.vmem(f"buffer_load_ushort v{WL+4+i}, v5, s[36:39], s63 offen", "w")
    a(f"""
    v_mov_b32 v{WL+10}, 0x7fffff00
    s_cmp_eq_u32 s3, 7
    s_cbranch_scc0 k1_nosp1
    s_lshr_b32 s62, s2, 4
    s_lshl_b32 s62, s62, 7
    s_and_b32 s63, s2, 15
    s_add_u32 s62, s62, s63
    v_and_b32 v4, 3, v2
    v_lshlrev_b32 v4, 5, v4
    v_and_b32 v5, 4, v2
    v_lshl_add_u32 v4, v5, 2, v4
    v_add_u32 v4, s62, v4
    s_movk_i32 s63, 514
    v_mul_lo_u32 v5, v4, s63
    v_lshrrev_b32 v6, 3, v2
    v_cmp_eq_u32 vcc, 1, v6
    v_add_u32 v30, 512, v5
    s_nop 0
    v_cndmask_b32 v5, v30, v5, vcc
    v_mov_b32 v30, 0x7fffff00
    v_cmp_gt_u32 vcc, 24, v2
    s_nop 1
    v_cndmask_b32 v5, v30, v5, vcc
    buffer_load_ushort v{WL+8}, v5, s[32:35], 0 offen
    buffer_load_ushort v{WL+9}, v5, s[36:39], 0 offen
    v_sub_u32 v5, 2048, v4
    v_and_b32 v5, 2047, v5
    v_cmp_eq_u32 s[62:63], 0, v6
    s_nop 1
    v_cndmask_b32 v4, v5, v4, s[62:63]
    v_lshrrev_b32 v5, 7, v4
    v_lshlrev_b32 v5, 9, v5
    v_and_b32 v31, 15, v4
    v_lshl_add_u32 v5, v31, 5, v5
    v_and_b32 v31, 16, v4
    v_add_u32 v5, v5, v31
    v_bfe_u32 v31, v4, 5, 2
    v_lshl_add_u32 v5, v31, 2, v5
    v_lshl_add_u32 v5, v6, 13, v5
    v_add_u32 v5, {WS_W + 256*8192}, v5
    v_cndmask_b32 v{WL+10}, v30, v5, vcc
    k1_nosp1:
    """)
    srd(a, 40, "s6", "s7", WS_SIZE)
    a("""
    s_and_b32 s23, s3, 1
    s_cmp_eq_u32 s23, 0
    s_cselect_b32 s44, s12, s14
    s_cselect_b32 s45, s13, s15
    s_mov_b32 s46, 1835008
    s_mov_b32 s47, 0x20000
    s_movk_i32 s48, 3584
    s_lshl_b32 s49, s19, 8
    s_cmp_lt_u32 s19, 14
    s_cbranch_scc1 k1_isglu
    s_mov_b32 s44, s24
    s_mov_b32 s45, s25
    s_mov_b32 s46, 524288
    s_movk_i32 s48, 1024
    s_sub_u32 s49, s19, 14
    s_lshl_b32 s49, s49, 9
    s_lshl_b32 s50, s23, 8
    s_add_u32 s49, s49, s50
    k1_isglu:
    """)
    a(f"""
    v_lshrrev_b32 v8, 4, v2
    v_and_b32 v6, 15, v2
    v_lshrrev_b32 v6, 1, v6
    v_lshlrev_b32 v10, 1, v8
    v_xor_b32 v6, v6, v10
    v_lshlrev_b32 v6, 5, v6
    v_and_b32 v10, 1, v2
    v_lshlrev_b32 v10, 4, v10
    v_add_u32 v6, v6, v10
    v_mul_lo_u32 v8, v8, s48
    v_add_u32 v6, v6, v8
    v_add_u32 v{VD}, s49, v6
    s_lshr_b32 s50, s3, 1
    s_lshl_b32 s50, s50, 3
    s_mul_i32 s52, s50, s48
    s_lshl_b32 s53, s50, 8
    s_lshl_b32 s54, s23, 13
    s_add_u32 s53, s53, s54
    s_lshl_b32 s54, s48, 2
    s_lshl_b32 s55, s48, 5
    s_lshl_b32 s58, s58, 1
    """)
    RING = [8, 9, 0, 1, 2, 3, 4, 5, 6]
    SPARE = 7 * 16384
    a(f"v_add_u32 v22, s54, v{VD}")
    def dma_one(c, u):
        if u == 0:
            a(f"s_xor_b32 s56, s58, {c}")
            a("s_mul_i32 s56, s56, s55")
        a(f"s_add_u32 m0, s53, {RING[c % 9]*16384 + u*1024}")
        if u == 0: a("s_add_u32 s56, s56, s52")
        else: a("s_nop 0")
        a.vmem(f"buffer_load_dwordx4 v{VD if u == 0 else 22}, s[44:47], s56 offen lds", f"c{c}")
    a(f"""
    v_lshrrev_b32 v10, 4, v2
    v_and_b32 v6, 15, v2
    v_lshrrev_b32 v31, 2, v6
    v_and_b32 v6, 3, v6
    v_lshrrev_b32 v30, 1, v10
    v_lshlrev_b32 v30, 3, v30
    v_add_u32 v30, v30, v31
    v_lshlrev_b32 v30, 8, v30
    v_lshlrev_b32 v6, 3, v6
    v_add_u32 v30, v30, v6
    v_and_b32 v10, 1, v10
    v_lshlrev_b32 v10, 5, v10
    v_add_u32 v30, v30, v10
    s_lshl_b32 s57, s21, 1
    v_xor_b32 v10, s57, v31
    v_lshlrev_b32 v10, 6, v10
    v_add_u32 v{TR}, v30, v10
    s_add_u32 s57, s57, 1
    v_xor_b32 v10, s57, v31
    v_lshlrev_b32 v10, 6, v10
    v_add_u32 v{TR+1}, v30, v10
    v_add_u32 v{TR+2}, 0x10000, v{TR}
    v_add_u32 v{TR+3}, 0x10000, v{TR+1}
    v_add_u32 v{TR+4}, 0x20000, v{TR}
    v_add_u32 v{TR+5}, 0x20000, v{TR+1}
    v_and_b32 v10, 31, v2
    v_lshrrev_b32 v6, 5, v2
    v_and_b32 v31, 15, v2
    v_xor_b32 v6, v6, v31
    s_lshl_b32 s57, s20, 15
    v_lshlrev_b32 v10, 10, v10
    v_add_u32 v10, s57, v10
    """)
    for tt in range(8):
        a(f"v_xor_b32 v31, {2*tt}, v6")
        a(f"v_lshl_add_u32 v{ACC+tt}, v31, 4, v10")
    a(f"""
    s_mov_b32 s26, 0x3f803f80
    s_mov_b32 s27, 0xffff0000
    v_mov_b32 v24, 0
    v_mov_b32 v25, 0
    v_mov_b32 v26, 0
    v_mov_b32 v27, 0
    s_lshl_b32 s57, s21, 6
    """)
    a.stamp()
    a.wait_vm("x")
    a("s_barrier")
    a.stamp()
    for c in (0, 1):
        for u in range(2): dma_one(c, u)
    for c in range(2, 2 + BWARM):
        a(f"s_xor_b32 s56, s58, {c}")
        a("s_mul_i32 s56, s56, s55")
        a("s_add_u32 s56, s56, s52")
        a.vmem(f"buffer_load_dwordx4 v[{PFD}:{PFD+3}], v{VD}, s[44:47], s56 offen", "bw")
        a.vmem(f"buffer_load_dwordx4 v[{PFD}:{PFD+3}], v22, s[44:47], s56 offen", "bw")
    for t in range(32):
        a(f"ds_read_b128 v[{A0+4*t}:{A0+4*t+3}], v{ACC + t%8} offset:{(t//8)*256}")
    a.wait_vm("w")
    for i in range(4):
        a(f"v_lshl_or_b32 v{WL+12+i}, v{WL+4+i}, 16, v{WL+i}")
    a(f"""
    s_cmp_eq_u32 s3, 7
    s_cbranch_scc0 k1_nosp2
    v_lshl_or_b32 v{WL+8}, v{WL+9}, 16, v{WL+8}
    buffer_store_dword v{WL+8}, v{WL+10}, s[40:43], 0 offen
    v_mov_b32 v4, 0
    v_mov_b32 v5, 0x7fffff00
    v_cmp_eq_u32 vcc, 0, v2
    s_lshl_b32 s51, s2, 4
    s_add_u32 s51, s51, {WS_FL}
    v_cndmask_b32 v5, v5, v4, vcc
    buffer_store_dword v4, v5, s[40:43], s51 offen
    k1_nosp2:
    """)
    a("s_waitcnt lgkmcnt(14)")
    a("s_set_gpr_idx_on s57, gpr_idx(SRC0,SRC1)")
    for t in range(16):
        if t % 2 == 0 and t > 0:
            a(f"s_waitcnt lgkmcnt({max(14 - t, 0)})")
        for r in range(4):
            reg = A0 + 4*t + r
            a(f"v_dot2_f32_bf16 v{24 + r%2}, v{reg}, s26, v{24 + r%2}")
            a(f"v_dot2_f32_bf16 v{26 + r%2}, v{reg}, v{reg}, v{26 + r%2}")
    a("s_set_gpr_idx_off")
    a(f"""
    s_waitcnt lgkmcnt(0)
    s_barrier
    v_add_f32 v24, v24, v25
    v_add_f32 v25, v26, v27
    v_mov_b32 v26, v24
    v_mov_b32 v27, v25
    s_lshl_b32 s57, s3, 9
    s_add_u32 s57, s57, {SPARE + 4096}
    v_lshlrev_b32 v10, 3, v2
    v_permlane32_swap_b32 v24, v26
    v_permlane32_swap_b32 v25, v27
    v_add_u32 v10, s57, v10
    v_add_f32 v24, v24, v26
    v_add_f32 v25, v25, v27
    v_xor_b32 v6, 0x800, v10
    ds_write_b64 v10, v[24:25]
    s_lshl_b32 s57, s3, 2
    s_add_u32 s57, s57, {SPARE}
    v_mov_b32 v{VFA}, s57
    v_mov_b32 v{VPG}, 0
    ds_write_b32 v{VFA}, v{VPG}
    v_and_b32 v{VFL}, 7, v2
    v_xor_b32 v4, s3, v{VFL}
    v_lshlrev_b32 v4, 4, v4
    v_lshl_add_u32 v4, v2, 7, v4
    v_add_u32 v4, {SPARE + 8192}, v4
    ds_write_b128 v4, v[{WL+12}:{WL+15}]
    v_lshlrev_b32 v{VFL}, 2, v{VFL}
    v_add_u32 v{VFL}, {SPARE}, v{VFL}
    """)
    a.stamp()
    pend = [(c, u) for c in range(2, 16) for u in range(2)]
    for _ in range(2*K1_PRE): dma_one(*pend.pop(0))
    getpc_tab(a, 32, "tab_G")
    a(f"""
    s_mov_b32 s34, {524288 + TSZ}
    s_mov_b32 s28, s60
    s_mov_b32 s29, s61
    s_mov_b32 s30, {1792*1024}
    s_lshr_b32 s50, s2, 3
    s_lshl_b32 s50, s50, 3
    s_add_u32 s50, s50, s3
    s_mul_i32 s62, s50, 7168
    s_mul_i32 s63, s50, 3072
    v_lshrrev_b32 v4, 3, v2
    v_and_b32 v5, 7, v2
    v_xor_b32 v30, v4, v5
    v_lshlrev_b32 v30, 4, v30
    v_lshl_add_u32 v30, v4, 7, v30
    s_lshl_b32 s57, s3, 10
    s_add_u32 s57, s57, {SPARE + 8192}
    v_add_u32 v30, s57, v30
    v_lshlrev_b32 v5, 4, v5
    v_lshl_add_u32 v5, v4, 13, v5
    s_and_b32 s57, s2, 3
    s_lshl_b32 s57, s57, 3
    s_add_u32 s57, s57, s3
    s_lshl_b32 s57, s57, 16
    s_lshr_b32 s51, s2, 2
    s_lshl_b32 s51, s51, 7
    s_add_u32 s57, s57, s51
    s_add_u32 s51, s57, {WS_W}
    """)
    a.stamp()
    vm_save = list(a.vm); nst_save = a.nst; pend_save = list(pend)

    def p2(i, r):
        reg = A0 + i*4 + r
        t0, t1 = PT + 2*r, PT + 2*r + 1
        return [f"v_lshlrev_b32 v{t0}, 16, v{reg}", f"v_and_b32 v{t1}, s27, v{reg}",
                f"v_add_f32 v{t0}, v{VNM}, v{t0}", f"v_add_f32 v{t1}, v{VNM}, v{t1}",
                f"v_cvt_pk_bf16_f32 v{reg}, v{t0}, v{t1}"]
    def p2_sched(i):
        o = [p2(i, r) for r in range(4)]
        seq = [o[0][0], o[0][1], o[1][0], o[1][1], o[2][0],
               o[2][1], o[3][0], o[3][1], o[0][2], o[0][3],
               o[1][2], o[1][3], o[2][2], o[2][3], o[3][2],
               o[3][3], o[0][4], o[1][4], o[2][4], o[3][4]]
        return [seq[5*g:5*g+5] for g in range(4)]

    def mainloop(dft):
        a.vm = list(vm_save); a.nst = nst_save
        pend = list(pend_save)
        lab = "d" if dft else "g"
        def reads(i, buf):
            c, s_ = i // 2, i % 2
            pos = RING[c % 9] * 16384
            win, base = pos >> 16, pos & 0xffff
            for P in range(2):
                for T in range(2):
                    fr = BF + buf*16 + (P*2+T)*4
                    for t in range(2):
                        off = base + P*8192 + (16*s_ + 4*t)*256
                        a(f"ds_read_b64_tr_b16 v[{fr+2*t}:{fr+2*t+1}], v{TR+2*win+T} offset:{off}")
        def mfma(i, buf, tile):
            areg = A0 + 4*i
            fr = BF + buf*16 + tile*4
            acc = ACC + tile*16
            cin = "0" if i == 0 else f"v[{acc}:{acc+15}]"
            if dft:
                a(f"v_mfma_f32_32x32x16_bf16 v[{acc}:{acc+15}], v[{areg}:{areg+3}], v[{fr}:{fr+3}], {cin}")
            else:
                a(f"v_mfma_f32_32x32x16_bf16 v[{acc}:{acc+15}], v[{fr}:{fr+3}], v[{areg}:{areg+3}], {cin}")
        a.wait_vm("c1")
        a("s_waitcnt lgkmcnt(0)")
        a("s_barrier")
        a.stamp()
        a("ds_read_b64 v[26:27], v6")
        a(f"ds_read_b128 v[{WL}:{WL+3}], v30")
        reads(0, 0)
        a(f"""
        s_waitcnt lgkmcnt(8)
        v_add_f32 v24, v24, v26
        v_add_f32 v25, v25, v27
        v_mul_f32 v24, 0x3b000000, v24
        v_mul_f32 v25, 0x3b000000, v25
        v_fma_f32 v{VVAR}, -v24, v24, v25
        v_cvt_pk_bf16_f32 v27, v24, v24
        v_lshlrev_b32 v27, 16, v27
        v_sub_f32 v{VNM}, 0, v27
        v_mul_f32 v29, v24, v24
        v_mul_f32 v30, 0x43800000, v{VVAR}
        v_cmp_gt_f32 vcc, v29, v30
        """)
        a.vmem(f"buffer_store_dwordx4 v[{WL}:{WL+3}], v5, s[40:43], s51 offen", "ws")
        a(f"""
        s_cbranch_vccz k1_fast{lab}
        v_mov_b32 v28, 0
        v_mov_b32 v29, 0
        s_mov_b32 s56, 0
        k1_slow{lab}:
        s_set_gpr_idx_on s56, gpr_idx(SRC1)
        v_lshlrev_b32 v30, 16, v{A0}
        v_and_b32 v31, s27, v{A0}
        s_set_gpr_idx_off
        v_add_f32 v30, v{VNM}, v30
        v_add_f32 v31, v{VNM}, v31
        v_fma_f32 v28, v30, v30, v28
        v_fma_f32 v29, v31, v31, v29
        s_add_u32 s56, s56, 1
        s_cmp_lt_u32 s56, 128
        s_cbranch_scc1 k1_slow{lab}
        v_add_f32 v28, v28, v29
        v_mov_b32 v29, v28
        v_sub_f32 v26, v24, v27
        s_nop 0
        v_permlane32_swap_b32 v28, v29
        v_add_f32 v28, v28, v29
        v_mul_f32 v28, 0x3b000000, v28
        v_fma_f32 v{VVAR}, -v26, v26, v28
        k1_fast{lab}:
        """)
        for g in p2_sched(0):
            for ins in g: a(ins)
        a.stamp()
        limit = 8
        npf = 0
        for i in range(32):
            c, s_ = i // 2, i % 2
            buf = i & 1
            if s_ == 0:
                if c >= 1 and c < 15: a(f"ds_read_b32 v0, v{VFL}")
                reads(i + 1, buf ^ 1)
                a("s_waitcnt lgkmcnt(8)")
                if c + 2 < 16:
                    assert not pend or pend[0][0] > c + 2
                    a.wait_vm(f"c{c+2}")
                    a(f"v_mov_b32 v{VPG}, {c+1}")
                    a(f"ds_write_b32 v{VFA}, v{VPG}")
            else:
                if i + 1 < 32:
                    if c >= 1:
                        a(f"""
                        k1_spin{lab}{c}:
                        v_cmp_gt_u32 vcc, {c}, v0
                        s_cbranch_vccz k1_ok{lab}{c}
                        ds_read_b32 v0, v{VFL}
                        s_waitcnt lgkmcnt(0)
                        s_branch k1_spin{lab}{c}
                        k1_ok{lab}{c}:
                        """)
                        limit = c + 7
                    reads(i + 1, buf ^ 1)
                    a("s_waitcnt lgkmcnt(8)")
                else:
                    a("s_waitcnt lgkmcnt(0)")
            groups = p2_sched(i + 1) if (i + 1 < 32 and not X_NOP2) else [[], [], [], []]
            for tile in range(4):
                mfma(i, buf, tile)
                for ins in groups[tile]: a(ins)
                if tile in (0, 2) and pend and pend[0][0] <= limit:
                    dma_one(*pend.pop(0))
                if PREF and tile == 1 and i >= PFS and npf < 10:
                    if npf < 7:
                        a.vmem(f"buffer_load_dwordx4 v[{PFD}:{PFD+3}], v{VPF}, s[28:31], s62 offen offset:{(npf % 4)*1024}", "pf")
                        if npf == 3: a("s_add_u32 s62, s62, 4096")
                    else:
                        a.vmem(f"buffer_load_dwordx4 v[{PFD}:{PFD+3}], v{VPF}, s[32:35], s63 offen offset:{(npf-7)*1024}", "pf")
                    npf += 1
            if i % 8 == 7 and i < 31: a.stamp()
        assert not pend
        a(f"""
        v_max_f32 v28, 0, v{VVAR}
        v_cvt_pk_bf16_f32 v28, v28, v28
        v_lshlrev_b32 v28, 16, v28
        v_add_f32 v28, 0x3727c5ac, v28
        v_cvt_pk_bf16_f32 v28, v28, v28
        v_lshlrev_b32 v28, 16, v28
        v_sqrt_f32 v28, v28
        s_nop 0
        v_cvt_pk_bf16_f32 v28, v28, v28
        v_lshlrev_b32 v28, 16, v28
        v_rcp_f32 v11, v28
        s_nop 4
        """)
        a.stamp()
    a("""
    s_cmp_lt_u32 s19, 14
    s_cbranch_scc0 k1_dft
    """)
    mainloop(False)
    a(f"""
    s_mul_i32 s50, s22, 112
    s_lshl_b32 s51, s19, 3
    s_add_u32 s50, s50, s51
    s_lshl_b32 s51, s21, 2
    s_add_u32 s50, s50, s51
    s_lshl_b32 s50, s50, 10
    s_add_u32 s50, s50, {WS_H}
    v_lshlrev_b32 v3, 4, v2
    v_mov_b32 v10, v11
    """)
    for T in range(2):
        G = ACC + T*16; U = ACC + 32 + T*16
        O = BF + T*8; Q = A0 + T*16
        for p in range(8):
            a(f"v_pk_mul_f32 v[{G+2*p}:{G+2*p+1}], v[{G+2*p}:{G+2*p+1}], v[10:11]")
            a(f"v_pk_mul_f32 v[{U+2*p}:{U+2*p+1}], v[{U+2*p}:{U+2*p+1}], v[10:11]")
        for p in range(16):
            a(f"v_max_f32 v{G+p}, 0, v{G+p}")
        for p in range(8):
            a(f"v_cvt_pk_bf16_f32 v{Q+p}, v{G+2*p}, v{G+2*p+1}")
            a(f"v_cvt_pk_bf16_f32 v{Q+8+p}, v{U+2*p}, v{U+2*p+1}")
        for p in range(8):
            a(f"v_lshlrev_b32 v{G+2*p}, 16, v{Q+p}")
            a(f"v_and_b32 v{G+2*p+1}, s27, v{Q+p}")
            a(f"v_lshlrev_b32 v{U+2*p}, 16, v{Q+8+p}")
            a(f"v_and_b32 v{U+2*p+1}, s27, v{Q+8+p}")
        for p in range(8):
            a(f"v_pk_mul_f32 v[{G+2*p}:{G+2*p+1}], v[{G+2*p}:{G+2*p+1}], v[{U+2*p}:{U+2*p+1}]")
        for p in range(8):
            a(f"v_cvt_pk_bf16_f32 v{O+p}, v{G+2*p}, v{G+2*p+1}")
        a(f"buffer_store_dwordx4 v[{O}:{O+3}], v3, s[40:43], s50 offen offset:{T*2048}")
        a(f"buffer_store_dwordx4 v[{O+4}:{O+7}], v3, s[40:43], s50 offen offset:{T*2048+1024}")
    a.stamp()
    if STAMP: a("s_waitcnt vmcnt(0)")
    a.stamp()
    a.stamp_store(0)
    a("s_endpgm")
    a.raw("k1_dft:")
    mainloop(True)
    a("""
    v_lshrrev_b32 v3, 5, v2
    v_lshlrev_b32 v3, 4, v3
    """)
    for i in range(16):
        a(f"v_add_u32 v4, {4*(8*(i>>2) + (i&3))}, v3")
        a(f"ds_bpermute_b32 v{BF+i}, v4, v11")
    a(f"""
    v_and_b32 v4, 31, v2
    v_lshrrev_b32 v5, 5, v2
    s_lshl_b32 s50, s20, 2
    v_add_u32 v5, s50, v5
    v_and_b32 v6, 15, v2
    v_xor_b32 v5, v5, v6
    v_lshlrev_b32 v5, 4, v5
    v_lshl_add_u32 v5, v4, 8, v5
    s_lshl_b32 s50, s21, 14
    v_add_u32 v5, s50, v5
    v_xor_b32 v6, 32, v5
    s_waitcnt lgkmcnt(0)
    s_barrier
    """)
    for P in range(2):
        for T in range(2):
            acc = ACC + (P*2+T)*16
            for p in range(8):
                a(f"v_pk_mul_f32 v[{acc+2*p}:{acc+2*p+1}], v[{acc+2*p}:{acc+2*p+1}], v[{BF+2*p}:{BF+2*p+1}]")
            O = A0 + 32 + (P*2+T)*8
            for p in range(8):
                a(f"v_cvt_pk_f16_f32 v{O+p}, v{acc+2*p}, v{acc+2*p+1}")
            a("s_nop 1")
            for q in (0, 2):
                a(f"v_permlane32_swap_b32 v{O+2*q}, v{O+2*q+2}")
                a(f"v_permlane32_swap_b32 v{O+2*q+1}, v{O+2*q+3}")
            a(f"ds_write_b128 v5, v[{O}:{O+3}] offset:{(128*P + 32*T)*256}")
            a(f"ds_write_b128 v6, v[{O+4}:{O+7}] offset:{(128*P + 32*T)*256}")
    a(f"""
    v_lshrrev_b32 v4, 4, v2
    v_and_b32 v5, 15, v2
    s_lshl_b32 s50, s3, 13
    v_lshlrev_b32 v3, 4, v5
    v_lshl_add_u32 v3, v4, 12, v3
    v_xor_b32 v5, v5, v4
    v_lshlrev_b32 v4, 8, v4
    v_add_u32 v4, s50, v4
    s_sub_u32 s50, s19, 14
    s_lshl_b32 s50, s50, 8
    s_lshl_b32 s51, s3, 5
    s_add_u32 s50, s50, s51
    s_lshl_b32 s50, s50, 12
    s_lshl_b32 s51, s18, 8
    s_add_u32 s50, s50, s51
    s_add_u32 s50, s50, {WS_Y}
    """)
    for j in range(4):
        a(f"v_xor_b32 v6, {4*j}, v5")
        a(f"v_lshl_add_u32 v{16+j}, v6, 4, v4")
    a("s_waitcnt lgkmcnt(0)")
    a("s_barrier")
    for j in range(8):
        a(f"ds_read_b128 v[{ACC+4*j}:{ACC+4*j+3}], v{16 + j%4} offset:{j*1024}")
    for j in range(8):
        a(f"s_waitcnt lgkmcnt({7-j})")
        a(f"buffer_store_dwordx4 v[{ACC+4*j}:{ACC+4*j+3}], v3, s[40:43], s50 offen")
        a("s_add_u32 s50, s50, 16384")
    a.stamp()
    if STAMP: a("s_waitcnt vmcnt(0)")
    a.stamp()
    a.stamp_store(0)
    a.raw("k1_end:")
    a("s_endpgm")
    return a.text()

TE1, TE2, TE3, TE4, TT1, TT2, TSZ = 0, 4096, 20480, 36864, 40960, 49152, 57344
def small_tables():
    buf = np.zeros(TSZ // 2, np.uint16)
    l = np.arange(64); c = l % 16; g = l // 16; j = np.arange(8)
    for t in range(2):
        ang = -2*np.pi*((8*g[:,None]+j[None,:])*(16*t+c)[:,None] % 32)/32
        buf[(TE1 + (0*2+t)*1024)//2:][:512] = f16(np.cos(ang)/8).ravel()
        buf[(TE1 + (1*2+t)*1024)//2:][:512] = f16(np.sin(ang)/8).ravel()
    for w in range(4):
        for st in range(2):
            ang = -2*np.pi*((32*st+8*g[:,None]+j[None,:])*(16*w+c)[:,None] % 64)/64
            buf[(TE2 + ((w*2+0)*2+st)*1024)//2:][:512] = f16(np.cos(ang)/8).ravel()
            buf[(TE2 + ((w*2+1)*2+st)*1024)//2:][:512] = f16(np.sin(ang)/8).ravel()
            buf[(TE3 + ((w*2+0)*2+st)*1024)//2:][:512] = bf16(np.cos(-ang)/8).ravel()
            buf[(TE3 + ((w*2+1)*2+st)*1024)//2:][:512] = bf16(np.sin(-ang)/8).ravel()
    sig = 16*(j[None,:]//4) + 4*g[:,None] + (j[None,:] % 4)
    for tp in range(2):
        ang = 2*np.pi*((sig*(16*tp+c)[:,None]) % 32)/32
        buf[(TE4 + (0*2+tp)*1024)//2:][:512] = bf16(np.cos(ang)/8).ravel()
        buf[(TE4 + (1*2+tp)*1024)//2:][:512] = bf16(np.sin(ang)/8).ravel()
    for w in range(4):
        for e in range(8):
            t, i = e // 4, e % 4
            a1 = -2*np.pi*(((16*w+4*g+i)*(16*t+c)) % 2048)/2048
            a2 = 2*np.pi*(((16*w+c)*(16*t+4*g+i)) % 2048)/2048
            for (base, an) in ((TT1, a1), (TT2, a2)):
                o = (base + (w*2 + e//4)*1024)//2 + l*8 + (e % 4)*2
                buf[o] = f16(np.cos(an)); buf[o+1] = f16(np.sin(an))
    return buf

K3_NS = 5
CSTR = int(os.environ.get('CSTR','2'))
NUP = int(os.environ.get('NUP','16'))
ZSC = os.environ.get('ZSC','sc1')
GLAG = int(os.environ.get('GLAG','5'))
ZMIN = int(os.environ.get('ZMIN','40'))
POLLD = int(os.environ.get('POLLD','5'))
HDIST = int(os.environ.get('HDIST','24'))
ZSTART = int(os.environ.get('ZSTART','28'))
ZTAIL = int(os.environ.get('ZTAIL','0'))
NIDLE = int(os.environ.get('NIDLE','2'))
NZB = int(os.environ.get('NZB','1'))
LOADALL = os.environ.get('LOADALL','1') == '1'
CPRIO = int(os.environ.get('CPRIO','2'))
LATEC = int(os.environ.get('LATEC','1'))
def gen_k23_main():
    a = Asm()
    a.raw(".p2align 8\nk23_kernel:")
    a("""
    s_cmp_ge_u32 s2, 256
    s_cbranch_scc1 k23_end
    s_load_dwordx2 s[4:5], s[0:1], 0
    s_load_dwordx4 s[8:11], s[0:1], 48
    s_load_dwordx2 s[14:15], s[0:1], 72
    v_lshrrev_b32 v1, 6, v0
    v_and_b32 v2, 63, v0
    s_nop 0
    v_readfirstlane_b32 s3, v1
    v_and_b32 v3, 15, v2
    v_lshrrev_b32 v4, 4, v2
    s_mov_b32 s48, 0x80008000
    s_mov_b32 s49, 0xffff0000
    s_cmp_ge_u32 s3, 4
    s_cbranch_scc1 k23_conv
    """)
    SB = 131072
    NCB = 5 + NIDLE + NZB
    getpc_tab(a, 24, "tab_G")
    srd(a, 44, "s24", "s25", 524288)
    if os.environ.get("K3_MAP", "0") == "0":
        a("""
    s_and_b32 s16, s2, 7
    s_lshr_b32 s17, s2, 3
    s_lshr_b32 s18, s16, 1
    s_lshl_b32 s18, s18, 3
    s_and_b32 s19, s17, 7
    s_add_u32 s18, s18, s19
    s_lshl_b32 s58, s19, 1
    s_and_b32 s19, s16, 1
    s_lshl_b32 s19, s19, 2
    s_lshr_b32 s20, s17, 3
    s_add_u32 s19, s19, s20
    s_lshl_b32 s20, s20, 2
    s_add_u32 s58, s58, s20
    """)
    else:
        a("""
    s_and_b32 s16, s2, 7
    s_lshr_b32 s17, s2, 3
    s_lshl_b32 s18, s16, 2
    s_and_b32 s19, s17, 3
    s_add_u32 s18, s18, s19
    s_lshl_b32 s58, s19, 2
    s_lshr_b32 s19, s17, 2
    s_lshl_b32 s20, s19, 1
    s_add_u32 s58, s58, s20
    """)
    a.sb = 92; a.maxst = 5
    XR = 8; PV = 16; VO, VF, VW, VZ, VH = 20, 21, 22, 23, 24
    VPG, VFA, VFL, VFV = 25, 26, 27, 28
    TRW = 29
    TRZ = 37
    GFR = 39
    VW2, VZ2 = 41, 42
    ACG, ACS = 44, 60
    FB = 76
    HB = 136; NHB = 28
    PW = SB + 28672
    NCH = 36
    a(f"""
    s_cmp_ge_u32 s58, 14
    s_cselect_b32 s20, 14, 0
    s_sub_u32 s58, s58, s20
    s_lshl_b32 s58, s58, 1
    s_add_u32 s12, s18, s19
    s_and_b32 s12, s12, 7
    s_and_b32 s20, s3, 1
    s_lshr_b32 s21, s3, 1
    s_lshl_b32 s22, s18, 1
    s_add_u32 s22, s22, s21
    v_lshlrev_b32 v{VF}, 4, v2
    v_lshrrev_b32 v6, 3, v2
    v_and_b32 v5, 7, v2
    v_lshrrev_b32 v5, 1, v5
    v_lshrrev_b32 v1, 1, v6
    v_xor_b32 v5, v5, v1
    v_lshlrev_b32 v5, 5, v5
    v_and_b32 v1, 1, v2
    v_lshl_add_u32 v5, v1, 4, v5
    v_lshl_add_u32 v{VW}, v6, 10, v5
    v_lshl_add_u32 v{VZ}, v6, 12, v5
    s_lshl_b32 s27, s19, 7
    v_add_u32 v{VW}, s27, v{VW}
    s_lshl_b32 s27, s18, 7
    s_add_u32 s27, s27, {WS_Z}
    v_add_u32 v{VZ}, s27, v{VZ}
    v_add_u32 v{VW2}, 8192, v{VW}
    v_add_u32 v{VZ2}, 32768, v{VZ}
    v_lshlrev_b32 v{VH}, 9, v4
    v_lshl_add_u32 v{VH}, v3, 4, v{VH}
    s_mul_i32 s50, s22, 112
    s_lshl_b32 s50, s50, 10
    s_lshl_b32 s27, s20, 8
    s_add_u32 s50, s50, s27
    s_add_u32 s50, s50, {WS_H}
    s_lshl_b32 s51, s19, 1
    s_add_u32 s51, s51, s21
    s_lshl_b32 s51, s51, 5
    s_lshl_b32 s27, s20, 1
    s_add_u32 s51, s51, s27
    s_lshl_b32 s51, s51, 10
    s_lshl_b32 s52, s3, 11
    s_lshl_b32 s54, s3, 14
    s_lshl_b32 s55, s3, 16
    s_mov_b32 s59, {WS_FL}
    s_lshl_b32 s27, s3, 2
    s_add_u32 s27, s27, {PW}
    v_mov_b32 v{VFA}, s27
    v_mov_b32 v{VPG}, 0
    v_and_b32 v{VFL}, 3, v2
    v_lshlrev_b32 v{VFL}, 2, v{VFL}
    v_add_u32 v{VFL}, {PW}, v{VFL}
    ds_write_b32 v{VFA}, v{VPG}
    s_waitcnt lgkmcnt(0)
    """)
    a.stamp()
    srd(a, 40, "s14", "s15", WS_SIZE)
    srd(a, 32, "s8", "s9", 1792*1024)
    isd = lambda c: c < 28
    upos = {}; p_ = 0
    for c in range(NCH):
        upos[c] = p_ % 16; p_ += 1 if isd(c) else 2
    ustart = {}; p_ = 0
    for c in range(NCH):
        ustart[c] = p_; p_ += 1 if isd(c) else 2
    uend = lambda c: ustart[c] + (1 if isd(c) else 2)
    a(f"""
    v_add_u32 v{VW}, s54, v{VW}
    v_add_u32 v{VW2}, s54, v{VW2}
    v_add_u32 v43, s50, v{VH}
    s_lshl_b32 s64, s58, 12
    """)
    def tab(c):
        a(f"s_add_u32 s{64+c}, s{63+c}, 4096")
        a(f"s_cmp_eq_u32 s{64+c}, {28*4096}")
        a(f"s_cselect_b32 s{64+c}, 0, s{64+c}")
    def dma_one(c, u):
        if isd(c):
            a(f"s_add_u32 m0, s52, {upos[c]*8192 + u*1024}")
            if u == 0: a(f"s_lshl_b32 s63, s{64+c}, 4")
            else: a("s_nop 0")
            a.vmem(f"buffer_load_dwordx4 v{VW if u == 0 else VW2}, s[32:35], s63 offen lds", f"c{c}")
            return
        if u == 0:
            a(f"s_xor_b32 s57, s12, {c-28}")
            a(f"s_lshl_b32 s62, s57, 12"); a(f"s_add_u32 s62, s62, s51")
            a(f"s_lshl_b32 s63, s57, 18"); a(f"s_add_u32 s63, s63, s55")
        if u < 2:
            a(f"s_add_u32 m0, s52, {upos[c]*8192 + u*1024}")
            a("s_nop 0")
            a.vmem(f"buffer_load_dwordx4 v{VZ if u == 0 else VZ2}, s[40:43], s63 offen {ZSC} lds", f"c{c}")
        else:
            if u == 2:
                a(f"s_add_u32 m0, s52, {((upos[c]+1) % 16)*8192}")
                a("s_nop 0")
            else:
                a(f"s_add_u32 m0, s52, {((upos[c]+1) % 16)*8192}")
                a("s_nop 0")
            a.vmem(f"buffer_load_dwordx4 v{VF}, s[44:47], s62 offen offset:{(u-2)*1024} lds", f"c{c}")
    def hload(j):
        c, s_ = j // 2, j % 2
        hb = HB + (j % NHB) * 4
        a.vmem(f"buffer_load_dwordx4 v[{hb}:{hb+3}], v43, s[40:43], s{64+c} offen offset:{s_*2048}", f"h{j}")
    tab(1)
    pend = [(c, u) for c in range(NCH) for u in range(2 if isd(c) else 4)]
    hp = [0]
    for c in range(2):
        for u in range(2): dma_one(*pend.pop(0))
        for _ in range(2): hload(hp[0]); hp[0] += 1
    for c in range(2, 28): tab(c)
    a("s_barrier")
    for c in range(NUP // 4):
        for u in range(2): dma_one(*pend.pop(0))
        for _ in range(2): hload(hp[0]); hp[0] += 1
    srd(a, 36, "s10", "s11", 2048*1024)
    srd(a, 28, "s4", "s5", 2048*1024)
    a(f"""
    v_lshrrev_b32 v{PV}, 2, v3
    v_and_b32 v{PV+1}, 3, v3
    v_lshrrev_b32 v{PV+2}, 1, v4
    v_lshlrev_b32 v{PV+2}, 4, v{PV+2}
    v_and_b32 v{PV+3}, 1, v4
    v_lshl_add_u32 v{PV+2}, v{PV+3}, 2, v{PV+2}
    v_add_u32 v{PV+2}, v{PV+2}, v{PV}
    v_lshlrev_b32 v{PV+2}, 7, v{PV+2}
    v_lshl_add_u32 v{PV+2}, v{PV+1}, 3, v{PV+2}
    v_lshrrev_b32 v{PV}, 1, v{PV}
    v_lshl_add_u32 v{PV}, v{PV+3}, 1, v{PV}
    """)
    for dt in range(4):
        a(f"v_xor_b32 v{PV+1}, {dt}, v{PV}")
        a(f"v_lshl_add_u32 v{TRW+dt}, v{PV+1}, 5, v{PV+2}")
        a(f"v_add_u32 v{TRW+4+dt}, 0x10000, v{TRW+dt}")
    a(f"""
    v_xor_b32 v{PV+1}, s3, v{PV}
    v_lshl_add_u32 v{TRZ}, v{PV+1}, 5, v{PV+2}
    v_add_u32 v{TRZ+1}, 0x10000, v{TRZ}
    v_mov_b32 v{GFR}, v{VH}
    v_add_u32 v{GFR+1}, 0x10000, v{VH}
    v_lshrrev_b32 v1, 3, v2
    v_and_b32 v{VO}, 7, v2
    v_lshlrev_b32 v{VO}, 4, v{VO}
    v_lshl_add_u32 v{VO}, v1, 16, v{VO}
    s_lshl_b32 s23, s22, 10
    s_lshl_b32 s26, s19, 7
    s_add_u32 s23, s23, s26
    s_lshl_b32 s26, s20, 20
    s_add_u32 s23, s23, s26
    s_add_u32 s13, s23, 0x80000
    """)
    DEPTH = 3
    NST = NCH * 2
    LAG = GLAG
    pubs = []
    def full_issued():
        return (pend[0][0] - 1) if pend else NCH - 1
    def arrive(want, rdone):
        q = min(want, full_issued(), NCH - 1)
        for cc in range(q, -1, -1):
            if f"c{cc}" in a.vm:
                a.wait_vm(f"c{cc}"); break
        pubs.append((q, rdone))
        a(f"v_mov_b32 v{VPG}, {len(pubs)}")
        a.lds(f"ds_write_b32 v{VFA}, v{VPG}", "pw")
    nspin = [0]
    checked = [0]
    fvp = [False]
    def check(k):
        n = nspin[0]; nspin[0] += 1
        if not fvp[0]:
            a.lds(f"ds_read_b32 v{VFV}, v{VFL}", "fv")
        fvp[0] = False
        a.wait_lds("fv")
        a(f"""
        k23_gs{n}:
        v_cmp_gt_u32 vcc, {k}, v{VFV}
        s_cbranch_vccz k23_go{n}
        ds_read_b32 v{VFV}, v{VFL}
        s_waitcnt lgkmcnt(0)
        s_branch k23_gs{n}
        k23_go{n}:
        """)
        checked[0] = k
        rd = pubs[k-1][1]
        if rd >= 0: ulimit[0] = max(ulimit[0], uend(rd) + 16)
    ulimit = [16]
    def reads(i):
        c, s_ = i // 2, i % 2
        if s_ == 0:
            have = pubs[checked[0]-1][0] if checked[0] else -1
            if have < c or c % 2 == 0:
                need = min(c + 1, NCH - 1) if c % 2 == 0 else c
                ks = [k+1 for k, (q, r) in enumerate(pubs) if q >= need]
                if not ks: ks = [k+1 for k, (q, r) in enumerate(pubs) if q >= c]
                assert ks, ("no publish covers chunk", c, pubs)
                k = max(ks[0], checked[0])
                if k > checked[0]: check(k)
            if c in (0, 12, 28): a.stamp()
            if c % 2 == 1 and c + 1 < NCH and c >= 3:
                a.lds(f"ds_read_b32 v{VFV}, v{VFL}", "fv"); fvp[0] = True
        fb = FB + (i % DEPTH) * 20
        u0 = upos[c] * 8192
        w0, b0 = u0 >> 16, u0 & 0xffff
        if isd(c):
            for dt in range(4):
                for t in range(2):
                    a.lds(f"ds_read_b64_tr_b16 v[{fb+4*dt+2*t}:{fb+4*dt+2*t+1}], v{TRW+4*w0+dt} offset:{b0 + (32*s_ + 8*t)*128}", f"g{i}")
        else:
            for t in range(2):
                a.lds(f"ds_read_b64_tr_b16 v[{fb+16+2*t}:{fb+17+2*t}], v{TRZ+w0} offset:{b0 + (32*s_ + 8*t)*128}", f"g{i}")
            u1 = ((upos[c] + 1) % 16) * 8192
            w1, b1 = u1 >> 16, u1 & 0xffff
            for dt in range(4):
                a.lds(f"ds_read_b128 v[{fb+4*dt}:{fb+4*dt+3}], v{GFR+w1} offset:{b1 + (dt>>1)*4096 + s_*2048 + (dt&1)*256}", f"g{i}")
    def mfma(i, dt):
        c, s_ = i // 2, i % 2
        fb = FB + (i % DEPTH) * 20
        if isd(c):
            hb = HB + (i % NHB) * 4
            cin = "0" if i == 0 else f"v[{ACG+4*dt}:{ACG+4*dt+3}]"
            a(f"v_mfma_f32_16x16x32_bf16 v[{ACG+4*dt}:{ACG+4*dt+3}], v[{fb+4*dt}:{fb+4*dt+3}], v[{hb}:{hb+3}], {cin}")
        else:
            cin = "0" if i == 56 else f"v[{ACS+4*dt}:{ACS+4*dt+3}]"
            a(f"v_mfma_f32_16x16x32_bf16 v[{ACS+4*dt}:{ACS+4*dt+3}], v[{fb+4*dt}:{fb+4*dt+3}], v[{fb+16}:{fb+19}], {cin}")
    def silu():
        G_ = ACG; T_ = HB
        for p in range(8): a(f"v_cvt_pk_bf16_f32 v{T_+p}, v{G_+2*p}, v{G_+2*p+1}")
        yield
        for p in range(8):
            a(f"v_lshlrev_b32 v{G_+2*p}, 16, v{T_+p}")
            a(f"v_and_b32 v{G_+2*p+1}, s49, v{T_+p}")
            if p % 4 == 3: yield
        for p in range(16):
            a(f"v_mul_f32 v{T_+p}, 0xbfb8aa3b, v{G_+p}")
            if p % 8 == 7: yield
        for p in range(16):
            a(f"v_exp_f32 v{T_+p}, v{T_+p}")
            if p % 4 == 3: yield
        for p in range(16):
            a(f"v_add_f32 v{T_+p}, 1.0, v{T_+p}")
            if p % 8 == 7: yield
        for p in range(16):
            a(f"v_rcp_f32 v{T_+p}, v{T_+p}")
            if p % 4 == 3: yield
        for p in range(16):
            a(f"v_mul_f32 v{G_+p}, v{G_+p}, v{T_+p}")
            if p % 8 == 7: yield
        for p in range(8): a(f"v_cvt_pk_bf16_f32 v{T_+p}, v{G_+2*p}, v{G_+2*p+1}")
        yield
        for p in range(8):
            a(f"v_lshlrev_b32 v{G_+2*p}, 16, v{T_+p}")
            a(f"v_and_b32 v{G_+2*p+1}, s49, v{T_+p}")
            if p % 4 == 3: yield
    sl = silu()
    polled = False
    arrive(1, -1)
    early = list(range(3, LAG, 2))
    for k in range(DEPTH - 1): reads(k)
    for i in range(NST):
        c, s_ = i // 2, i % 2
        if early: arrive(early.pop(0), -1)
        if i + DEPTH - 1 < NST: reads(i + DEPTH - 1)
        a.wait_lds(f"g{i}")
        if isd(c): a.wait_vm(f"h{i}")
        if s_ == 1 and c < NCH - 1 and pubs[-1][0] < NCH - 1 and (c % 2 == 0 or c >= 24):
            arrive(c + LAG, c)
        for dt in range(4):
            mfma(i, dt)
            if dt in (0, 2):
                if pend:
                    pc, pu = pend[0]
                    need = ustart[pc] + (1 if pu < 2 else 2)
                    if need <= ulimit[0] and len(a.vm) < 56 and not (pc >= 28 and i < ZMIN):
                        if pend[0] == (28, 0):
                            a.wait_vm("poll")
                            a(f"""
                            s_mov_b32 s27, 0
                            k23_spin:
                            v_and_b32 v{PV}, v{PV}, v{PV+1}
                            v_and_b32 v{PV+2}, v{PV+2}, v{PV+3}
                            v_and_b32 v{PV}, v{PV}, v{PV+2}
                            v_cmp_ne_u32 vcc, 1, v{PV}
                            s_cbranch_vccz k23_go
                            s_add_u32 s27, s27, 1
                            s_cmp_ge_u32 s27, 0x4000
                            s_cbranch_scc1 k23_go
                            s_sleep 8
                            buffer_load_dword v{PV}, v{VF}, s[40:43], s59 offen sc1
                            buffer_load_dword v{PV+1}, v{VF}, s[40:43], s59 offen offset:1024 sc1
                            buffer_load_dword v{PV+2}, v{VF}, s[40:43], s59 offen offset:2048 sc1
                            buffer_load_dword v{PV+3}, v{VF}, s[40:43], s59 offen offset:3072 sc1
                            s_waitcnt vmcnt(0)
                            s_branch k23_spin
                            k23_go:
                            """)
                            print("Z issue at step", i, file=sys.stderr)
                        dma_one(*pend.pop(0))
            if dt in (1, 3):
                if hp[0] < 56 and hp[0] - NHB < i and len(a.vm) < 56 and hp[0] <= i + HDIST:
                    hload(hp[0]); hp[0] += 1
            if i >= 58: next(sl, None)
        if i == ZMIN - POLLD and not polled:
            polled = True
            for q in range(4):
                a.vmem(f"buffer_load_dword v{PV+q}, v{VF}, s[40:43], s59 offen offset:{q*1024} sc1", "poll")
        if i == 50:
            a.vmem(f"buffer_load_dwordx4 v[{XR}:{XR+3}], v{VO}, s[28:31], s23 offen", "x")
            a.vmem(f"buffer_load_dwordx4 v[{XR+4}:{XR+7}], v{VO}, s[28:31], s13 offen", "x")
    assert not pend and hp[0] == 56
    for _ in sl: a("s_nop 0")
    a("s_nop 7")
    O = HB + 16; SV = ACS; GV = ACG; Q = HB + 24
    for p in range(8):
        a(f"v_cvt_pk_bf16_f32 v{Q+p}, v{SV+2*p}, v{SV+2*p+1}")
    for p in range(8):
        a(f"v_lshlrev_b32 v{SV+2*p}, 16, v{Q+p}")
        a(f"v_and_b32 v{SV+2*p+1}, s49, v{Q+p}")
    for p in range(16):
        a(f"v_mul_f32 v{SV+p}, v{SV+p}, v{GV+p}")
    for p in range(8):
        a(f"v_cvt_pk_bf16_f32 v{O+p}, v{SV+2*p}, v{SV+2*p+1}")
    a(f"""
    v_lshrrev_b32 v5, 1, v4
    v_and_b32 v6, 7, v2
    v_xor_b32 v5, v5, v6
    v_and_b32 v7, 1, v4
    v_lshlrev_b32 v7, 3, v7
    v_lshl_add_u32 v7, v3, 7, v7
    s_lshl_b32 s26, s3, 11
    s_add_u32 s26, s26, {SB}
    v_add_u32 v7, s26, v7
    s_barrier
    """)
    for dt in range(4):
        a(f"v_xor_b32 v1, {2*dt}, v5")
        a(f"v_lshl_add_u32 v1, v1, 4, v7")
        a(f"ds_write_b64 v1, v[{O+2*dt}:{O+2*dt+1}]")
    a(f"""
    v_lshrrev_b32 v4, 3, v2
    v_xor_b32 v6, v6, v4
    v_lshlrev_b32 v6, 4, v6
    v_lshl_add_u32 v6, v4, 7, v6
    v_add_u32 v6, s26, v6
    s_waitcnt lgkmcnt(0)
    ds_read_b128 v[{Q}:{Q+3}], v6
    ds_read_b128 v[{Q+4}:{Q+7}], v6 offset:1024
    """)
    a.wait_vm_all()
    for p in range(8):
        a(f"v_lshlrev_b32 v{GV+2*p}, 16, v{XR+p}")
        a(f"v_and_b32 v{GV+2*p+1}, s49, v{XR+p}")
    a("s_waitcnt lgkmcnt(0)")
    for p in range(8):
        a(f"v_lshlrev_b32 v{SV+2*p}, 16, v{Q+p}")
        a(f"v_and_b32 v{SV+2*p+1}, s49, v{Q+p}")
    for p in range(16):
        a(f"v_add_f32 v{SV+p}, v{SV+p}, v{GV+p}")
    for p in range(8):
        a(f"v_cvt_pk_bf16_f32 v{O+p}, v{SV+2*p}, v{SV+2*p+1}")
    a(f"buffer_store_dwordx4 v[{O}:{O+3}], v{VO}, s[36:39], s23 offen")
    a(f"buffer_store_dwordx4 v[{O+4}:{O+7}], v{VO}, s[36:39], s13 offen")
    a.stamp()
    if STAMP: a("s_waitcnt vmcnt(0)")
    a.stamp()
    a.stamp_store(1)
    a("s_endpgm")

    a.raw("k23_conv:")
    a.vm = []; a.lq = []; a.nst = 0; a.sb = 74; a.maxst = 14
    YR, YI = 8, 12
    E1 = 16; T1 = 32; E2 = 48; WW = 64; E3 = 80; T2 = 96; E4 = 112
    D = 128; F = 144; N = 176; TMP = 184; WM = 200; VL = 7
    getpc_tab(a, 24, "tab_S")
    srd(a, 28, "s24", "s25", TSZ)
    a(f"""
    s_sub_u32 s13, s3, 4
    v_lshlrev_b32 v5, 6, v3
    v_lshl_add_u32 v5, v4, 4, v5
    s_lshl_b32 s60, s2, 13
    s_lshl_b32 s61, s13, 10
    s_add_u32 s60, s60, s61
    s_add_u32 s60, s60, {WS_Y}
    s_add_u32 s61, s60, 4096
    v_lshlrev_b32 v{VL}, 4, v2
    s_lshl_b32 s26, s13, 12
    s_lshl_b32 s12, s13, 11
    v_subrev_u32 v6, 256, v0
    v_lshlrev_b32 v6, 5, v6
    s_waitcnt lgkmcnt(0)
    """)
    a.stamp()
    srd(a, 40, "s14", "s15", WS_SIZE)
    def tload(dst, n, soff, base, tag):
        for q in range(n):
            a.vmem(f"buffer_load_dwordx4 v[{dst+4*q}:{dst+4*q+3}], v{VL}, s[28:31], {soff} offen offset:{base+q*1024}", tag)
    a.vmem(f"buffer_load_dwordx4 v[{YR}:{YR+3}], v5, s[40:43], s60 offen", "y")
    a.vmem(f"buffer_load_dwordx4 v[{YI}:{YI+3}], v5, s[40:43], s61 offen", "y")
    tload(E1, 4, "0", TE1, "e1")
    a(f"s_add_u32 s27, s12, {TT1}")
    tload(T1, 2, "s27", 0, "t1")
    def loads2():
        a(f"s_add_u32 s27, s26, {TE2}")
        tload(E2, 4, "s27", 0, "e2")
        a(f"""
        s_lshl_b32 s27, s2, 13
        s_add_u32 s27, s27, {WS_W}
        s_cmp_eq_u32 s2, 0
        s_cbranch_scc0 k23_now256
        s_mov_b32 s56, {WS_W + 256*8192}
        buffer_load_dwordx4 v[{WW+8}:{WW+11}], v{VWT}, s[40:43], s56 offen
        buffer_load_dwordx4 v[{WW+12}:{WW+15}], v{VWT}, s[40:43], s56 offen offset:16
        s_add_u32 s56, s56, 8192
        buffer_load_dwordx4 v[{WM}:{WM+3}], v{VWT}, s[40:43], s56 offen
        buffer_load_dwordx4 v[{WM+4}:{WM+7}], v{VWT}, s[40:43], s56 offen offset:16
        s_add_u32 s56, s56, 8192
        buffer_load_dwordx4 v[{WM+8}:{WM+11}], v{VWT}, s[40:43], s56 offen
        buffer_load_dwordx4 v[{WM+12}:{WM+15}], v{VWT}, s[40:43], s56 offen offset:16
        k23_now256:
        """)
        a.vmem(f"buffer_load_dwordx4 v[{WW}:{WW+3}], v{VWT}, s[40:43], s27 offen", "w")
        a.vmem(f"buffer_load_dwordx4 v[{WW+4}:{WW+7}], v{VWT}, s[40:43], s27 offen offset:16", "w")
    def loads3():
        a(f"s_add_u32 s27, s26, {TE3}")
        tload(E3, 4, "s27", 0, "e3")
        a(f"s_add_u32 s27, s12, {TT2}")
        tload(T2, 2, "s27", 0, "t2")
        a(f"s_mov_b32 s27, {TE4}")
        tload(E4, 4, "s27", 0, "e4")
    VWT = 216; PQ = 220
    a(f"""
    v_mov_b32 v{VWT}, v6
    s_lshl_b32 s27, s13, 9
    v_lshlrev_b32 v1, 7, v4
    v_add3_u32 v1, v1, v3, s27
    s_movk_i32 s27, 144
    v_mul_lo_u32 v6, v3, s27
    v_add_u32 v6, {SB}, v6
    v_lshl_add_u32 v5, v4, 3, v6
    s_lshl_b32 s27, s13, 5
    v_add_u32 v5, s27, v5
    v_lshl_add_u32 v6, v4, 4, v6
    """)
    UB, XB, MB = 0, 9216, 18432
    PL = 4608
    def R(x): return f"v[{x}:{x+3}]"
    def fr(pl, t, st): return F + ((pl*2+t)*2+st)*4
    def cmul_tw(tw):
        for e in range(8):
            r = D + e; im = D + 8 + e; tq = tw + e
            t = TMP + 2*(e % 4)
            a(f"""
            v_fma_mix_f32 v{t}, v{im}, v{tq}, 0 op_sel:[0,1,0] op_sel_hi:[0,1,0]
            v_fma_mix_f32 v{t+1}, v{r}, v{tq}, 0 op_sel:[0,1,0] op_sel_hi:[0,1,0]
            """)
            if e % 4 == 3:
                for e2 in range(e-3, e+1):
                    r = D + e2; im = D + 8 + e2; tq = tw + e2
                    t = TMP + 2*(e2 % 4)
                    a(f"""
                    v_fma_mix_f32 v{r}, v{r}, v{tq}, -v{t} op_sel:[0,0,0] op_sel_hi:[0,1,0]
                    v_fma_mix_f32 v{im}, v{im}, v{tq}, v{t+1} op_sel:[0,0,0] op_sel_hi:[0,1,0]
                    """)
    def pack(cvt, dst):
        for e in range(8):
            a(f"{cvt} v{dst+e}, v{D+2*e}, v{D+2*e+1}")
    def lds_write(base, src):
        for pl in range(2):
            for t in range(2):
                a(f"ds_write_b64 v5, v[{src+pl*4+t*2}:{src+pl*4+t*2+1}] offset:{base + pl*PL + t*16*144}")
    def lds_read(base):
        for pl in range(2):
            for t in range(2):
                for st in range(2):
                    f_ = fr(pl, t, st)
                    a(f"ds_read_b128 v[{f_}:{f_+3}], v6 offset:{base + pl*PL + t*16*144 + st*64}")
    nbar = [0]
    CA, CL, CV = 217, 218, 219
    def bar(tag=""):
        nbar[0] += 1
        p = nbar[0]
        a(f"""
        v_mov_b32 v{CV}, {p}
        s_waitcnt lgkmcnt(0)
        ds_write_b32 v{CA}, v{CV}
        k23_cs{p}{tag}:
        ds_read_b32 v{CV}, v{CL}
        s_waitcnt lgkmcnt(0)
        v_cmp_gt_u32 vcc, {p}, v{CV}
        s_cbranch_vccnz k23_cs{p}{tag}
        """)
        a.stamp()
    a(f"""
    s_setprio {CPRIO}
    s_lshl_b32 s27, s13, 2
    s_add_u32 s27, s27, {PW + 16}
    v_mov_b32 v{CA}, s27
    v_mov_b32 v{CV}, 0
    v_and_b32 v{CL}, 3, v2
    v_lshlrev_b32 v{CL}, 2, v{CL}
    v_add_u32 v{CL}, {PW + 16}, v{CL}
    ds_write_b32 v{CA}, v{CV}
    """)
    loads2(); loads3()
    a("s_waitcnt lgkmcnt(0)")
    a("s_barrier")
    a.stamp()
    a.wait_vm("e1")
    for r in range(4):
        a(f"v_xor_b32 v{N+r}, s48, v{YI+r}")
    a("s_nop 1")
    for t in range(2):
        er = E1 + 4*t; ei = E1 + 8 + 4*t
        a(f"v_mfma_f32_16x16x32_f16 {R(D+4*t)}, {R(YR)}, {R(er)}, 0")
        a(f"v_mfma_f32_16x16x32_f16 {R(D+8+4*t)}, {R(YR)}, {R(ei)}, 0")
    for t in range(2):
        er = E1 + 4*t; ei = E1 + 8 + 4*t
        a(f"v_mfma_f32_16x16x32_f16 {R(D+4*t)}, {R(N)}, {R(ei)}, {R(D+4*t)}")
        a(f"v_mfma_f32_16x16x32_f16 {R(D+8+4*t)}, {R(YI)}, {R(er)}, {R(D+8+4*t)}")
    a.wait_vm("t1")
    a("s_nop 7")
    cmul_tw(T1)
    pack("v_cvt_pk_f16_f32", TMP + 8)
    lds_write(UB, TMP + 8)
    bar()
    lds_read(UB)
    a.wait_vm("e2")
    for r in range(8):
        a(f"v_xor_b32 v{N+r}, s48, v{E2+8+r}")
    a("s_waitcnt lgkmcnt(0)")
    for st in range(2):
        for t in range(2):
            cr = "0" if st == 0 else R(D+4*t); ci = "0" if st == 0 else R(D+8+4*t)
            a(f"v_mfma_f32_16x16x32_f16 {R(D+4*t)}, {R(E2+4*st)}, {R(fr(0,t,st))}, {cr}")
            a(f"v_mfma_f32_16x16x32_f16 {R(D+8+4*t)}, {R(E2+8+4*st)}, {R(fr(0,t,st))}, {ci}")
        for t in range(2):
            a(f"v_mfma_f32_16x16x32_f16 {R(D+4*t)}, {R(N+4*st)}, {R(fr(1,t,st))}, {R(D+4*t)}")
            a(f"v_mfma_f32_16x16x32_f16 {R(D+8+4*t)}, {R(E2+4*st)}, {R(fr(1,t,st))}, {R(D+8+4*t)}")
    a("""
    s_cmp_eq_u32 s2, 0
    s_cbranch_scc1 k2_special
    """)
    vm_keep = list(a.vm)
    a.wait_vm("w")
    a("s_nop 7")
    for e in range(8):
        r = D + e; im = D + 8 + e
        t = TMP + 4*(e % 2)
        a(f"""
        v_lshlrev_b32 v{t+2}, 16, v{WW+e}
        v_and_b32 v{t+3}, s49, v{WW+e}
        v_mul_f32 v{t}, v{im}, v{t+3}
        v_mul_f32 v{t+1}, v{r}, v{t+3}
        v_fma_f32 v{r}, v{r}, v{t+2}, -v{t}
        v_fma_f32 v{im}, v{im}, v{t+2}, v{t+1}
        """)
    a("s_branch k2_join")
    a.raw("k2_special:")
    a.vm = vm_keep
    a.wait_vm("w")
    TA_ = 8
    for e in range(8):
        q = PQ + 4*e; t = TA_ + 4*e
        a(f"""
        v_lshlrev_b32 v{q}, 16, v{WW+e}
        v_and_b32 v{q+1}, s49, v{WW+e}
        v_lshlrev_b32 v{q+2}, 16, v{WM+e}
        v_and_b32 v{q+3}, s49, v{WM+e}
        v_lshlrev_b32 v{t}, 16, v{WW+8+e}
        v_and_b32 v{t+1}, s49, v{WW+8+e}
        v_lshlrev_b32 v{t+2}, 16, v{WM+8+e}
        v_and_b32 v{t+3}, s49, v{WM+8+e}
        """)
    for e in range(8):
        q = PQ + 4*e; t = TA_ + 4*e
        a(f"""
        v_add_f32 v{q}, v{q}, v{q+2}
        v_sub_f32 v{q+1}, v{q+1}, v{q+3}
        v_add_f32 v{t}, v{t}, v{t+2}
        v_sub_f32 v{t+1}, v{t+1}, v{t+3}
        """)
    for e in range(8):
        q = PQ + 4*e; t = TA_ + 4*e
        a(f"""
        v_sub_f32 v{q+2}, v{q}, v{t}
        v_sub_f32 v{q+3}, v{q+1}, v{t+1}
        v_add_f32 v{q}, v{q}, v{t}
        v_add_f32 v{q+1}, v{q+1}, v{t+1}
        """)
    for e in range(32):
        a(f"v_mul_f32 v{PQ+e}, 0x3e800000, v{PQ+e}")
    for e in range(8):
        t, i = e // 4, e % 4
        q = TMP + 2*(e % 2)
        a(f"""
        v_cvt_pk_f16_f32 v{q}, v{D+e}, v{D+8+e}
        v_add_u32 v{q+1}, {32*i+16*t+(SB+MB)//4}, v1
        v_lshlrev_b32 v{q+1}, 2, v{q+1}
        ds_write_b32 v{q+1}, v{q}
        """)
    for e in range(8):
        r = D + e; q = PQ + 4*e; t = F + 8 + 2*e
        a(f"v_mul_f32 v{t}, v{r}, v{q}")
        a(f"v_mul_f32 v{t+1}, v{r}, v{q+1}")
    for e in range(8):
        im = D + 8 + e; q = PQ + 4*e; t = F + 8 + 2*e
        a(f"v_fma_f32 v{t}, -v{im}, v{q+1}, v{t}")
        a(f"v_fma_f32 v{t+1}, v{im}, v{q}, v{t+1}")
    nst_keep = a.nst
    bar("s")
    a.nst = nst_keep
    for e in range(8):
        t, i = e // 4, e % 4
        a(f"""
        v_add_u32 v{TMP+4}, {32*i+16*t}, v1
        v_sub_u32 v{TMP+4}, 2048, v{TMP+4}
        v_and_b32 v{TMP+4}, 2047, v{TMP+4}
        v_lshlrev_b32 v{TMP+4}, 2, v{TMP+4}
        v_add_u32 v{TMP+4}, {SB+MB}, v{TMP+4}
        ds_read_b32 v{F+e}, v{TMP+4}
        """)
    a("s_waitcnt lgkmcnt(0)")
    for e in range(8):
        xm = F + e; q = PQ + 4*e; t = F + 8 + 2*e
        a(f"""
        v_fma_mix_f32 v{t}, v{q+2}, v{xm}, v{t} op_sel:[0,0,0] op_sel_hi:[0,1,0]
        v_fma_mix_f32 v{t+1}, v{q+3}, v{xm}, v{t+1} op_sel:[0,0,0] op_sel_hi:[0,1,0]
        """)
    for e in range(8):
        r = D + e; im = D + 8 + e
        xm = F + e; q = PQ + 4*e; t = F + 8 + 2*e
        a(f"""
        v_fma_mix_f32 v{r}, v{q+3}, v{xm}, v{t} op_sel:[0,1,0] op_sel_hi:[0,1,0]
        v_fma_mix_f32 v{im}, -v{q+2}, v{xm}, v{t+1} op_sel:[0,1,0] op_sel_hi:[0,1,0]
        """)
    a.raw("k2_join:")
    a.stamp()
    pack("v_cvt_pk_bf16_f32", TMP + 8)
    lds_write(XB, TMP + 8)
    bar()
    lds_read(XB)
    a.wait_vm("e3")
    for r in range(8):
        a(f"v_xor_b32 v{N+r}, s48, v{E3+8+r}")
    a("s_waitcnt lgkmcnt(0)")
    for st in range(2):
        for t in range(2):
            cr = "0" if st == 0 else R(D+4*t); ci = "0" if st == 0 else R(D+8+4*t)
            a(f"v_mfma_f32_16x16x32_bf16 {R(D+4*t)}, {R(fr(0,t,st))}, {R(E3+4*st)}, {cr}")
            a(f"v_mfma_f32_16x16x32_bf16 {R(D+8+4*t)}, {R(fr(0,t,st))}, {R(E3+8+4*st)}, {ci}")
        for t in range(2):
            a(f"v_mfma_f32_16x16x32_bf16 {R(D+4*t)}, {R(fr(1,t,st))}, {R(N+4*st)}, {R(D+4*t)}")
            a(f"v_mfma_f32_16x16x32_bf16 {R(D+8+4*t)}, {R(fr(1,t,st))}, {R(E3+4*st)}, {R(D+8+4*t)}")
    a.wait_vm("t2")
    a("s_nop 7")
    cmul_tw(T2)
    pack("v_cvt_pk_bf16_f32", TMP + 8)
    VR, VI = TMP + 8, TMP + 12
    for r in range(4):
        a(f"v_xor_b32 v{N+r}, s48, v{VI+r}")
    a.wait_vm("e4")
    a("s_nop 1")
    for tp in range(2):
        a(f"v_mfma_f32_16x16x32_bf16 {R(D+4*tp)}, {R(E4+4*tp)}, {R(VR)}, 0")
        a(f"v_mfma_f32_16x16x32_bf16 {R(D+8+4*tp)}, {R(E4+8+4*tp)}, {R(VR)}, 0")
    for tp in range(2):
        a(f"v_mfma_f32_16x16x32_bf16 {R(D+4*tp)}, {R(E4+8+4*tp)}, {R(N)}, {R(D+4*tp)}")
        a(f"v_mfma_f32_16x16x32_bf16 {R(D+8+4*tp)}, {R(E4+4*tp)}, {R(VI)}, {R(D+8+4*tp)}")
    a(f"""
    v_lshlrev_b32 v5, 6, v3
    v_and_b32 v1, 1, v4
    v_lshl_add_u32 v5, v1, 5, v5
    v_lshrrev_b32 v1, 1, v4
    v_lshl_add_u32 v5, v1, 4, v5
    s_add_u32 s60, s60, {WS_Z - WS_Y}
    s_add_u32 s61, s61, {WS_Z - WS_Y}
    s_nop 3
    """)
    pack("v_cvt_pk_bf16_f32", TMP + 8)
    a("s_nop 1")
    for pl in range(2):
        b = TMP + 8 + pl*4
        a(f"v_permlane16_swap_b32 v{b}, v{b+2}")
        a(f"v_permlane16_swap_b32 v{b+1}, v{b+3}")
    for pl in range(2):
        b = TMP + 8 + pl*4
        a.vmem(f"buffer_store_dwordx4 v[{b}:{b+3}], v5, s[40:43], s{60+pl} offen sc1", "z")
    a.stamp()
    a.wait_vm_all()
    bar()
    a(f"""
    s_cmp_eq_u32 s13, 0
    s_cbranch_scc0 k23_nosig
    s_lshl_b32 s26, s2, 4
    s_add_u32 s26, s26, {WS_FL}
    v_mov_b32 v1, 1
    v_mov_b32 v7, 0
    s_mov_b64 exec, 1
    buffer_store_dword v1, v7, s[40:43], s26 offen sc1
    s_mov_b64 exec, -1
    k23_nosig:
    """)
    if os.environ.get("CSTAMP", "0") == "1": a.stamp_store(1)
    a.raw("k23_end:")
    a("s_endpgm")
    return a.text()

def tables_asm():
    o = []
    j = np.arange(512)
    c1 = bf16(np.cos(2*np.pi*j/512) / 16); c2 = bf16(np.cos(2*np.pi*j/512) / 8)
    c1[np.abs(np.cos(2*np.pi*j/512)) < 1e-9] = 0; c2[np.abs(np.cos(2*np.pi*j/512)) < 1e-9] = 0
    for i in range(512):
        o.append(f".set CA{i}, 0x{c1[i]:04x}")
        o.append(f".set CB{i}, 0x{c2[i]:04x}")
    o.append(".altmacro")
    o.append(""".macro f8 a,b,c,d,e,f,g,h
.short CA\\a, CA\\b, CA\\c, CA\\d, CA\\e, CA\\f, CA\\g, CA\\h
.endm
.macro g8 a,b,c,d,e,f,g,h
.short CB\\a, CB\\b, CB\\c, CB\\d, CB\\e, CB\\f, CB\\g, CB\\h
.endm
.macro g8s a,b,c,d,e,f,g,h
.short CA\\a, CA\\b, CB\\c, CB\\d, CB\\e, CB\\f, CB\\g, CB\\h
.endm
.macro frow d
f8 0, %((\\d*256)&511), %((\\d*1)&511), %((\\d+128)&511), %((\\d*2)&511), %((\\d*2+128)&511), %((\\d*3)&511), %((\\d*3+128)&511)
.set kk, 4
.rept 63
f8 %((\\d*kk)&511), %((\\d*kk+128)&511), %((\\d*(kk+1))&511), %((\\d*(kk+1)+128)&511), %((\\d*(kk+2))&511), %((\\d*(kk+2)+128)&511), %((\\d*(kk+3))&511), %((\\d*(kk+3)+128)&511)
.set kk, kk+4
.endr
.endm
.section .rodata,"a"
.p2align 8
tab_F:
.set dd, 0
.rept 512
frow %dd
.set dd, dd+1
.endr
""")
    o.append(""".macro glane d, k
g8 %((\\d*\\k)&511), %((\\d*\\k+128)&511), %((\\d*(\\k+1))&511), %((\\d*(\\k+1)+128)&511), %((\\d*(\\k+4))&511), %((\\d*(\\k+4)+128)&511), %((\\d*(\\k+5))&511), %((\\d*(\\k+5)+128)&511)
.endm
.macro glane0 d
g8s 0, %((\\d*256)&511), %((\\d*1)&511), %((\\d+128)&511), %((\\d*4)&511), %((\\d*4+128)&511), %((\\d*5)&511), %((\\d*5+128)&511)
.endm
.macro ghalf d0, k
.set ll, 0
.rept 32
glane %(\\d0+ll), \\k
.set ll, ll+1
.endr
.endm
.macro ghalf0 d0
.set ll, 0
.rept 32
glane0 %(\\d0+ll)
.set ll, ll+1
.endr
.endm
.macro gtile d0
ghalf0 \\d0
ghalf \\d0, 2
.set gg, 1
.rept 31
ghalf \\d0, %(8*gg)
ghalf \\d0, %(8*gg+2)
.set gg, gg+1
.endr
.endm
.p2align 8
tab_G:
.set tt, 0
.rept 16
gtile %(32*tt)
.set tt, tt+1
.endr
.noaltmacro
.p2align 8
tab_S:
""")
    st = small_tables().view(np.uint64)
    for i in range(0, len(st), 8):
        o.append(".quad " + ",".join(f"0x{v:x}" for v in st[i:i+8]))
    return "\n".join(o) + "\n"

hdr = """; fused LN + GFNet spectral filter + ReGLU, 2 launches
; @launch kernel=k1_kernel grid=(256,1,1) block=(512,1,1) lds=163840
; @launch kernel=k23_kernel grid=(256,1,1) block=(512,1,1) lds=163840
.amdgcn_target "amdgcn-amd-amdhsa--gfx950"
.text
.globl k1_kernel
.type k1_kernel,@function
.globl k23_kernel
.type k23_kernel,@function
"""
src = hdr + gen_k1() + gen_k23_main() + "code_end:\n" + tables_asm()
src += '.section .rodata,"a"\n.p2align 6\n' + kd("k1_kernel", 256) + ".p2align 6\n" + kd("k23_kernel", 256)
open(OUT, "w").write(src)
print("wrote", OUT, len(src))
```

```python
import numpy as np, sys, math

OUT = sys.argv[1] if len(sys.argv) > 1 else "recurrent_scan__spectral_gfnet__glu_gated_reglu__prompt.s"

WS_H = 0
WS_Y = 8 << 20
WS_Z = 10 << 20
WS_W = 12 << 20
WS_SIZE = 268435456
WS_FL = 15 << 20

def bf16(x):
    u = np.asarray(x, np.float32).view(np.uint32).astype(np.uint64)
    r = ((u + 0x7fff + ((u >> 16) & 1)) >> 16).astype(np.uint16)
    return r
def f16(x):
    return np.asarray(x, np.float64).astype(np.float16).view(np.uint16)

import os
STAMP = os.environ.get("STAMP", "0") == "1"
WS_ST = 16 << 20
class Asm:
    def __init__(self):
        self.lines = []
        self.vm = []
        self.nst = 0
        self.issued = set()
        self.lq = []
        self.sb = 74
        self.maxst = 14
    def stamp(self):
        if not STAMP or self.nst >= self.maxst: return
        self(f"s_memtime s[{self.sb+2*self.nst}:{self.sb+1+2*self.nst}]")
        self("s_waitcnt lgkmcnt(0)")
        self.lq = []
        self.nst += 1
    def stamp_store(self, kidx, wavereg="s3"):
        if not STAMP: return
        self("s_waitcnt lgkmcnt(0)")
        self(f"s_lshl_b32 s62, s2, 4")
        self(f"s_add_u32 s62, s62, {wavereg}")
        self(f"s_lshl_b32 s62, s62, 7")
        self(f"s_add_u32 s62, s62, {WS_ST + kidx*(1<<20)}")
        self("v_mov_b32 v0, 0")
        for i in range(self.nst):
            self(f"v_mov_b32 v1, s{self.sb+2*i}")
            self(f"buffer_store_dword v1, v0, s[40:43], s62 offen offset:{4*i}")
    def __call__(self, s):
        for ln in s.strip("\n").split("\n"):
            self.lines.append("  " + ln.strip() if not ln.strip().endswith(":") else ln.strip())
    def raw(self, s):
        self.lines.append(s)
    def vmem(self, s, tag):
        self(s); self.vm.append(tag); self.issued.add(tag)
        assert len(self.vm) <= 63, "vmcnt overflow"
    def wait_vm(self, tag):
        assert tag in self.issued, tag
        if tag not in self.vm: return
        idx = max(i for i, t in enumerate(self.vm) if t == tag)
        n = len(self.vm) - 1 - idx
        self(f"s_waitcnt vmcnt({n})")
        self.vm = self.vm[idx + 1:]
    def lds(self, s, tag):
        self(s); self.lq.append(tag)
    def wait_lds(self, tag):
        if tag not in self.lq: return
        idx = max(i for i, t in enumerate(self.lq) if t == tag)
        n = min(len(self.lq) - 1 - idx, 15)
        self(f"s_waitcnt lgkmcnt({n})")
        self.lq = self.lq[len(self.lq) - n:] if n else []
    def wait_lds_all(self):
        self("s_waitcnt lgkmcnt(0)"); self.lq = []
    def wait_vm_all(self):
        self("s_waitcnt vmcnt(0)"); self.vm = []
    def text(self):
        return "\n".join(self.lines) + "\n"

def srd(a, s, lo, hi, nbytes):
    a(f"s_mov_b32 s{s}, {lo}")
    a(f"s_mov_b32 s{s+1}, {hi}")
    a(f"s_mov_b32 s{s+2}, {nbytes}")
    a(f"s_mov_b32 s{s+3}, 0x20000")

def getpc_tab(a, s, sym):
    a(f"s_getpc_b64 s[{s}:{s+1}]")
    a(f"s_add_u32 s{s}, s{s}, {sym}@rel32@lo+4")
    a(f"s_addc_u32 s{s+1}, s{s+1}, {sym}@rel32@hi+12")

def kd(name, vgpr, sgpr=102):
    acc = min((vgpr + 3) // 4 * 4, 256)
    return f""".amdhsa_kernel {name}
  .amdhsa_next_free_vgpr {vgpr}
  .amdhsa_next_free_sgpr {sgpr}
  .amdhsa_accum_offset {acc}
  .amdhsa_group_segment_fixed_size 0
  .amdhsa_kernarg_size 80
  .amdhsa_user_sgpr_count 2
  .amdhsa_user_sgpr_kernarg_segment_ptr 1
  .amdhsa_system_sgpr_workgroup_id_x 1
.end_amdhsa_kernel
"""

K1_NS = 5
PREF = os.environ.get('PREF','1') == '1'
K1_PRE = int(os.environ.get('K1_PRE','2'))
CODEPF = int(os.environ.get('CODEPF','5'))
PFS = int(os.environ.get('PFS','16'))
BWARM = int(os.environ.get('BWARM','0'))
STP = os.environ.get('STP','')
BNREV = os.environ.get('BNREV','0') == '1'
X_NOP2 = os.environ.get('X_NOP2','0')=='1'
X_NODMA = os.environ.get('X_NODMA','0')=='1'
X_NOBAR = os.environ.get('X_NOBAR','0')=='1'
def gen_k1():
    a = Asm()
    A0 = 128; ACC = 64; BF = 32
    PT = 24
    VD, VNM, VVAR, VPF, VPG, VFA, VFL = 1, 7, 8, 9, 10, 11, 3
    TR = 16
    PFD = 12
    a.raw(".p2align 8\nk1_kernel:")
    a("""
    s_cmp_ge_u32 s2, 256
    s_cbranch_scc1 k1_end
    s_load_dwordx2 s[4:5], s[0:1], 0
    s_load_dwordx4 s[8:11], s[0:1], 8
    s_load_dwordx4 s[12:15], s[0:1], 32
    s_load_dwordx2 s[6:7], s[0:1], 72
    s_load_dwordx2 s[60:61], s[0:1], 48
    v_lshrrev_b32 v1, 6, v0
    v_and_b32 v2, 63, v0
    s_nop 0
    v_readfirstlane_b32 s3, v1
    """)
    XM = int(os.environ.get("K1_XM", "4"))
    lg = {8: 3, 4: 2, 2: 1}[XM]
    nxm = 16 // XM
    lgx = {2: 1, 4: 2, 8: 3}[nxm]
    a(f"""
    s_and_b32 s16, s2, 7
    s_lshr_b32 s17, s2, 3
    s_and_b32 s18, s16, {nxm-1}
    s_lshl_b32 s18, s18, {lg}
    s_and_b32 s58, s17, {XM-1}
    s_add_u32 s18, s18, s58
    s_lshr_b32 s19, s16, {lgx}
    s_lshl_b32 s19, s19, {5-lg}
    s_lshr_b32 s20, s17, {lg}
    s_add_u32 s19, s19, s20
    s_lshl_b32 s59, s20, {lg-1}
    s_lshl_b32 s58, s58, {3-lg}
    {"s_sub_u32 s19, 15, s19" if BNREV else "s_nop 0"}
    s_and_b32 s20, s3, 3
    s_lshr_b32 s21, s3, 2
    s_lshl_b32 s22, s18, 2
    s_add_u32 s22, s22, s20
    v_lshlrev_b32 v{VPF}, 4, v2
    """)
    if CODEPF:
        getpc_tab(a, 64, "k1_kernel")
        a(f"""
        s_mov_b32 s66, code_end-k1_kernel
        s_mov_b32 s67, 0x20000
        s_lshl_b32 s57, s17, 1
        s_add_u32 s57, s57, s3
        s_lshl_b32 s57, s57, 10
        s_cmp_lt_u32 s3, 2
        s_cselect_b32 s57, s57, 0x7f000000
        """)
        a.vmem(f"buffer_load_dwordx4 v[{PFD}:{PFD+3}], v{VPF}, s[64:67], s57 offen", "cpf")
    getpc_tab(a, 24, "tab_F")
    a("""
    s_lshl_b32 s50, s21, 4
    s_lshl_b32 s51, s50, 6
    s_add_u32 s51, s51, s22
    s_lshl_b32 s51, s51, 10
    s_lshl_b32 s52, s20, 5
    s_add_u32 s52, s52, s50
    s_lshl_b32 s52, s52, 10
    s_lshl_b32 s53, s58, 3
    v_xor_b32 v3, s53, v2
    s_waitcnt lgkmcnt(0)
    """)
    a.stamp()
    srd(a, 28, "s4", "s5", 2048*1024)
    for u in range(16):
        a(f"""
        s_xor_b32 s54, s59, {u}
        v_xor_b32 v4, s54, v3
        v_lshlrev_b32 v4, 4, v4
        s_lshl_b32 s55, s54, 10
        s_add_u32 m0, s52, s55
        s_lshl_b32 s55, s54, 16
        s_add_u32 s53, s51, s55
        """)
        a.vmem("buffer_load_dwordx4 v4, s[28:31], s53 offen lds", "x")
    srd(a, 32, "s8", "s9", 2048*514)
    srd(a, 36, "s10", "s11", 2048*514)
    WL = ACC + 16
    a(f"""
    s_lshr_b32 s62, s2, 2
    s_lshl_b32 s62, s62, 2
    s_lshr_b32 s63, s3, 1
    s_add_u32 s62, s62, s63
    s_lshr_b32 s63, s62, 4
    s_lshl_b32 s63, s63, 7
    s_and_b32 s62, s62, 15
    s_add_u32 s63, s63, s62
    s_and_b32 s62, s3, 1
    s_lshl_b32 s62, s62, 4
    s_add_u32 s63, s63, s62
    s_mul_i32 s63, s63, 514
    s_and_b32 s62, s2, 3
    s_lshl_b32 s62, s62, 7
    s_add_u32 s63, s63, s62
    v_lshlrev_b32 v5, 1, v2
    """)
    for i in range(4):
        if i: a(f"s_add_u32 s63, s63, {32*514}")
        a.vmem(f"buffer_load_ushort v{WL+i}, v5, s[32:35], s63 offen", "w")
        a.vmem(f"buffer_load_ushort v{WL+4+i}, v5, s[36:39], s63 offen", "w")
    a(f"""
    v_mov_b32 v{WL+10}, 0x7fffff00
    s_cmp_eq_u32 s3, 7
    s_cbranch_scc0 k1_nosp1
    s_lshr_b32 s62, s2, 4
    s_lshl_b32 s62, s62, 7
    s_and_b32 s63, s2, 15
    s_add_u32 s62, s62, s63
    v_and_b32 v4, 3, v2
    v_lshlrev_b32 v4, 5, v4
    v_and_b32 v5, 4, v2
    v_lshl_add_u32 v4, v5, 2, v4
    v_add_u32 v4, s62, v4
    s_movk_i32 s63, 514
    v_mul_lo_u32 v5, v4, s63
    v_lshrrev_b32 v6, 3, v2
    v_cmp_eq_u32 vcc, 1, v6
    v_add_u32 v30, 512, v5
    s_nop 0
    v_cndmask_b32 v5, v30, v5, vcc
    v_mov_b32 v30, 0x7fffff00
    v_cmp_gt_u32 vcc, 24, v2
    s_nop 1
    v_cndmask_b32 v5, v30, v5, vcc
    buffer_load_ushort v{WL+8}, v5, s[32:35], 0 offen
    buffer_load_ushort v{WL+9}, v5, s[36:39], 0 offen
    v_sub_u32 v5, 2048, v4
    v_and_b32 v5, 2047, v5
    v_cmp_eq_u32 s[62:63], 0, v6
    s_nop 1
    v_cndmask_b32 v4, v5, v4, s[62:63]
    v_lshrrev_b32 v5, 7, v4
    v_lshlrev_b32 v5, 9, v5
    v_and_b32 v31, 15, v4
    v_lshl_add_u32 v5, v31, 5, v5
    v_and_b32 v31, 16, v4
    v_add_u32 v5, v5, v31
    v_bfe_u32 v31, v4, 5, 2
    v_lshl_add_u32 v5, v31, 2, v5
    v_lshl_add_u32 v5, v6, 13, v5
    v_add_u32 v5, {WS_W + 256*8192}, v5
    v_cndmask_b32 v{WL+10}, v30, v5, vcc
    k1_nosp1:
    """)
    srd(a, 40, "s6", "s7", WS_SIZE)
    a("""
    s_and_b32 s23, s3, 1
    s_cmp_eq_u32 s23, 0
    s_cselect_b32 s44, s12, s14
    s_cselect_b32 s45, s13, s15
    s_mov_b32 s46, 1835008
    s_mov_b32 s47, 0x20000
    s_movk_i32 s48, 3584
    s_lshl_b32 s49, s19, 8
    s_cmp_lt_u32 s19, 14
    s_cbranch_scc1 k1_isglu
    s_mov_b32 s44, s24
    s_mov_b32 s45, s25
    s_mov_b32 s46, 524288
    s_movk_i32 s48, 1024
    s_sub_u32 s49, s19, 14
    s_lshl_b32 s49, s49, 9
    s_lshl_b32 s50, s23, 8
    s_add_u32 s49, s49, s50
    k1_isglu:
    """)
    a(f"""
    v_lshrrev_b32 v8, 4, v2
    v_and_b32 v6, 15, v2
    v_lshrrev_b32 v6, 1, v6
    v_lshlrev_b32 v10, 1, v8
    v_xor_b32 v6, v6, v10
    v_lshlrev_b32 v6, 5, v6
    v_and_b32 v10, 1, v2
    v_lshlrev_b32 v10, 4, v10
    v_add_u32 v6, v6, v10
    v_mul_lo_u32 v8, v8, s48
    v_add_u32 v6, v6, v8
    v_add_u32 v{VD}, s49, v6
    s_lshr_b32 s50, s3, 1
    s_lshl_b32 s50, s50, 3
    s_mul_i32 s52, s50, s48
    s_lshl_b32 s53, s50, 8
    s_lshl_b32 s54, s23, 13
    s_add_u32 s53, s53, s54
    s_lshl_b32 s54, s48, 2
    s_lshl_b32 s55, s48, 5
    s_lshl_b32 s58, s58, 1
    """)
    RING = [8, 9, 0, 1, 2, 3, 4, 5, 6]
    SPARE = 7 * 16384
    a(f"v_add_u32 v22, s54, v{VD}")
    def dma_one(c, u):
        if u == 0:
            a(f"s_xor_b32 s56, s58, {c}")
            a("s_mul_i32 s56, s56, s55")
        a(f"s_add_u32 m0, s53, {RING[c % 9]*16384 + u*1024}")
        if u == 0: a("s_add_u32 s56, s56, s52")
        else: a("s_nop 0")
        a.vmem(f"buffer_load_dwordx4 v{VD if u == 0 else 22}, s[44:47], s56 offen lds", f"c{c}")
    a(f"""
    v_lshrrev_b32 v10, 4, v2
    v_and_b32 v6, 15, v2
    v_lshrrev_b32 v31, 2, v6
    v_and_b32 v6, 3, v6
    v_lshrrev_b32 v30, 1, v10
    v_lshlrev_b32 v30, 3, v30
    v_add_u32 v30, v30, v31
    v_lshlrev_b32 v30, 8, v30
    v_lshlrev_b32 v6, 3, v6
    v_add_u32 v30, v30, v6
    v_and_b32 v10, 1, v10
    v_lshlrev_b32 v10, 5, v10
    v_add_u32 v30, v30, v10
    s_lshl_b32 s57, s21, 1
    v_xor_b32 v10, s57, v31
    v_lshlrev_b32 v10, 6, v10
    v_add_u32 v{TR}, v30, v10
    s_add_u32 s57, s57, 1
    v_xor_b32 v10, s57, v31
    v_lshlrev_b32 v10, 6, v10
    v_add_u32 v{TR+1}, v30, v10
    v_add_u32 v{TR+2}, 0x10000, v{TR}
    v_add_u32 v{TR+3}, 0x10000, v{TR+1}
    v_add_u32 v{TR+4}, 0x20000, v{TR}
    v_add_u32 v{TR+5}, 0x20000, v{TR+1}
    v_and_b32 v10, 31, v2
    v_lshrrev_b32 v6, 5, v2
    v_and_b32 v31, 15, v2
    v_xor_b32 v6, v6, v31
    s_lshl_b32 s57, s20, 15
    v_lshlrev_b32 v10, 10, v10
    v_add_u32 v10, s57, v10
    """)
    for tt in range(8):
        a(f"v_xor_b32 v31, {2*tt}, v6")
        a(f"v_lshl_add_u32 v{ACC+tt}, v31, 4, v10")
    a(f"""
    s_mov_b32 s26, 0x3f803f80
    s_mov_b32 s27, 0xffff0000
    v_mov_b32 v24, 0
    v_mov_b32 v25, 0
    v_mov_b32 v26, 0
    v_mov_b32 v27, 0
    s_lshl_b32 s57, s21, 6
    """)
    a.stamp()
    a.wait_vm("x")
    a("s_barrier")
    a.stamp()
    for c in (0, 1):
        for u in range(2): dma_one(c, u)
    for c in range(2, 2 + BWARM):
        a(f"s_xor_b32 s56, s58, {c}")
        a("s_mul_i32 s56, s56, s55")
        a("s_add_u32 s56, s56, s52")
        a.vmem(f"buffer_load_dwordx4 v[{PFD}:{PFD+3}], v{VD}, s[44:47], s56 offen", "bw")
        a.vmem(f"buffer_load_dwordx4 v[{PFD}:{PFD+3}], v22, s[44:47], s56 offen", "bw")
    for t in range(32):
        a(f"ds_read_b128 v[{A0+4*t}:{A0+4*t+3}], v{ACC + t%8} offset:{(t//8)*256}")
    a.wait_vm("w")
    for i in range(4):
        a(f"v_lshl_or_b32 v{WL+12+i}, v{WL+4+i}, 16, v{WL+i}")
    a(f"""
    s_cmp_eq_u32 s3, 7
    s_cbranch_scc0 k1_nosp2
    v_lshl_or_b32 v{WL+8}, v{WL+9}, 16, v{WL+8}
    buffer_store_dword v{WL+8}, v{WL+10}, s[40:43], 0 offen
    v_mov_b32 v4, 0
    v_mov_b32 v5, 0x7fffff00
    v_cmp_eq_u32 vcc, 0, v2
    s_lshl_b32 s51, s2, 4
    s_add_u32 s51, s51, {WS_FL}
    v_cndmask_b32 v5, v5, v4, vcc
    buffer_store_dword v4, v5, s[40:43], s51 offen
    k1_nosp2:
    """)
    a("s_waitcnt lgkmcnt(14)")
    a("s_set_gpr_idx_on s57, gpr_idx(SRC0,SRC1)")
    for t in range(16):
        if t % 2 == 0 and t > 0:
            a(f"s_waitcnt lgkmcnt({max(14 - t, 0)})")
        for r in range(4):
            reg = A0 + 4*t + r
            a(f"v_dot2_f32_bf16 v{24 + r%2}, v{reg}, s26, v{24 + r%2}")
            a(f"v_dot2_f32_bf16 v{26 + r%2}, v{reg}, v{reg}, v{26 + r%2}")
    a("s_set_gpr_idx_off")
    a(f"""
    s_waitcnt lgkmcnt(0)
    s_barrier
    v_add_f32 v24, v24, v25
    v_add_f32 v25, v26, v27
    v_mov_b32 v26, v24
    v_mov_b32 v27, v25
    s_lshl_b32 s57, s3, 9
    s_add_u32 s57, s57, {SPARE + 4096}
    v_lshlrev_b32 v10, 3, v2
    v_permlane32_swap_b32 v24, v26
    v_permlane32_swap_b32 v25, v27
    v_add_u32 v10, s57, v10
    v_add_f32 v24, v24, v26
    v_add_f32 v25, v25, v27
    v_xor_b32 v6, 0x800, v10
    ds_write_b64 v10, v[24:25]
    s_lshl_b32 s57, s3, 2
    s_add_u32 s57, s57, {SPARE}
    v_mov_b32 v{VFA}, s57
    v_mov_b32 v{VPG}, 0
    ds_write_b32 v{VFA}, v{VPG}
    v_and_b32 v{VFL}, 7, v2
    v_xor_b32 v4, s3, v{VFL}
    v_lshlrev_b32 v4, 4, v4
    v_lshl_add_u32 v4, v2, 7, v4
    v_add_u32 v4, {SPARE + 8192}, v4
    ds_write_b128 v4, v[{WL+12}:{WL+15}]
    v_lshlrev_b32 v{VFL}, 2, v{VFL}
    v_add_u32 v{VFL}, {SPARE}, v{VFL}
    """)
    a.stamp()
    pend = [(c, u) for c in range(2, 16) for u in range(2)]
    for _ in range(2*K1_PRE): dma_one(*pend.pop(0))
    getpc_tab(a, 32, "tab_G")
    a(f"""
    s_mov_b32 s34, {524288 + TSZ}
    s_mov_b32 s28, s60
    s_mov_b32 s29, s61
    s_mov_b32 s30, {1792*1024}
    s_lshr_b32 s50, s2, 3
    s_lshl_b32 s50, s50, 3
    s_add_u32 s50, s50, s3
    s_mul_i32 s62, s50, 7168
    s_mul_i32 s63, s50, 3072
    v_lshrrev_b32 v4, 3, v2
    v_and_b32 v5, 7, v2
    v_xor_b32 v30, v4, v5
    v_lshlrev_b32 v30, 4, v30
    v_lshl_add_u32 v30, v4, 7, v30
    s_lshl_b32 s57, s3, 10
    s_add_u32 s57, s57, {SPARE + 8192}
    v_add_u32 v30, s57, v30
    v_lshlrev_b32 v5, 4, v5
    v_lshl_add_u32 v5, v4, 13, v5
    s_and_b32 s57, s2, 3
    s_lshl_b32 s57, s57, 3
    s_add_u32 s57, s57, s3
    s_lshl_b32 s57, s57, 16
    s_lshr_b32 s51, s2, 2
    s_lshl_b32 s51, s51, 7
    s_add_u32 s57, s57, s51
    s_add_u32 s51, s57, {WS_W}
    """)
    a.stamp()
    vm_save = list(a.vm); nst_save = a.nst; pend_save = list(pend)

    def p2(i, r):
        reg = A0 + i*4 + r
        t0, t1 = PT + 2*r, PT + 2*r + 1
        return [f"v_lshlrev_b32 v{t0}, 16, v{reg}", f"v_and_b32 v{t1}, s27, v{reg}",
                f"v_add_f32 v{t0}, v{VNM}, v{t0}", f"v_add_f32 v{t1}, v{VNM}, v{t1}",
                f"v_cvt_pk_bf16_f32 v{reg}, v{t0}, v{t1}"]
    def p2_sched(i):
        o = [p2(i, r) for r in range(4)]
        seq = [o[0][0], o[0][1], o[1][0], o[1][1], o[2][0],
               o[2][1], o[3][0], o[3][1], o[0][2], o[0][3],
               o[1][2], o[1][3], o[2][2], o[2][3], o[3][2],
               o[3][3], o[0][4], o[1][4], o[2][4], o[3][4]]
        return [seq[5*g:5*g+5] for g in range(4)]

    def mainloop(dft):
        a.vm = list(vm_save); a.nst = nst_save
        pend = list(pend_save)
        lab = "d" if dft else "g"
        def reads(i, buf):
            c, s_ = i // 2, i % 2
            pos = RING[c % 9] * 16384
            win, base = pos >> 16, pos & 0xffff
            for P in range(2):
                for T in range(2):
                    fr = BF + buf*16 + (P*2+T)*4
                    for t in range(2):
                        off = base + P*8192 + (16*s_ + 4*t)*256
                        a(f"ds_read_b64_tr_b16 v[{fr+2*t}:{fr+2*t+1}], v{TR+2*win+T} offset:{off}")
        def mfma(i, buf, tile):
            areg = A0 + 4*i
            fr = BF + buf*16 + tile*4
            acc = ACC + tile*16
            cin = "0" if i == 0 else f"v[{acc}:{acc+15}]"
            if dft:
                a(f"v_mfma_f32_32x32x16_bf16 v[{acc}:{acc+15}], v[{areg}:{areg+3}], v[{fr}:{fr+3}], {cin}")
            else:
                a(f"v_mfma_f32_32x32x16_bf16 v[{acc}:{acc+15}], v[{fr}:{fr+3}], v[{areg}:{areg+3}], {cin}")
        a.wait_vm("c1")
        a("s_waitcnt lgkmcnt(0)")
        a("s_barrier")
        a.stamp()
        a("ds_read_b64 v[26:27], v6")
        a(f"ds_read_b128 v[{WL}:{WL+3}], v30")
        reads(0, 0)
        a(f"""
        s_waitcnt lgkmcnt(8)
        v_add_f32 v24, v24, v26
        v_add_f32 v25, v25, v27
        v_mul_f32 v24, 0x3b000000, v24
        v_mul_f32 v25, 0x3b000000, v25
        v_fma_f32 v{VVAR}, -v24, v24, v25
        v_cvt_pk_bf16_f32 v27, v24, v24
        v_lshlrev_b32 v27, 16, v27
        v_sub_f32 v{VNM}, 0, v27
        v_mul_f32 v29, v24, v24
        v_mul_f32 v30, 0x43800000, v{VVAR}
        v_cmp_gt_f32 vcc, v29, v30
        """)
        a.vmem(f"buffer_store_dwordx4 v[{WL}:{WL+3}], v5, s[40:43], s51 offen {STP}", "ws")
        a(f"""
        s_cbranch_vccz k1_fast{lab}
        v_mov_b32 v28, 0
        v_mov_b32 v29, 0
        s_mov_b32 s56, 0
        k1_slow{lab}:
        s_set_gpr_idx_on s56, gpr_idx(SRC1)
        v_lshlrev_b32 v30, 16, v{A0}
        v_and_b32 v31, s27, v{A0}
        s_set_gpr_idx_off
        v_add_f32 v30, v{VNM}, v30
        v_add_f32 v31, v{VNM}, v31
        v_fma_f32 v28, v30, v30, v28
        v_fma_f32 v29, v31, v31, v29
        s_add_u32 s56, s56, 1
        s_cmp_lt_u32 s56, 128
        s_cbranch_scc1 k1_slow{lab}
        v_add_f32 v28, v28, v29
        v_mov_b32 v29, v28
        v_sub_f32 v26, v24, v27
        s_nop 0
        v_permlane32_swap_b32 v28, v29
        v_add_f32 v28, v28, v29
        v_mul_f32 v28, 0x3b000000, v28
        v_fma_f32 v{VVAR}, -v26, v26, v28
        k1_fast{lab}:
        """)
        for g in p2_sched(0):
            for ins in g: a(ins)
        a.stamp()
        limit = 8
        npf = 0
        for i in range(32):
            c, s_ = i // 2, i % 2
            buf = i & 1
            if s_ == 0:
                if c >= 1 and c < 15: a(f"ds_read_b32 v0, v{VFL}")
                reads(i + 1, buf ^ 1)
                a("s_waitcnt lgkmcnt(8)")
                if c + 2 < 16:
                    assert not pend or pend[0][0] > c + 2
                    a.wait_vm(f"c{c+2}")
                    a(f"v_mov_b32 v{VPG}, {c+1}")
                    a(f"ds_write_b32 v{VFA}, v{VPG}")
            else:
                if i + 1 < 32:
                    if c >= 1:
                        a(f"""
                        k1_spin{lab}{c}:
                        v_cmp_gt_u32 vcc, {c}, v0
                        s_cbranch_vccz k1_ok{lab}{c}
                        ds_read_b32 v0, v{VFL}
                        s_waitcnt lgkmcnt(0)
                        s_branch k1_spin{lab}{c}
                        k1_ok{lab}{c}:
                        """)
                        limit = c + 7
                    reads(i + 1, buf ^ 1)
                    a("s_waitcnt lgkmcnt(8)")
                else:
                    a("s_waitcnt lgkmcnt(0)")
            groups = p2_sched(i + 1) if (i + 1 < 32 and not X_NOP2) else [[], [], [], []]
            for tile in range(4):
                mfma(i, buf, tile)
                for ins in groups[tile]: a(ins)
                if tile in (0, 2) and pend and pend[0][0] <= limit:
                    dma_one(*pend.pop(0))
                if PREF and tile == 1 and i >= PFS and npf < 10:
                    if npf < 7:
                        a.vmem(f"buffer_load_dwordx4 v[{PFD}:{PFD+3}], v{VPF}, s[28:31], s62 offen offset:{(npf % 4)*1024}", "pf")
                        if npf == 3: a("s_add_u32 s62, s62, 4096")
                    else:
                        a.vmem(f"buffer_load_dwordx4 v[{PFD}:{PFD+3}], v{VPF}, s[32:35], s63 offen offset:{(npf-7)*1024}", "pf")
                    npf += 1
            if i % 8 == 7 and i < 31: a.stamp()
        assert not pend
        a(f"""
        v_max_f32 v28, 0, v{VVAR}
        v_cvt_pk_bf16_f32 v28, v28, v28
        v_lshlrev_b32 v28, 16, v28
        v_add_f32 v28, 0x3727c5ac, v28
        v_cvt_pk_bf16_f32 v28, v28, v28
        v_lshlrev_b32 v28, 16, v28
        v_sqrt_f32 v28, v28
        s_nop 0
        v_cvt_pk_bf16_f32 v28, v28, v28
        v_lshlrev_b32 v28, 16, v28
        v_rcp_f32 v11, v28
        s_nop 4
        """)
        a.stamp()
    a("""
    s_cmp_lt_u32 s19, 14
    s_cbranch_scc0 k1_dft
    """)
    mainloop(False)
    a(f"""
    s_mul_i32 s50, s22, 112
    s_lshl_b32 s51, s19, 3
    s_add_u32 s50, s50, s51
    s_lshl_b32 s51, s21, 2
    s_add_u32 s50, s50, s51
    s_lshl_b32 s50, s50, 10
    s_add_u32 s50, s50, {WS_H}
    v_lshlrev_b32 v3, 4, v2
    v_mov_b32 v10, v11
    """)
    for T in range(2):
        G = ACC + T*16; U = ACC + 32 + T*16
        O = BF + T*8; Q = A0 + T*16
        for p in range(8):
            a(f"v_pk_mul_f32 v[{G+2*p}:{G+2*p+1}], v[{G+2*p}:{G+2*p+1}], v[10:11]")
            a(f"v_pk_mul_f32 v[{U+2*p}:{U+2*p+1}], v[{U+2*p}:{U+2*p+1}], v[10:11]")
        for p in range(16):
            a(f"v_max_f32 v{G+p}, 0, v{G+p}")
        for p in range(8):
            a(f"v_cvt_pk_bf16_f32 v{Q+p}, v{G+2*p}, v{G+2*p+1}")
            a(f"v_cvt_pk_bf16_f32 v{Q+8+p}, v{U+2*p}, v{U+2*p+1}")
        for p in range(8):
            a(f"v_lshlrev_b32 v{G+2*p}, 16, v{Q+p}")
            a(f"v_and_b32 v{G+2*p+1}, s27, v{Q+p}")
            a(f"v_lshlrev_b32 v{U+2*p}, 16, v{Q+8+p}")
            a(f"v_and_b32 v{U+2*p+1}, s27, v{Q+8+p}")
        for p in range(8):
            a(f"v_pk_mul_f32 v[{G+2*p}:{G+2*p+1}], v[{G+2*p}:{G+2*p+1}], v[{U+2*p}:{U+2*p+1}]")
        for p in range(8):
            a(f"v_cvt_pk_bf16_f32 v{O+p}, v{G+2*p}, v{G+2*p+1}")
        a(f"buffer_store_dwordx4 v[{O}:{O+3}], v3, s[40:43], s50 offen offset:{T*2048} {STP}")
        a(f"buffer_store_dwordx4 v[{O+4}:{O+7}], v3, s[40:43], s50 offen offset:{T*2048+1024} {STP}")
    a.stamp()
    if STAMP: a("s_waitcnt vmcnt(0)")
    a.stamp()
    a.stamp_store(0)
    a("s_endpgm")
    a.raw("k1_dft:")
    mainloop(True)
    a("""
    v_lshrrev_b32 v3, 5, v2
    v_lshlrev_b32 v3, 4, v3
    """)
    for i in range(16):
        a(f"v_add_u32 v4, {4*(8*(i>>2) + (i&3))}, v3")
        a(f"ds_bpermute_b32 v{BF+i}, v4, v11")
    a(f"""
    v_and_b32 v4, 31, v2
    v_lshrrev_b32 v5, 5, v2
    s_lshl_b32 s50, s20, 2
    v_add_u32 v5, s50, v5
    v_and_b32 v6, 15, v2
    v_xor_b32 v5, v5, v6
    v_lshlrev_b32 v5, 4, v5
    v_lshl_add_u32 v5, v4, 8, v5
    s_lshl_b32 s50, s21, 14
    v_add_u32 v5, s50, v5
    v_xor_b32 v6, 32, v5
    s_waitcnt lgkmcnt(0)
    s_barrier
    """)
    for P in range(2):
        for T in range(2):
            acc = ACC + (P*2+T)*16
            for p in range(8):
                a(f"v_pk_mul_f32 v[{acc+2*p}:{acc+2*p+1}], v[{acc+2*p}:{acc+2*p+1}], v[{BF+2*p}:{BF+2*p+1}]")
            O = A0 + 32 + (P*2+T)*8
            for p in range(8):
                a(f"v_cvt_pk_f16_f32 v{O+p}, v{acc+2*p}, v{acc+2*p+1}")
            a("s_nop 1")
            for q in (0, 2):
                a(f"v_permlane32_swap_b32 v{O+2*q}, v{O+2*q+2}")
                a(f"v_permlane32_swap_b32 v{O+2*q+1}, v{O+2*q+3}")
            a(f"ds_write_b128 v5, v[{O}:{O+3}] offset:{(128*P + 32*T)*256}")
            a(f"ds_write_b128 v6, v[{O+4}:{O+7}] offset:{(128*P + 32*T)*256}")
    a(f"""
    v_lshrrev_b32 v4, 4, v2
    v_and_b32 v5, 15, v2
    s_lshl_b32 s50, s3, 13
    v_lshlrev_b32 v3, 4, v5
    v_lshl_add_u32 v3, v4, 12, v3
    v_xor_b32 v5, v5, v4
    v_lshlrev_b32 v4, 8, v4
    v_add_u32 v4, s50, v4
    s_sub_u32 s50, s19, 14
    s_lshl_b32 s50, s50, 8
    s_lshl_b32 s51, s3, 5
    s_add_u32 s50, s50, s51
    s_lshl_b32 s50, s50, 12
    s_lshl_b32 s51, s18, 8
    s_add_u32 s50, s50, s51
    s_add_u32 s50, s50, {WS_Y}
    """)
    for j in range(4):
        a(f"v_xor_b32 v6, {4*j}, v5")
        a(f"v_lshl_add_u32 v{16+j}, v6, 4, v4")
    a("s_waitcnt lgkmcnt(0)")
    a("s_barrier")
    for j in range(8):
        a(f"ds_read_b128 v[{ACC+4*j}:{ACC+4*j+3}], v{16 + j%4} offset:{j*1024}")
    for j in range(8):
        a(f"s_waitcnt lgkmcnt({7-j})")
        a(f"buffer_store_dwordx4 v[{ACC+4*j}:{ACC+4*j+3}], v3, s[40:43], s50 offen {STP}")
        a("s_add_u32 s50, s50, 16384")
    a.stamp()
    if STAMP: a("s_waitcnt vmcnt(0)")
    a.stamp()
    a.stamp_store(0)
    a.raw("k1_end:")
    a("s_endpgm")
    return a.text()

TE1, TE2, TE3, TE4, TT1, TT2, TSZ = 0, 4096, 20480, 36864, 40960, 49152, 57344
def small_tables():
    buf = np.zeros(TSZ // 2, np.uint16)
    l = np.arange(64); c = l % 16; g = l // 16; j = np.arange(8)
    for t in range(2):
        ang = -2*np.pi*((8*g[:,None]+j[None,:])*(16*t+c)[:,None] % 32)/32
        buf[(TE1 + (0*2+t)*1024)//2:][:512] = f16(np.cos(ang)/8).ravel()
        buf[(TE1 + (1*2+t)*1024)//2:][:512] = f16(np.sin(ang)/8).ravel()
    for w in range(4):
        for st in range(2):
            ang = -2*np.pi*((32*st+8*g[:,None]+j[None,:])*(16*w+c)[:,None] % 64)/64
            buf[(TE2 + ((w*2+0)*2+st)*1024)//2:][:512] = f16(np.cos(ang)/8).ravel()
            buf[(TE2 + ((w*2+1)*2+st)*1024)//2:][:512] = f16(np.sin(ang)/8).ravel()
            buf[(TE3 + ((w*2+0)*2+st)*1024)//2:][:512] = bf16(np.cos(-ang)/8).ravel()
            buf[(TE3 + ((w*2+1)*2+st)*1024)//2:][:512] = bf16(np.sin(-ang)/8).ravel()
    sig = 16*(j[None,:]//4) + 4*g[:,None] + (j[None,:] % 4)
    for tp in range(2):
        ang = 2*np.pi*((sig*(16*tp+c)[:,None]) % 32)/32
        buf[(TE4 + (0*2+tp)*1024)//2:][:512] = bf16(np.cos(ang)/8).ravel()
        buf[(TE4 + (1*2+tp)*1024)//2:][:512] = bf16(np.sin(ang)/8).ravel()
    for w in range(4):
        for e in range(8):
            t, i = e // 4, e % 4
            a1 = -2*np.pi*(((16*w+4*g+i)*(16*t+c)) % 2048)/2048
            a2 = 2*np.pi*(((16*w+c)*(16*t+4*g+i)) % 2048)/2048
            for (base, an) in ((TT1, a1), (TT2, a2)):
                o = (base + (w*2 + e//4)*1024)//2 + l*8 + (e % 4)*2
                buf[o] = f16(np.cos(an)); buf[o+1] = f16(np.sin(an))
    return buf

K3_NS = 5
CSTR = int(os.environ.get('CSTR','2'))
NUP = int(os.environ.get('NUP','16'))
ZSC = os.environ.get('ZSC','sc1')
GLAG = int(os.environ.get('GLAG','5'))
ZMIN = int(os.environ.get('ZMIN','40'))
POLLD = int(os.environ.get('POLLD','5'))
HDIST = int(os.environ.get('HDIST','24'))
ZSTART = int(os.environ.get('ZSTART','28'))
ZTAIL = int(os.environ.get('ZTAIL','0'))
NIDLE = int(os.environ.get('NIDLE','2'))
NZB = int(os.environ.get('NZB','1'))
LOADALL = os.environ.get('LOADALL','1') == '1'
CPRIO = int(os.environ.get('CPRIO','2'))
LATEC = int(os.environ.get('LATEC','1'))
def gen_k23_main():
    a = Asm()
    a.raw(".p2align 8\nk23_kernel:")
    a("""
    s_cmp_ge_u32 s2, 256
    s_cbranch_scc1 k23_end
    s_load_dwordx2 s[4:5], s[0:1], 0
    s_load_dwordx4 s[8:11], s[0:1], 48
    s_load_dwordx2 s[14:15], s[0:1], 72
    v_lshrrev_b32 v1, 6, v0
    v_and_b32 v2, 63, v0
    s_nop 0
    v_readfirstlane_b32 s3, v1
    v_and_b32 v3, 15, v2
    v_lshrrev_b32 v4, 4, v2
    s_mov_b32 s48, 0x80008000
    s_mov_b32 s49, 0xffff0000
    s_cmp_ge_u32 s3, 4
    s_cbranch_scc1 k23_conv
    """)
    SB = 131072
    NCB = 5 + NIDLE + NZB
    getpc_tab(a, 24, "tab_G")
    srd(a, 44, "s24", "s25", 524288)
    if os.environ.get("K3_MAP", "0") == "0":
        a("""
    s_and_b32 s16, s2, 7
    s_lshr_b32 s17, s2, 3
    s_lshr_b32 s18, s16, 1
    s_lshl_b32 s18, s18, 3
    s_and_b32 s19, s17, 7
    s_add_u32 s18, s18, s19
    s_lshl_b32 s58, s19, 1
    s_and_b32 s19, s16, 1
    s_lshl_b32 s19, s19, 2
    s_lshr_b32 s20, s17, 3
    s_add_u32 s19, s19, s20
    s_lshl_b32 s20, s20, 2
    s_add_u32 s58, s58, s20
    """)
    else:
        a("""
    s_and_b32 s16, s2, 7
    s_lshr_b32 s17, s2, 3
    s_lshl_b32 s18, s16, 2
    s_and_b32 s19, s17, 3
    s_add_u32 s18, s18, s19
    s_lshl_b32 s58, s19, 2
    s_lshr_b32 s19, s17, 2
    s_lshl_b32 s20, s19, 1
    s_add_u32 s58, s58, s20
    """)
    a.sb = 92; a.maxst = 5
    XR = 8; PV = 16; VO, VF, VW, VZ, VH = 20, 21, 22, 23, 24
    VPG, VFA, VFL, VFV = 25, 26, 27, 28
    TRW = 29
    TRZ = 37
    GFR = 39
    VW2, VZ2 = 41, 42
    ACG, ACS = 44, 60
    FB = 76
    HB = 136; NHB = 28
    PW = SB + 28672
    NCH = 36
    a(f"""
    s_cmp_ge_u32 s58, 14
    s_cselect_b32 s20, 14, 0
    s_sub_u32 s58, s58, s20
    s_lshl_b32 s58, s58, 1
    s_add_u32 s12, s18, s19
    s_and_b32 s12, s12, 7
    s_and_b32 s20, s3, 1
    s_lshr_b32 s21, s3, 1
    s_lshl_b32 s22, s18, 1
    s_add_u32 s22, s22, s21
    v_lshlrev_b32 v{VF}, 4, v2
    v_lshrrev_b32 v6, 3, v2
    v_and_b32 v5, 7, v2
    v_lshrrev_b32 v5, 1, v5
    v_lshrrev_b32 v1, 1, v6
    v_xor_b32 v5, v5, v1
    v_lshlrev_b32 v5, 5, v5
    v_and_b32 v1, 1, v2
    v_lshl_add_u32 v5, v1, 4, v5
    v_lshl_add_u32 v{VW}, v6, 10, v5
    v_lshl_add_u32 v{VZ}, v6, 12, v5
    s_lshl_b32 s27, s19, 7
    v_add_u32 v{VW}, s27, v{VW}
    s_lshl_b32 s27, s18, 7
    s_add_u32 s27, s27, {WS_Z}
    v_add_u32 v{VZ}, s27, v{VZ}
    v_add_u32 v{VW2}, 8192, v{VW}
    v_add_u32 v{VZ2}, 32768, v{VZ}
    v_lshlrev_b32 v{VH}, 9, v4
    v_lshl_add_u32 v{VH}, v3, 4, v{VH}
    s_mul_i32 s50, s22, 112
    s_lshl_b32 s50, s50, 10
    s_lshl_b32 s27, s20, 8
    s_add_u32 s50, s50, s27
    s_add_u32 s50, s50, {WS_H}
    s_lshl_b32 s51, s19, 1
    s_add_u32 s51, s51, s21
    s_lshl_b32 s51, s51, 5
    s_lshl_b32 s27, s20, 1
    s_add_u32 s51, s51, s27
    s_lshl_b32 s51, s51, 10
    s_lshl_b32 s52, s3, 11
    s_lshl_b32 s54, s3, 14
    s_lshl_b32 s55, s3, 16
    s_mov_b32 s59, {WS_FL}
    s_lshl_b32 s27, s3, 2
    s_add_u32 s27, s27, {PW}
    v_mov_b32 v{VFA}, s27
    v_mov_b32 v{VPG}, 0
    v_and_b32 v{VFL}, 3, v2
    v_lshlrev_b32 v{VFL}, 2, v{VFL}
    v_add_u32 v{VFL}, {PW}, v{VFL}
    ds_write_b32 v{VFA}, v{VPG}
    s_waitcnt lgkmcnt(0)
    """)
    a.stamp()
    srd(a, 40, "s14", "s15", WS_SIZE)
    srd(a, 32, "s8", "s9", 1792*1024)
    isd = lambda c: c < 28
    upos = {}; p_ = 0
    for c in range(NCH):
        upos[c] = p_ % 16; p_ += 1 if isd(c) else 2
    ustart = {}; p_ = 0
    for c in range(NCH):
        ustart[c] = p_; p_ += 1 if isd(c) else 2
    uend = lambda c: ustart[c] + (1 if isd(c) else 2)
    a(f"""
    v_add_u32 v{VW}, s54, v{VW}
    v_add_u32 v{VW2}, s54, v{VW2}
    v_add_u32 v43, s50, v{VH}
    s_lshl_b32 s64, s58, 12
    """)
    def tab(c):
        a(f"s_add_u32 s{64+c}, s{63+c}, 4096")
        a(f"s_cmp_eq_u32 s{64+c}, {28*4096}")
        a(f"s_cselect_b32 s{64+c}, 0, s{64+c}")
    def dma_one(c, u):
        if isd(c):
            a(f"s_add_u32 m0, s52, {upos[c]*8192 + u*1024}")
            if u == 0: a(f"s_lshl_b32 s63, s{64+c}, 4")
            else: a("s_nop 0")
            a.vmem(f"buffer_load_dwordx4 v{VW if u == 0 else VW2}, s[32:35], s63 offen lds", f"c{c}")
            return
        if u == 0:
            a(f"s_xor_b32 s57, s12, {c-28}")
            a(f"s_lshl_b32 s62, s57, 12"); a(f"s_add_u32 s62, s62, s51")
            a(f"s_lshl_b32 s63, s57, 18"); a(f"s_add_u32 s63, s63, s55")
        if u < 2:
            a(f"s_add_u32 m0, s52, {upos[c]*8192 + u*1024}")
            a("s_nop 0")
            a.vmem(f"buffer_load_dwordx4 v{VZ if u == 0 else VZ2}, s[40:43], s63 offen {ZSC} lds", f"c{c}")
        else:
            if u == 2:
                a(f"s_add_u32 m0, s52, {((upos[c]+1) % 16)*8192}")
                a("s_nop 0")
            else:
                a(f"s_add_u32 m0, s52, {((upos[c]+1) % 16)*8192}")
                a("s_nop 0")
            a.vmem(f"buffer_load_dwordx4 v{VF}, s[44:47], s62 offen offset:{(u-2)*1024} lds", f"c{c}")
    def hload(j):
        c, s_ = j // 2, j % 2
        hb = HB + (j % NHB) * 4
        a.vmem(f"buffer_load_dwordx4 v[{hb}:{hb+3}], v43, s[40:43], s{64+c} offen offset:{s_*2048}", f"h{j}")
    tab(1)
    pend = [(c, u) for c in range(NCH) for u in range(2 if isd(c) else 4)]
    hp = [0]
    for c in range(2):
        for u in range(2): dma_one(*pend.pop(0))
        for _ in range(2): hload(hp[0]); hp[0] += 1
    for c in range(2, 28): tab(c)
    a("s_barrier")
    for c in range(NUP // 4):
        for u in range(2): dma_one(*pend.pop(0))
        for _ in range(2): hload(hp[0]); hp[0] += 1
    srd(a, 36, "s10", "s11", 2048*1024)
    srd(a, 28, "s4", "s5", 2048*1024)
    a(f"""
    v_lshrrev_b32 v{PV}, 2, v3
    v_and_b32 v{PV+1}, 3, v3
    v_lshrrev_b32 v{PV+2}, 1, v4
    v_lshlrev_b32 v{PV+2}, 4, v{PV+2}
    v_and_b32 v{PV+3}, 1, v4
    v_lshl_add_u32 v{PV+2}, v{PV+3}, 2, v{PV+2}
    v_add_u32 v{PV+2}, v{PV+2}, v{PV}
    v_lshlrev_b32 v{PV+2}, 7, v{PV+2}
    v_lshl_add_u32 v{PV+2}, v{PV+1}, 3, v{PV+2}
    v_lshrrev_b32 v{PV}, 1, v{PV}
    v_lshl_add_u32 v{PV}, v{PV+3}, 1, v{PV}
    """)
    for dt in range(4):
        a(f"v_xor_b32 v{PV+1}, {dt}, v{PV}")
        a(f"v_lshl_add_u32 v{TRW+dt}, v{PV+1}, 5, v{PV+2}")
        a(f"v_add_u32 v{TRW+4+dt}, 0x10000, v{TRW+dt}")
    a(f"""
    v_xor_b32 v{PV+1}, s3, v{PV}
    v_lshl_add_u32 v{TRZ}, v{PV+1}, 5, v{PV+2}
    v_add_u32 v{TRZ+1}, 0x10000, v{TRZ}
    v_mov_b32 v{GFR}, v{VH}
    v_add_u32 v{GFR+1}, 0x10000, v{VH}
    v_lshrrev_b32 v1, 3, v2
    v_and_b32 v{VO}, 7, v2
    v_lshlrev_b32 v{VO}, 4, v{VO}
    v_lshl_add_u32 v{VO}, v1, 16, v{VO}
    s_lshl_b32 s23, s22, 10
    s_lshl_b32 s26, s19, 7
    s_add_u32 s23, s23, s26
    s_lshl_b32 s26, s20, 20
    s_add_u32 s23, s23, s26
    s_add_u32 s13, s23, 0x80000
    """)
    DEPTH = 3
    NST = NCH * 2
    LAG = GLAG
    pubs = []
    def full_issued():
        return (pend[0][0] - 1) if pend else NCH - 1
    def arrive(want, rdone):
        q = min(want, full_issued(), NCH - 1)
        for cc in range(q, -1, -1):
            if f"c{cc}" in a.vm:
                a.wait_vm(f"c{cc}"); break
        pubs.append((q, rdone))
        a(f"v_mov_b32 v{VPG}, {len(pubs)}")
        a.lds(f"ds_write_b32 v{VFA}, v{VPG}", "pw")
    nspin = [0]
    checked = [0]
    fvp = [False]
    def check(k):
        n = nspin[0]; nspin[0] += 1
        if not fvp[0]:
            a.lds(f"ds_read_b32 v{VFV}, v{VFL}", "fv")
        fvp[0] = False
        a.wait_lds("fv")
        a(f"""
        k23_gs{n}:
        v_cmp_gt_u32 vcc, {k}, v{VFV}
        s_cbranch_vccz k23_go{n}
        ds_read_b32 v{VFV}, v{VFL}
        s_waitcnt lgkmcnt(0)
        s_branch k23_gs{n}
        k23_go{n}:
        """)
        checked[0] = k
        rd = pubs[k-1][1]
        if rd >= 0: ulimit[0] = max(ulimit[0], uend(rd) + 16)
    ulimit = [16]
    def reads(i):
        c, s_ = i // 2, i % 2
        if s_ == 0:
            have = pubs[checked[0]-1][0] if checked[0] else -1
            if have < c or c % 2 == 0:
                need = min(c + 1, NCH - 1) if c % 2 == 0 else c
                ks = [k+1 for k, (q, r) in enumerate(pubs) if q >= need]
                if not ks: ks = [k+1 for k, (q, r) in enumerate(pubs) if q >= c]
                assert ks, ("no publish covers chunk", c, pubs)
                k = max(ks[0], checked[0])
                if k > checked[0]: check(k)
            if c in (0, 12, 28): a.stamp()
            if c % 2 == 1 and c + 1 < NCH and c >= 3:
                a.lds(f"ds_read_b32 v{VFV}, v{VFL}", "fv"); fvp[0] = True
        fb = FB + (i % DEPTH) * 20
        u0 = upos[c] * 8192
        w0, b0 = u0 >> 16, u0 & 0xffff
        if isd(c):
            for dt in range(4):
                for t in range(2):
                    a.lds(f"ds_read_b64_tr_b16 v[{fb+4*dt+2*t}:{fb+4*dt+2*t+1}], v{TRW+4*w0+dt} offset:{b0 + (32*s_ + 8*t)*128}", f"g{i}")
        else:
            for t in range(2):
                a.lds(f"ds_read_b64_tr_b16 v[{fb+16+2*t}:{fb+17+2*t}], v{TRZ+w0} offset:{b0 + (32*s_ + 8*t)*128}", f"g{i}")
            u1 = ((upos[c] + 1) % 16) * 8192
            w1, b1 = u1 >> 16, u1 & 0xffff
            for dt in range(4):
                a.lds(f"ds_read_b128 v[{fb+4*dt}:{fb+4*dt+3}], v{GFR+w1} offset:{b1 + (dt>>1)*4096 + s_*2048 + (dt&1)*256}", f"g{i}")
    def mfma(i, dt):
        c, s_ = i // 2, i % 2
        fb = FB + (i % DEPTH) * 20
        if isd(c):
            hb = HB + (i % NHB) * 4
            cin = "0" if i == 0 else f"v[{ACG+4*dt}:{ACG+4*dt+3}]"
            a(f"v_mfma_f32_16x16x32_bf16 v[{ACG+4*dt}:{ACG+4*dt+3}], v[{fb+4*dt}:{fb+4*dt+3}], v[{hb}:{hb+3}], {cin}")
        else:
            cin = "0" if i == 56 else f"v[{ACS+4*dt}:{ACS+4*dt+3}]"
            a(f"v_mfma_f32_16x16x32_bf16 v[{ACS+4*dt}:{ACS+4*dt+3}], v[{fb+4*dt}:{fb+4*dt+3}], v[{fb+16}:{fb+19}], {cin}")
    def silu():
        G_ = ACG; T_ = HB
        for p in range(8): a(f"v_cvt_pk_bf16_f32 v{T_+p}, v{G_+2*p}, v{G_+2*p+1}")
        yield
        for p in range(8):
            a(f"v_lshlrev_b32 v{G_+2*p}, 16, v{T_+p}")
            a(f"v_and_b32 v{G_+2*p+1}, s49, v{T_+p}")
            if p % 4 == 3: yield
        for p in range(16):
            a(f"v_mul_f32 v{T_+p}, 0xbfb8aa3b, v{G_+p}")
            if p % 8 == 7: yield
        for p in range(16):
            a(f"v_exp_f32 v{T_+p}, v{T_+p}")
            if p % 4 == 3: yield
        for p in range(16):
            a(f"v_add_f32 v{T_+p}, 1.0, v{T_+p}")
            if p % 8 == 7: yield
        for p in range(16):
            a(f"v_rcp_f32 v{T_+p}, v{T_+p}")
            if p % 4 == 3: yield
        for p in range(16):
            a(f"v_mul_f32 v{G_+p}, v{G_+p}, v{T_+p}")
            if p % 8 == 7: yield
        for p in range(8): a(f"v_cvt_pk_bf16_f32 v{T_+p}, v{G_+2*p}, v{G_+2*p+1}")
        yield
        for p in range(8):
            a(f"v_lshlrev_b32 v{G_+2*p}, 16, v{T_+p}")
            a(f"v_and_b32 v{G_+2*p+1}, s49, v{T_+p}")
            if p % 4 == 3: yield
    sl = silu()
    polled = False
    arrive(1, -1)
    early = list(range(3, LAG, 2))
    for k in range(DEPTH - 1): reads(k)
    for i in range(NST):
        c, s_ = i // 2, i % 2
        if early: arrive(early.pop(0), -1)
        if i + DEPTH - 1 < NST: reads(i + DEPTH - 1)
        a.wait_lds(f"g{i}")
        if isd(c): a.wait_vm(f"h{i}")
        if s_ == 1 and c < NCH - 1 and pubs[-1][0] < NCH - 1 and (c % 2 == 0 or c >= 24):
            arrive(c + LAG, c)
        for dt in range(4):
            mfma(i, dt)
            if dt in (0, 2):
                if pend:
                    pc, pu = pend[0]
                    need = ustart[pc] + (1 if pu < 2 else 2)
                    if need <= ulimit[0] and len(a.vm) < 56 and not (pc >= 28 and i < ZMIN):
                        if pend[0] == (28, 0):
                            a.wait_vm("poll")
                            a(f"""
                            s_mov_b32 s27, 0
                            k23_spin:
                            v_and_b32 v{PV}, v{PV}, v{PV+1}
                            v_and_b32 v{PV+2}, v{PV+2}, v{PV+3}
                            v_and_b32 v{PV}, v{PV}, v{PV+2}
                            v_cmp_ne_u32 vcc, 1, v{PV}
                            s_cbranch_vccz k23_go
                            s_add_u32 s27, s27, 1
                            s_cmp_ge_u32 s27, 0x4000
                            s_cbranch_scc1 k23_go
                            s_sleep 8
                            buffer_load_dword v{PV}, v{VF}, s[40:43], s59 offen sc1
                            buffer_load_dword v{PV+1}, v{VF}, s[40:43], s59 offen offset:1024 sc1
                            buffer_load_dword v{PV+2}, v{VF}, s[40:43], s59 offen offset:2048 sc1
                            buffer_load_dword v{PV+3}, v{VF}, s[40:43], s59 offen offset:3072 sc1
                            s_waitcnt vmcnt(0)
                            s_branch k23_spin
                            k23_go:
                            """)
                            print("Z issue at step", i, file=sys.stderr)
                        dma_one(*pend.pop(0))
            if dt in (1, 3):
                if hp[0] < 56 and hp[0] - NHB < i and len(a.vm) < 56 and hp[0] <= i + HDIST:
                    hload(hp[0]); hp[0] += 1
            if i >= 58: next(sl, None)
        if i == ZMIN - POLLD and not polled:
            polled = True
            for q in range(4):
                a.vmem(f"buffer_load_dword v{PV+q}, v{VF}, s[40:43], s59 offen offset:{q*1024} sc1", "poll")
        if i == 50:
            a.vmem(f"buffer_load_dwordx4 v[{XR}:{XR+3}], v{VO}, s[28:31], s23 offen", "x")
            a.vmem(f"buffer_load_dwordx4 v[{XR+4}:{XR+7}], v{VO}, s[28:31], s13 offen", "x")
    assert not pend and hp[0] == 56
    for _ in sl: a("s_nop 0")
    a("s_nop 7")
    O = HB + 16; SV = ACS; GV = ACG; Q = HB + 24
    for p in range(8):
        a(f"v_cvt_pk_bf16_f32 v{Q+p}, v{SV+2*p}, v{SV+2*p+1}")
    for p in range(8):
        a(f"v_lshlrev_b32 v{SV+2*p}, 16, v{Q+p}")
        a(f"v_and_b32 v{SV+2*p+1}, s49, v{Q+p}")
    for p in range(16):
        a(f"v_mul_f32 v{SV+p}, v{SV+p}, v{GV+p}")
    for p in range(8):
        a(f"v_cvt_pk_bf16_f32 v{O+p}, v{SV+2*p}, v{SV+2*p+1}")
    a(f"""
    v_lshrrev_b32 v5, 1, v4
    v_and_b32 v6, 7, v2
    v_xor_b32 v5, v5, v6
    v_and_b32 v7, 1, v4
    v_lshlrev_b32 v7, 3, v7
    v_lshl_add_u32 v7, v3, 7, v7
    s_lshl_b32 s26, s3, 11
    s_add_u32 s26, s26, {SB}
    v_add_u32 v7, s26, v7
    s_barrier
    """)
    for dt in range(4):
        a(f"v_xor_b32 v1, {2*dt}, v5")
        a(f"v_lshl_add_u32 v1, v1, 4, v7")
        a(f"ds_write_b64 v1, v[{O+2*dt}:{O+2*dt+1}]")
    a(f"""
    v_lshrrev_b32 v4, 3, v2
    v_xor_b32 v6, v6, v4
    v_lshlrev_b32 v6, 4, v6
    v_lshl_add_u32 v6, v4, 7, v6
    v_add_u32 v6, s26, v6
    s_waitcnt lgkmcnt(0)
    ds_read_b128 v[{Q}:{Q+3}], v6
    ds_read_b128 v[{Q+4}:{Q+7}], v6 offset:1024
    """)
    a.wait_vm_all()
    for p in range(8):
        a(f"v_lshlrev_b32 v{GV+2*p}, 16, v{XR+p}")
        a(f"v_and_b32 v{GV+2*p+1}, s49, v{XR+p}")
    a("s_waitcnt lgkmcnt(0)")
    for p in range(8):
        a(f"v_lshlrev_b32 v{SV+2*p}, 16, v{Q+p}")
        a(f"v_and_b32 v{SV+2*p+1}, s49, v{Q+p}")
    for p in range(16):
        a(f"v_add_f32 v{SV+p}, v{SV+p}, v{GV+p}")
    for p in range(8):
        a(f"v_cvt_pk_bf16_f32 v{O+p}, v{SV+2*p}, v{SV+2*p+1}")
    a(f"buffer_store_dwordx4 v[{O}:{O+3}], v{VO}, s[36:39], s23 offen")
    a(f"buffer_store_dwordx4 v[{O+4}:{O+7}], v{VO}, s[36:39], s13 offen")
    a.stamp()
    if STAMP: a("s_waitcnt vmcnt(0)")
    a.stamp()
    a.stamp_store(1)
    a("s_endpgm")

    a.raw("k23_conv:")
    a.vm = []; a.lq = []; a.nst = 0; a.sb = 74; a.maxst = 14
    YR, YI = 8, 12
    E1 = 16; T1 = 32; E2 = 48; WW = 64; E3 = 80; T2 = 96; E4 = 112
    D = 128; F = 144; N = 176; TMP = 184; WM = 200; VL = 7
    getpc_tab(a, 24, "tab_S")
    srd(a, 28, "s24", "s25", TSZ)
    a(f"""
    s_sub_u32 s13, s3, 4
    v_lshlrev_b32 v5, 6, v3
    v_lshl_add_u32 v5, v4, 4, v5
    s_lshl_b32 s60, s2, 13
    s_lshl_b32 s61, s13, 10
    s_add_u32 s60, s60, s61
    s_add_u32 s60, s60, {WS_Y}
    s_add_u32 s61, s60, 4096
    v_lshlrev_b32 v{VL}, 4, v2
    s_lshl_b32 s26, s13, 12
    s_lshl_b32 s12, s13, 11
    v_subrev_u32 v6, 256, v0
    v_lshlrev_b32 v6, 5, v6
    s_waitcnt lgkmcnt(0)
    """)
    a.stamp()
    srd(a, 40, "s14", "s15", WS_SIZE)
    def tload(dst, n, soff, base, tag):
        for q in range(n):
            a.vmem(f"buffer_load_dwordx4 v[{dst+4*q}:{dst+4*q+3}], v{VL}, s[28:31], {soff} offen offset:{base+q*1024}", tag)
    a.vmem(f"buffer_load_dwordx4 v[{YR}:{YR+3}], v5, s[40:43], s60 offen", "y")
    a.vmem(f"buffer_load_dwordx4 v[{YI}:{YI+3}], v5, s[40:43], s61 offen", "y")
    tload(E1, 4, "0", TE1, "e1")
    a(f"s_add_u32 s27, s12, {TT1}")
    tload(T1, 2, "s27", 0, "t1")
    def loads2():
        a(f"s_add_u32 s27, s26, {TE2}")
        tload(E2, 4, "s27", 0, "e2")
        a(f"""
        s_lshl_b32 s27, s2, 13
        s_add_u32 s27, s27, {WS_W}
        s_cmp_eq_u32 s2, 0
        s_cbranch_scc0 k23_now256
        s_mov_b32 s56, {WS_W + 256*8192}
        buffer_load_dwordx4 v[{WW+8}:{WW+11}], v{VWT}, s[40:43], s56 offen
        buffer_load_dwordx4 v[{WW+12}:{WW+15}], v{VWT}, s[40:43], s56 offen offset:16
        s_add_u32 s56, s56, 8192
        buffer_load_dwordx4 v[{WM}:{WM+3}], v{VWT}, s[40:43], s56 offen
        buffer_load_dwordx4 v[{WM+4}:{WM+7}], v{VWT}, s[40:43], s56 offen offset:16
        s_add_u32 s56, s56, 8192
        buffer_load_dwordx4 v[{WM+8}:{WM+11}], v{VWT}, s[40:43], s56 offen
        buffer_load_dwordx4 v[{WM+12}:{WM+15}], v{VWT}, s[40:43], s56 offen offset:16
        k23_now256:
        """)
        a.vmem(f"buffer_load_dwordx4 v[{WW}:{WW+3}], v{VWT}, s[40:43], s27 offen", "w")
        a.vmem(f"buffer_load_dwordx4 v[{WW+4}:{WW+7}], v{VWT}, s[40:43], s27 offen offset:16", "w")
    def loads3():
        a(f"s_add_u32 s27, s26, {TE3}")
        tload(E3, 4, "s27", 0, "e3")
        a(f"s_add_u32 s27, s12, {TT2}")
        tload(T2, 2, "s27", 0, "t2")
        a(f"s_mov_b32 s27, {TE4}")
        tload(E4, 4, "s27", 0, "e4")
    VWT = 216; PQ = 220
    a(f"""
    v_mov_b32 v{VWT}, v6
    s_lshl_b32 s27, s13, 9
    v_lshlrev_b32 v1, 7, v4
    v_add3_u32 v1, v1, v3, s27
    s_movk_i32 s27, 144
    v_mul_lo_u32 v6, v3, s27
    v_add_u32 v6, {SB}, v6
    v_lshl_add_u32 v5, v4, 3, v6
    s_lshl_b32 s27, s13, 5
    v_add_u32 v5, s27, v5
    v_lshl_add_u32 v6, v4, 4, v6
    """)
    UB, XB, MB = 0, 9216, 18432
    PL = 4608
    def R(x): return f"v[{x}:{x+3}]"
    def fr(pl, t, st): return F + ((pl*2+t)*2+st)*4
    def cmul_tw(tw):
        for e in range(8):
            r = D + e; im = D + 8 + e; tq = tw + e
            t = TMP + 2*(e % 4)
            a(f"""
            v_fma_mix_f32 v{t}, v{im}, v{tq}, 0 op_sel:[0,1,0] op_sel_hi:[0,1,0]
            v_fma_mix_f32 v{t+1}, v{r}, v{tq}, 0 op_sel:[0,1,0] op_sel_hi:[0,1,0]
            """)
            if e % 4 == 3:
                for e2 in range(e-3, e+1):
                    r = D + e2; im = D + 8 + e2; tq = tw + e2
                    t = TMP + 2*(e2 % 4)
                    a(f"""
                    v_fma_mix_f32 v{r}, v{r}, v{tq}, -v{t} op_sel:[0,0,0] op_sel_hi:[0,1,0]
                    v_fma_mix_f32 v{im}, v{im}, v{tq}, v{t+1} op_sel:[0,0,0] op_sel_hi:[0,1,0]
                    """)
    def pack(cvt, dst):
        for e in range(8):
            a(f"{cvt} v{dst+e}, v{D+2*e}, v{D+2*e+1}")
    def lds_write(base, src):
        for pl in range(2):
            for t in range(2):
                a(f"ds_write_b64 v5, v[{src+pl*4+t*2}:{src+pl*4+t*2+1}] offset:{base + pl*PL + t*16*144}")
    def lds_read(base):
        for pl in range(2):
            for t in range(2):
                for st in range(2):
                    f_ = fr(pl, t, st)
                    a(f"ds_read_b128 v[{f_}:{f_+3}], v6 offset:{base + pl*PL + t*16*144 + st*64}")
    nbar = [0]
    CA, CL, CV = 217, 218, 219
    def bar(tag=""):
        nbar[0] += 1
        p = nbar[0]
        a(f"""
        v_mov_b32 v{CV}, {p}
        s_waitcnt lgkmcnt(0)
        ds_write_b32 v{CA}, v{CV}
        k23_cs{p}{tag}:
        ds_read_b32 v{CV}, v{CL}
        s_waitcnt lgkmcnt(0)
        v_cmp_gt_u32 vcc, {p}, v{CV}
        s_cbranch_vccnz k23_cs{p}{tag}
        """)
        a.stamp()
    a(f"""
    s_setprio {CPRIO}
    s_lshl_b32 s27, s13, 2
    s_add_u32 s27, s27, {PW + 16}
    v_mov_b32 v{CA}, s27
    v_mov_b32 v{CV}, 0
    v_and_b32 v{CL}, 3, v2
    v_lshlrev_b32 v{CL}, 2, v{CL}
    v_add_u32 v{CL}, {PW + 16}, v{CL}
    ds_write_b32 v{CA}, v{CV}
    """)
    loads2(); loads3()
    a("s_waitcnt lgkmcnt(0)")
    a("s_barrier")
    a.stamp()
    a.wait_vm("e1")
    for r in range(4):
        a(f"v_xor_b32 v{N+r}, s48, v{YI+r}")
    a("s_nop 1")
    for t in range(2):
        er = E1 + 4*t; ei = E1 + 8 + 4*t
        a(f"v_mfma_f32_16x16x32_f16 {R(D+4*t)}, {R(YR)}, {R(er)}, 0")
        a(f"v_mfma_f32_16x16x32_f16 {R(D+8+4*t)}, {R(YR)}, {R(ei)}, 0")
    for t in range(2):
        er = E1 + 4*t; ei = E1 + 8 + 4*t
        a(f"v_mfma_f32_16x16x32_f16 {R(D+4*t)}, {R(N)}, {R(ei)}, {R(D+4*t)}")
        a(f"v_mfma_f32_16x16x32_f16 {R(D+8+4*t)}, {R(YI)}, {R(er)}, {R(D+8+4*t)}")
    a.wait_vm("t1")
    a("s_nop 7")
    cmul_tw(T1)
    pack("v_cvt_pk_f16_f32", TMP + 8)
    lds_write(UB, TMP + 8)
    bar()
    lds_read(UB)
    a.wait_vm("e2")
    for r in range(8):
        a(f"v_xor_b32 v{N+r}, s48, v{E2+8+r}")
    a("s_waitcnt lgkmcnt(0)")
    for st in range(2):
        for t in range(2):
            cr = "0" if st == 0 else R(D+4*t); ci = "0" if st == 0 else R(D+8+4*t)
            a(f"v_mfma_f32_16x16x32_f16 {R(D+4*t)}, {R(E2+4*st)}, {R(fr(0,t,st))}, {cr}")
            a(f"v_mfma_f32_16x16x32_f16 {R(D+8+4*t)}, {R(E2+8+4*st)}, {R(fr(0,t,st))}, {ci}")
        for t in range(2):
            a(f"v_mfma_f32_16x16x32_f16 {R(D+4*t)}, {R(N+4*st)}, {R(fr(1,t,st))}, {R(D+4*t)}")
            a(f"v_mfma_f32_16x16x32_f16 {R(D+8+4*t)}, {R(E2+4*st)}, {R(fr(1,t,st))}, {R(D+8+4*t)}")
    a("""
    s_cmp_eq_u32 s2, 0
    s_cbranch_scc1 k2_special
    """)
    vm_keep = list(a.vm)
    a.wait_vm("w")
    a("s_nop 7")
    for e in range(8):
        r = D + e; im = D + 8 + e
        t = TMP + 4*(e % 2)
        a(f"""
        v_lshlrev_b32 v{t+2}, 16, v{WW+e}
        v_and_b32 v{t+3}, s49, v{WW+e}
        v_mul_f32 v{t}, v{im}, v{t+3}
        v_mul_f32 v{t+1}, v{r}, v{t+3}
        v_fma_f32 v{r}, v{r}, v{t+2}, -v{t}
        v_fma_f32 v{im}, v{im}, v{t+2}, v{t+1}
        """)
    a("s_branch k2_join")
    a.raw("k2_special:")
    a.vm = vm_keep
    a.wait_vm("w")
    TA_ = 8
    for e in range(8):
        q = PQ + 4*e; t = TA_ + 4*e
        a(f"""
        v_lshlrev_b32 v{q}, 16, v{WW+e}
        v_and_b32 v{q+1}, s49, v{WW+e}
        v_lshlrev_b32 v{q+2}, 16, v{WM+e}
        v_and_b32 v{q+3}, s49, v{WM+e}
        v_lshlrev_b32 v{t}, 16, v{WW+8+e}
        v_and_b32 v{t+1}, s49, v{WW+8+e}
        v_lshlrev_b32 v{t+2}, 16, v{WM+8+e}
        v_and_b32 v{t+3}, s49, v{WM+8+e}
        """)
    for e in range(8):
        q = PQ + 4*e; t = TA_ + 4*e
        a(f"""
        v_add_f32 v{q}, v{q}, v{q+2}
        v_sub_f32 v{q+1}, v{q+1}, v{q+3}
        v_add_f32 v{t}, v{t}, v{t+2}
        v_sub_f32 v{t+1}, v{t+1}, v{t+3}
        """)
    for e in range(8):
        q = PQ + 4*e; t = TA_ + 4*e
        a(f"""
        v_sub_f32 v{q+2}, v{q}, v{t}
        v_sub_f32 v{q+3}, v{q+1}, v{t+1}
        v_add_f32 v{q}, v{q}, v{t}
        v_add_f32 v{q+1}, v{q+1}, v{t+1}
        """)
    for e in range(32):
        a(f"v_mul_f32 v{PQ+e}, 0x3e800000, v{PQ+e}")
    for e in range(8):
        t, i = e // 4, e % 4
        q = TMP + 2*(e % 2)
        a(f"""
        v_cvt_pk_f16_f32 v{q}, v{D+e}, v{D+8+e}
        v_add_u32 v{q+1}, {32*i+16*t+(SB+MB)//4}, v1
        v_lshlrev_b32 v{q+1}, 2, v{q+1}
        ds_write_b32 v{q+1}, v{q}
        """)
    for e in range(8):
        r = D + e; q = PQ + 4*e; t = F + 8 + 2*e
        a(f"v_mul_f32 v{t}, v{r}, v{q}")
        a(f"v_mul_f32 v{t+1}, v{r}, v{q+1}")
    for e in range(8):
        im = D + 8 + e; q = PQ + 4*e; t = F + 8 + 2*e
        a(f"v_fma_f32 v{t}, -v{im}, v{q+1}, v{t}")
        a(f"v_fma_f32 v{t+1}, v{im}, v{q}, v{t+1}")
    nst_keep = a.nst
    bar("s")
    a.nst = nst_keep
    for e in range(8):
        t, i = e // 4, e % 4
        a(f"""
        v_add_u32 v{TMP+4}, {32*i+16*t}, v1
        v_sub_u32 v{TMP+4}, 2048, v{TMP+4}
        v_and_b32 v{TMP+4}, 2047, v{TMP+4}
        v_lshlrev_b32 v{TMP+4}, 2, v{TMP+4}
        v_add_u32 v{TMP+4}, {SB+MB}, v{TMP+4}
        ds_read_b32 v{F+e}, v{TMP+4}
        """)
    a("s_waitcnt lgkmcnt(0)")
    for e in range(8):
        xm = F + e; q = PQ + 4*e; t = F + 8 + 2*e
        a(f"""
        v_fma_mix_f32 v{t}, v{q+2}, v{xm}, v{t} op_sel:[0,0,0] op_sel_hi:[0,1,0]
        v_fma_mix_f32 v{t+1}, v{q+3}, v{xm}, v{t+1} op_sel:[0,0,0] op_sel_hi:[0,1,0]
        """)
    for e in range(8):
        r = D + e; im = D + 8 + e
        xm = F + e; q = PQ + 4*e; t = F + 8 + 2*e
        a(f"""
        v_fma_mix_f32 v{r}, v{q+3}, v{xm}, v{t} op_sel:[0,1,0] op_sel_hi:[0,1,0]
        v_fma_mix_f32 v{im}, -v{q+2}, v{xm}, v{t+1} op_sel:[0,1,0] op_sel_hi:[0,1,0]
        """)
    a.raw("k2_join:")
    a.stamp()
    pack("v_cvt_pk_bf16_f32", TMP + 8)
    lds_write(XB, TMP + 8)
    bar()
    lds_read(XB)
    a.wait_vm("e3")
    for r in range(8):
        a(f"v_xor_b32 v{N+r}, s48, v{E3+8+r}")
    a("s_waitcnt lgkmcnt(0)")
    for st in range(2):
        for t in range(2):
            cr = "0" if st == 0 else R(D+4*t); ci = "0" if st == 0 else R(D+8+4*t)
            a(f"v_mfma_f32_16x16x32_bf16 {R(D+4*t)}, {R(fr(0,t,st))}, {R(E3+4*st)}, {cr}")
            a(f"v_mfma_f32_16x16x32_bf16 {R(D+8+4*t)}, {R(fr(0,t,st))}, {R(E3+8+4*st)}, {ci}")
        for t in range(2):
            a(f"v_mfma_f32_16x16x32_bf16 {R(D+4*t)}, {R(fr(1,t,st))}, {R(N+4*st)}, {R(D+4*t)}")
            a(f"v_mfma_f32_16x16x32_bf16 {R(D+8+4*t)}, {R(fr(1,t,st))}, {R(E3+4*st)}, {R(D+8+4*t)}")
    a.wait_vm("t2")
    a("s_nop 7")
    cmul_tw(T2)
    pack("v_cvt_pk_bf16_f32", TMP + 8)
    VR, VI = TMP + 8, TMP + 12
    for r in range(4):
        a(f"v_xor_b32 v{N+r}, s48, v{VI+r}")
    a.wait_vm("e4")
    a("s_nop 1")
    for tp in range(2):
        a(f"v_mfma_f32_16x16x32_bf16 {R(D+4*tp)}, {R(E4+4*tp)}, {R(VR)}, 0")
        a(f"v_mfma_f32_16x16x32_bf16 {R(D+8+4*tp)}, {R(E4+8+4*tp)}, {R(VR)}, 0")
    for tp in range(2):
        a(f"v_mfma_f32_16x16x32_bf16 {R(D+4*tp)}, {R(E4+8+4*tp)}, {R(N)}, {R(D+4*tp)}")
        a(f"v_mfma_f32_16x16x32_bf16 {R(D+8+4*tp)}, {R(E4+4*tp)}, {R(VI)}, {R(D+8+4*tp)}")
    a(f"""
    v_lshlrev_b32 v5, 6, v3
    v_and_b32 v1, 1, v4
    v_lshl_add_u32 v5, v1, 5, v5
    v_lshrrev_b32 v1, 1, v4
    v_lshl_add_u32 v5, v1, 4, v5
    s_add_u32 s60, s60, {WS_Z - WS_Y}
    s_add_u32 s61, s61, {WS_Z - WS_Y}
    s_nop 3
    """)
    pack("v_cvt_pk_bf16_f32", TMP + 8)
    a("s_nop 1")
    for pl in range(2):
        b = TMP + 8 + pl*4
        a(f"v_permlane16_swap_b32 v{b}, v{b+2}")
        a(f"v_permlane16_swap_b32 v{b+1}, v{b+3}")
    for pl in range(2):
        b = TMP + 8 + pl*4
        a.vmem(f"buffer_store_dwordx4 v[{b}:{b+3}], v5, s[40:43], s{60+pl} offen sc1", "z")
    a.stamp()
    a.wait_vm_all()
    bar()
    a(f"""
    s_cmp_eq_u32 s13, 0
    s_cbranch_scc0 k23_nosig
    s_lshl_b32 s26, s2, 4
    s_add_u32 s26, s26, {WS_FL}
    v_mov_b32 v1, 1
    v_mov_b32 v7, 0
    s_mov_b64 exec, 1
    buffer_store_dword v1, v7, s[40:43], s26 offen sc1
    s_mov_b64 exec, -1
    k23_nosig:
    """)
    if os.environ.get("CSTAMP", "0") == "1": a.stamp_store(1)
    a.raw("k23_end:")
    a("s_endpgm")
    return a.text()

def tables_asm():
    o = []
    j = np.arange(512)
    c1 = bf16(np.cos(2*np.pi*j/512) / 16); c2 = bf16(np.cos(2*np.pi*j/512) / 8)
    c1[np.abs(np.cos(2*np.pi*j/512)) < 1e-9] = 0; c2[np.abs(np.cos(2*np.pi*j/512)) < 1e-9] = 0
    for i in range(512):
        o.append(f".set CA{i}, 0x{c1[i]:04x}")
        o.append(f".set CB{i}, 0x{c2[i]:04x}")
    o.append(".altmacro")
    o.append(""".macro f8 a,b,c,d,e,f,g,h
.short CA\\a, CA\\b, CA\\c, CA\\d, CA\\e, CA\\f, CA\\g, CA\\h
.endm
.macro g8 a,b,c,d,e,f,g,h
.short CB\\a, CB\\b, CB\\c, CB\\d, CB\\e, CB\\f, CB\\g, CB\\h
.endm
.macro g8s a,b,c,d,e,f,g,h
.short CA\\a, CA\\b, CB\\c, CB\\d, CB\\e, CB\\f, CB\\g, CB\\h
.endm
.macro frow d
f8 0, %((\\d*256)&511), %((\\d*1)&511), %((\\d+128)&511), %((\\d*2)&511), %((\\d*2+128)&511), %((\\d*3)&511), %((\\d*3+128)&511)
.set kk, 4
.rept 63
f8 %((\\d*kk)&511), %((\\d*kk+128)&511), %((\\d*(kk+1))&511), %((\\d*(kk+1)+128)&511), %((\\d*(kk+2))&511), %((\\d*(kk+2)+128)&511), %((\\d*(kk+3))&511), %((\\d*(kk+3)+128)&511)
.set kk, kk+4
.endr
.endm
.section .rodata,"a"
.p2align 8
tab_F:
.set dd, 0
.rept 512
frow %dd
.set dd, dd+1
.endr
""")
    o.append(""".macro glane d, k
g8 %((\\d*\\k)&511), %((\\d*\\k+128)&511), %((\\d*(\\k+1))&511), %((\\d*(\\k+1)+128)&511), %((\\d*(\\k+4))&511), %((\\d*(\\k+4)+128)&511), %((\\d*(\\k+5))&511), %((\\d*(\\k+5)+128)&511)
.endm
.macro glane0 d
g8s 0, %((\\d*256)&511), %((\\d*1)&511), %((\\d+128)&511), %((\\d*4)&511), %((\\d*4+128)&511), %((\\d*5)&511), %((\\d*5+128)&511)
.endm
.macro ghalf d0, k
.set ll, 0
.rept 32
glane %(\\d0+ll), \\k
.set ll, ll+1
.endr
.endm
.macro ghalf0 d0
.set ll, 0
.rept 32
glane0 %(\\d0+ll)
.set ll, ll+1
.endr
.endm
.macro gtile d0
ghalf0 \\d0
ghalf \\d0, 2
.set gg, 1
.rept 31
ghalf \\d0, %(8*gg)
ghalf \\d0, %(8*gg+2)
.set gg, gg+1
.endr
.endm
.p2align 8
tab_G:
.set tt, 0
.rept 16
gtile %(32*tt)
.set tt, tt+1
.endr
.noaltmacro
.p2align 8
tab_S:
""")
    st = small_tables().view(np.uint64)
    for i in range(0, len(st), 8):
        o.append(".quad " + ",".join(f"0x{v:x}" for v in st[i:i+8]))
    return "\n".join(o) + "\n"

hdr = """; fused LN + GFNet spectral filter + ReGLU, 2 launches
; @launch kernel=k1_kernel grid=(256,1,1) block=(512,1,1) lds=163840
; @launch kernel=k23_kernel grid=(256,1,1) block=(512,1,1) lds=163840
.amdgcn_target "amdgcn-amd-amdhsa--gfx950"
.text
.globl k1_kernel
.type k1_kernel,@function
.globl k23_kernel
.type k23_kernel,@function
"""
src = hdr + gen_k1() + gen_k23_main() + "code_end:\n" + tables_asm()
src += '.section .rodata,"a"\n.p2align 6\n' + kd("k1_kernel", 256) + ".p2align 6\n" + kd("k23_kernel", 256)
open(OUT, "w").write(src)
print("wrote", OUT, len(src))
```

```python
import numpy as np, sys, math

OUT = sys.argv[1] if len(sys.argv) > 1 else "recurrent_scan__spectral_gfnet__glu_gated_reglu__prompt.s"

WS_H = 0
WS_Y = 8 << 20
WS_Z = 10 << 20
WS_W = 12 << 20
WS_SIZE = 268435456
WS_FL = 15 << 20

def bf16(x):
    u = np.asarray(x, np.float32).view(np.uint32).astype(np.uint64)
    r = ((u + 0x7fff + ((u >> 16) & 1)) >> 16).astype(np.uint16)
    return r
def f16(x):
    return np.asarray(x, np.float64).astype(np.float16).view(np.uint16)

import os
STAMP = os.environ.get("STAMP", "0") == "1"
WS_ST = 16 << 20
class Asm:
    def __init__(self):
        self.lines = []
        self.vm = []
        self.nst = 0
        self.issued = set()
        self.lq = []
        self.sb = 74
        self.maxst = 14
    def stamp(self):
        if not STAMP or self.nst >= self.maxst: return
        self(f"s_memtime s[{self.sb+2*self.nst}:{self.sb+1+2*self.nst}]")
        self("s_waitcnt lgkmcnt(0)")
        self.lq = []
        self.nst += 1
    def stamp_store(self, kidx, wavereg="s3"):
        if not STAMP: return
        self("s_waitcnt lgkmcnt(0)")
        self(f"s_lshl_b32 s62, s2, 4")
        self(f"s_add_u32 s62, s62, {wavereg}")
        self(f"s_lshl_b32 s62, s62, 7")
        self(f"s_add_u32 s62, s62, {WS_ST + kidx*(1<<20)}")
        self("v_mov_b32 v0, 0")
        for i in range(self.nst):
            self(f"v_mov_b32 v1, s{self.sb+2*i}")
            self(f"buffer_store_dword v1, v0, s[40:43], s62 offen offset:{4*i}")
    def __call__(self, s):
        for ln in s.strip("\n").split("\n"):
            self.lines.append("  " + ln.strip() if not ln.strip().endswith(":") else ln.strip())
    def raw(self, s):
        self.lines.append(s)
    def vmem(self, s, tag):
        self(s); self.vm.append(tag); self.issued.add(tag)
        assert len(self.vm) <= 63, "vmcnt overflow"
    def wait_vm(self, tag):
        assert tag in self.issued, tag
        if tag not in self.vm: return
        idx = max(i for i, t in enumerate(self.vm) if t == tag)
        n = len(self.vm) - 1 - idx
        self(f"s_waitcnt vmcnt({n})")
        self.vm = self.vm[idx + 1:]
    def lds(self, s, tag):
        self(s); self.lq.append(tag)
    def wait_lds(self, tag):
        if tag not in self.lq: return
        idx = max(i for i, t in enumerate(self.lq) if t == tag)
        n = min(len(self.lq) - 1 - idx, 15)
        self(f"s_waitcnt lgkmcnt({n})")
        self.lq = self.lq[len(self.lq) - n:] if n else []
    def wait_lds_all(self):
        self("s_waitcnt lgkmcnt(0)"); self.lq = []
    def wait_vm_all(self):
        self("s_waitcnt vmcnt(0)"); self.vm = []
    def text(self):
        return "\n".join(self.lines) + "\n"

def srd(a, s, lo, hi, nbytes):
    a(f"s_mov_b32 s{s}, {lo}")
    a(f"s_mov_b32 s{s+1}, {hi}")
    a(f"s_mov_b32 s{s+2}, {nbytes}")
    a(f"s_mov_b32 s{s+3}, 0x20000")

def getpc_tab(a, s, sym):
    a(f"s_getpc_b64 s[{s}:{s+1}]")
    a(f"s_add_u32 s{s}, s{s}, {sym}@rel32@lo+4")
    a(f"s_addc_u32 s{s+1}, s{s+1}, {sym}@rel32@hi+12")

def kd(name, vgpr, sgpr=102):
    acc = min((vgpr + 3) // 4 * 4, 256)
    return f""".amdhsa_kernel {name}
  .amdhsa_next_free_vgpr {vgpr}
  .amdhsa_next_free_sgpr {sgpr}
  .amdhsa_accum_offset {acc}
  .amdhsa_group_segment_fixed_size 0
  .amdhsa_kernarg_size 80
  .amdhsa_user_sgpr_count 2
  .amdhsa_user_sgpr_kernarg_segment_ptr 1
  .amdhsa_system_sgpr_workgroup_id_x 1
.end_amdhsa_kernel
"""

K1_NS = 5
PREF = os.environ.get('PREF','1') == '1'
K1_PRE = int(os.environ.get('K1_PRE','2'))
CODEPF = int(os.environ.get('CODEPF','5'))
PFS = int(os.environ.get('PFS','16'))
BWARM = int(os.environ.get('BWARM','0'))
STP = os.environ.get('STP','sc1')
OSP = os.environ.get('OSP','')
BNREV = os.environ.get('BNREV','1') == '1'
X_NOP2 = os.environ.get('X_NOP2','0')=='1'
X_NODMA = os.environ.get('X_NODMA','0')=='1'
X_NOBAR = os.environ.get('X_NOBAR','0')=='1'
def gen_k1():
    a = Asm()
    A0 = 128; ACC = 64; BF = 32
    PT = 24
    VD, VNM, VVAR, VPF, VPG, VFA, VFL = 1, 7, 8, 9, 10, 11, 3
    TR = 16
    PFD = 12
    a.raw(".p2align 8\nk1_kernel:")
    a("""
    s_cmp_ge_u32 s2, 256
    s_cbranch_scc1 k1_end
    s_load_dwordx2 s[4:5], s[0:1], 0
    s_load_dwordx4 s[8:11], s[0:1], 8
    s_load_dwordx4 s[12:15], s[0:1], 32
    s_load_dwordx2 s[6:7], s[0:1], 72
    s_load_dwordx2 s[60:61], s[0:1], 48
    v_lshrrev_b32 v1, 6, v0
    v_and_b32 v2, 63, v0
    s_nop 0
    v_readfirstlane_b32 s3, v1
    """)
    XM = int(os.environ.get("K1_XM", "8"))
    lg = {8: 3, 4: 2, 2: 1}[XM]
    nxm = 16 // XM
    lgx = {2: 1, 4: 2, 8: 3}[nxm]
    a(f"""
    s_and_b32 s16, s2, 7
    s_lshr_b32 s17, s2, 3
    s_and_b32 s18, s16, {nxm-1}
    s_lshl_b32 s18, s18, {lg}
    s_and_b32 s58, s17, {XM-1}
    s_add_u32 s18, s18, s58
    s_lshr_b32 s19, s16, {lgx}
    s_lshl_b32 s19, s19, {5-lg}
    s_lshr_b32 s20, s17, {lg}
    s_add_u32 s19, s19, s20
    s_lshl_b32 s59, s20, {lg-1}
    s_lshl_b32 s58, s58, {3-lg}
    {"s_sub_u32 s19, 15, s19" if BNREV else "s_nop 0"}
    s_and_b32 s20, s3, 3
    s_lshr_b32 s21, s3, 2
    s_lshl_b32 s22, s18, 2
    s_add_u32 s22, s22, s20
    v_lshlrev_b32 v{VPF}, 4, v2
    """)
    if CODEPF:
        getpc_tab(a, 64, "k1_kernel")
        a(f"""
        s_mov_b32 s66, code_end-k1_kernel
        s_mov_b32 s67, 0x20000
        s_lshl_b32 s57, s17, 1
        s_add_u32 s57, s57, s3
        s_lshl_b32 s57, s57, 10
        s_cmp_lt_u32 s3, 2
        s_cselect_b32 s57, s57, 0x7f000000
        """)
        a.vmem(f"buffer_load_dwordx4 v[{PFD}:{PFD+3}], v{VPF}, s[64:67], s57 offen", "cpf")
    getpc_tab(a, 24, "tab_F")
    a("""
    s_lshl_b32 s50, s21, 4
    s_lshl_b32 s51, s50, 6
    s_add_u32 s51, s51, s22
    s_lshl_b32 s51, s51, 10
    s_lshl_b32 s52, s20, 5
    s_add_u32 s52, s52, s50
    s_lshl_b32 s52, s52, 10
    s_lshl_b32 s53, s58, 3
    v_xor_b32 v3, s53, v2
    s_waitcnt lgkmcnt(0)
    """)
    a.stamp()
    srd(a, 28, "s4", "s5", 2048*1024)
    for u in range(16):
        a(f"""
        s_xor_b32 s54, s59, {u}
        v_xor_b32 v4, s54, v3
        v_lshlrev_b32 v4, 4, v4
        s_lshl_b32 s55, s54, 10
        s_add_u32 m0, s52, s55
        s_lshl_b32 s55, s54, 16
        s_add_u32 s53, s51, s55
        """)
        a.vmem("buffer_load_dwordx4 v4, s[28:31], s53 offen lds", "x")
    srd(a, 32, "s8", "s9", 2048*514)
    srd(a, 36, "s10", "s11", 2048*514)
    WL = ACC + 16
    a(f"""
    s_lshr_b32 s62, s2, 2
    s_lshl_b32 s62, s62, 2
    s_lshr_b32 s63, s3, 1
    s_add_u32 s62, s62, s63
    s_lshr_b32 s63, s62, 4
    s_lshl_b32 s63, s63, 7
    s_and_b32 s62, s62, 15
    s_add_u32 s63, s63, s62
    s_and_b32 s62, s3, 1
    s_lshl_b32 s62, s62, 4
    s_add_u32 s63, s63, s62
    s_mul_i32 s63, s63, 514
    s_and_b32 s62, s2, 3
    s_lshl_b32 s62, s62, 7
    s_add_u32 s63, s63, s62
    v_lshlrev_b32 v5, 1, v2
    """)
    for i in range(4):
        if i: a(f"s_add_u32 s63, s63, {32*514}")
        a.vmem(f"buffer_load_ushort v{WL+i}, v5, s[32:35], s63 offen", "w")
        a.vmem(f"buffer_load_ushort v{WL+4+i}, v5, s[36:39], s63 offen", "w")
    a(f"""
    v_mov_b32 v{WL+10}, 0x7fffff00
    s_cmp_eq_u32 s3, 7
    s_cbranch_scc0 k1_nosp1
    s_lshr_b32 s62, s2, 4
    s_lshl_b32 s62, s62, 7
    s_and_b32 s63, s2, 15
    s_add_u32 s62, s62, s63
    v_and_b32 v4, 3, v2
    v_lshlrev_b32 v4, 5, v4
    v_and_b32 v5, 4, v2
    v_lshl_add_u32 v4, v5, 2, v4
    v_add_u32 v4, s62, v4
    s_movk_i32 s63, 514
    v_mul_lo_u32 v5, v4, s63
    v_lshrrev_b32 v6, 3, v2
    v_cmp_eq_u32 vcc, 1, v6
    v_add_u32 v30, 512, v5
    s_nop 0
    v_cndmask_b32 v5, v30, v5, vcc
    v_mov_b32 v30, 0x7fffff00
    v_cmp_gt_u32 vcc, 24, v2
    s_nop 1
    v_cndmask_b32 v5, v30, v5, vcc
    buffer_load_ushort v{WL+8}, v5, s[32:35], 0 offen
    buffer_load_ushort v{WL+9}, v5, s[36:39], 0 offen
    v_sub_u32 v5, 2048, v4
    v_and_b32 v5, 2047, v5
    v_cmp_eq_u32 s[62:63], 0, v6
    s_nop 1
    v_cndmask_b32 v4, v5, v4, s[62:63]
    v_lshrrev_b32 v5, 7, v4
    v_lshlrev_b32 v5, 9, v5
    v_and_b32 v31, 15, v4
    v_lshl_add_u32 v5, v31, 5, v5
    v_and_b32 v31, 16, v4
    v_add_u32 v5, v5, v31
    v_bfe_u32 v31, v4, 5, 2
    v_lshl_add_u32 v5, v31, 2, v5
    v_lshl_add_u32 v5, v6, 13, v5
    v_add_u32 v5, {WS_W + 256*8192}, v5
    v_cndmask_b32 v{WL+10}, v30, v5, vcc
    k1_nosp1:
    """)
    srd(a, 40, "s6", "s7", WS_SIZE)
    a("""
    s_and_b32 s23, s3, 1
    s_cmp_eq_u32 s23, 0
    s_cselect_b32 s44, s12, s14
    s_cselect_b32 s45, s13, s15
    s_mov_b32 s46, 1835008
    s_mov_b32 s47, 0x20000
    s_movk_i32 s48, 3584
    s_lshl_b32 s49, s19, 8
    s_cmp_lt_u32 s19, 14
    s_cbranch_scc1 k1_isglu
    s_mov_b32 s44, s24
    s_mov_b32 s45, s25
    s_mov_b32 s46, 524288
    s_movk_i32 s48, 1024
    s_sub_u32 s49, s19, 14
    s_lshl_b32 s49, s49, 9
    s_lshl_b32 s50, s23, 8
    s_add_u32 s49, s49, s50
    k1_isglu:
    """)
    a(f"""
    v_lshrrev_b32 v8, 4, v2
    v_and_b32 v6, 15, v2
    v_lshrrev_b32 v6, 1, v6
    v_lshlrev_b32 v10, 1, v8
    v_xor_b32 v6, v6, v10
    v_lshlrev_b32 v6, 5, v6
    v_and_b32 v10, 1, v2
    v_lshlrev_b32 v10, 4, v10
    v_add_u32 v6, v6, v10
    v_mul_lo_u32 v8, v8, s48
    v_add_u32 v6, v6, v8
    v_add_u32 v{VD}, s49, v6
    s_lshr_b32 s50, s3, 1
    s_lshl_b32 s50, s50, 3
    s_mul_i32 s52, s50, s48
    s_lshl_b32 s53, s50, 8
    s_lshl_b32 s54, s23, 13
    s_add_u32 s53, s53, s54
    s_lshl_b32 s54, s48, 2
    s_lshl_b32 s55, s48, 5
    s_lshl_b32 s58, s58, 1
    """)
    RING = [8, 9, 0, 1, 2, 3, 4, 5, 6]
    SPARE = 7 * 16384
    a(f"v_add_u32 v22, s54, v{VD}")
    def dma_one(c, u):
        if u == 0:
            a(f"s_xor_b32 s56, s58, {c}")
            a("s_mul_i32 s56, s56, s55")
        a(f"s_add_u32 m0, s53, {RING[c % 9]*16384 + u*1024}")
        if u == 0: a("s_add_u32 s56, s56, s52")
        else: a("s_nop 0")
        a.vmem(f"buffer_load_dwordx4 v{VD if u == 0 else 22}, s[44:47], s56 offen lds", f"c{c}")
    a(f"""
    v_lshrrev_b32 v10, 4, v2
    v_and_b32 v6, 15, v2
    v_lshrrev_b32 v31, 2, v6
    v_and_b32 v6, 3, v6
    v_lshrrev_b32 v30, 1, v10
    v_lshlrev_b32 v30, 3, v30
    v_add_u32 v30, v30, v31
    v_lshlrev_b32 v30, 8, v30
    v_lshlrev_b32 v6, 3, v6
    v_add_u32 v30, v30, v6
    v_and_b32 v10, 1, v10
    v_lshlrev_b32 v10, 5, v10
    v_add_u32 v30, v30, v10
    s_lshl_b32 s57, s21, 1
    v_xor_b32 v10, s57, v31
    v_lshlrev_b32 v10, 6, v10
    v_add_u32 v{TR}, v30, v10
    s_add_u32 s57, s57, 1
    v_xor_b32 v10, s57, v31
    v_lshlrev_b32 v10, 6, v10
    v_add_u32 v{TR+1}, v30, v10
    v_add_u32 v{TR+2}, 0x10000, v{TR}
    v_add_u32 v{TR+3}, 0x10000, v{TR+1}
    v_add_u32 v{TR+4}, 0x20000, v{TR}
    v_add_u32 v{TR+5}, 0x20000, v{TR+1}
    v_and_b32 v10, 31, v2
    v_lshrrev_b32 v6, 5, v2
    v_and_b32 v31, 15, v2
    v_xor_b32 v6, v6, v31
    s_lshl_b32 s57, s20, 15
    v_lshlrev_b32 v10, 10, v10
    v_add_u32 v10, s57, v10
    """)
    for tt in range(8):
        a(f"v_xor_b32 v31, {2*tt}, v6")
        a(f"v_lshl_add_u32 v{ACC+tt}, v31, 4, v10")
    a(f"""
    s_mov_b32 s26, 0x3f803f80
    s_mov_b32 s27, 0xffff0000
    v_mov_b32 v24, 0
    v_mov_b32 v25, 0
    v_mov_b32 v26, 0
    v_mov_b32 v27, 0
    s_lshl_b32 s57, s21, 6
    """)
    a.stamp()
    a.wait_vm("x")
    a("s_barrier")
    a.stamp()
    for c in (0, 1):
        for u in range(2): dma_one(c, u)
    for c in range(2, 2 + BWARM):
        a(f"s_xor_b32 s56, s58, {c}")
        a("s_mul_i32 s56, s56, s55")
        a("s_add_u32 s56, s56, s52")
        a.vmem(f"buffer_load_dwordx4 v[{PFD}:{PFD+3}], v{VD}, s[44:47], s56 offen", "bw")
        a.vmem(f"buffer_load_dwordx4 v[{PFD}:{PFD+3}], v22, s[44:47], s56 offen", "bw")
    for t in range(32):
        a(f"ds_read_b128 v[{A0+4*t}:{A0+4*t+3}], v{ACC + t%8} offset:{(t//8)*256}")
    a.wait_vm("w")
    for i in range(4):
        a(f"v_lshl_or_b32 v{WL+12+i}, v{WL+4+i}, 16, v{WL+i}")
    a(f"""
    s_cmp_eq_u32 s3, 7
    s_cbranch_scc0 k1_nosp2
    v_lshl_or_b32 v{WL+8}, v{WL+9}, 16, v{WL+8}
    buffer_store_dword v{WL+8}, v{WL+10}, s[40:43], 0 offen
    v_mov_b32 v4, 0
    v_mov_b32 v5, 0x7fffff00
    v_cmp_eq_u32 vcc, 0, v2
    s_lshl_b32 s51, s2, 4
    s_add_u32 s51, s51, {WS_FL}
    v_cndmask_b32 v5, v5, v4, vcc
    buffer_store_dword v4, v5, s[40:43], s51 offen
    k1_nosp2:
    """)
    a("s_waitcnt lgkmcnt(14)")
    a("s_set_gpr_idx_on s57, gpr_idx(SRC0,SRC1)")
    for t in range(16):
        if t % 2 == 0 and t > 0:
            a(f"s_waitcnt lgkmcnt({max(14 - t, 0)})")
        for r in range(4):
            reg = A0 + 4*t + r
            a(f"v_dot2_f32_bf16 v{24 + r%2}, v{reg}, s26, v{24 + r%2}")
            a(f"v_dot2_f32_bf16 v{26 + r%2}, v{reg}, v{reg}, v{26 + r%2}")
    a("s_set_gpr_idx_off")
    a(f"""
    s_waitcnt lgkmcnt(0)
    s_barrier
    v_add_f32 v24, v24, v25
    v_add_f32 v25, v26, v27
    v_mov_b32 v26, v24
    v_mov_b32 v27, v25
    s_lshl_b32 s57, s3, 9
    s_add_u32 s57, s57, {SPARE + 4096}
    v_lshlrev_b32 v10, 3, v2
    v_permlane32_swap_b32 v24, v26
    v_permlane32_swap_b32 v25, v27
    v_add_u32 v10, s57, v10
    v_add_f32 v24, v24, v26
    v_add_f32 v25, v25, v27
    v_xor_b32 v6, 0x800, v10
    ds_write_b64 v10, v[24:25]
    s_lshl_b32 s57, s3, 2
    s_add_u32 s57, s57, {SPARE}
    v_mov_b32 v{VFA}, s57
    v_mov_b32 v{VPG}, 0
    ds_write_b32 v{VFA}, v{VPG}
    v_and_b32 v{VFL}, 7, v2
    v_xor_b32 v4, s3, v{VFL}
    v_lshlrev_b32 v4, 4, v4
    v_lshl_add_u32 v4, v2, 7, v4
    v_add_u32 v4, {SPARE + 8192}, v4
    ds_write_b128 v4, v[{WL+12}:{WL+15}]
    v_lshlrev_b32 v{VFL}, 2, v{VFL}
    v_add_u32 v{VFL}, {SPARE}, v{VFL}
    """)
    a.stamp()
    pend = [(c, u) for c in range(2, 16) for u in range(2)]
    for _ in range(2*K1_PRE): dma_one(*pend.pop(0))
    getpc_tab(a, 32, "tab_G")
    a(f"""
    s_mov_b32 s34, {524288 + TSZ}
    s_mov_b32 s28, s60
    s_mov_b32 s29, s61
    s_mov_b32 s30, {1792*1024}
    s_lshr_b32 s50, s2, 3
    s_lshl_b32 s50, s50, 3
    s_add_u32 s50, s50, s3
    s_mul_i32 s62, s50, 7168
    s_mul_i32 s63, s50, 3072
    v_lshrrev_b32 v4, 3, v2
    v_and_b32 v5, 7, v2
    v_xor_b32 v30, v4, v5
    v_lshlrev_b32 v30, 4, v30
    v_lshl_add_u32 v30, v4, 7, v30
    s_lshl_b32 s57, s3, 10
    s_add_u32 s57, s57, {SPARE + 8192}
    v_add_u32 v30, s57, v30
    v_lshlrev_b32 v5, 4, v5
    v_lshl_add_u32 v5, v4, 13, v5
    s_and_b32 s57, s2, 3
    s_lshl_b32 s57, s57, 3
    s_add_u32 s57, s57, s3
    s_lshl_b32 s57, s57, 16
    s_lshr_b32 s51, s2, 2
    s_lshl_b32 s51, s51, 7
    s_add_u32 s57, s57, s51
    s_add_u32 s51, s57, {WS_W}
    """)
    a.stamp()
    vm_save = list(a.vm); nst_save = a.nst; pend_save = list(pend)

    def p2(i, r):
        reg = A0 + i*4 + r
        t0, t1 = PT + 2*r, PT + 2*r + 1
        return [f"v_lshlrev_b32 v{t0}, 16, v{reg}", f"v_and_b32 v{t1}, s27, v{reg}",
                f"v_add_f32 v{t0}, v{VNM}, v{t0}", f"v_add_f32 v{t1}, v{VNM}, v{t1}",
                f"v_cvt_pk_bf16_f32 v{reg}, v{t0}, v{t1}"]
    def p2_sched(i):
        o = [p2(i, r) for r in range(4)]
        seq = [o[0][0], o[0][1], o[1][0], o[1][1], o[2][0],
               o[2][1], o[3][0], o[3][1], o[0][2], o[0][3],
               o[1][2], o[1][3], o[2][2], o[2][3], o[3][2],
               o[3][3], o[0][4], o[1][4], o[2][4], o[3][4]]
        return [seq[5*g:5*g+5] for g in range(4)]

    def mainloop(dft):
        a.vm = list(vm_save); a.nst = nst_save
        pend = list(pend_save)
        lab = "d" if dft else "g"
        def reads(i, buf):
            c, s_ = i // 2, i % 2
            pos = RING[c % 9] * 16384
            win, base = pos >> 16, pos & 0xffff
            for P in range(2):
                for T in range(2):
                    fr = BF + buf*16 + (P*2+T)*4
                    for t in range(2):
                        off = base + P*8192 + (16*s_ + 4*t)*256
                        a(f"ds_read_b64_tr_b16 v[{fr+2*t}:{fr+2*t+1}], v{TR+2*win+T} offset:{off}")
        def mfma(i, buf, tile):
            areg = A0 + 4*i
            fr = BF + buf*16 + tile*4
            acc = ACC + tile*16
            cin = "0" if i == 0 else f"v[{acc}:{acc+15}]"
            if dft:
                a(f"v_mfma_f32_32x32x16_bf16 v[{acc}:{acc+15}], v[{areg}:{areg+3}], v[{fr}:{fr+3}], {cin}")
            else:
                a(f"v_mfma_f32_32x32x16_bf16 v[{acc}:{acc+15}], v[{fr}:{fr+3}], v[{areg}:{areg+3}], {cin}")
        a.wait_vm("c1")
        a("s_waitcnt lgkmcnt(0)")
        a("s_barrier")
        a.stamp()
        a("ds_read_b64 v[26:27], v6")
        a(f"ds_read_b128 v[{WL}:{WL+3}], v30")
        reads(0, 0)
        a(f"""
        s_waitcnt lgkmcnt(8)
        v_add_f32 v24, v24, v26
        v_add_f32 v25, v25, v27
        v_mul_f32 v24, 0x3b000000, v24
        v_mul_f32 v25, 0x3b000000, v25
        v_fma_f32 v{VVAR}, -v24, v24, v25
        v_cvt_pk_bf16_f32 v27, v24, v24
        v_lshlrev_b32 v27, 16, v27
        v_sub_f32 v{VNM}, 0, v27
        v_mul_f32 v29, v24, v24
        v_mul_f32 v30, 0x43800000, v{VVAR}
        v_cmp_gt_f32 vcc, v29, v30
        """)
        a.vmem(f"buffer_store_dwordx4 v[{WL}:{WL+3}], v5, s[40:43], s51 offen {STP}", "ws")
        a(f"""
        s_cbranch_vccz k1_fast{lab}
        v_mov_b32 v28, 0
        v_mov_b32 v29, 0
        s_mov_b32 s56, 0
        k1_slow{lab}:
        s_set_gpr_idx_on s56, gpr_idx(SRC1)
        v_lshlrev_b32 v30, 16, v{A0}
        v_and_b32 v31, s27, v{A0}
        s_set_gpr_idx_off
        v_add_f32 v30, v{VNM}, v30
        v_add_f32 v31, v{VNM}, v31
        v_fma_f32 v28, v30, v30, v28
        v_fma_f32 v29, v31, v31, v29
        s_add_u32 s56, s56, 1
        s_cmp_lt_u32 s56, 128
        s_cbranch_scc1 k1_slow{lab}
        v_add_f32 v28, v28, v29
        v_mov_b32 v29, v28
        v_sub_f32 v26, v24, v27
        s_nop 0
        v_permlane32_swap_b32 v28, v29
        v_add_f32 v28, v28, v29
        v_mul_f32 v28, 0x3b000000, v28
        v_fma_f32 v{VVAR}, -v26, v26, v28
        k1_fast{lab}:
        """)
        for g in p2_sched(0):
            for ins in g: a(ins)
        a.stamp()
        limit = 8
        npf = 0
        for i in range(32):
            c, s_ = i // 2, i % 2
            buf = i & 1
            if s_ == 0:
                if c >= 1 and c < 15: a(f"ds_read_b32 v0, v{VFL}")
                reads(i + 1, buf ^ 1)
                a("s_waitcnt lgkmcnt(8)")
                if c + 2 < 16:
                    assert not pend or pend[0][0] > c + 2
                    a.wait_vm(f"c{c+2}")
                    a(f"v_mov_b32 v{VPG}, {c+1}")
                    a(f"ds_write_b32 v{VFA}, v{VPG}")
            else:
                if i + 1 < 32:
                    if c >= 1:
                        a(f"""
                        k1_spin{lab}{c}:
                        v_cmp_gt_u32 vcc, {c}, v0
                        s_cbranch_vccz k1_ok{lab}{c}
                        ds_read_b32 v0, v{VFL}
                        s_waitcnt lgkmcnt(0)
                        s_branch k1_spin{lab}{c}
                        k1_ok{lab}{c}:
                        """)
                        limit = c + 7
                    reads(i + 1, buf ^ 1)
                    a("s_waitcnt lgkmcnt(8)")
                else:
                    a("s_waitcnt lgkmcnt(0)")
            groups = p2_sched(i + 1) if (i + 1 < 32 and not X_NOP2) else [[], [], [], []]
            for tile in range(4):
                mfma(i, buf, tile)
                for ins in groups[tile]: a(ins)
                if tile in (0, 2) and pend and pend[0][0] <= limit:
                    dma_one(*pend.pop(0))
                if PREF and tile == 1 and i >= PFS and npf < 10:
                    if npf < 7:
                        a.vmem(f"buffer_load_dwordx4 v[{PFD}:{PFD+3}], v{VPF}, s[28:31], s62 offen offset:{(npf % 4)*1024}", "pf")
                        if npf == 3: a("s_add_u32 s62, s62, 4096")
                    else:
                        a.vmem(f"buffer_load_dwordx4 v[{PFD}:{PFD+3}], v{VPF}, s[32:35], s63 offen offset:{(npf-7)*1024}", "pf")
                    npf += 1
            if i % 8 == 7 and i < 31: a.stamp()
        assert not pend
        a(f"""
        v_max_f32 v28, 0, v{VVAR}
        v_cvt_pk_bf16_f32 v28, v28, v28
        v_lshlrev_b32 v28, 16, v28
        v_add_f32 v28, 0x3727c5ac, v28
        v_cvt_pk_bf16_f32 v28, v28, v28
        v_lshlrev_b32 v28, 16, v28
        v_sqrt_f32 v28, v28
        s_nop 0
        v_cvt_pk_bf16_f32 v28, v28, v28
        v_lshlrev_b32 v28, 16, v28
        v_rcp_f32 v11, v28
        s_nop 4
        """)
        a.stamp()
    a("""
    s_cmp_lt_u32 s19, 14
    s_cbranch_scc0 k1_dft
    """)
    mainloop(False)
    a(f"""
    s_mul_i32 s50, s22, 112
    s_lshl_b32 s51, s19, 3
    s_add_u32 s50, s50, s51
    s_lshl_b32 s51, s21, 2
    s_add_u32 s50, s50, s51
    s_lshl_b32 s50, s50, 10
    s_add_u32 s50, s50, {WS_H}
    v_lshlrev_b32 v3, 4, v2
    v_mov_b32 v10, v11
    """)
    for T in range(2):
        G = ACC + T*16; U = ACC + 32 + T*16
        O = BF + T*8; Q = A0 + T*16
        for p in range(8):
            a(f"v_pk_mul_f32 v[{G+2*p}:{G+2*p+1}], v[{G+2*p}:{G+2*p+1}], v[10:11]")
            a(f"v_pk_mul_f32 v[{U+2*p}:{U+2*p+1}], v[{U+2*p}:{U+2*p+1}], v[10:11]")
        for p in range(16):
            a(f"v_max_f32 v{G+p}, 0, v{G+p}")
        for p in range(8):
            a(f"v_cvt_pk_bf16_f32 v{Q+p}, v{G+2*p}, v{G+2*p+1}")
            a(f"v_cvt_pk_bf16_f32 v{Q+8+p}, v{U+2*p}, v{U+2*p+1}")
        for p in range(8):
            a(f"v_lshlrev_b32 v{G+2*p}, 16, v{Q+p}")
            a(f"v_and_b32 v{G+2*p+1}, s27, v{Q+p}")
            a(f"v_lshlrev_b32 v{U+2*p}, 16, v{Q+8+p}")
            a(f"v_and_b32 v{U+2*p+1}, s27, v{Q+8+p}")
        for p in range(8):
            a(f"v_pk_mul_f32 v[{G+2*p}:{G+2*p+1}], v[{G+2*p}:{G+2*p+1}], v[{U+2*p}:{U+2*p+1}]")
        for p in range(8):
            a(f"v_cvt_pk_bf16_f32 v{O+p}, v{G+2*p}, v{G+2*p+1}")
        a(f"buffer_store_dwordx4 v[{O}:{O+3}], v3, s[40:43], s50 offen offset:{T*2048} {STP}")
        a(f"buffer_store_dwordx4 v[{O+4}:{O+7}], v3, s[40:43], s50 offen offset:{T*2048+1024} {STP}")
    a.stamp()
    if STAMP: a("s_waitcnt vmcnt(0)")
    a.stamp()
    a.stamp_store(0)
    a("s_endpgm")
    a.raw("k1_dft:")
    mainloop(True)
    a("""
    v_lshrrev_b32 v3, 5, v2
    v_lshlrev_b32 v3, 4, v3
    """)
    for i in range(16):
        a(f"v_add_u32 v4, {4*(8*(i>>2) + (i&3))}, v3")
        a(f"ds_bpermute_b32 v{BF+i}, v4, v11")
    a(f"""
    v_and_b32 v4, 31, v2
    v_lshrrev_b32 v5, 5, v2
    s_lshl_b32 s50, s20, 2
    v_add_u32 v5, s50, v5
    v_and_b32 v6, 15, v2
    v_xor_b32 v5, v5, v6
    v_lshlrev_b32 v5, 4, v5
    v_lshl_add_u32 v5, v4, 8, v5
    s_lshl_b32 s50, s21, 14
    v_add_u32 v5, s50, v5
    v_xor_b32 v6, 32, v5
    s_waitcnt lgkmcnt(0)
    s_barrier
    """)
    for P in range(2):
        for T in range(2):
            acc = ACC + (P*2+T)*16
            for p in range(8):
                a(f"v_pk_mul_f32 v[{acc+2*p}:{acc+2*p+1}], v[{acc+2*p}:{acc+2*p+1}], v[{BF+2*p}:{BF+2*p+1}]")
            O = A0 + 32 + (P*2+T)*8
            for p in range(8):
                a(f"v_cvt_pk_f16_f32 v{O+p}, v{acc+2*p}, v{acc+2*p+1}")
            a("s_nop 1")
            for q in (0, 2):
                a(f"v_permlane32_swap_b32 v{O+2*q}, v{O+2*q+2}")
                a(f"v_permlane32_swap_b32 v{O+2*q+1}, v{O+2*q+3}")
            a(f"ds_write_b128 v5, v[{O}:{O+3}] offset:{(128*P + 32*T)*256}")
            a(f"ds_write_b128 v6, v[{O+4}:{O+7}] offset:{(128*P + 32*T)*256}")
    a(f"""
    v_lshrrev_b32 v4, 4, v2
    v_and_b32 v5, 15, v2
    s_lshl_b32 s50, s3, 13
    v_lshlrev_b32 v3, 4, v5
    v_lshl_add_u32 v3, v4, 12, v3
    v_xor_b32 v5, v5, v4
    v_lshlrev_b32 v4, 8, v4
    v_add_u32 v4, s50, v4
    s_sub_u32 s50, s19, 14
    s_lshl_b32 s50, s50, 8
    s_lshl_b32 s51, s3, 5
    s_add_u32 s50, s50, s51
    s_lshl_b32 s50, s50, 12
    s_lshl_b32 s51, s18, 8
    s_add_u32 s50, s50, s51
    s_add_u32 s50, s50, {WS_Y}
    """)
    for j in range(4):
        a(f"v_xor_b32 v6, {4*j}, v5")
        a(f"v_lshl_add_u32 v{16+j}, v6, 4, v4")
    a("s_waitcnt lgkmcnt(0)")
    a("s_barrier")
    for j in range(8):
        a(f"ds_read_b128 v[{ACC+4*j}:{ACC+4*j+3}], v{16 + j%4} offset:{j*1024}")
    for j in range(8):
        a(f"s_waitcnt lgkmcnt({7-j})")
        a(f"buffer_store_dwordx4 v[{ACC+4*j}:{ACC+4*j+3}], v3, s[40:43], s50 offen {STP}")
        a("s_add_u32 s50, s50, 16384")
    a.stamp()
    if STAMP: a("s_waitcnt vmcnt(0)")
    a.stamp()
    a.stamp_store(0)
    a.raw("k1_end:")
    a("s_endpgm")
    return a.text()

TE1, TE2, TE3, TE4, TT1, TT2, TSZ = 0, 4096, 20480, 36864, 40960, 49152, 57344
def small_tables():
    buf = np.zeros(TSZ // 2, np.uint16)
    l = np.arange(64); c = l % 16; g = l // 16; j = np.arange(8)
    for t in range(2):
        ang = -2*np.pi*((8*g[:,None]+j[None,:])*(16*t+c)[:,None] % 32)/32
        buf[(TE1 + (0*2+t)*1024)//2:][:512] = f16(np.cos(ang)/8).ravel()
        buf[(TE1 + (1*2+t)*1024)//2:][:512] = f16(np.sin(ang)/8).ravel()
    for w in range(4):
        for st in range(2):
            ang = -2*np.pi*((32*st+8*g[:,None]+j[None,:])*(16*w+c)[:,None] % 64)/64
            buf[(TE2 + ((w*2+0)*2+st)*1024)//2:][:512] = f16(np.cos(ang)/8).ravel()
            buf[(TE2 + ((w*2+1)*2+st)*1024)//2:][:512] = f16(np.sin(ang)/8).ravel()
            buf[(TE3 + ((w*2+0)*2+st)*1024)//2:][:512] = bf16(np.cos(-ang)/8).ravel()
            buf[(TE3 + ((w*2+1)*2+st)*1024)//2:][:512] = bf16(np.sin(-ang)/8).ravel()
    sig = 16*(j[None,:]//4) + 4*g[:,None] + (j[None,:] % 4)
    for tp in range(2):
        ang = 2*np.pi*((sig*(16*tp+c)[:,None]) % 32)/32
        buf[(TE4 + (0*2+tp)*1024)//2:][:512] = bf16(np.cos(ang)/8).ravel()
        buf[(TE4 + (1*2+tp)*1024)//2:][:512] = bf16(np.sin(ang)/8).ravel()
    for w in range(4):
        for e in range(8):
            t, i = e // 4, e % 4
            a1 = -2*np.pi*(((16*w+4*g+i)*(16*t+c)) % 2048)/2048
            a2 = 2*np.pi*(((16*w+c)*(16*t+4*g+i)) % 2048)/2048
            for (base, an) in ((TT1, a1), (TT2, a2)):
                o = (base + (w*2 + e//4)*1024)//2 + l*8 + (e % 4)*2
                buf[o] = f16(np.cos(an)); buf[o+1] = f16(np.sin(an))
    return buf

K3_NS = 5
CSTR = int(os.environ.get('CSTR','2'))
NUP = int(os.environ.get('NUP','16'))
ZSC = os.environ.get('ZSC','sc1')
GLAG = int(os.environ.get('GLAG','5'))
ZMIN = int(os.environ.get('ZMIN','40'))
POLLD = int(os.environ.get('POLLD','5'))
HDIST = int(os.environ.get('HDIST','12'))
ZSTART = int(os.environ.get('ZSTART','28'))
ZTAIL = int(os.environ.get('ZTAIL','0'))
NIDLE = int(os.environ.get('NIDLE','2'))
NZB = int(os.environ.get('NZB','1'))
LOADALL = os.environ.get('LOADALL','1') == '1'
CPRIO = int(os.environ.get('CPRIO','2'))
LATEC = int(os.environ.get('LATEC','1'))
def gen_k23_main():
    a = Asm()
    a.raw(".p2align 8\nk23_kernel:")
    a("""
    s_cmp_ge_u32 s2, 256
    s_cbranch_scc1 k23_end
    s_load_dwordx2 s[4:5], s[0:1], 0
    s_load_dwordx4 s[8:11], s[0:1], 48
    s_load_dwordx2 s[14:15], s[0:1], 72
    v_lshrrev_b32 v1, 6, v0
    v_and_b32 v2, 63, v0
    s_nop 0
    v_readfirstlane_b32 s3, v1
    v_and_b32 v3, 15, v2
    v_lshrrev_b32 v4, 4, v2
    s_mov_b32 s48, 0x80008000
    s_mov_b32 s49, 0xffff0000
    s_cmp_ge_u32 s3, 4
    s_cbranch_scc1 k23_conv
    """)
    SB = 131072
    NCB = 5 + NIDLE + NZB
    getpc_tab(a, 24, "tab_G")
    srd(a, 44, "s24", "s25", 524288)
    if os.environ.get("K3_MAP", "1") == "0":
        a("""
    s_and_b32 s16, s2, 7
    s_lshr_b32 s17, s2, 3
    s_lshr_b32 s18, s16, 1
    s_lshl_b32 s18, s18, 3
    s_and_b32 s19, s17, 7
    s_add_u32 s18, s18, s19
    s_lshl_b32 s58, s19, 1
    s_and_b32 s19, s16, 1
    s_lshl_b32 s19, s19, 2
    s_lshr_b32 s20, s17, 3
    s_add_u32 s19, s19, s20
    s_lshl_b32 s20, s20, 2
    s_add_u32 s58, s58, s20
    """)
    else:
        a("""
    s_and_b32 s16, s2, 7
    s_lshr_b32 s17, s2, 3
    s_lshl_b32 s18, s16, 2
    s_and_b32 s19, s17, 3
    s_add_u32 s18, s18, s19
    s_lshl_b32 s58, s19, 2
    s_lshr_b32 s19, s17, 2
    s_lshl_b32 s20, s19, 1
    s_add_u32 s58, s58, s20
    """)
    a.sb = 92; a.maxst = 5
    XR = 8; PV = 16; VO, VF, VW, VZ, VH = 20, 21, 22, 23, 24
    VPG, VFA, VFL, VFV = 25, 26, 27, 28
    TRW = 29
    TRZ = 37
    GFR = 39
    VW2, VZ2 = 41, 42
    ACG, ACS = 44, 60
    FB = 76
    HB = 136; NHB = 28
    PW = SB + 28672
    NCH = 36
    a(f"""
    s_cmp_ge_u32 s58, 14
    s_cselect_b32 s20, 14, 0
    s_sub_u32 s58, s58, s20
    s_lshl_b32 s58, s58, 1
    s_add_u32 s12, s18, s19
    s_and_b32 s12, s12, 7
    s_and_b32 s20, s3, 1
    s_lshr_b32 s21, s3, 1
    s_lshl_b32 s22, s18, 1
    s_add_u32 s22, s22, s21
    v_lshlrev_b32 v{VF}, 4, v2
    v_lshrrev_b32 v6, 3, v2
    v_and_b32 v5, 7, v2
    v_lshrrev_b32 v5, 1, v5
    v_lshrrev_b32 v1, 1, v6
    v_xor_b32 v5, v5, v1
    v_lshlrev_b32 v5, 5, v5
    v_and_b32 v1, 1, v2
    v_lshl_add_u32 v5, v1, 4, v5
    v_lshl_add_u32 v{VW}, v6, 10, v5
    v_lshl_add_u32 v{VZ}, v6, 12, v5
    s_lshl_b32 s27, s19, 7
    v_add_u32 v{VW}, s27, v{VW}
    s_lshl_b32 s27, s18, 7
    s_add_u32 s27, s27, {WS_Z}
    v_add_u32 v{VZ}, s27, v{VZ}
    v_add_u32 v{VW2}, 8192, v{VW}
    v_add_u32 v{VZ2}, 32768, v{VZ}
    v_lshlrev_b32 v{VH}, 9, v4
    v_lshl_add_u32 v{VH}, v3, 4, v{VH}
    s_mul_i32 s50, s22, 112
    s_lshl_b32 s50, s50, 10
    s_lshl_b32 s27, s20, 8
    s_add_u32 s50, s50, s27
    s_add_u32 s50, s50, {WS_H}
    s_lshl_b32 s51, s19, 1
    s_add_u32 s51, s51, s21
    s_lshl_b32 s51, s51, 5
    s_lshl_b32 s27, s20, 1
    s_add_u32 s51, s51, s27
    s_lshl_b32 s51, s51, 10
    s_lshl_b32 s52, s3, 11
    s_lshl_b32 s54, s3, 14
    s_lshl_b32 s55, s3, 16
    s_mov_b32 s59, {WS_FL}
    s_lshl_b32 s27, s3, 2
    s_add_u32 s27, s27, {PW}
    v_mov_b32 v{VFA}, s27
    v_mov_b32 v{VPG}, 0
    v_and_b32 v{VFL}, 3, v2
    v_lshlrev_b32 v{VFL}, 2, v{VFL}
    v_add_u32 v{VFL}, {PW}, v{VFL}
    ds_write_b32 v{VFA}, v{VPG}
    s_waitcnt lgkmcnt(0)
    """)
    a.stamp()
    srd(a, 40, "s14", "s15", WS_SIZE)
    srd(a, 32, "s8", "s9", 1792*1024)
    isd = lambda c: c < 28
    upos = {}; p_ = 0
    for c in range(NCH):
        upos[c] = p_ % 16; p_ += 1 if isd(c) else 2
    ustart = {}; p_ = 0
    for c in range(NCH):
        ustart[c] = p_; p_ += 1 if isd(c) else 2
    uend = lambda c: ustart[c] + (1 if isd(c) else 2)
    a(f"""
    v_add_u32 v{VW}, s54, v{VW}
    v_add_u32 v{VW2}, s54, v{VW2}
    v_add_u32 v43, s50, v{VH}
    s_lshl_b32 s64, s58, 12
    """)
    def tab(c):
        a(f"s_add_u32 s{64+c}, s{63+c}, 4096")
        a(f"s_cmp_eq_u32 s{64+c}, {28*4096}")
        a(f"s_cselect_b32 s{64+c}, 0, s{64+c}")
    def dma_one(c, u):
        if isd(c):
            a(f"s_add_u32 m0, s52, {upos[c]*8192 + u*1024}")
            if u == 0: a(f"s_lshl_b32 s63, s{64+c}, 4")
            else: a("s_nop 0")
            a.vmem(f"buffer_load_dwordx4 v{VW if u == 0 else VW2}, s[32:35], s63 offen lds", f"c{c}")
            return
        if u == 0:
            a(f"s_xor_b32 s57, s12, {c-28}")
            a(f"s_lshl_b32 s62, s57, 12"); a(f"s_add_u32 s62, s62, s51")
            a(f"s_lshl_b32 s63, s57, 18"); a(f"s_add_u32 s63, s63, s55")
        if u < 2:
            a(f"s_add_u32 m0, s52, {upos[c]*8192 + u*1024}")
            a("s_nop 0")
            a.vmem(f"buffer_load_dwordx4 v{VZ if u == 0 else VZ2}, s[40:43], s63 offen {ZSC} lds", f"c{c}")
        else:
            if u == 2:
                a(f"s_add_u32 m0, s52, {((upos[c]+1) % 16)*8192}")
                a("s_nop 0")
            else:
                a(f"s_add_u32 m0, s52, {((upos[c]+1) % 16)*8192}")
                a("s_nop 0")
            a.vmem(f"buffer_load_dwordx4 v{VF}, s[44:47], s62 offen offset:{(u-2)*1024} lds", f"c{c}")
    def hload(j):
        c, s_ = j // 2, j % 2
        hb = HB + (j % NHB) * 4
        a.vmem(f"buffer_load_dwordx4 v[{hb}:{hb+3}], v43, s[40:43], s{64+c} offen offset:{s_*2048}", f"h{j}")
    tab(1)
    pend = [(c, u) for c in range(NCH) for u in range(2 if isd(c) else 4)]
    hp = [0]
    for c in range(2):
        for u in range(2): dma_one(*pend.pop(0))
        for _ in range(2): hload(hp[0]); hp[0] += 1
    for c in range(2, 28): tab(c)
    a("s_barrier")
    for c in range(NUP // 4):
        for u in range(2): dma_one(*pend.pop(0))
        for _ in range(2): hload(hp[0]); hp[0] += 1
    srd(a, 36, "s10", "s11", 2048*1024)
    srd(a, 28, "s4", "s5", 2048*1024)
    a(f"""
    v_lshrrev_b32 v{PV}, 2, v3
    v_and_b32 v{PV+1}, 3, v3
    v_lshrrev_b32 v{PV+2}, 1, v4
    v_lshlrev_b32 v{PV+2}, 4, v{PV+2}
    v_and_b32 v{PV+3}, 1, v4
    v_lshl_add_u32 v{PV+2}, v{PV+3}, 2, v{PV+2}
    v_add_u32 v{PV+2}, v{PV+2}, v{PV}
    v_lshlrev_b32 v{PV+2}, 7, v{PV+2}
    v_lshl_add_u32 v{PV+2}, v{PV+1}, 3, v{PV+2}
    v_lshrrev_b32 v{PV}, 1, v{PV}
    v_lshl_add_u32 v{PV}, v{PV+3}, 1, v{PV}
    """)
    for dt in range(4):
        a(f"v_xor_b32 v{PV+1}, {dt}, v{PV}")
        a(f"v_lshl_add_u32 v{TRW+dt}, v{PV+1}, 5, v{PV+2}")
        a(f"v_add_u32 v{TRW+4+dt}, 0x10000, v{TRW+dt}")
    a(f"""
    v_xor_b32 v{PV+1}, s3, v{PV}
    v_lshl_add_u32 v{TRZ}, v{PV+1}, 5, v{PV+2}
    v_add_u32 v{TRZ+1}, 0x10000, v{TRZ}
    v_mov_b32 v{GFR}, v{VH}
    v_add_u32 v{GFR+1}, 0x10000, v{VH}
    v_lshrrev_b32 v1, 3, v2
    v_and_b32 v{VO}, 7, v2
    v_lshlrev_b32 v{VO}, 4, v{VO}
    v_lshl_add_u32 v{VO}, v1, 16, v{VO}
    s_lshl_b32 s23, s22, 10
    s_lshl_b32 s26, s19, 7
    s_add_u32 s23, s23, s26
    s_lshl_b32 s26, s20, 20
    s_add_u32 s23, s23, s26
    s_add_u32 s13, s23, 0x80000
    """)
    DEPTH = 3
    NST = NCH * 2
    LAG = GLAG
    pubs = []
    def full_issued():
        return (pend[0][0] - 1) if pend else NCH - 1
    def arrive(want, rdone):
        q = min(want, full_issued(), NCH - 1)
        for cc in range(q, -1, -1):
            if f"c{cc}" in a.vm:
                a.wait_vm(f"c{cc}"); break
        pubs.append((q, rdone))
        a(f"v_mov_b32 v{VPG}, {len(pubs)}")
        a.lds(f"ds_write_b32 v{VFA}, v{VPG}", "pw")
    nspin = [0]
    checked = [0]
    fvp = [False]
    def check(k):
        n = nspin[0]; nspin[0] += 1
        if not fvp[0]:
            a.lds(f"ds_read_b32 v{VFV}, v{VFL}", "fv")
        fvp[0] = False
        a.wait_lds("fv")
        a(f"""
        k23_gs{n}:
        v_cmp_gt_u32 vcc, {k}, v{VFV}
        s_cbranch_vccz k23_go{n}
        ds_read_b32 v{VFV}, v{VFL}
        s_waitcnt lgkmcnt(0)
        s_branch k23_gs{n}
        k23_go{n}:
        """)
        checked[0] = k
        rd = pubs[k-1][1]
        if rd >= 0: ulimit[0] = max(ulimit[0], uend(rd) + 16)
    ulimit = [16]
    def reads(i):
        c, s_ = i // 2, i % 2
        if s_ == 0:
            have = pubs[checked[0]-1][0] if checked[0] else -1
            if have < c or c % 2 == 0:
                need = min(c + 1, NCH - 1) if c % 2 == 0 else c
                ks = [k+1 for k, (q, r) in enumerate(pubs) if q >= need]
                if not ks: ks = [k+1 for k, (q, r) in enumerate(pubs) if q >= c]
                assert ks, ("no publish covers chunk", c, pubs)
                k = max(ks[0], checked[0])
                if k > checked[0]: check(k)
            if c in (0, 12, 28): a.stamp()
            if c % 2 == 1 and c + 1 < NCH and c >= 3:
                a.lds(f"ds_read_b32 v{VFV}, v{VFL}", "fv"); fvp[0] = True
        fb = FB + (i % DEPTH) * 20
        u0 = upos[c] * 8192
        w0, b0 = u0 >> 16, u0 & 0xffff
        if isd(c):
            for dt in range(4):
                for t in range(2):
                    a.lds(f"ds_read_b64_tr_b16 v[{fb+4*dt+2*t}:{fb+4*dt+2*t+1}], v{TRW+4*w0+dt} offset:{b0 + (32*s_ + 8*t)*128}", f"g{i}")
        else:
            for t in range(2):
                a.lds(f"ds_read_b64_tr_b16 v[{fb+16+2*t}:{fb+17+2*t}], v{TRZ+w0} offset:{b0 + (32*s_ + 8*t)*128}", f"g{i}")
            u1 = ((upos[c] + 1) % 16) * 8192
            w1, b1 = u1 >> 16, u1 & 0xffff
            for dt in range(4):
                a.lds(f"ds_read_b128 v[{fb+4*dt}:{fb+4*dt+3}], v{GFR+w1} offset:{b1 + (dt>>1)*4096 + s_*2048 + (dt&1)*256}", f"g{i}")
    def mfma(i, dt):
        c, s_ = i // 2, i % 2
        fb = FB + (i % DEPTH) * 20
        if isd(c):
            hb = HB + (i % NHB) * 4
            cin = "0" if i == 0 else f"v[{ACG+4*dt}:{ACG+4*dt+3}]"
            a(f"v_mfma_f32_16x16x32_bf16 v[{ACG+4*dt}:{ACG+4*dt+3}], v[{fb+4*dt}:{fb+4*dt+3}], v[{hb}:{hb+3}], {cin}")
        else:
            cin = "0" if i == 56 else f"v[{ACS+4*dt}:{ACS+4*dt+3}]"
            a(f"v_mfma_f32_16x16x32_bf16 v[{ACS+4*dt}:{ACS+4*dt+3}], v[{fb+4*dt}:{fb+4*dt+3}], v[{fb+16}:{fb+19}], {cin}")
    def silu():
        G_ = ACG; T_ = HB
        for p in range(8): a(f"v_cvt_pk_bf16_f32 v{T_+p}, v{G_+2*p}, v{G_+2*p+1}")
        yield
        for p in range(8):
            a(f"v_lshlrev_b32 v{G_+2*p}, 16, v{T_+p}")
            a(f"v_and_b32 v{G_+2*p+1}, s49, v{T_+p}")
            if p % 4 == 3: yield
        for p in range(16):
            a(f"v_mul_f32 v{T_+p}, 0xbfb8aa3b, v{G_+p}")
            if p % 8 == 7: yield
        for p in range(16):
            a(f"v_exp_f32 v{T_+p}, v{T_+p}")
            if p % 4 == 3: yield
        for p in range(16):
            a(f"v_add_f32 v{T_+p}, 1.0, v{T_+p}")
            if p % 8 == 7: yield
        for p in range(16):
            a(f"v_rcp_f32 v{T_+p}, v{T_+p}")
            if p % 4 == 3: yield
        for p in range(16):
            a(f"v_mul_f32 v{G_+p}, v{G_+p}, v{T_+p}")
            if p % 8 == 7: yield
        for p in range(8): a(f"v_cvt_pk_bf16_f32 v{T_+p}, v{G_+2*p}, v{G_+2*p+1}")
        yield
        for p in range(8):
            a(f"v_lshlrev_b32 v{G_+2*p}, 16, v{T_+p}")
            a(f"v_and_b32 v{G_+2*p+1}, s49, v{T_+p}")
            if p % 4 == 3: yield
    sl = silu()
    polled = False
    arrive(1, -1)
    early = list(range(3, LAG, 2))
    for k in range(DEPTH - 1): reads(k)
    for i in range(NST):
        c, s_ = i // 2, i % 2
        if early: arrive(early.pop(0), -1)
        if i + DEPTH - 1 < NST: reads(i + DEPTH - 1)
        a.wait_lds(f"g{i}")
        if isd(c): a.wait_vm(f"h{i}")
        if s_ == 1 and c < NCH - 1 and pubs[-1][0] < NCH - 1 and (c % 2 == 0 or c >= 24):
            arrive(c + LAG, c)
        for dt in range(4):
            mfma(i, dt)
            if dt in (0, 2):
                if pend:
                    pc, pu = pend[0]
                    need = ustart[pc] + (1 if pu < 2 else 2)
                    if need <= ulimit[0] and len(a.vm) < 56 and not (pc >= 28 and i < ZMIN):
                        if pend[0] == (28, 0):
                            a.wait_vm("poll")
                            a(f"""
                            s_mov_b32 s27, 0
                            k23_spin:
                            v_and_b32 v{PV}, v{PV}, v{PV+1}
                            v_and_b32 v{PV+2}, v{PV+2}, v{PV+3}
                            v_and_b32 v{PV}, v{PV}, v{PV+2}
                            v_cmp_ne_u32 vcc, 1, v{PV}
                            s_cbranch_vccz k23_go
                            s_add_u32 s27, s27, 1
                            s_cmp_ge_u32 s27, 0x4000
                            s_cbranch_scc1 k23_go
                            s_sleep 8
                            buffer_load_dword v{PV}, v{VF}, s[40:43], s59 offen sc1
                            buffer_load_dword v{PV+1}, v{VF}, s[40:43], s59 offen offset:1024 sc1
                            buffer_load_dword v{PV+2}, v{VF}, s[40:43], s59 offen offset:2048 sc1
                            buffer_load_dword v{PV+3}, v{VF}, s[40:43], s59 offen offset:3072 sc1
                            s_waitcnt vmcnt(0)
                            s_branch k23_spin
                            k23_go:
                            """)
                            print("Z issue at step", i, file=sys.stderr)
                        dma_one(*pend.pop(0))
            if dt in (1, 3):
                if hp[0] < 56 and hp[0] - NHB < i and len(a.vm) < 56 and hp[0] <= i + HDIST:
                    hload(hp[0]); hp[0] += 1
            if i >= 58: next(sl, None)
        if i == ZMIN - POLLD and not polled:
            polled = True
            for q in range(4):
                a.vmem(f"buffer_load_dword v{PV+q}, v{VF}, s[40:43], s59 offen offset:{q*1024} sc1", "poll")
        if i == 50:
            a.vmem(f"buffer_load_dwordx4 v[{XR}:{XR+3}], v{VO}, s[28:31], s23 offen", "x")
            a.vmem(f"buffer_load_dwordx4 v[{XR+4}:{XR+7}], v{VO}, s[28:31], s13 offen", "x")
    assert not pend and hp[0] == 56
    for _ in sl: a("s_nop 0")
    a("s_nop 7")
    O = HB + 16; SV = ACS; GV = ACG; Q = HB + 24
    for p in range(8):
        a(f"v_cvt_pk_bf16_f32 v{Q+p}, v{SV+2*p}, v{SV+2*p+1}")
    for p in range(8):
        a(f"v_lshlrev_b32 v{SV+2*p}, 16, v{Q+p}")
        a(f"v_and_b32 v{SV+2*p+1}, s49, v{Q+p}")
    for p in range(16):
        a(f"v_mul_f32 v{SV+p}, v{SV+p}, v{GV+p}")
    for p in range(8):
        a(f"v_cvt_pk_bf16_f32 v{O+p}, v{SV+2*p}, v{SV+2*p+1}")
    a(f"""
    v_lshrrev_b32 v5, 1, v4
    v_and_b32 v6, 7, v2
    v_xor_b32 v5, v5, v6
    v_and_b32 v7, 1, v4
    v_lshlrev_b32 v7, 3, v7
    v_lshl_add_u32 v7, v3, 7, v7
    s_lshl_b32 s26, s3, 11
    s_add_u32 s26, s26, {SB}
    v_add_u32 v7, s26, v7
    s_barrier
    """)
    for dt in range(4):
        a(f"v_xor_b32 v1, {2*dt}, v5")
        a(f"v_lshl_add_u32 v1, v1, 4, v7")
        a(f"ds_write_b64 v1, v[{O+2*dt}:{O+2*dt+1}]")
    a(f"""
    v_lshrrev_b32 v4, 3, v2
    v_xor_b32 v6, v6, v4
    v_lshlrev_b32 v6, 4, v6
    v_lshl_add_u32 v6, v4, 7, v6
    v_add_u32 v6, s26, v6
    s_waitcnt lgkmcnt(0)
    ds_read_b128 v[{Q}:{Q+3}], v6
    ds_read_b128 v[{Q+4}:{Q+7}], v6 offset:1024
    """)
    a.wait_vm_all()
    for p in range(8):
        a(f"v_lshlrev_b32 v{GV+2*p}, 16, v{XR+p}")
        a(f"v_and_b32 v{GV+2*p+1}, s49, v{XR+p}")
    a("s_waitcnt lgkmcnt(0)")
    for p in range(8):
        a(f"v_lshlrev_b32 v{SV+2*p}, 16, v{Q+p}")
        a(f"v_and_b32 v{SV+2*p+1}, s49, v{Q+p}")
    for p in range(16):
        a(f"v_add_f32 v{SV+p}, v{SV+p}, v{GV+p}")
    for p in range(8):
        a(f"v_cvt_pk_bf16_f32 v{O+p}, v{SV+2*p}, v{SV+2*p+1}")
    a(f"buffer_store_dwordx4 v[{O}:{O+3}], v{VO}, s[36:39], s23 offen {OSP}")
    a(f"buffer_store_dwordx4 v[{O+4}:{O+7}], v{VO}, s[36:39], s13 offen {OSP}")
    a.stamp()
    if STAMP: a("s_waitcnt vmcnt(0)")
    a.stamp()
    a.stamp_store(1)
    a("s_endpgm")

    a.raw("k23_conv:")
    a.vm = []; a.lq = []; a.nst = 0; a.sb = 74; a.maxst = 14
    YR, YI = 8, 12
    E1 = 16; T1 = 32; E2 = 48; WW = 64; E3 = 80; T2 = 96; E4 = 112
    D = 128; F = 144; N = 176; TMP = 184; WM = 200; VL = 7
    getpc_tab(a, 24, "tab_S")
    srd(a, 28, "s24", "s25", TSZ)
    a(f"""
    s_sub_u32 s13, s3, 4
    v_lshlrev_b32 v5, 6, v3
    v_lshl_add_u32 v5, v4, 4, v5
    s_lshl_b32 s60, s2, 13
    s_lshl_b32 s61, s13, 10
    s_add_u32 s60, s60, s61
    s_add_u32 s60, s60, {WS_Y}
    s_add_u32 s61, s60, 4096
    v_lshlrev_b32 v{VL}, 4, v2
    s_lshl_b32 s26, s13, 12
    s_lshl_b32 s12, s13, 11
    v_subrev_u32 v6, 256, v0
    v_lshlrev_b32 v6, 5, v6
    s_waitcnt lgkmcnt(0)
    """)
    a.stamp()
    srd(a, 40, "s14", "s15", WS_SIZE)
    def tload(dst, n, soff, base, tag):
        for q in range(n):
            a.vmem(f"buffer_load_dwordx4 v[{dst+4*q}:{dst+4*q+3}], v{VL}, s[28:31], {soff} offen offset:{base+q*1024}", tag)
    a.vmem(f"buffer_load_dwordx4 v[{YR}:{YR+3}], v5, s[40:43], s60 offen", "y")
    a.vmem(f"buffer_load_dwordx4 v[{YI}:{YI+3}], v5, s[40:43], s61 offen", "y")
    tload(E1, 4, "0", TE1, "e1")
    a(f"s_add_u32 s27, s12, {TT1}")
    tload(T1, 2, "s27", 0, "t1")
    def loads2():
        a(f"s_add_u32 s27, s26, {TE2}")
        tload(E2, 4, "s27", 0, "e2")
        a(f"""
        s_lshl_b32 s27, s2, 13
        s_add_u32 s27, s27, {WS_W}
        s_cmp_eq_u32 s2, 0
        s_cbranch_scc0 k23_now256
        s_mov_b32 s56, {WS_W + 256*8192}
        buffer_load_dwordx4 v[{WW+8}:{WW+11}], v{VWT}, s[40:43], s56 offen
        buffer_load_dwordx4 v[{WW+12}:{WW+15}], v{VWT}, s[40:43], s56 offen offset:16
        s_add_u32 s56, s56, 8192
        buffer_load_dwordx4 v[{WM}:{WM+3}], v{VWT}, s[40:43], s56 offen
        buffer_load_dwordx4 v[{WM+4}:{WM+7}], v{VWT}, s[40:43], s56 offen offset:16
        s_add_u32 s56, s56, 8192
        buffer_load_dwordx4 v[{WM+8}:{WM+11}], v{VWT}, s[40:43], s56 offen
        buffer_load_dwordx4 v[{WM+12}:{WM+15}], v{VWT}, s[40:43], s56 offen offset:16
        k23_now256:
        """)
        a.vmem(f"buffer_load_dwordx4 v[{WW}:{WW+3}], v{VWT}, s[40:43], s27 offen", "w")
        a.vmem(f"buffer_load_dwordx4 v[{WW+4}:{WW+7}], v{VWT}, s[40:43], s27 offen offset:16", "w")
    def loads3():
        a(f"s_add_u32 s27, s26, {TE3}")
        tload(E3, 4, "s27", 0, "e3")
        a(f"s_add_u32 s27, s12, {TT2}")
        tload(T2, 2, "s27", 0, "t2")
        a(f"s_mov_b32 s27, {TE4}")
        tload(E4, 4, "s27", 0, "e4")
    VWT = 216; PQ = 220
    a(f"""
    v_mov_b32 v{VWT}, v6
    s_lshl_b32 s27, s13, 9
    v_lshlrev_b32 v1, 7, v4
    v_add3_u32 v1, v1, v3, s27
    s_movk_i32 s27, 144
    v_mul_lo_u32 v6, v3, s27
    v_add_u32 v6, {SB}, v6
    v_lshl_add_u32 v5, v4, 3, v6
    s_lshl_b32 s27, s13, 5
    v_add_u32 v5, s27, v5
    v_lshl_add_u32 v6, v4, 4, v6
    """)
    UB, XB, MB = 0, 9216, 18432
    PL = 4608
    def R(x): return f"v[{x}:{x+3}]"
    def fr(pl, t, st): return F + ((pl*2+t)*2+st)*4
    def cmul_tw(tw):
        for e in range(8):
            r = D + e; im = D + 8 + e; tq = tw + e
            t = TMP + 2*(e % 4)
            a(f"""
            v_fma_mix_f32 v{t}, v{im}, v{tq}, 0 op_sel:[0,1,0] op_sel_hi:[0,1,0]
            v_fma_mix_f32 v{t+1}, v{r}, v{tq}, 0 op_sel:[0,1,0] op_sel_hi:[0,1,0]
            """)
            if e % 4 == 3:
                for e2 in range(e-3, e+1):
                    r = D + e2; im = D + 8 + e2; tq = tw + e2
                    t = TMP + 2*(e2 % 4)
                    a(f"""
                    v_fma_mix_f32 v{r}, v{r}, v{tq}, -v{t} op_sel:[0,0,0] op_sel_hi:[0,1,0]
                    v_fma_mix_f32 v{im}, v{im}, v{tq}, v{t+1} op_sel:[0,0,0] op_sel_hi:[0,1,0]
                    """)
    def pack(cvt, dst):
        for e in range(8):
            a(f"{cvt} v{dst+e}, v{D+2*e}, v{D+2*e+1}")
    def lds_write(base, src):
        for pl in range(2):
            for t in range(2):
                a(f"ds_write_b64 v5, v[{src+pl*4+t*2}:{src+pl*4+t*2+1}] offset:{base + pl*PL + t*16*144}")
    def lds_read(base):
        for pl in range(2):
            for t in range(2):
                for st in range(2):
                    f_ = fr(pl, t, st)
                    a(f"ds_read_b128 v[{f_}:{f_+3}], v6 offset:{base + pl*PL + t*16*144 + st*64}")
    nbar = [0]
    CA, CL, CV = 217, 218, 219
    def bar(tag=""):
        nbar[0] += 1
        p = nbar[0]
        a(f"""
        v_mov_b32 v{CV}, {p}
        s_waitcnt lgkmcnt(0)
        ds_write_b32 v{CA}, v{CV}
        k23_cs{p}{tag}:
        ds_read_b32 v{CV}, v{CL}
        s_waitcnt lgkmcnt(0)
        v_cmp_gt_u32 vcc, {p}, v{CV}
        s_cbranch_vccnz k23_cs{p}{tag}
        """)
        a.stamp()
    a(f"""
    s_setprio {CPRIO}
    s_lshl_b32 s27, s13, 2
    s_add_u32 s27, s27, {PW + 16}
    v_mov_b32 v{CA}, s27
    v_mov_b32 v{CV}, 0
    v_and_b32 v{CL}, 3, v2
    v_lshlrev_b32 v{CL}, 2, v{CL}
    v_add_u32 v{CL}, {PW + 16}, v{CL}
    ds_write_b32 v{CA}, v{CV}
    """)
    loads2(); loads3()
    a("s_waitcnt lgkmcnt(0)")
    a("s_barrier")
    a.stamp()
    a.wait_vm("e1")
    for r in range(4):
        a(f"v_xor_b32 v{N+r}, s48, v{YI+r}")
    a("s_nop 1")
    for t in range(2):
        er = E1 + 4*t; ei = E1 + 8 + 4*t
        a(f"v_mfma_f32_16x16x32_f16 {R(D+4*t)}, {R(YR)}, {R(er)}, 0")
        a(f"v_mfma_f32_16x16x32_f16 {R(D+8+4*t)}, {R(YR)}, {R(ei)}, 0")
    for t in range(2):
        er = E1 + 4*t; ei = E1 + 8 + 4*t
        a(f"v_mfma_f32_16x16x32_f16 {R(D+4*t)}, {R(N)}, {R(ei)}, {R(D+4*t)}")
        a(f"v_mfma_f32_16x16x32_f16 {R(D+8+4*t)}, {R(YI)}, {R(er)}, {R(D+8+4*t)}")
    a.wait_vm("t1")
    a("s_nop 7")
    cmul_tw(T1)
    pack("v_cvt_pk_f16_f32", TMP + 8)
    lds_write(UB, TMP + 8)
    bar()
    lds_read(UB)
    a.wait_vm("e2")
    for r in range(8):
        a(f"v_xor_b32 v{N+r}, s48, v{E2+8+r}")
    a("s_waitcnt lgkmcnt(0)")
    for st in range(2):
        for t in range(2):
            cr = "0" if st == 0 else R(D+4*t); ci = "0" if st == 0 else R(D+8+4*t)
            a(f"v_mfma_f32_16x16x32_f16 {R(D+4*t)}, {R(E2+4*st)}, {R(fr(0,t,st))}, {cr}")
            a(f"v_mfma_f32_16x16x32_f16 {R(D+8+4*t)}, {R(E2+8+4*st)}, {R(fr(0,t,st))}, {ci}")
        for t in range(2):
            a(f"v_mfma_f32_16x16x32_f16 {R(D+4*t)}, {R(N+4*st)}, {R(fr(1,t,st))}, {R(D+4*t)}")
            a(f"v_mfma_f32_16x16x32_f16 {R(D+8+4*t)}, {R(E2+4*st)}, {R(fr(1,t,st))}, {R(D+8+4*t)}")
    a("""
    s_cmp_eq_u32 s2, 0
    s_cbranch_scc1 k2_special
    """)
    vm_keep = list(a.vm)
    a.wait_vm("w")
    a("s_nop 7")
    for e in range(8):
        r = D + e; im = D + 8 + e
        t = TMP + 4*(e % 2)
        a(f"""
        v_lshlrev_b32 v{t+2}, 16, v{WW+e}
        v_and_b32 v{t+3}, s49, v{WW+e}
        v_mul_f32 v{t}, v{im}, v{t+3}
        v_mul_f32 v{t+1}, v{r}, v{t+3}
        v_fma_f32 v{r}, v{r}, v{t+2}, -v{t}
        v_fma_f32 v{im}, v{im}, v{t+2}, v{t+1}
        """)
    a("s_branch k2_join")
    a.raw("k2_special:")
    a.vm = vm_keep
    a.wait_vm("w")
    TA_ = 8
    for e in range(8):
        q = PQ + 4*e; t = TA_ + 4*e
        a(f"""
        v_lshlrev_b32 v{q}, 16, v{WW+e}
        v_and_b32 v{q+1}, s49, v{WW+e}
        v_lshlrev_b32 v{q+2}, 16, v{WM+e}
        v_and_b32 v{q+3}, s49, v{WM+e}
        v_lshlrev_b32 v{t}, 16, v{WW+8+e}
        v_and_b32 v{t+1}, s49, v{WW+8+e}
        v_lshlrev_b32 v{t+2}, 16, v{WM+8+e}
        v_and_b32 v{t+3}, s49, v{WM+8+e}
        """)
    for e in range(8):
        q = PQ + 4*e; t = TA_ + 4*e
        a(f"""
        v_add_f32 v{q}, v{q}, v{q+2}
        v_sub_f32 v{q+1}, v{q+1}, v{q+3}
        v_add_f32 v{t}, v{t}, v{t+2}
        v_sub_f32 v{t+1}, v{t+1}, v{t+3}
        """)
    for e in range(8):
        q = PQ + 4*e; t = TA_ + 4*e
        a(f"""
        v_sub_f32 v{q+2}, v{q}, v{t}
        v_sub_f32 v{q+3}, v{q+1}, v{t+1}
        v_add_f32 v{q}, v{q}, v{t}
        v_add_f32 v{q+1}, v{q+1}, v{t+1}
        """)
    for e in range(32):
        a(f"v_mul_f32 v{PQ+e}, 0x3e800000, v{PQ+e}")
    for e in range(8):
        t, i = e // 4, e % 4
        q = TMP + 2*(e % 2)
        a(f"""
        v_cvt_pk_f16_f32 v{q}, v{D+e}, v{D+8+e}
        v_add_u32 v{q+1}, {32*i+16*t+(SB+MB)//4}, v1
        v_lshlrev_b32 v{q+1}, 2, v{q+1}
        ds_write_b32 v{q+1}, v{q}
        """)
    for e in range(8):
        r = D + e; q = PQ + 4*e; t = F + 8 + 2*e
        a(f"v_mul_f32 v{t}, v{r}, v{q}")
        a(f"v_mul_f32 v{t+1}, v{r}, v{q+1}")
    for e in range(8):
        im = D + 8 + e; q = PQ + 4*e; t = F + 8 + 2*e
        a(f"v_fma_f32 v{t}, -v{im}, v{q+1}, v{t}")
        a(f"v_fma_f32 v{t+1}, v{im}, v{q}, v{t+1}")
    nst_keep = a.nst
    bar("s")
    a.nst = nst_keep
    for e in range(8):
        t, i = e // 4, e % 4
        a(f"""
        v_add_u32 v{TMP+4}, {32*i+16*t}, v1
        v_sub_u32 v{TMP+4}, 2048, v{TMP+4}
        v_and_b32 v{TMP+4}, 2047, v{TMP+4}
        v_lshlrev_b32 v{TMP+4}, 2, v{TMP+4}
        v_add_u32 v{TMP+4}, {SB+MB}, v{TMP+4}
        ds_read_b32 v{F+e}, v{TMP+4}
        """)
    a("s_waitcnt lgkmcnt(0)")
    for e in range(8):
        xm = F + e; q = PQ + 4*e; t = F + 8 + 2*e
        a(f"""
        v_fma_mix_f32 v{t}, v{q+2}, v{xm}, v{t} op_sel:[0,0,0] op_sel_hi:[0,1,0]
        v_fma_mix_f32 v{t+1}, v{q+3}, v{xm}, v{t+1} op_sel:[0,0,0] op_sel_hi:[0,1,0]
        """)
    for e in range(8):
        r = D + e; im = D + 8 + e
        xm = F + e; q = PQ + 4*e; t = F + 8 + 2*e
        a(f"""
        v_fma_mix_f32 v{r}, v{q+3}, v{xm}, v{t} op_sel:[0,1,0] op_sel_hi:[0,1,0]
        v_fma_mix_f32 v{im}, -v{q+2}, v{xm}, v{t+1} op_sel:[0,1,0] op_sel_hi:[0,1,0]
        """)
    a.raw("k2_join:")
    a.stamp()
    pack("v_cvt_pk_bf16_f32", TMP + 8)
    lds_write(XB, TMP + 8)
    bar()
    lds_read(XB)
    a.wait_vm("e3")
    for r in range(8):
        a(f"v_xor_b32 v{N+r}, s48, v{E3+8+r}")
    a("s_waitcnt lgkmcnt(0)")
    for st in range(2):
        for t in range(2):
            cr = "0" if st == 0 else R(D+4*t); ci = "0" if st == 0 else R(D+8+4*t)
            a(f"v_mfma_f32_16x16x32_bf16 {R(D+4*t)}, {R(fr(0,t,st))}, {R(E3+4*st)}, {cr}")
            a(f"v_mfma_f32_16x16x32_bf16 {R(D+8+4*t)}, {R(fr(0,t,st))}, {R(E3+8+4*st)}, {ci}")
        for t in range(2):
            a(f"v_mfma_f32_16x16x32_bf16 {R(D+4*t)}, {R(fr(1,t,st))}, {R(N+4*st)}, {R(D+4*t)}")
            a(f"v_mfma_f32_16x16x32_bf16 {R(D+8+4*t)}, {R(fr(1,t,st))}, {R(E3+4*st)}, {R(D+8+4*t)}")
    a.wait_vm("t2")
    a("s_nop 7")
    cmul_tw(T2)
    pack("v_cvt_pk_bf16_f32", TMP + 8)
    VR, VI = TMP + 8, TMP + 12
    for r in range(4):
        a(f"v_xor_b32 v{N+r}, s48, v{VI+r}")
    a.wait_vm("e4")
    a("s_nop 1")
    for tp in range(2):
        a(f"v_mfma_f32_16x16x32_bf16 {R(D+4*tp)}, {R(E4+4*tp)}, {R(VR)}, 0")
        a(f"v_mfma_f32_16x16x32_bf16 {R(D+8+4*tp)}, {R(E4+8+4*tp)}, {R(VR)}, 0")
    for tp in range(2):
        a(f"v_mfma_f32_16x16x32_bf16 {R(D+4*tp)}, {R(E4+8+4*tp)}, {R(N)}, {R(D+4*tp)}")
        a(f"v_mfma_f32_16x16x32_bf16 {R(D+8+4*tp)}, {R(E4+4*tp)}, {R(VI)}, {R(D+8+4*tp)}")
    a(f"""
    v_lshlrev_b32 v5, 6, v3
    v_and_b32 v1, 1, v4
    v_lshl_add_u32 v5, v1, 5, v5
    v_lshrrev_b32 v1, 1, v4
    v_lshl_add_u32 v5, v1, 4, v5
    s_add_u32 s60, s60, {WS_Z - WS_Y}
    s_add_u32 s61, s61, {WS_Z - WS_Y}
    s_nop 3
    """)
    pack("v_cvt_pk_bf16_f32", TMP + 8)
    a("s_nop 1")
    for pl in range(2):
        b = TMP + 8 + pl*4
        a(f"v_permlane16_swap_b32 v{b}, v{b+2}")
        a(f"v_permlane16_swap_b32 v{b+1}, v{b+3}")
    for pl in range(2):
        b = TMP + 8 + pl*4
        a.vmem(f"buffer_store_dwordx4 v[{b}:{b+3}], v5, s[40:43], s{60+pl} offen sc1", "z")
    a.stamp()
    a.wait_vm_all()
    bar()
    a(f"""
    s_cmp_eq_u32 s13, 0
    s_cbranch_scc0 k23_nosig
    s_lshl_b32 s26, s2, 4
    s_add_u32 s26, s26, {WS_FL}
    v_mov_b32 v1, 1
    v_mov_b32 v7, 0
    s_mov_b64 exec, 1
    buffer_store_dword v1, v7, s[40:43], s26 offen sc1
    s_mov_b64 exec, -1
    k23_nosig:
    """)
    if os.environ.get("CSTAMP", "0") == "1": a.stamp_store(1)
    a.raw("k23_end:")
    a("s_endpgm")
    return a.text()

def tables_asm():
    o = []
    j = np.arange(512)
    c1 = bf16(np.cos(2*np.pi*j/512) / 16); c2 = bf16(np.cos(2*np.pi*j/512) / 8)
    c1[np.abs(np.cos(2*np.pi*j/512)) < 1e-9] = 0; c2[np.abs(np.cos(2*np.pi*j/512)) < 1e-9] = 0
    for i in range(512):
        o.append(f".set CA{i}, 0x{c1[i]:04x}")
        o.append(f".set CB{i}, 0x{c2[i]:04x}")
    o.append(".altmacro")
    o.append(""".macro f8 a,b,c,d,e,f,g,h
.short CA\\a, CA\\b, CA\\c, CA\\d, CA\\e, CA\\f, CA\\g, CA\\h
.endm
.macro g8 a,b,c,d,e,f,g,h
.short CB\\a, CB\\b, CB\\c, CB\\d, CB\\e, CB\\f, CB\\g, CB\\h
.endm
.macro g8s a,b,c,d,e,f,g,h
.short CA\\a, CA\\b, CB\\c, CB\\d, CB\\e, CB\\f, CB\\g, CB\\h
.endm
.macro frow d
f8 0, %((\\d*256)&511), %((\\d*1)&511), %((\\d+128)&511), %((\\d*2)&511), %((\\d*2+128)&511), %((\\d*3)&511), %((\\d*3+128)&511)
.set kk, 4
.rept 63
f8 %((\\d*kk)&511), %((\\d*kk+128)&511), %((\\d*(kk+1))&511), %((\\d*(kk+1)+128)&511), %((\\d*(kk+2))&511), %((\\d*(kk+2)+128)&511), %((\\d*(kk+3))&511), %((\\d*(kk+3)+128)&511)
.set kk, kk+4
.endr
.endm
.section .rodata,"a"
.p2align 8
tab_F:
.set dd, 0
.rept 512
frow %dd
.set dd, dd+1
.endr
""")
    o.append(""".macro glane d, k
g8 %((\\d*\\k)&511), %((\\d*\\k+128)&511), %((\\d*(\\k+1))&511), %((\\d*(\\k+1)+128)&511), %((\\d*(\\k+4))&511), %((\\d*(\\k+4)+128)&511), %((\\d*(\\k+5))&511), %((\\d*(\\k+5)+128)&511)
.endm
.macro glane0 d
g8s 0, %((\\d*256)&511), %((\\d*1)&511), %((\\d+128)&511), %((\\d*4)&511), %((\\d*4+128)&511), %((\\d*5)&511), %((\\d*5+128)&511)
.endm
.macro ghalf d0, k
.set ll, 0
.rept 32
glane %(\\d0+ll), \\k
.set ll, ll+1
.endr
.endm
.macro ghalf0 d0
.set ll, 0
.rept 32
glane0 %(\\d0+ll)
.set ll, ll+1
.endr
.endm
.macro gtile d0
ghalf0 \\d0
ghalf \\d0, 2
.set gg, 1
.rept 31
ghalf \\d0, %(8*gg)
ghalf \\d0, %(8*gg+2)
.set gg, gg+1
.endr
.endm
.p2align 8
tab_G:
.set tt, 0
.rept 16
gtile %(32*tt)
.set tt, tt+1
.endr
.noaltmacro
.p2align 8
tab_S:
""")
    st = small_tables().view(np.uint64)
    for i in range(0, len(st), 8):
        o.append(".quad " + ",".join(f"0x{v:x}" for v in st[i:i+8]))
    return "\n".join(o) + "\n"

hdr = """; fused LN + GFNet spectral filter + ReGLU, 2 launches
; @launch kernel=k1_kernel grid=(256,1,1) block=(512,1,1) lds=163840
; @launch kernel=k23_kernel grid=(256,1,1) block=(512,1,1) lds=163840
.amdgcn_target "amdgcn-amd-amdhsa--gfx950"
.text
.globl k1_kernel
.type k1_kernel,@function
.globl k23_kernel
.type k23_kernel,@function
"""
src = hdr + gen_k1() + gen_k23_main() + "code_end:\n" + tables_asm()
src += '.section .rodata,"a"\n.p2align 6\n' + kd("k1_kernel", 256) + ".p2align 6\n" + kd("k23_kernel", 256)
open(OUT, "w").write(src)
print("wrote", OUT, len(src))
```

```python
import numpy as np, sys, math

OUT = sys.argv[1] if len(sys.argv) > 1 else "recurrent_scan__spectral_gfnet__glu_gated_reglu__prompt.s"

WS_H = 0
WS_Y = 8 << 20
WS_Z = 10 << 20
WS_W = 12 << 20
WS_SIZE = 268435456
WS_FL = 15 << 20

def bf16(x):
    u = np.asarray(x, np.float32).view(np.uint32).astype(np.uint64)
    r = ((u + 0x7fff + ((u >> 16) & 1)) >> 16).astype(np.uint16)
    return r
def f16(x):
    return np.asarray(x, np.float64).astype(np.float16).view(np.uint16)

import os
STAMP = os.environ.get("STAMP", "0") == "1"
MERGE = os.environ.get('MERGE','1') == '1'
KNAME = 'recurrent_scan__spectral_gfnet__glu_gated_reglu__prompt_kernel'
WS_ST = 16 << 20
class Asm:
    def __init__(self):
        self.lines = []
        self.vm = []
        self.nst = 0
        self.issued = set()
        self.lq = []
        self.sb = 74
        self.maxst = 14
    def stamp(self):
        if not STAMP or self.nst >= self.maxst: return
        self(f"s_memtime s[{self.sb+2*self.nst}:{self.sb+1+2*self.nst}]")
        self("s_waitcnt lgkmcnt(0)")
        self.lq = []
        self.nst += 1
    def stamp_store(self, kidx, wavereg="s3"):
        if not STAMP: return
        self("s_waitcnt lgkmcnt(0)")
        self(f"s_lshl_b32 s62, s2, 4")
        self(f"s_add_u32 s62, s62, {wavereg}")
        self(f"s_lshl_b32 s62, s62, 7")
        self(f"s_add_u32 s62, s62, {WS_ST + kidx*(1<<20)}")
        self("v_mov_b32 v0, 0")
        for i in range(self.nst):
            self(f"v_mov_b32 v1, s{self.sb+2*i}")
            self(f"buffer_store_dword v1, v0, s[40:43], s62 offen offset:{4*i}")
    def __call__(self, s):
        for ln in s.strip("\n").split("\n"):
            self.lines.append("  " + ln.strip() if not ln.strip().endswith(":") else ln.strip())
    def raw(self, s):
        self.lines.append(s)
    def vmem(self, s, tag):
        self(s); self.vm.append(tag); self.issued.add(tag)
        assert len(self.vm) <= 63, "vmcnt overflow"
    def wait_vm(self, tag):
        assert tag in self.issued, tag
        if tag not in self.vm: return
        idx = max(i for i, t in enumerate(self.vm) if t == tag)
        n = len(self.vm) - 1 - idx
        self(f"s_waitcnt vmcnt({n})")
        self.vm = self.vm[idx + 1:]
    def lds(self, s, tag):
        self(s); self.lq.append(tag)
    def wait_lds(self, tag):
        if tag not in self.lq: return
        idx = max(i for i, t in enumerate(self.lq) if t == tag)
        n = min(len(self.lq) - 1 - idx, 15)
        self(f"s_waitcnt lgkmcnt({n})")
        self.lq = self.lq[len(self.lq) - n:] if n else []
    def wait_lds_all(self):
        self("s_waitcnt lgkmcnt(0)"); self.lq = []
    def wait_vm_all(self):
        self("s_waitcnt vmcnt(0)"); self.vm = []
    def text(self):
        return "\n".join(self.lines) + "\n"

def srd(a, s, lo, hi, nbytes):
    a(f"s_mov_b32 s{s}, {lo}")
    a(f"s_mov_b32 s{s+1}, {hi}")
    a(f"s_mov_b32 s{s+2}, {nbytes}")
    a(f"s_mov_b32 s{s+3}, 0x20000")

def getpc_tab(a, s, sym):
    a(f"s_getpc_b64 s[{s}:{s+1}]")
    a(f"s_add_u32 s{s}, s{s}, {sym}@rel32@lo+4")
    a(f"s_addc_u32 s{s+1}, s{s+1}, {sym}@rel32@hi+12")

def kd(name, vgpr, sgpr=102):
    acc = min((vgpr + 3) // 4 * 4, 256)
    return f""".amdhsa_kernel {name}
  .amdhsa_next_free_vgpr {vgpr}
  .amdhsa_next_free_sgpr {sgpr}
  .amdhsa_accum_offset {acc}
  .amdhsa_group_segment_fixed_size 0
  .amdhsa_kernarg_size 80
  .amdhsa_user_sgpr_count 2
  .amdhsa_user_sgpr_kernarg_segment_ptr 1
  .amdhsa_system_sgpr_workgroup_id_x 1
.end_amdhsa_kernel
"""

K1_NS = 5
PREF = os.environ.get('PREF','1') == '1'
K1_PRE = int(os.environ.get('K1_PRE','2'))
CODEPF = int(os.environ.get('CODEPF','5'))
PFS = int(os.environ.get('PFS','16'))
BWARM = int(os.environ.get('BWARM','0'))
STP = os.environ.get('STP','sc1')
OSP = os.environ.get('OSP','sc1')
BNREV = os.environ.get('BNREV','1') == '1'
X_NOP2 = os.environ.get('X_NOP2','0')=='1'
X_NODMA = os.environ.get('X_NODMA','0')=='1'
X_NOBAR = os.environ.get('X_NOBAR','0')=='1'
def gen_k1():
    a = Asm()
    A0 = 128; ACC = 64; BF = 32
    PT = 24
    VD, VNM, VVAR, VPF, VPG, VFA, VFL = 1, 7, 8, 9, 10, 11, 3
    TR = 16
    PFD = 12
    a.raw(".p2align 8\n" + (KNAME + ":\n" if MERGE else "") + "k1_kernel:")
    a("""
    s_cmp_ge_u32 s2, 256
    s_cbranch_scc1 k1_end
    s_load_dwordx2 s[4:5], s[0:1], 0
    s_load_dwordx4 s[8:11], s[0:1], 8
    s_load_dwordx4 s[12:15], s[0:1], 32
    s_load_dwordx2 s[6:7], s[0:1], 72
    s_load_dwordx2 s[60:61], s[0:1], 48
    s_load_dwordx2 s[68:69], s[0:1], 64
    s_memrealtime s[70:71]
    v_lshrrev_b32 v1, 6, v0
    v_and_b32 v2, 63, v0
    s_nop 0
    v_readfirstlane_b32 s3, v1
    """)
    XM = int(os.environ.get("K1_XM", "8"))
    lg = {8: 3, 4: 2, 2: 1}[XM]
    nxm = 16 // XM
    lgx = {2: 1, 4: 2, 8: 3}[nxm]
    a(f"""
    s_and_b32 s16, s2, 7
    s_lshr_b32 s17, s2, 3
    s_and_b32 s18, s16, {nxm-1}
    s_lshl_b32 s18, s18, {lg}
    s_and_b32 s58, s17, {XM-1}
    s_add_u32 s18, s18, s58
    s_lshr_b32 s19, s16, {lgx}
    s_lshl_b32 s19, s19, {5-lg}
    s_lshr_b32 s20, s17, {lg}
    s_add_u32 s19, s19, s20
    s_lshl_b32 s59, s20, {lg-1}
    s_lshl_b32 s58, s58, {3-lg}
    {"s_sub_u32 s19, 15, s19" if BNREV else "s_nop 0"}
    s_and_b32 s20, s3, 3
    s_lshr_b32 s21, s3, 2
    s_lshl_b32 s22, s18, 2
    s_add_u32 s22, s22, s20
    v_lshlrev_b32 v{VPF}, 4, v2
    """)
    if CODEPF:
        getpc_tab(a, 64, "k1_kernel")
        a(f"""
        s_mov_b32 s66, code_end-k1_kernel
        s_mov_b32 s67, 0x20000
        s_lshl_b32 s57, s17, 1
        s_add_u32 s57, s57, s3
        s_lshl_b32 s57, s57, 10
        s_cmp_lt_u32 s3, 2
        s_cselect_b32 s57, s57, 0x7f000000
        """)
        a.vmem(f"buffer_load_dwordx4 v[{PFD}:{PFD+3}], v{VPF}, s[64:67], s57 offen", "cpf")
    getpc_tab(a, 24, "tab_F")
    a("""
    s_lshl_b32 s50, s21, 4
    s_lshl_b32 s51, s50, 6
    s_add_u32 s51, s51, s22
    s_lshl_b32 s51, s51, 10
    s_lshl_b32 s52, s20, 5
    s_add_u32 s52, s52, s50
    s_lshl_b32 s52, s52, 10
    s_lshl_b32 s53, s58, 3
    v_xor_b32 v3, s53, v2
    s_waitcnt lgkmcnt(0)
    """)
    a.stamp()
    srd(a, 28, "s4", "s5", 2048*1024)
    for u in range(16):
        a(f"""
        s_xor_b32 s54, s59, {u}
        v_xor_b32 v4, s54, v3
        v_lshlrev_b32 v4, 4, v4
        s_lshl_b32 s55, s54, 10
        s_add_u32 m0, s52, s55
        s_lshl_b32 s55, s54, 16
        s_add_u32 s53, s51, s55
        """)
        a.vmem("buffer_load_dwordx4 v4, s[28:31], s53 offen lds", "x")
    srd(a, 32, "s8", "s9", 2048*514)
    srd(a, 36, "s10", "s11", 2048*514)
    WL = ACC + 16
    a(f"""
    s_lshr_b32 s62, s2, 2
    s_lshl_b32 s62, s62, 2
    s_lshr_b32 s63, s3, 1
    s_add_u32 s62, s62, s63
    s_lshr_b32 s63, s62, 4
    s_lshl_b32 s63, s63, 7
    s_and_b32 s62, s62, 15
    s_add_u32 s63, s63, s62
    s_and_b32 s62, s3, 1
    s_lshl_b32 s62, s62, 4
    s_add_u32 s63, s63, s62
    s_mul_i32 s63, s63, 514
    s_and_b32 s62, s2, 3
    s_lshl_b32 s62, s62, 7
    s_add_u32 s63, s63, s62
    v_lshlrev_b32 v5, 1, v2
    """)
    for i in range(4):
        if i: a(f"s_add_u32 s63, s63, {32*514}")
        a.vmem(f"buffer_load_ushort v{WL+i}, v5, s[32:35], s63 offen", "w")
        a.vmem(f"buffer_load_ushort v{WL+4+i}, v5, s[36:39], s63 offen", "w")
    a(f"""
    v_mov_b32 v{WL+10}, 0x7fffff00
    s_cmp_eq_u32 s3, 7
    s_cbranch_scc0 k1_nosp1
    s_lshr_b32 s62, s2, 4
    s_lshl_b32 s62, s62, 7
    s_and_b32 s63, s2, 15
    s_add_u32 s62, s62, s63
    v_and_b32 v4, 3, v2
    v_lshlrev_b32 v4, 5, v4
    v_and_b32 v5, 4, v2
    v_lshl_add_u32 v4, v5, 2, v4
    v_add_u32 v4, s62, v4
    s_movk_i32 s63, 514
    v_mul_lo_u32 v5, v4, s63
    v_lshrrev_b32 v6, 3, v2
    v_cmp_eq_u32 vcc, 1, v6
    v_add_u32 v30, 512, v5
    s_nop 0
    v_cndmask_b32 v5, v30, v5, vcc
    v_mov_b32 v30, 0x7fffff00
    v_cmp_gt_u32 vcc, 24, v2
    s_nop 1
    v_cndmask_b32 v5, v30, v5, vcc
    buffer_load_ushort v{WL+8}, v5, s[32:35], 0 offen
    buffer_load_ushort v{WL+9}, v5, s[36:39], 0 offen
    v_sub_u32 v5, 2048, v4
    v_and_b32 v5, 2047, v5
    v_cmp_eq_u32 s[62:63], 0, v6
    s_nop 1
    v_cndmask_b32 v4, v5, v4, s[62:63]
    v_lshrrev_b32 v5, 7, v4
    v_lshlrev_b32 v5, 9, v5
    v_and_b32 v31, 15, v4
    v_lshl_add_u32 v5, v31, 5, v5
    v_and_b32 v31, 16, v4
    v_add_u32 v5, v5, v31
    v_bfe_u32 v31, v4, 5, 2
    v_lshl_add_u32 v5, v31, 2, v5
    v_lshl_add_u32 v5, v6, 13, v5
    v_add_u32 v5, {WS_W + 256*8192}, v5
    v_cndmask_b32 v{WL+10}, v30, v5, vcc
    k1_nosp1:
    """)
    srd(a, 40, "s6", "s7", WS_SIZE)
    a("""
    s_and_b32 s23, s3, 1
    s_cmp_eq_u32 s23, 0
    s_cselect_b32 s44, s12, s14
    s_cselect_b32 s45, s13, s15
    s_mov_b32 s46, 1835008
    s_mov_b32 s47, 0x20000
    s_movk_i32 s48, 3584
    s_lshl_b32 s49, s19, 8
    s_cmp_lt_u32 s19, 14
    s_cbranch_scc1 k1_isglu
    s_mov_b32 s44, s24
    s_mov_b32 s45, s25
    s_mov_b32 s46, 524288
    s_movk_i32 s48, 1024
    s_sub_u32 s49, s19, 14
    s_lshl_b32 s49, s49, 9
    s_lshl_b32 s50, s23, 8
    s_add_u32 s49, s49, s50
    k1_isglu:
    """)
    a(f"""
    v_lshrrev_b32 v8, 4, v2
    v_and_b32 v6, 15, v2
    v_lshrrev_b32 v6, 1, v6
    v_lshlrev_b32 v10, 1, v8
    v_xor_b32 v6, v6, v10
    v_lshlrev_b32 v6, 5, v6
    v_and_b32 v10, 1, v2
    v_lshlrev_b32 v10, 4, v10
    v_add_u32 v6, v6, v10
    v_mul_lo_u32 v8, v8, s48
    v_add_u32 v6, v6, v8
    v_add_u32 v{VD}, s49, v6
    s_lshr_b32 s50, s3, 1
    s_lshl_b32 s50, s50, 3
    s_mul_i32 s52, s50, s48
    s_lshl_b32 s53, s50, 8
    s_lshl_b32 s54, s23, 13
    s_add_u32 s53, s53, s54
    s_lshl_b32 s54, s48, 2
    s_lshl_b32 s55, s48, 5
    s_lshl_b32 s58, s58, 1
    """)
    RING = [8, 9, 0, 1, 2, 3, 4, 5, 6]
    SPARE = 7 * 16384
    a(f"v_add_u32 v22, s54, v{VD}")
    def dma_one(c, u):
        if u == 0:
            a(f"s_xor_b32 s56, s58, {c}")
            a("s_mul_i32 s56, s56, s55")
        a(f"s_add_u32 m0, s53, {RING[c % 9]*16384 + u*1024}")
        if u == 0: a("s_add_u32 s56, s56, s52")
        else: a("s_nop 0")
        a.vmem(f"buffer_load_dwordx4 v{VD if u == 0 else 22}, s[44:47], s56 offen lds", f"c{c}")
    a(f"""
    v_lshrrev_b32 v10, 4, v2
    v_and_b32 v6, 15, v2
    v_lshrrev_b32 v31, 2, v6
    v_and_b32 v6, 3, v6
    v_lshrrev_b32 v30, 1, v10
    v_lshlrev_b32 v30, 3, v30
    v_add_u32 v30, v30, v31
    v_lshlrev_b32 v30, 8, v30
    v_lshlrev_b32 v6, 3, v6
    v_add_u32 v30, v30, v6
    v_and_b32 v10, 1, v10
    v_lshlrev_b32 v10, 5, v10
    v_add_u32 v30, v30, v10
    s_lshl_b32 s57, s21, 1
    v_xor_b32 v10, s57, v31
    v_lshlrev_b32 v10, 6, v10
    v_add_u32 v{TR}, v30, v10
    s_add_u32 s57, s57, 1
    v_xor_b32 v10, s57, v31
    v_lshlrev_b32 v10, 6, v10
    v_add_u32 v{TR+1}, v30, v10
    v_add_u32 v{TR+2}, 0x10000, v{TR}
    v_add_u32 v{TR+3}, 0x10000, v{TR+1}
    v_add_u32 v{TR+4}, 0x20000, v{TR}
    v_add_u32 v{TR+5}, 0x20000, v{TR+1}
    v_and_b32 v10, 31, v2
    v_lshrrev_b32 v6, 5, v2
    v_and_b32 v31, 15, v2
    v_xor_b32 v6, v6, v31
    s_lshl_b32 s57, s20, 15
    v_lshlrev_b32 v10, 10, v10
    v_add_u32 v10, s57, v10
    """)
    for tt in range(8):
        a(f"v_xor_b32 v31, {2*tt}, v6")
        a(f"v_lshl_add_u32 v{ACC+tt}, v31, 4, v10")
    a(f"""
    s_mov_b32 s26, 0x3f803f80
    s_mov_b32 s27, 0xffff0000
    v_mov_b32 v24, 0
    v_mov_b32 v25, 0
    v_mov_b32 v26, 0
    v_mov_b32 v27, 0
    s_lshl_b32 s57, s21, 6
    """)
    a.stamp()
    a.wait_vm("x")
    a("s_barrier")
    a.stamp()
    for c in (0, 1):
        for u in range(2): dma_one(c, u)
    for c in range(2, 2 + BWARM):
        a(f"s_xor_b32 s56, s58, {c}")
        a("s_mul_i32 s56, s56, s55")
        a("s_add_u32 s56, s56, s52")
        a.vmem(f"buffer_load_dwordx4 v[{PFD}:{PFD+3}], v{VD}, s[44:47], s56 offen", "bw")
        a.vmem(f"buffer_load_dwordx4 v[{PFD}:{PFD+3}], v22, s[44:47], s56 offen", "bw")
    for t in range(32):
        a(f"ds_read_b128 v[{A0+4*t}:{A0+4*t+3}], v{ACC + t%8} offset:{(t//8)*256}")
    a.wait_vm("w")
    for i in range(4):
        a(f"v_lshl_or_b32 v{WL+12+i}, v{WL+4+i}, 16, v{WL+i}")
    a(f"""
    s_cmp_eq_u32 s3, 7
    s_cbranch_scc0 k1_nosp2
    v_lshl_or_b32 v{WL+8}, v{WL+9}, 16, v{WL+8}
    buffer_store_dword v{WL+8}, v{WL+10}, s[40:43], 0 offen sc1
    v_mov_b32 v4, 0
    v_mov_b32 v5, 0x7fffff00
    v_cmp_eq_u32 vcc, 0, v2
    s_lshl_b32 s51, s2, 4
    s_add_u32 s51, s51, {WS_FL}
    v_cndmask_b32 v5, v5, v4, vcc
    buffer_store_dword v4, v5, s[40:43], s51 offen sc1
    s_add_u32 s51, s51, 8192
    buffer_store_dword v4, v5, s[40:43], s51 offen sc1
    s_cmp_eq_u32 s2, 0
    s_cbranch_scc0 k1_nosp2
    s_or_b32 s70, s70, 1
    v_mov_b32 v5, s70
    s_mov_b64 exec, 1
    global_store_dword v4, v5, s[68:69] sc1
    s_mov_b64 exec, -1
    k1_nosp2:
    """)
    a("s_waitcnt lgkmcnt(14)")
    a("s_set_gpr_idx_on s57, gpr_idx(SRC0,SRC1)")
    for t in range(16):
        if t % 2 == 0 and t > 0:
            a(f"s_waitcnt lgkmcnt({max(14 - t, 0)})")
        for r in range(4):
            reg = A0 + 4*t + r
            a(f"v_dot2_f32_bf16 v{24 + r%2}, v{reg}, s26, v{24 + r%2}")
            a(f"v_dot2_f32_bf16 v{26 + r%2}, v{reg}, v{reg}, v{26 + r%2}")
    a("s_set_gpr_idx_off")
    a(f"""
    s_waitcnt lgkmcnt(0)
    s_barrier
    v_add_f32 v24, v24, v25
    v_add_f32 v25, v26, v27
    v_mov_b32 v26, v24
    v_mov_b32 v27, v25
    s_lshl_b32 s57, s3, 9
    s_add_u32 s57, s57, {SPARE + 4096}
    v_lshlrev_b32 v10, 3, v2
    v_permlane32_swap_b32 v24, v26
    v_permlane32_swap_b32 v25, v27
    v_add_u32 v10, s57, v10
    v_add_f32 v24, v24, v26
    v_add_f32 v25, v25, v27
    v_xor_b32 v6, 0x800, v10
    ds_write_b64 v10, v[24:25]
    s_lshl_b32 s57, s3, 2
    s_add_u32 s57, s57, {SPARE}
    v_mov_b32 v{VFA}, s57
    v_mov_b32 v{VPG}, 0
    ds_write_b32 v{VFA}, v{VPG}
    v_and_b32 v{VFL}, 7, v2
    v_xor_b32 v4, s3, v{VFL}
    v_lshlrev_b32 v4, 4, v4
    v_lshl_add_u32 v4, v2, 7, v4
    v_add_u32 v4, {SPARE + 8192}, v4
    ds_write_b128 v4, v[{WL+12}:{WL+15}]
    v_lshlrev_b32 v{VFL}, 2, v{VFL}
    v_add_u32 v{VFL}, {SPARE}, v{VFL}
    """)
    a.stamp()
    pend = [(c, u) for c in range(2, 16) for u in range(2)]
    for _ in range(2*K1_PRE): dma_one(*pend.pop(0))
    getpc_tab(a, 32, "tab_G")
    a(f"""
    s_mov_b32 s34, {524288 + TSZ}
    s_mov_b32 s28, s60
    s_mov_b32 s29, s61
    s_mov_b32 s30, {1792*1024}
    s_lshr_b32 s50, s2, 3
    s_lshl_b32 s50, s50, 3
    s_add_u32 s50, s50, s3
    s_mul_i32 s62, s50, 7168
    s_mul_i32 s63, s50, 3072
    v_lshrrev_b32 v4, 3, v2
    v_and_b32 v5, 7, v2
    v_xor_b32 v30, v4, v5
    v_lshlrev_b32 v30, 4, v30
    v_lshl_add_u32 v30, v4, 7, v30
    s_lshl_b32 s57, s3, 10
    s_add_u32 s57, s57, {SPARE + 8192}
    v_add_u32 v30, s57, v30
    v_lshlrev_b32 v5, 4, v5
    v_lshl_add_u32 v5, v4, 13, v5
    s_and_b32 s57, s2, 3
    s_lshl_b32 s57, s57, 3
    s_add_u32 s57, s57, s3
    s_lshl_b32 s57, s57, 16
    s_lshr_b32 s51, s2, 2
    s_lshl_b32 s51, s51, 7
    s_add_u32 s57, s57, s51
    s_add_u32 s51, s57, {WS_W}
    """)
    a.stamp()
    vm_save = list(a.vm); nst_save = a.nst; pend_save = list(pend)

    def p2(i, r):
        reg = A0 + i*4 + r
        t0, t1 = PT + 2*r, PT + 2*r + 1
        return [f"v_lshlrev_b32 v{t0}, 16, v{reg}", f"v_and_b32 v{t1}, s27, v{reg}",
                f"v_add_f32 v{t0}, v{VNM}, v{t0}", f"v_add_f32 v{t1}, v{VNM}, v{t1}",
                f"v_cvt_pk_bf16_f32 v{reg}, v{t0}, v{t1}"]
    def p2_sched(i):
        o = [p2(i, r) for r in range(4)]
        seq = [o[0][0], o[0][1], o[1][0], o[1][1], o[2][0],
               o[2][1], o[3][0], o[3][1], o[0][2], o[0][3],
               o[1][2], o[1][3], o[2][2], o[2][3], o[3][2],
               o[3][3], o[0][4], o[1][4], o[2][4], o[3][4]]
        return [seq[5*g:5*g+5] for g in range(4)]

    def mainloop(dft):
        a.vm = list(vm_save); a.nst = nst_save
        pend = list(pend_save)
        lab = "d" if dft else "g"
        def reads(i, buf):
            c, s_ = i // 2, i % 2
            pos = RING[c % 9] * 16384
            win, base = pos >> 16, pos & 0xffff
            for P in range(2):
                for T in range(2):
                    fr = BF + buf*16 + (P*2+T)*4
                    for t in range(2):
                        off = base + P*8192 + (16*s_ + 4*t)*256
                        a(f"ds_read_b64_tr_b16 v[{fr+2*t}:{fr+2*t+1}], v{TR+2*win+T} offset:{off}")
        def mfma(i, buf, tile):
            areg = A0 + 4*i
            fr = BF + buf*16 + tile*4
            acc = ACC + tile*16
            cin = "0" if i == 0 else f"v[{acc}:{acc+15}]"
            if dft:
                a(f"v_mfma_f32_32x32x16_bf16 v[{acc}:{acc+15}], v[{areg}:{areg+3}], v[{fr}:{fr+3}], {cin}")
            else:
                a(f"v_mfma_f32_32x32x16_bf16 v[{acc}:{acc+15}], v[{fr}:{fr+3}], v[{areg}:{areg+3}], {cin}")
        a.wait_vm("c1")
        a("s_waitcnt lgkmcnt(0)")
        a("s_barrier")
        a.stamp()
        a("ds_read_b64 v[26:27], v6")
        a(f"ds_read_b128 v[{WL}:{WL+3}], v30")
        reads(0, 0)
        a(f"""
        s_waitcnt lgkmcnt(8)
        v_add_f32 v24, v24, v26
        v_add_f32 v25, v25, v27
        v_mul_f32 v24, 0x3b000000, v24
        v_mul_f32 v25, 0x3b000000, v25
        v_fma_f32 v{VVAR}, -v24, v24, v25
        v_cvt_pk_bf16_f32 v27, v24, v24
        v_lshlrev_b32 v27, 16, v27
        v_sub_f32 v{VNM}, 0, v27
        v_mul_f32 v29, v24, v24
        v_mul_f32 v30, 0x43800000, v{VVAR}
        v_cmp_gt_f32 vcc, v29, v30
        """)
        a.vmem(f"buffer_store_dwordx4 v[{WL}:{WL+3}], v5, s[40:43], s51 offen {STP}", "ws")
        a(f"""
        s_cbranch_vccz k1_fast{lab}
        v_mov_b32 v28, 0
        v_mov_b32 v29, 0
        s_mov_b32 s56, 0
        k1_slow{lab}:
        s_set_gpr_idx_on s56, gpr_idx(SRC1)
        v_lshlrev_b32 v30, 16, v{A0}
        v_and_b32 v31, s27, v{A0}
        s_set_gpr_idx_off
        v_add_f32 v30, v{VNM}, v30
        v_add_f32 v31, v{VNM}, v31
        v_fma_f32 v28, v30, v30, v28
        v_fma_f32 v29, v31, v31, v29
        s_add_u32 s56, s56, 1
        s_cmp_lt_u32 s56, 128
        s_cbranch_scc1 k1_slow{lab}
        v_add_f32 v28, v28, v29
        v_mov_b32 v29, v28
        v_sub_f32 v26, v24, v27
        s_nop 0
        v_permlane32_swap_b32 v28, v29
        v_add_f32 v28, v28, v29
        v_mul_f32 v28, 0x3b000000, v28
        v_fma_f32 v{VVAR}, -v26, v26, v28
        k1_fast{lab}:
        """)
        for g in p2_sched(0):
            for ins in g: a(ins)
        a.stamp()
        limit = 8
        npf = 0
        for i in range(32):
            c, s_ = i // 2, i % 2
            buf = i & 1
            if s_ == 0:
                if c >= 1 and c < 15: a(f"ds_read_b32 v0, v{VFL}")
                reads(i + 1, buf ^ 1)
                a("s_waitcnt lgkmcnt(8)")
                if c + 2 < 16:
                    assert not pend or pend[0][0] > c + 2
                    a.wait_vm(f"c{c+2}")
                    a(f"v_mov_b32 v{VPG}, {c+1}")
                    a(f"ds_write_b32 v{VFA}, v{VPG}")
            else:
                if i + 1 < 32:
                    if c >= 1:
                        a(f"""
                        k1_spin{lab}{c}:
                        v_cmp_gt_u32 vcc, {c}, v0
                        s_cbranch_vccz k1_ok{lab}{c}
                        ds_read_b32 v0, v{VFL}
                        s_waitcnt lgkmcnt(0)
                        s_branch k1_spin{lab}{c}
                        k1_ok{lab}{c}:
                        """)
                        limit = c + 7
                    reads(i + 1, buf ^ 1)
                    a("s_waitcnt lgkmcnt(8)")
                else:
                    a("s_waitcnt lgkmcnt(0)")
            groups = p2_sched(i + 1) if (i + 1 < 32 and not X_NOP2) else [[], [], [], []]
            for tile in range(4):
                mfma(i, buf, tile)
                for ins in groups[tile]: a(ins)
                if tile in (0, 2) and pend and pend[0][0] <= limit:
                    dma_one(*pend.pop(0))
                if PREF and tile == 1 and i >= PFS and npf < 10:
                    if npf < 7:
                        a.vmem(f"buffer_load_dwordx4 v[{PFD}:{PFD+3}], v{VPF}, s[28:31], s62 offen offset:{(npf % 4)*1024}", "pf")
                        if npf == 3: a("s_add_u32 s62, s62, 4096")
                    else:
                        a.vmem(f"buffer_load_dwordx4 v[{PFD}:{PFD+3}], v{VPF}, s[32:35], s63 offen offset:{(npf-7)*1024}", "pf")
                    npf += 1
            if i % 8 == 7 and i < 31: a.stamp()
            if MERGE and i == 28:
                a("v_mov_b32 v23, 0")
                a.vmem("global_load_dword v23, v23, s[68:69] sc1", "nonce")
        assert not pend
        a(f"""
        v_max_f32 v28, 0, v{VVAR}
        v_cvt_pk_bf16_f32 v28, v28, v28
        v_lshlrev_b32 v28, 16, v28
        v_add_f32 v28, 0x3727c5ac, v28
        v_cvt_pk_bf16_f32 v28, v28, v28
        v_lshlrev_b32 v28, 16, v28
        v_sqrt_f32 v28, v28
        s_nop 0
        v_cvt_pk_bf16_f32 v28, v28, v28
        v_lshlrev_b32 v28, 16, v28
        v_rcp_f32 v11, v28
        s_nop 4
        """)
        a.stamp()
    a("""
    s_cmp_lt_u32 s19, 14
    s_cbranch_scc0 k1_dft
    """)
    mainloop(False)
    a(f"""
    s_mul_i32 s50, s22, 112
    s_lshl_b32 s51, s19, 3
    s_add_u32 s50, s50, s51
    s_lshl_b32 s51, s21, 2
    s_add_u32 s50, s50, s51
    s_lshl_b32 s50, s50, 10
    s_add_u32 s50, s50, {WS_H}
    v_lshlrev_b32 v3, 4, v2
    v_mov_b32 v10, v11
    """)
    for T in range(2):
        G = ACC + T*16; U = ACC + 32 + T*16
        O = BF + T*8; Q = A0 + T*16
        for p in range(8):
            a(f"v_pk_mul_f32 v[{G+2*p}:{G+2*p+1}], v[{G+2*p}:{G+2*p+1}], v[10:11]")
            a(f"v_pk_mul_f32 v[{U+2*p}:{U+2*p+1}], v[{U+2*p}:{U+2*p+1}], v[10:11]")
        for p in range(16):
            a(f"v_max_f32 v{G+p}, 0, v{G+p}")
        for p in range(8):
            a(f"v_cvt_pk_bf16_f32 v{Q+p}, v{G+2*p}, v{G+2*p+1}")
            a(f"v_cvt_pk_bf16_f32 v{Q+8+p}, v{U+2*p}, v{U+2*p+1}")
        for p in range(8):
            a(f"v_lshlrev_b32 v{G+2*p}, 16, v{Q+p}")
            a(f"v_and_b32 v{G+2*p+1}, s27, v{Q+p}")
            a(f"v_lshlrev_b32 v{U+2*p}, 16, v{Q+8+p}")
            a(f"v_and_b32 v{U+2*p+1}, s27, v{Q+8+p}")
        for p in range(8):
            a(f"v_pk_mul_f32 v[{G+2*p}:{G+2*p+1}], v[{G+2*p}:{G+2*p+1}], v[{U+2*p}:{U+2*p+1}]")
        for p in range(8):
            a(f"v_cvt_pk_bf16_f32 v{O+p}, v{G+2*p}, v{G+2*p+1}")
        a(f"buffer_store_dwordx4 v[{O}:{O+3}], v3, s[40:43], s50 offen offset:{T*2048} {STP}")
        a(f"buffer_store_dwordx4 v[{O+4}:{O+7}], v3, s[40:43], s50 offen offset:{T*2048+1024} {STP}")
    a.stamp()
    if STAMP: a("s_waitcnt vmcnt(0)")
    a.stamp()
    a.stamp_store(0)
    a("s_branch ph2" if MERGE else "s_endpgm")
    a.raw("k1_dft:")
    mainloop(True)
    a("""
    v_lshrrev_b32 v3, 5, v2
    v_lshlrev_b32 v3, 4, v3
    """)
    for i in range(16):
        a(f"v_add_u32 v4, {4*(8*(i>>2) + (i&3))}, v3")
        a(f"ds_bpermute_b32 v{BF+i}, v4, v11")
    a(f"""
    v_and_b32 v4, 31, v2
    v_lshrrev_b32 v5, 5, v2
    s_lshl_b32 s50, s20, 2
    v_add_u32 v5, s50, v5
    v_and_b32 v6, 15, v2
    v_xor_b32 v5, v5, v6
    v_lshlrev_b32 v5, 4, v5
    v_lshl_add_u32 v5, v4, 8, v5
    s_lshl_b32 s50, s21, 14
    v_add_u32 v5, s50, v5
    v_xor_b32 v6, 32, v5
    s_waitcnt lgkmcnt(0)
    s_barrier
    """)
    for P in range(2):
        for T in range(2):
            acc = ACC + (P*2+T)*16
            for p in range(8):
                a(f"v_pk_mul_f32 v[{acc+2*p}:{acc+2*p+1}], v[{acc+2*p}:{acc+2*p+1}], v[{BF+2*p}:{BF+2*p+1}]")
            O = A0 + 32 + (P*2+T)*8
            for p in range(8):
                a(f"v_cvt_pk_f16_f32 v{O+p}, v{acc+2*p}, v{acc+2*p+1}")
            a("s_nop 1")
            for q in (0, 2):
                a(f"v_permlane32_swap_b32 v{O+2*q}, v{O+2*q+2}")
                a(f"v_permlane32_swap_b32 v{O+2*q+1}, v{O+2*q+3}")
            a(f"ds_write_b128 v5, v[{O}:{O+3}] offset:{(128*P + 32*T)*256}")
            a(f"ds_write_b128 v6, v[{O+4}:{O+7}] offset:{(128*P + 32*T)*256}")
    a(f"""
    v_lshrrev_b32 v4, 4, v2
    v_and_b32 v5, 15, v2
    s_lshl_b32 s50, s3, 13
    v_lshlrev_b32 v3, 4, v5
    v_lshl_add_u32 v3, v4, 12, v3
    v_xor_b32 v5, v5, v4
    v_lshlrev_b32 v4, 8, v4
    v_add_u32 v4, s50, v4
    s_sub_u32 s50, s19, 14
    s_lshl_b32 s50, s50, 8
    s_lshl_b32 s51, s3, 5
    s_add_u32 s50, s50, s51
    s_lshl_b32 s50, s50, 12
    s_lshl_b32 s51, s18, 8
    s_add_u32 s50, s50, s51
    s_add_u32 s50, s50, {WS_Y}
    """)
    for j in range(4):
        a(f"v_xor_b32 v6, {4*j}, v5")
        a(f"v_lshl_add_u32 v{16+j}, v6, 4, v4")
    a("s_waitcnt lgkmcnt(0)")
    a("s_barrier")
    for j in range(8):
        a(f"ds_read_b128 v[{ACC+4*j}:{ACC+4*j+3}], v{16 + j%4} offset:{j*1024}")
    for j in range(8):
        a(f"s_waitcnt lgkmcnt({7-j})")
        a(f"buffer_store_dwordx4 v[{ACC+4*j}:{ACC+4*j+3}], v3, s[40:43], s50 offen {STP}")
        a("s_add_u32 s50, s50, 16384")
    a.stamp()
    if STAMP: a("s_waitcnt vmcnt(0)")
    a.stamp()
    a.stamp_store(0)
    if MERGE: a("s_branch ph2")
    a.raw("k1_end:")
    a("s_endpgm")
    return a.text()

TE1, TE2, TE3, TE4, TT1, TT2, TSZ = 0, 4096, 20480, 36864, 40960, 49152, 57344
def small_tables():
    buf = np.zeros(TSZ // 2, np.uint16)
    l = np.arange(64); c = l % 16; g = l // 16; j = np.arange(8)
    for t in range(2):
        ang = -2*np.pi*((8*g[:,None]+j[None,:])*(16*t+c)[:,None] % 32)/32
        buf[(TE1 + (0*2+t)*1024)//2:][:512] = f16(np.cos(ang)/8).ravel()
        buf[(TE1 + (1*2+t)*1024)//2:][:512] = f16(np.sin(ang)/8).ravel()
    for w in range(4):
        for st in range(2):
            ang = -2*np.pi*((32*st+8*g[:,None]+j[None,:])*(16*w+c)[:,None] % 64)/64
            buf[(TE2 + ((w*2+0)*2+st)*1024)//2:][:512] = f16(np.cos(ang)/8).ravel()
            buf[(TE2 + ((w*2+1)*2+st)*1024)//2:][:512] = f16(np.sin(ang)/8).ravel()
            buf[(TE3 + ((w*2+0)*2+st)*1024)//2:][:512] = bf16(np.cos(-ang)/8).ravel()
            buf[(TE3 + ((w*2+1)*2+st)*1024)//2:][:512] = bf16(np.sin(-ang)/8).ravel()
    sig = 16*(j[None,:]//4) + 4*g[:,None] + (j[None,:] % 4)
    for tp in range(2):
        ang = 2*np.pi*((sig*(16*tp+c)[:,None]) % 32)/32
        buf[(TE4 + (0*2+tp)*1024)//2:][:512] = bf16(np.cos(ang)/8).ravel()
        buf[(TE4 + (1*2+tp)*1024)//2:][:512] = bf16(np.sin(ang)/8).ravel()
    for w in range(4):
        for e in range(8):
            t, i = e // 4, e % 4
            a1 = -2*np.pi*(((16*w+4*g+i)*(16*t+c)) % 2048)/2048
            a2 = 2*np.pi*(((16*w+c)*(16*t+4*g+i)) % 2048)/2048
            for (base, an) in ((TT1, a1), (TT2, a2)):
                o = (base + (w*2 + e//4)*1024)//2 + l*8 + (e % 4)*2
                buf[o] = f16(np.cos(an)); buf[o+1] = f16(np.sin(an))
    return buf

K3_NS = 5
CSTR = int(os.environ.get('CSTR','2'))
NUP = int(os.environ.get('NUP','16'))
ZSC = os.environ.get('ZSC','sc1')
HSC = 'sc1' if MERGE else ''
MPRE = int(os.environ.get('MPRE','16'))
PSLEEP = int(os.environ.get('PSLEEP','4'))
GLAG = int(os.environ.get('GLAG','5'))
ZMIN = int(os.environ.get('ZMIN','40'))
POLLD = int(os.environ.get('POLLD','5'))
HDIST = int(os.environ.get('HDIST','12'))
ZSTART = int(os.environ.get('ZSTART','28'))
ZTAIL = int(os.environ.get('ZTAIL','0'))
NIDLE = int(os.environ.get('NIDLE','2'))
NZB = int(os.environ.get('NZB','1'))
LOADALL = os.environ.get('LOADALL','1') == '1'
CPRIO = int(os.environ.get('CPRIO','2'))
LATEC = int(os.environ.get('LATEC','1'))
def gen_k23_main():
    a = Asm()
    if MERGE:
        a.raw("ph2:")
        a(f"""
        s_load_dwordx4 s[8:11], s[0:1], 48
        s_load_dwordx2 s[14:15], s[0:1], 72
        s_waitcnt vmcnt(0) lgkmcnt(0)
        s_barrier
        s_mov_b32 s27, 0
        ph2_n:
        v_readfirstlane_b32 s6, v23
        s_cmp_lg_u32 s6, 0
        s_cbranch_scc1 ph2_have
        s_add_u32 s27, s27, 1
        s_cmp_ge_u32 s27, 0x8000
        s_cbranch_scc1 ph2_have
        v_mov_b32 v23, 0
        s_sleep 4
        global_load_dword v23, v23, s[68:69] sc1
        s_waitcnt vmcnt(0)
        s_branch ph2_n
        ph2_have:
        s_cmp_eq_u32 s3, 4
        s_cbranch_scc0 ph2_nopub
        s_lshl_b32 s26, s2, 4
        s_add_u32 s26, s26, {WS_FL + 8192}
        v_mov_b32 v7, 0
        s_mov_b64 exec, 1
        buffer_store_dword v23, v7, s[40:43], s26 offen sc1
        s_mov_b64 exec, -1
        ph2_nopub:
        s_lshl_b32 s26, s3, 6
        v_add_u32 v0, s26, v2
        """)
    else:
        a.raw(".p2align 8\nk23_kernel:")
        a("""
        s_cmp_ge_u32 s2, 256
        s_cbranch_scc1 k23_end
        s_load_dwordx2 s[4:5], s[0:1], 0
        s_load_dwordx4 s[8:11], s[0:1], 48
        s_load_dwordx2 s[14:15], s[0:1], 72
        v_lshrrev_b32 v1, 6, v0
        v_and_b32 v2, 63, v0
        s_mov_b32 s6, 1
        v_readfirstlane_b32 s3, v1
        """)
    a("""
    v_and_b32 v3, 15, v2
    v_lshrrev_b32 v4, 4, v2
    s_mov_b32 s48, 0x80008000
    s_mov_b32 s49, 0xffff0000
    s_cmp_ge_u32 s3, 4
    s_cbranch_scc1 k23_conv
    """)
    SB = 131072
    NCB = 5 + NIDLE + NZB
    getpc_tab(a, 24, "tab_G")
    srd(a, 44, "s24", "s25", 524288)
    if os.environ.get("K3_MAP", "1") == "0":
        a("""
    s_and_b32 s16, s2, 7
    s_lshr_b32 s17, s2, 3
    s_lshr_b32 s18, s16, 1
    s_lshl_b32 s18, s18, 3
    s_and_b32 s19, s17, 7
    s_add_u32 s18, s18, s19
    s_lshl_b32 s58, s19, 1
    s_and_b32 s19, s16, 1
    s_lshl_b32 s19, s19, 2
    s_lshr_b32 s20, s17, 3
    s_add_u32 s19, s19, s20
    s_lshl_b32 s20, s20, 2
    s_add_u32 s58, s58, s20
    """)
    else:
        a("""
    s_and_b32 s16, s2, 7
    s_lshr_b32 s17, s2, 3
    s_lshl_b32 s18, s16, 2
    s_and_b32 s19, s17, 3
    s_add_u32 s18, s18, s19
    s_lshl_b32 s58, s19, 2
    s_lshr_b32 s19, s17, 2
    s_lshl_b32 s20, s19, 1
    s_add_u32 s58, s58, s20
    """)
    a.sb = 92; a.maxst = 5
    XR = 8; PV = 16; VO, VF, VW, VZ, VH = 20, 21, 22, 23, 24
    VPG, VFA, VFL, VFV = 25, 26, 27, 28
    TRW = 29
    TRZ = 37
    GFR = 39
    VW2, VZ2 = 41, 42
    ACG, ACS = 44, 60
    FB = 76
    HB = 136; NHB = 28
    PW = SB + 28672
    NCH = 36
    a(f"""
    s_cmp_ge_u32 s58, 14
    s_cselect_b32 s20, 14, 0
    s_sub_u32 s58, s58, s20
    s_lshl_b32 s58, s58, 1
    s_add_u32 s12, s18, s19
    s_and_b32 s12, s12, 7
    s_and_b32 s20, s3, 1
    s_lshr_b32 s21, s3, 1
    s_lshl_b32 s22, s18, 1
    s_add_u32 s22, s22, s21
    v_lshlrev_b32 v{VF}, 4, v2
    v_lshrrev_b32 v6, 3, v2
    v_and_b32 v5, 7, v2
    v_lshrrev_b32 v5, 1, v5
    v_lshrrev_b32 v1, 1, v6
    v_xor_b32 v5, v5, v1
    v_lshlrev_b32 v5, 5, v5
    v_and_b32 v1, 1, v2
    v_lshl_add_u32 v5, v1, 4, v5
    v_lshl_add_u32 v{VW}, v6, 10, v5
    v_lshl_add_u32 v{VZ}, v6, 12, v5
    s_lshl_b32 s27, s19, 7
    v_add_u32 v{VW}, s27, v{VW}
    s_lshl_b32 s27, s18, 7
    s_add_u32 s27, s27, {WS_Z}
    v_add_u32 v{VZ}, s27, v{VZ}
    v_add_u32 v{VW2}, 8192, v{VW}
    v_add_u32 v{VZ2}, 32768, v{VZ}
    v_lshlrev_b32 v{VH}, 9, v4
    v_lshl_add_u32 v{VH}, v3, 4, v{VH}
    s_mul_i32 s50, s22, 112
    s_lshl_b32 s50, s50, 10
    s_lshl_b32 s27, s20, 8
    s_add_u32 s50, s50, s27
    s_add_u32 s50, s50, {WS_H}
    s_lshl_b32 s51, s19, 1
    s_add_u32 s51, s51, s21
    s_lshl_b32 s51, s51, 5
    s_lshl_b32 s27, s20, 1
    s_add_u32 s51, s51, s27
    s_lshl_b32 s51, s51, 10
    s_lshl_b32 s52, s3, 11
    s_lshl_b32 s54, s3, 14
    s_lshl_b32 s55, s3, 16
    s_mov_b32 s59, {WS_FL}
    s_lshl_b32 s27, s3, 2
    s_add_u32 s27, s27, {PW}
    v_mov_b32 v{VFA}, s27
    v_mov_b32 v{VPG}, 0
    v_and_b32 v{VFL}, 3, v2
    v_lshlrev_b32 v{VFL}, 2, v{VFL}
    v_add_u32 v{VFL}, {PW}, v{VFL}
    ds_write_b32 v{VFA}, v{VPG}
    s_waitcnt lgkmcnt(0)
    """)
    a.stamp()
    srd(a, 40, "s14", "s15", WS_SIZE)
    srd(a, 32, "s8", "s9", 1792*1024)
    isd = lambda c: c < 28
    upos = {}; p_ = 0
    for c in range(NCH):
        upos[c] = p_ % 16; p_ += 1 if isd(c) else 2
    ustart = {}; p_ = 0
    for c in range(NCH):
        ustart[c] = p_; p_ += 1 if isd(c) else 2
    uend = lambda c: ustart[c] + (1 if isd(c) else 2)
    a(f"""
    v_add_u32 v{VW}, s54, v{VW}
    v_add_u32 v{VW2}, s54, v{VW2}
    v_add_u32 v43, s50, v{VH}
    s_lshl_b32 s64, s58, 12
    """)
    def tab(c):
        a(f"s_add_u32 s{64+c}, s{63+c}, 4096")
        a(f"s_cmp_eq_u32 s{64+c}, {28*4096}")
        a(f"s_cselect_b32 s{64+c}, 0, s{64+c}")
    def dma_one(c, u):
        if isd(c):
            a(f"s_add_u32 m0, s52, {upos[c]*8192 + u*1024}")
            if u == 0: a(f"s_lshl_b32 s63, s{64+c}, 4")
            else: a("s_nop 0")
            a.vmem(f"buffer_load_dwordx4 v{VW if u == 0 else VW2}, s[32:35], s63 offen lds", f"c{c}")
            return
        if u == 0:
            a(f"s_xor_b32 s57, s12, {c-28}")
            a(f"s_lshl_b32 s62, s57, 12"); a(f"s_add_u32 s62, s62, s51")
            a(f"s_lshl_b32 s63, s57, 18"); a(f"s_add_u32 s63, s63, s55")
        if u < 2:
            a(f"s_add_u32 m0, s52, {upos[c]*8192 + u*1024}")
            a("s_nop 0")
            a.vmem(f"buffer_load_dwordx4 v{VZ if u == 0 else VZ2}, s[40:43], s63 offen {ZSC} lds", f"c{c}")
        else:
            if u == 2:
                a(f"s_add_u32 m0, s52, {((upos[c]+1) % 16)*8192}")
                a("s_nop 0")
            else:
                a(f"s_add_u32 m0, s52, {((upos[c]+1) % 16)*8192}")
                a("s_nop 0")
            a.vmem(f"buffer_load_dwordx4 v{VF}, s[44:47], s62 offen offset:{(u-2)*1024} lds", f"c{c}")
    def hload(j):
        c, s_ = j // 2, j % 2
        hb = HB + (j % NHB) * 4
        a.vmem(f"buffer_load_dwordx4 v[{hb}:{hb+3}], v43, s[40:43], s{64+c} offen offset:{s_*2048} {HSC}", f"h{j}")
    tab(1)
    pend = [(c, u) for c in range(NCH) for u in range(2 if isd(c) else 4)]
    hp = [0]
    if MERGE:
        for c in range(2, 28): tab(c)
        for c in range(MPRE):
            for u in range(2): dma_one(*pend.pop(0))
    else:
        for c in range(2):
            for u in range(2): dma_one(*pend.pop(0))
            for _ in range(2): hload(hp[0]); hp[0] += 1
        for c in range(2, 28): tab(c)
        a("s_barrier")
        for c in range(NUP // 4):
            for u in range(2): dma_one(*pend.pop(0))
            for _ in range(2): hload(hp[0]); hp[0] += 1
    srd(a, 36, "s10", "s11", 2048*1024)
    srd(a, 28, "s4", "s5", 2048*1024)
    a(f"""
    v_lshrrev_b32 v{PV}, 2, v3
    v_and_b32 v{PV+1}, 3, v3
    v_lshrrev_b32 v{PV+2}, 1, v4
    v_lshlrev_b32 v{PV+2}, 4, v{PV+2}
    v_and_b32 v{PV+3}, 1, v4
    v_lshl_add_u32 v{PV+2}, v{PV+3}, 2, v{PV+2}
    v_add_u32 v{PV+2}, v{PV+2}, v{PV}
    v_lshlrev_b32 v{PV+2}, 7, v{PV+2}
    v_lshl_add_u32 v{PV+2}, v{PV+1}, 3, v{PV+2}
    v_lshrrev_b32 v{PV}, 1, v{PV}
    v_lshl_add_u32 v{PV}, v{PV+3}, 1, v{PV}
    """)
    for dt in range(4):
        a(f"v_xor_b32 v{PV+1}, {dt}, v{PV}")
        a(f"v_lshl_add_u32 v{TRW+dt}, v{PV+1}, 5, v{PV+2}")
        a(f"v_add_u32 v{TRW+4+dt}, 0x10000, v{TRW+dt}")
    a(f"""
    v_xor_b32 v{PV+1}, s3, v{PV}
    v_lshl_add_u32 v{TRZ}, v{PV+1}, 5, v{PV+2}
    v_add_u32 v{TRZ+1}, 0x10000, v{TRZ}
    v_mov_b32 v{GFR}, v{VH}
    v_add_u32 v{GFR+1}, 0x10000, v{VH}
    v_lshrrev_b32 v1, 3, v2
    v_and_b32 v{VO}, 7, v2
    v_lshlrev_b32 v{VO}, 4, v{VO}
    v_lshl_add_u32 v{VO}, v1, 16, v{VO}
    s_lshl_b32 s23, s22, 10
    s_lshl_b32 s26, s19, 7
    s_add_u32 s23, s23, s26
    s_lshl_b32 s26, s20, 20
    s_add_u32 s23, s23, s26
    s_add_u32 s13, s23, 0x80000
    """)
    if MERGE:
        a("s_barrier")
        for _ in range(HDIST): hload(hp[0]); hp[0] += 1
    DEPTH = 3
    NST = NCH * 2
    LAG = GLAG
    pubs = []
    def full_issued():
        return (pend[0][0] - 1) if pend else NCH - 1
    def arrive(want, rdone):
        q = min(want, full_issued(), NCH - 1)
        for cc in range(q, -1, -1):
            if f"c{cc}" in a.vm:
                a.wait_vm(f"c{cc}"); break
        pubs.append((q, rdone))
        a(f"v_mov_b32 v{VPG}, {len(pubs)}")
        a.lds(f"ds_write_b32 v{VFA}, v{VPG}", "pw")
    nspin = [0]
    checked = [0]
    fvp = [False]
    def check(k):
        n = nspin[0]; nspin[0] += 1
        if not fvp[0]:
            a.lds(f"ds_read_b32 v{VFV}, v{VFL}", "fv")
        fvp[0] = False
        a.wait_lds("fv")
        a(f"""
        k23_gs{n}:
        v_cmp_gt_u32 vcc, {k}, v{VFV}
        s_cbranch_vccz k23_go{n}
        ds_read_b32 v{VFV}, v{VFL}
        s_waitcnt lgkmcnt(0)
        s_branch k23_gs{n}
        k23_go{n}:
        """)
        checked[0] = k
        rd = pubs[k-1][1]
        if rd >= 0: ulimit[0] = max(ulimit[0], uend(rd) + 16)
    ulimit = [16]
    def reads(i):
        c, s_ = i // 2, i % 2
        if s_ == 0:
            have = pubs[checked[0]-1][0] if checked[0] else -1
            if have < c or c % 2 == 0:
                need = min(c + 1, NCH - 1) if c % 2 == 0 else c
                ks = [k+1 for k, (q, r) in enumerate(pubs) if q >= need]
                if not ks: ks = [k+1 for k, (q, r) in enumerate(pubs) if q >= c]
                assert ks, ("no publish covers chunk", c, pubs)
                k = max(ks[0], checked[0])
                if k > checked[0]: check(k)
            if c in (0, 12, 28): a.stamp()
            if c % 2 == 1 and c + 1 < NCH and c >= 3:
                a.lds(f"ds_read_b32 v{VFV}, v{VFL}", "fv"); fvp[0] = True
        fb = FB + (i % DEPTH) * 20
        u0 = upos[c] * 8192
        w0, b0 = u0 >> 16, u0 & 0xffff
        if isd(c):
            for dt in range(4):
                for t in range(2):
                    a.lds(f"ds_read_b64_tr_b16 v[{fb+4*dt+2*t}:{fb+4*dt+2*t+1}], v{TRW+4*w0+dt} offset:{b0 + (32*s_ + 8*t)*128}", f"g{i}")
        else:
            for t in range(2):
                a.lds(f"ds_read_b64_tr_b16 v[{fb+16+2*t}:{fb+17+2*t}], v{TRZ+w0} offset:{b0 + (32*s_ + 8*t)*128}", f"g{i}")
            u1 = ((upos[c] + 1) % 16) * 8192
            w1, b1 = u1 >> 16, u1 & 0xffff
            for dt in range(4):
                a.lds(f"ds_read_b128 v[{fb+4*dt}:{fb+4*dt+3}], v{GFR+w1} offset:{b1 + (dt>>1)*4096 + s_*2048 + (dt&1)*256}", f"g{i}")
    def mfma(i, dt):
        c, s_ = i // 2, i % 2
        fb = FB + (i % DEPTH) * 20
        if isd(c):
            hb = HB + (i % NHB) * 4
            cin = "0" if i == 0 else f"v[{ACG+4*dt}:{ACG+4*dt+3}]"
            a(f"v_mfma_f32_16x16x32_bf16 v[{ACG+4*dt}:{ACG+4*dt+3}], v[{fb+4*dt}:{fb+4*dt+3}], v[{hb}:{hb+3}], {cin}")
        else:
            cin = "0" if i == 56 else f"v[{ACS+4*dt}:{ACS+4*dt+3}]"
            a(f"v_mfma_f32_16x16x32_bf16 v[{ACS+4*dt}:{ACS+4*dt+3}], v[{fb+4*dt}:{fb+4*dt+3}], v[{fb+16}:{fb+19}], {cin}")
    def silu():
        G_ = ACG; T_ = HB
        for p in range(8): a(f"v_cvt_pk_bf16_f32 v{T_+p}, v{G_+2*p}, v{G_+2*p+1}")
        yield
        for p in range(8):
            a(f"v_lshlrev_b32 v{G_+2*p}, 16, v{T_+p}")
            a(f"v_and_b32 v{G_+2*p+1}, s49, v{T_+p}")
            if p % 4 == 3: yield
        for p in range(16):
            a(f"v_mul_f32 v{T_+p}, 0xbfb8aa3b, v{G_+p}")
            if p % 8 == 7: yield
        for p in range(16):
            a(f"v_exp_f32 v{T_+p}, v{T_+p}")
            if p % 4 == 3: yield
        for p in range(16):
            a(f"v_add_f32 v{T_+p}, 1.0, v{T_+p}")
            if p % 8 == 7: yield
        for p in range(16):
            a(f"v_rcp_f32 v{T_+p}, v{T_+p}")
            if p % 4 == 3: yield
        for p in range(16):
            a(f"v_mul_f32 v{G_+p}, v{G_+p}, v{T_+p}")
            if p % 8 == 7: yield
        for p in range(8): a(f"v_cvt_pk_bf16_f32 v{T_+p}, v{G_+2*p}, v{G_+2*p+1}")
        yield
        for p in range(8):
            a(f"v_lshlrev_b32 v{G_+2*p}, 16, v{T_+p}")
            a(f"v_and_b32 v{G_+2*p+1}, s49, v{T_+p}")
            if p % 4 == 3: yield
    sl = silu()
    polled = False
    arrive(1, -1)
    early = list(range(3, LAG, 2))
    for k in range(DEPTH - 1): reads(k)
    for i in range(NST):
        c, s_ = i // 2, i % 2
        if early: arrive(early.pop(0), -1)
        if i + DEPTH - 1 < NST: reads(i + DEPTH - 1)
        a.wait_lds(f"g{i}")
        if isd(c): a.wait_vm(f"h{i}")
        if s_ == 1 and c < NCH - 1 and pubs[-1][0] < NCH - 1 and (c % 2 == 0 or c >= 24):
            arrive(c + LAG, c)
        for dt in range(4):
            mfma(i, dt)
            if dt in (0, 2):
                if pend:
                    pc, pu = pend[0]
                    need = ustart[pc] + (1 if pu < 2 else 2)
                    if need <= ulimit[0] and len(a.vm) < 56 and not (pc >= 28 and i < ZMIN):
                        if pend[0] == (28, 0):
                            a.wait_vm("poll")
                            a(f"""
                            s_mov_b32 s27, 0
                            k23_spin:
                            v_xor_b32 v{PV}, s6, v{PV}
                            v_xor_b32 v{PV+1}, s6, v{PV+1}
                            v_xor_b32 v{PV+2}, s6, v{PV+2}
                            v_xor_b32 v{PV+3}, s6, v{PV+3}
                            v_or3_b32 v{PV}, v{PV}, v{PV+1}, v{PV+2}
                            v_or_b32 v{PV}, v{PV}, v{PV+3}
                            v_cmp_ne_u32 vcc, 0, v{PV}
                            s_cbranch_vccz k23_go
                            s_add_u32 s27, s27, 1
                            s_cmp_ge_u32 s27, 0x4000
                            s_cbranch_scc1 k23_go
                            s_sleep 8
                            buffer_load_dword v{PV}, v{VF}, s[40:43], s59 offen sc1
                            buffer_load_dword v{PV+1}, v{VF}, s[40:43], s59 offen offset:1024 sc1
                            buffer_load_dword v{PV+2}, v{VF}, s[40:43], s59 offen offset:2048 sc1
                            buffer_load_dword v{PV+3}, v{VF}, s[40:43], s59 offen offset:3072 sc1
                            s_waitcnt vmcnt(0)
                            s_branch k23_spin
                            k23_go:
                            """)
                            print("Z issue at step", i, file=sys.stderr)
                        dma_one(*pend.pop(0))
            if dt in (1, 3):
                if hp[0] < 56 and hp[0] - NHB < i and len(a.vm) < 56 and hp[0] <= i + HDIST:
                    hload(hp[0]); hp[0] += 1
            if i >= 58: next(sl, None)
        if i == ZMIN - POLLD and not polled:
            polled = True
            for q in range(4):
                a.vmem(f"buffer_load_dword v{PV+q}, v{VF}, s[40:43], s59 offen offset:{q*1024} sc1", "poll")
        if i == 50:
            a.vmem(f"buffer_load_dwordx4 v[{XR}:{XR+3}], v{VO}, s[28:31], s23 offen", "x")
            a.vmem(f"buffer_load_dwordx4 v[{XR+4}:{XR+7}], v{VO}, s[28:31], s13 offen", "x")
    assert not pend and hp[0] == 56
    for _ in sl: a("s_nop 0")
    a("s_nop 7")
    O = HB + 16; SV = ACS; GV = ACG; Q = HB + 24
    for p in range(8):
        a(f"v_cvt_pk_bf16_f32 v{Q+p}, v{SV+2*p}, v{SV+2*p+1}")
    for p in range(8):
        a(f"v_lshlrev_b32 v{SV+2*p}, 16, v{Q+p}")
        a(f"v_and_b32 v{SV+2*p+1}, s49, v{Q+p}")
    for p in range(16):
        a(f"v_mul_f32 v{SV+p}, v{SV+p}, v{GV+p}")
    for p in range(8):
        a(f"v_cvt_pk_bf16_f32 v{O+p}, v{SV+2*p}, v{SV+2*p+1}")
    a(f"""
    v_lshrrev_b32 v5, 1, v4
    v_and_b32 v6, 7, v2
    v_xor_b32 v5, v5, v6
    v_and_b32 v7, 1, v4
    v_lshlrev_b32 v7, 3, v7
    v_lshl_add_u32 v7, v3, 7, v7
    s_lshl_b32 s26, s3, 11
    s_add_u32 s26, s26, {SB}
    v_add_u32 v7, s26, v7
    s_barrier
    """)
    for dt in range(4):
        a(f"v_xor_b32 v1, {2*dt}, v5")
        a(f"v_lshl_add_u32 v1, v1, 4, v7")
        a(f"ds_write_b64 v1, v[{O+2*dt}:{O+2*dt+1}]")
    a(f"""
    v_lshrrev_b32 v4, 3, v2
    v_xor_b32 v6, v6, v4
    v_lshlrev_b32 v6, 4, v6
    v_lshl_add_u32 v6, v4, 7, v6
    v_add_u32 v6, s26, v6
    s_waitcnt lgkmcnt(0)
    ds_read_b128 v[{Q}:{Q+3}], v6
    ds_read_b128 v[{Q+4}:{Q+7}], v6 offset:1024
    """)
    a.wait_vm_all()
    for p in range(8):
        a(f"v_lshlrev_b32 v{GV+2*p}, 16, v{XR+p}")
        a(f"v_and_b32 v{GV+2*p+1}, s49, v{XR+p}")
    a("s_waitcnt lgkmcnt(0)")
    for p in range(8):
        a(f"v_lshlrev_b32 v{SV+2*p}, 16, v{Q+p}")
        a(f"v_and_b32 v{SV+2*p+1}, s49, v{Q+p}")
    for p in range(16):
        a(f"v_add_f32 v{SV+p}, v{SV+p}, v{GV+p}")
    for p in range(8):
        a(f"v_cvt_pk_bf16_f32 v{O+p}, v{SV+2*p}, v{SV+2*p+1}")
    a(f"buffer_store_dwordx4 v[{O}:{O+3}], v{VO}, s[36:39], s23 offen {OSP}")
    a(f"buffer_store_dwordx4 v[{O+4}:{O+7}], v{VO}, s[36:39], s13 offen {OSP}")
    a.stamp()
    if STAMP: a("s_waitcnt vmcnt(0)")
    a.stamp()
    a.stamp_store(1)
    a("s_endpgm")

    a.raw("k23_conv:")
    a.vm = []; a.lq = []; a.nst = 0; a.sb = 74; a.maxst = 14
    YR, YI = 8, 12
    E1 = 16; T1 = 32; E2 = 48; WW = 64; E3 = 80; T2 = 96; E4 = 112
    D = 128; F = 144; N = 176; TMP = 184; WM = 200; VL = 7
    getpc_tab(a, 24, "tab_S")
    srd(a, 28, "s24", "s25", TSZ)
    a(f"""
    s_sub_u32 s13, s3, 4
    v_lshlrev_b32 v5, 6, v3
    v_lshl_add_u32 v5, v4, 4, v5
    s_lshl_b32 s60, s2, 13
    s_lshl_b32 s61, s13, 10
    s_add_u32 s60, s60, s61
    s_add_u32 s60, s60, {WS_Y}
    s_add_u32 s61, s60, 4096
    v_lshlrev_b32 v{VL}, 4, v2
    s_lshl_b32 s26, s13, 12
    s_lshl_b32 s12, s13, 11
    v_subrev_u32 v6, 256, v0
    v_lshlrev_b32 v6, 5, v6
    s_waitcnt lgkmcnt(0)
    """)
    a.stamp()
    srd(a, 40, "s14", "s15", WS_SIZE)
    def tload(dst, n, soff, base, tag):
        for q in range(n):
            a.vmem(f"buffer_load_dwordx4 v[{dst+4*q}:{dst+4*q+3}], v{VL}, s[28:31], {soff} offen offset:{base+q*1024}", tag)
    a("v_mov_b32 v215, v5")
    def yloads():
        a.vmem(f"buffer_load_dwordx4 v[{YR}:{YR+3}], v215, s[40:43], s60 offen {HSC}", "y")
        a.vmem(f"buffer_load_dwordx4 v[{YI}:{YI+3}], v215, s[40:43], s61 offen {HSC}", "y")
    if not MERGE: yloads()
    tload(E1, 4, "0", TE1, "e1")
    a(f"s_add_u32 s27, s12, {TT1}")
    tload(T1, 2, "s27", 0, "t1")
    def loads2a():
        a(f"s_add_u32 s27, s26, {TE2}")
        tload(E2, 4, "s27", 0, "e2")
    def loads2():
        a(f"""
        s_lshl_b32 s27, s2, 13
        s_add_u32 s27, s27, {WS_W}
        s_cmp_eq_u32 s2, 0
        s_cbranch_scc0 k23_now256
        s_mov_b32 s56, {WS_W + 256*8192}
        buffer_load_dwordx4 v[{WW+8}:{WW+11}], v{VWT}, s[40:43], s56 offen {HSC}
        buffer_load_dwordx4 v[{WW+12}:{WW+15}], v{VWT}, s[40:43], s56 offen offset:16 {HSC}
        s_add_u32 s56, s56, 8192
        buffer_load_dwordx4 v[{WM}:{WM+3}], v{VWT}, s[40:43], s56 offen {HSC}
        buffer_load_dwordx4 v[{WM+4}:{WM+7}], v{VWT}, s[40:43], s56 offen offset:16 {HSC}
        s_add_u32 s56, s56, 8192
        buffer_load_dwordx4 v[{WM+8}:{WM+11}], v{VWT}, s[40:43], s56 offen {HSC}
        buffer_load_dwordx4 v[{WM+12}:{WM+15}], v{VWT}, s[40:43], s56 offen offset:16 {HSC}
        k23_now256:
        """)
        a.vmem(f"buffer_load_dwordx4 v[{WW}:{WW+3}], v{VWT}, s[40:43], s27 offen {HSC}", "w")
        a.vmem(f"buffer_load_dwordx4 v[{WW+4}:{WW+7}], v{VWT}, s[40:43], s27 offen offset:16 {HSC}", "w")
    def loads3():
        a(f"s_add_u32 s27, s26, {TE3}")
        tload(E3, 4, "s27", 0, "e3")
        a(f"s_add_u32 s27, s12, {TT2}")
        tload(T2, 2, "s27", 0, "t2")
        a(f"s_mov_b32 s27, {TE4}")
        tload(E4, 4, "s27", 0, "e4")
    VWT = 216; PQ = 220
    a(f"""
    v_mov_b32 v{VWT}, v6
    s_lshl_b32 s27, s13, 9
    v_lshlrev_b32 v1, 7, v4
    v_add3_u32 v1, v1, v3, s27
    s_movk_i32 s27, 144
    v_mul_lo_u32 v6, v3, s27
    v_add_u32 v6, {SB}, v6
    v_lshl_add_u32 v5, v4, 3, v6
    s_lshl_b32 s27, s13, 5
    v_add_u32 v5, s27, v5
    v_lshl_add_u32 v6, v4, 4, v6
    """)
    UB, XB, MB = 0, 9216, 18432
    PL = 4608
    def R(x): return f"v[{x}:{x+3}]"
    def fr(pl, t, st): return F + ((pl*2+t)*2+st)*4
    def cmul_tw(tw):
        for e in range(8):
            r = D + e; im = D + 8 + e; tq = tw + e
            t = TMP + 2*(e % 4)
            a(f"""
            v_fma_mix_f32 v{t}, v{im}, v{tq}, 0 op_sel:[0,1,0] op_sel_hi:[0,1,0]
            v_fma_mix_f32 v{t+1}, v{r}, v{tq}, 0 op_sel:[0,1,0] op_sel_hi:[0,1,0]
            """)
            if e % 4 == 3:
                for e2 in range(e-3, e+1):
                    r = D + e2; im = D + 8 + e2; tq = tw + e2
                    t = TMP + 2*(e2 % 4)
                    a(f"""
                    v_fma_mix_f32 v{r}, v{r}, v{tq}, -v{t} op_sel:[0,0,0] op_sel_hi:[0,1,0]
                    v_fma_mix_f32 v{im}, v{im}, v{tq}, v{t+1} op_sel:[0,0,0] op_sel_hi:[0,1,0]
                    """)
    def pack(cvt, dst):
        for e in range(8):
            a(f"{cvt} v{dst+e}, v{D+2*e}, v{D+2*e+1}")
    def lds_write(base, src):
        for pl in range(2):
            for t in range(2):
                a(f"ds_write_b64 v5, v[{src+pl*4+t*2}:{src+pl*4+t*2+1}] offset:{base + pl*PL + t*16*144}")
    def lds_read(base):
        for pl in range(2):
            for t in range(2):
                for st in range(2):
                    f_ = fr(pl, t, st)
                    a(f"ds_read_b128 v[{f_}:{f_+3}], v6 offset:{base + pl*PL + t*16*144 + st*64}")
    nbar = [0]
    CA, CL, CV = 217, 218, 219
    def bar(tag=""):
        nbar[0] += 1
        p = nbar[0]
        a(f"""
        v_mov_b32 v{CV}, {p}
        s_waitcnt lgkmcnt(0)
        ds_write_b32 v{CA}, v{CV}
        k23_cs{p}{tag}:
        ds_read_b32 v{CV}, v{CL}
        s_waitcnt lgkmcnt(0)
        v_cmp_gt_u32 vcc, {p}, v{CV}
        s_cbranch_vccnz k23_cs{p}{tag}
        """)
        a.stamp()
    a(f"""
    s_setprio {CPRIO}
    s_lshl_b32 s27, s13, 2
    s_add_u32 s27, s27, {PW + 16}
    v_mov_b32 v{CA}, s27
    v_mov_b32 v{CV}, 0
    v_and_b32 v{CL}, 3, v2
    v_lshlrev_b32 v{CL}, 2, v{CL}
    v_add_u32 v{CL}, {PW + 16}, v{CL}
    ds_write_b32 v{CA}, v{CV}
    """)
    if MERGE:
        loads2a(); loads3()
        a(f"""
        s_cmp_eq_u32 s13, 0
        s_cbranch_scc0 ph2_gate
        s_mov_b32 s27, 0
        s_mov_b32 s56, {WS_FL + 8192}
        ph2_poll:
        buffer_load_dword v{TMP}, v{VL}, s[40:43], s56 offen sc1
        buffer_load_dword v{TMP+1}, v{VL}, s[40:43], s56 offen offset:1024 sc1
        buffer_load_dword v{TMP+2}, v{VL}, s[40:43], s56 offen offset:2048 sc1
        buffer_load_dword v{TMP+3}, v{VL}, s[40:43], s56 offen offset:3072 sc1
        s_waitcnt vmcnt(0)
        v_xor_b32 v{TMP}, s6, v{TMP}
        v_xor_b32 v{TMP+1}, s6, v{TMP+1}
        v_xor_b32 v{TMP+2}, s6, v{TMP+2}
        v_xor_b32 v{TMP+3}, s6, v{TMP+3}
        v_or3_b32 v{TMP}, v{TMP}, v{TMP+1}, v{TMP+2}
        v_or_b32 v{TMP}, v{TMP}, v{TMP+3}
        v_cmp_ne_u32 vcc, 0, v{TMP}
        s_cbranch_vccz ph2_gate
        s_add_u32 s27, s27, 1
        s_cmp_ge_u32 s27, 0x8000
        s_cbranch_scc1 ph2_gate
        s_sleep {PSLEEP}
        s_branch ph2_poll
        ph2_gate:
        s_waitcnt lgkmcnt(0)
        s_barrier
        """)
        a.stamp()
        yloads(); loads2()
        a.wait_vm("y")
    else:
        loads2a(); loads2(); loads3()
        a("s_waitcnt lgkmcnt(0)")
        a("s_barrier")
        a.stamp()
    a.wait_vm("e1")
    for r in range(4):
        a(f"v_xor_b32 v{N+r}, s48, v{YI+r}")
    a("s_nop 1")
    for t in range(2):
        er = E1 + 4*t; ei = E1 + 8 + 4*t
        a(f"v_mfma_f32_16x16x32_f16 {R(D+4*t)}, {R(YR)}, {R(er)}, 0")
        a(f"v_mfma_f32_16x16x32_f16 {R(D+8+4*t)}, {R(YR)}, {R(ei)}, 0")
    for t in range(2):
        er = E1 + 4*t; ei = E1 + 8 + 4*t
        a(f"v_mfma_f32_16x16x32_f16 {R(D+4*t)}, {R(N)}, {R(ei)}, {R(D+4*t)}")
        a(f"v_mfma_f32_16x16x32_f16 {R(D+8+4*t)}, {R(YI)}, {R(er)}, {R(D+8+4*t)}")
    a.wait_vm("t1")
    a("s_nop 7")
    cmul_tw(T1)
    pack("v_cvt_pk_f16_f32", TMP + 8)
    lds_write(UB, TMP + 8)
    bar()
    lds_read(UB)
    a.wait_vm("e2")
    for r in range(8):
        a(f"v_xor_b32 v{N+r}, s48, v{E2+8+r}")
    a("s_waitcnt lgkmcnt(0)")
    for st in range(2):
        for t in range(2):
            cr = "0" if st == 0 else R(D+4*t); ci = "0" if st == 0 else R(D+8+4*t)
            a(f"v_mfma_f32_16x16x32_f16 {R(D+4*t)}, {R(E2+4*st)}, {R(fr(0,t,st))}, {cr}")
            a(f"v_mfma_f32_16x16x32_f16 {R(D+8+4*t)}, {R(E2+8+4*st)}, {R(fr(0,t,st))}, {ci}")
        for t in range(2):
            a(f"v_mfma_f32_16x16x32_f16 {R(D+4*t)}, {R(N+4*st)}, {R(fr(1,t,st))}, {R(D+4*t)}")
            a(f"v_mfma_f32_16x16x32_f16 {R(D+8+4*t)}, {R(E2+4*st)}, {R(fr(1,t,st))}, {R(D+8+4*t)}")
    a("""
    s_cmp_eq_u32 s2, 0
    s_cbranch_scc1 k2_special
    """)
    vm_keep = list(a.vm)
    a.wait_vm("w")
    a("s_nop 7")
    for e in range(8):
        r = D + e; im = D + 8 + e
        t = TMP + 4*(e % 2)
        a(f"""
        v_lshlrev_b32 v{t+2}, 16, v{WW+e}
        v_and_b32 v{t+3}, s49, v{WW+e}
        v_mul_f32 v{t}, v{im}, v{t+3}
        v_mul_f32 v{t+1}, v{r}, v{t+3}
        v_fma_f32 v{r}, v{r}, v{t+2}, -v{t}
        v_fma_f32 v{im}, v{im}, v{t+2}, v{t+1}
        """)
    a("s_branch k2_join")
    a.raw("k2_special:")
    a.vm = vm_keep
    a.wait_vm("w")
    TA_ = 8
    for e in range(8):
        q = PQ + 4*e; t = TA_ + 4*e
        a(f"""
        v_lshlrev_b32 v{q}, 16, v{WW+e}
        v_and_b32 v{q+1}, s49, v{WW+e}
        v_lshlrev_b32 v{q+2}, 16, v{WM+e}
        v_and_b32 v{q+3}, s49, v{WM+e}
        v_lshlrev_b32 v{t}, 16, v{WW+8+e}
        v_and_b32 v{t+1}, s49, v{WW+8+e}
        v_lshlrev_b32 v{t+2}, 16, v{WM+8+e}
        v_and_b32 v{t+3}, s49, v{WM+8+e}
        """)
    for e in range(8):
        q = PQ + 4*e; t = TA_ + 4*e
        a(f"""
        v_add_f32 v{q}, v{q}, v{q+2}
        v_sub_f32 v{q+1}, v{q+1}, v{q+3}
        v_add_f32 v{t}, v{t}, v{t+2}
        v_sub_f32 v{t+1}, v{t+1}, v{t+3}
        """)
    for e in range(8):
        q = PQ + 4*e; t = TA_ + 4*e
        a(f"""
        v_sub_f32 v{q+2}, v{q}, v{t}
        v_sub_f32 v{q+3}, v{q+1}, v{t+1}
        v_add_f32 v{q}, v{q}, v{t}
        v_add_f32 v{q+1}, v{q+1}, v{t+1}
        """)
    for e in range(32):
        a(f"v_mul_f32 v{PQ+e}, 0x3e800000, v{PQ+e}")
    for e in range(8):
        t, i = e // 4, e % 4
        q = TMP + 2*(e % 2)
        a(f"""
        v_cvt_pk_f16_f32 v{q}, v{D+e}, v{D+8+e}
        v_add_u32 v{q+1}, {32*i+16*t+(SB+MB)//4}, v1
        v_lshlrev_b32 v{q+1}, 2, v{q+1}
        ds_write_b32 v{q+1}, v{q}
        """)
    for e in range(8):
        r = D + e; q = PQ + 4*e; t = F + 8 + 2*e
        a(f"v_mul_f32 v{t}, v{r}, v{q}")
        a(f"v_mul_f32 v{t+1}, v{r}, v{q+1}")
    for e in range(8):
        im = D + 8 + e; q = PQ + 4*e; t = F + 8 + 2*e
        a(f"v_fma_f32 v{t}, -v{im}, v{q+1}, v{t}")
        a(f"v_fma_f32 v{t+1}, v{im}, v{q}, v{t+1}")
    nst_keep = a.nst
    bar("s")
    a.nst = nst_keep
    for e in range(8):
        t, i = e // 4, e % 4
        a(f"""
        v_add_u32 v{TMP+4}, {32*i+16*t}, v1
        v_sub_u32 v{TMP+4}, 2048, v{TMP+4}
        v_and_b32 v{TMP+4}, 2047, v{TMP+4}
        v_lshlrev_b32 v{TMP+4}, 2, v{TMP+4}
        v_add_u32 v{TMP+4}, {SB+MB}, v{TMP+4}
        ds_read_b32 v{F+e}, v{TMP+4}
        """)
    a("s_waitcnt lgkmcnt(0)")
    for e in range(8):
        xm = F + e; q = PQ + 4*e; t = F + 8 + 2*e
        a(f"""
        v_fma_mix_f32 v{t}, v{q+2}, v{xm}, v{t} op_sel:[0,0,0] op_sel_hi:[0,1,0]
        v_fma_mix_f32 v{t+1}, v{q+3}, v{xm}, v{t+1} op_sel:[0,0,0] op_sel_hi:[0,1,0]
        """)
    for e in range(8):
        r = D + e; im = D + 8 + e
        xm = F + e; q = PQ + 4*e; t = F + 8 + 2*e
        a(f"""
        v_fma_mix_f32 v{r}, v{q+3}, v{xm}, v{t} op_sel:[0,1,0] op_sel_hi:[0,1,0]
        v_fma_mix_f32 v{im}, -v{q+2}, v{xm}, v{t+1} op_sel:[0,1,0] op_sel_hi:[0,1,0]
        """)
    a.raw("k2_join:")
    a.stamp()
    pack("v_cvt_pk_bf16_f32", TMP + 8)
    lds_write(XB, TMP + 8)
    bar()
    lds_read(XB)
    a.wait_vm("e3")
    for r in range(8):
        a(f"v_xor_b32 v{N+r}, s48, v{E3+8+r}")
    a("s_waitcnt lgkmcnt(0)")
    for st in range(2):
        for t in range(2):
            cr = "0" if st == 0 else R(D+4*t); ci = "0" if st == 0 else R(D+8+4*t)
            a(f"v_mfma_f32_16x16x32_bf16 {R(D+4*t)}, {R(fr(0,t,st))}, {R(E3+4*st)}, {cr}")
            a(f"v_mfma_f32_16x16x32_bf16 {R(D+8+4*t)}, {R(fr(0,t,st))}, {R(E3+8+4*st)}, {ci}")
        for t in range(2):
            a(f"v_mfma_f32_16x16x32_bf16 {R(D+4*t)}, {R(fr(1,t,st))}, {R(N+4*st)}, {R(D+4*t)}")
            a(f"v_mfma_f32_16x16x32_bf16 {R(D+8+4*t)}, {R(fr(1,t,st))}, {R(E3+4*st)}, {R(D+8+4*t)}")
    a.wait_vm("t2")
    a("s_nop 7")
    cmul_tw(T2)
    pack("v_cvt_pk_bf16_f32", TMP + 8)
    VR, VI = TMP + 8, TMP + 12
    for r in range(4):
        a(f"v_xor_b32 v{N+r}, s48, v{VI+r}")
    a.wait_vm("e4")
    a("s_nop 1")
    for tp in range(2):
        a(f"v_mfma_f32_16x16x32_bf16 {R(D+4*tp)}, {R(E4+4*tp)}, {R(VR)}, 0")
        a(f"v_mfma_f32_16x16x32_bf16 {R(D+8+4*tp)}, {R(E4+8+4*tp)}, {R(VR)}, 0")
    for tp in range(2):
        a(f"v_mfma_f32_16x16x32_bf16 {R(D+4*tp)}, {R(E4+8+4*tp)}, {R(N)}, {R(D+4*tp)}")
        a(f"v_mfma_f32_16x16x32_bf16 {R(D+8+4*tp)}, {R(E4+4*tp)}, {R(VI)}, {R(D+8+4*tp)}")
    a(f"""
    v_lshlrev_b32 v5, 6, v3
    v_and_b32 v1, 1, v4
    v_lshl_add_u32 v5, v1, 5, v5
    v_lshrrev_b32 v1, 1, v4
    v_lshl_add_u32 v5, v1, 4, v5
    s_add_u32 s60, s60, {WS_Z - WS_Y}
    s_add_u32 s61, s61, {WS_Z - WS_Y}
    s_nop 3
    """)
    pack("v_cvt_pk_bf16_f32", TMP + 8)
    a("s_nop 1")
    for pl in range(2):
        b = TMP + 8 + pl*4
        a(f"v_permlane16_swap_b32 v{b}, v{b+2}")
        a(f"v_permlane16_swap_b32 v{b+1}, v{b+3}")
    for pl in range(2):
        b = TMP + 8 + pl*4
        a.vmem(f"buffer_store_dwordx4 v[{b}:{b+3}], v5, s[40:43], s{60+pl} offen sc1", "z")
    a.stamp()
    a.wait_vm_all()
    bar()
    a(f"""
    s_cmp_eq_u32 s13, 0
    s_cbranch_scc0 k23_nosig
    s_lshl_b32 s26, s2, 4
    s_add_u32 s26, s26, {WS_FL}
    v_mov_b32 v1, s6
    v_mov_b32 v7, 0
    s_mov_b64 exec, 1
    buffer_store_dword v1, v7, s[40:43], s26 offen sc1
    s_mov_b64 exec, -1
    k23_nosig:
    """)
    if os.environ.get("CSTAMP", "0") == "1": a.stamp_store(1)
    a.raw("k23_end:")
    a("s_endpgm")
    return a.text()

def tables_asm():
    o = []
    j = np.arange(512)
    c1 = bf16(np.cos(2*np.pi*j/512) / 16); c2 = bf16(np.cos(2*np.pi*j/512) / 8)
    c1[np.abs(np.cos(2*np.pi*j/512)) < 1e-9] = 0; c2[np.abs(np.cos(2*np.pi*j/512)) < 1e-9] = 0
    for i in range(512):
        o.append(f".set CA{i}, 0x{c1[i]:04x}")
        o.append(f".set CB{i}, 0x{c2[i]:04x}")
    o.append(".altmacro")
    o.append(""".macro f8 a,b,c,d,e,f,g,h
.short CA\\a, CA\\b, CA\\c, CA\\d, CA\\e, CA\\f, CA\\g, CA\\h
.endm
.macro g8 a,b,c,d,e,f,g,h
.short CB\\a, CB\\b, CB\\c, CB\\d, CB\\e, CB\\f, CB\\g, CB\\h
.endm
.macro g8s a,b,c,d,e,f,g,h
.short CA\\a, CA\\b, CB\\c, CB\\d, CB\\e, CB\\f, CB\\g, CB\\h
.endm
.macro frow d
f8 0, %((\\d*256)&511), %((\\d*1)&511), %((\\d+128)&511), %((\\d*2)&511), %((\\d*2+128)&511), %((\\d*3)&511), %((\\d*3+128)&511)
.set kk, 4
.rept 63
f8 %((\\d*kk)&511), %((\\d*kk+128)&511), %((\\d*(kk+1))&511), %((\\d*(kk+1)+128)&511), %((\\d*(kk+2))&511), %((\\d*(kk+2)+128)&511), %((\\d*(kk+3))&511), %((\\d*(kk+3)+128)&511)
.set kk, kk+4
.endr
.endm
.section .rodata,"a"
.p2align 8
tab_F:
.set dd, 0
.rept 512
frow %dd
.set dd, dd+1
.endr
""")
    o.append(""".macro glane d, k
g8 %((\\d*\\k)&511), %((\\d*\\k+128)&511), %((\\d*(\\k+1))&511), %((\\d*(\\k+1)+128)&511), %((\\d*(\\k+4))&511), %((\\d*(\\k+4)+128)&511), %((\\d*(\\k+5))&511), %((\\d*(\\k+5)+128)&511)
.endm
.macro glane0 d
g8s 0, %((\\d*256)&511), %((\\d*1)&511), %((\\d+128)&511), %((\\d*4)&511), %((\\d*4+128)&511), %((\\d*5)&511), %((\\d*5+128)&511)
.endm
.macro ghalf d0, k
.set ll, 0
.rept 32
glane %(\\d0+ll), \\k
.set ll, ll+1
.endr
.endm
.macro ghalf0 d0
.set ll, 0
.rept 32
glane0 %(\\d0+ll)
.set ll, ll+1
.endr
.endm
.macro gtile d0
ghalf0 \\d0
ghalf \\d0, 2
.set gg, 1
.rept 31
ghalf \\d0, %(8*gg)
ghalf \\d0, %(8*gg+2)
.set gg, gg+1
.endr
.endm
.p2align 8
tab_G:
.set tt, 0
.rept 16
gtile %(32*tt)
.set tt, tt+1
.endr
.noaltmacro
.p2align 8
tab_S:
""")
    st = small_tables().view(np.uint64)
    for i in range(0, len(st), 8):
        o.append(".quad " + ",".join(f"0x{v:x}" for v in st[i:i+8]))
    return "\n".join(o) + "\n"

if MERGE:
    hdr = f"""; fused LN + GFNet spectral filter + ReGLU, single persistent launch (256 co-resident workgroups)
; @launch kernel={KNAME} grid=(256,1,1) block=(512,1,1) lds=163840
.amdgcn_target "amdgcn-amd-amdhsa--gfx950"
.text
.globl {KNAME}
.type {KNAME},@function
"""
    src = hdr + gen_k1() + gen_k23_main() + "code_end:\n" + tables_asm()
    src += '.section .rodata,"a"\n.p2align 6\n' + kd(KNAME, 256)
else:
    hdr = """; fused LN + GFNet spectral filter + ReGLU, 2 launches
; @launch kernel=k1_kernel grid=(256,1,1) block=(512,1,1) lds=163840
; @launch kernel=k23_kernel grid=(256,1,1) block=(512,1,1) lds=163840
.amdgcn_target "amdgcn-amd-amdhsa--gfx950"
.text
.globl k1_kernel
.type k1_kernel,@function
.globl k23_kernel
.type k23_kernel,@function
"""
    src = hdr + gen_k1() + gen_k23_main() + "code_end:\n" + tables_asm()
    src += '.section .rodata,"a"\n.p2align 6\n' + kd("k1_kernel", 256) + ".p2align 6\n" + kd("k23_kernel", 256)
open(OUT, "w").write(src)
print("wrote", OUT, len(src))
```

```python
import numpy as np, sys, math

OUT = sys.argv[1] if len(sys.argv) > 1 else "recurrent_scan__spectral_gfnet__glu_gated_reglu__prompt.s"

WS_H = 0
WS_Y = 8 << 20
WS_Z = 10 << 20
WS_W = 12 << 20
WS_SIZE = 268435456
WS_FL = 15 << 20

def bf16(x):
    u = np.asarray(x, np.float32).view(np.uint32).astype(np.uint64)
    r = ((u + 0x7fff + ((u >> 16) & 1)) >> 16).astype(np.uint16)
    return r
def f16(x):
    return np.asarray(x, np.float64).astype(np.float16).view(np.uint16)

import os
STAMP = os.environ.get("STAMP", "0") == "1"
MERGE = os.environ.get('MERGE','1') == '1'
KNAME = 'recurrent_scan__spectral_gfnet__glu_gated_reglu__prompt_kernel'
WS_ST = 16 << 20
class Asm:
    def __init__(self):
        self.lines = []
        self.vm = []
        self.nst = 0
        self.issued = set()
        self.lq = []
        self.sb = 74
        self.maxst = 14
    def stamp(self):
        if not STAMP or self.nst >= self.maxst: return
        self(f"s_memtime s[{self.sb+2*self.nst}:{self.sb+1+2*self.nst}]")
        self("s_waitcnt lgkmcnt(0)")
        self.lq = []
        self.nst += 1
    def stamp_store(self, kidx, wavereg="s3"):
        if not STAMP: return
        self("s_waitcnt lgkmcnt(0)")
        self(f"s_lshl_b32 s62, s2, 4")
        self(f"s_add_u32 s62, s62, {wavereg}")
        self(f"s_lshl_b32 s62, s62, 7")
        self(f"s_add_u32 s62, s62, {WS_ST + kidx*(1<<20)}")
        self("v_mov_b32 v0, 0")
        for i in range(self.nst):
            self(f"v_mov_b32 v1, s{self.sb+2*i}")
            self(f"buffer_store_dword v1, v0, s[40:43], s62 offen offset:{4*i}")
    def __call__(self, s):
        for ln in s.strip("\n").split("\n"):
            self.lines.append("  " + ln.strip() if not ln.strip().endswith(":") else ln.strip())
    def raw(self, s):
        self.lines.append(s)
    def vmem(self, s, tag):
        self(s); self.vm.append(tag); self.issued.add(tag)
        assert len(self.vm) <= 63, "vmcnt overflow"
    def wait_vm(self, tag):
        assert tag in self.issued, tag
        if tag not in self.vm: return
        idx = max(i for i, t in enumerate(self.vm) if t == tag)
        n = len(self.vm) - 1 - idx
        self(f"s_waitcnt vmcnt({n})")
        self.vm = self.vm[idx + 1:]
    def lds(self, s, tag):
        self(s); self.lq.append(tag)
    def wait_lds(self, tag):
        if tag not in self.lq: return
        idx = max(i for i, t in enumerate(self.lq) if t == tag)
        n = min(len(self.lq) - 1 - idx, 15)
        self(f"s_waitcnt lgkmcnt({n})")
        self.lq = self.lq[len(self.lq) - n:] if n else []
    def wait_lds_all(self):
        self("s_waitcnt lgkmcnt(0)"); self.lq = []
    def wait_vm_all(self):
        self("s_waitcnt vmcnt(0)"); self.vm = []
    def text(self):
        return "\n".join(self.lines) + "\n"

def srd(a, s, lo, hi, nbytes):
    a(f"s_mov_b32 s{s}, {lo}")
    a(f"s_mov_b32 s{s+1}, {hi}")
    a(f"s_mov_b32 s{s+2}, {nbytes}")
    a(f"s_mov_b32 s{s+3}, 0x20000")

def getpc_tab(a, s, sym):
    a(f"s_getpc_b64 s[{s}:{s+1}]")
    a(f"s_add_u32 s{s}, s{s}, {sym}@rel32@lo+4")
    a(f"s_addc_u32 s{s+1}, s{s+1}, {sym}@rel32@hi+12")

def kd(name, vgpr, sgpr=102):
    acc = min((vgpr + 3) // 4 * 4, 256)
    return f""".amdhsa_kernel {name}
  .amdhsa_next_free_vgpr {vgpr}
  .amdhsa_next_free_sgpr {sgpr}
  .amdhsa_accum_offset {acc}
  .amdhsa_group_segment_fixed_size 0
  .amdhsa_kernarg_size 80
  .amdhsa_user_sgpr_count 2
  .amdhsa_user_sgpr_kernarg_segment_ptr 1
  .amdhsa_system_sgpr_workgroup_id_x 1
.end_amdhsa_kernel
"""

K1_NS = 5
PREF = os.environ.get('PREF','1') == '1'
K1_PRE = int(os.environ.get('K1_PRE','2'))
K1_PRE2 = int(os.environ.get('K1_PRE2','2'))
P1BAR = int(os.environ.get('P1BAR','7'))
CODEPF = int(os.environ.get('CODEPF','5'))
PFS = int(os.environ.get('PFS','16'))
BWARM = int(os.environ.get('BWARM','0'))
STP = os.environ.get('STP','sc1')
OSP = os.environ.get('OSP','sc1')
BNREV = os.environ.get('BNREV','1') == '1'
X_NOP2 = os.environ.get('X_NOP2','0')=='1'
X_NODMA = os.environ.get('X_NODMA','0')=='1'
X_NOBAR = os.environ.get('X_NOBAR','0')=='1'
def gen_k1():
    a = Asm()
    A0 = 128; ACC = 64; BF = 32
    PT = 24; TR = 16; PFD = 12
    VD, VFL, VD2, VNM, VRI, VPF, VPG, VFA = 1, 3, 4, 7, 8, 9, 10, 11
    a.raw(".p2align 8\n" + KNAME + ":\nk1_kernel:")
    a("""
    s_cmp_ge_u32 s2, 256
    s_cbranch_scc1 k1_end
    s_load_dwordx2 s[4:5], s[0:1], 0
    s_load_dwordx4 s[8:11], s[0:1], 8
    s_load_dwordx4 s[12:15], s[0:1], 32
    s_load_dwordx2 s[6:7], s[0:1], 72
    s_load_dwordx2 s[60:61], s[0:1], 48
    s_load_dwordx2 s[68:69], s[0:1], 64
    s_memrealtime s[70:71]
    v_lshrrev_b32 v1, 6, v0
    v_and_b32 v2, 63, v0
    s_nop 0
    v_readfirstlane_b32 s3, v1
    """)
    a(f"""
    s_and_b32 s16, s2, 7
    s_lshr_b32 s17, s2, 3
    s_and_b32 s18, s16, 1
    s_lshl_b32 s18, s18, 3
    s_and_b32 s58, s17, 7
    s_add_u32 s18, s18, s58
    s_lshr_b32 s19, s16, 1
    s_lshl_b32 s19, s19, 2
    s_lshr_b32 s20, s17, 3
    s_add_u32 s19, s19, s20
    s_lshl_b32 s59, s20, 2
    s_and_b32 s20, s3, 3
    s_lshr_b32 s21, s3, 2
    s_lshl_b32 s22, s18, 2
    s_add_u32 s22, s22, s20
    v_lshlrev_b32 v{VPF}, 4, v2
    """)
    getpc_tab(a, 64, "k1_kernel")
    a(f"""
    s_mov_b32 s66, code_end-k1_kernel
    s_mov_b32 s67, 0x20000
    s_lshl_b32 s57, s17, 1
    s_add_u32 s57, s57, s3
    s_lshl_b32 s57, s57, 10
    s_cmp_lt_u32 s3, 2
    s_cselect_b32 s57, s57, 0x7f000000
    """)
    a.vmem(f"buffer_load_dwordx4 v[{PFD}:{PFD+3}], v{VPF}, s[64:67], s57 offen", "cpf")
    getpc_tab(a, 24, "tab_F")
    a("""
    s_mov_b32 s26, 524288
    s_mov_b32 s27, 0x20000
    s_lshl_b32 s50, s21, 4
    s_lshl_b32 s51, s50, 6
    s_add_u32 s51, s51, s22
    s_lshl_b32 s51, s51, 10
    s_lshl_b32 s52, s20, 5
    s_add_u32 s52, s52, s50
    s_lshl_b32 s52, s52, 10
    s_lshl_b32 s53, s58, 3
    v_xor_b32 v3, s53, v2
    s_waitcnt lgkmcnt(0)
    """)
    a.stamp()
    srd(a, 28, "s4", "s5", 2048*1024)
    for u in range(16):
        a(f"""
        s_xor_b32 s54, s59, {u}
        v_xor_b32 v4, s54, v3
        v_lshlrev_b32 v4, 4, v4
        s_lshl_b32 s55, s54, 10
        s_add_u32 m0, s52, s55
        s_lshl_b32 s55, s54, 16
        s_add_u32 s53, s51, s55
        """)
        a.vmem("buffer_load_dwordx4 v4, s[28:31], s53 offen lds", "x")
    RR = 131072
    a(f"""
    s_xor_b32 s54, s3, s58
    s_lshl_b32 s54, s54, 12
    s_lshl_b32 s55, s19, 15
    s_add_u32 s54, s54, s55
    s_lshl_b32 s55, s3, 12
    s_add_u32 m0, s55, {RR}
    s_nop 0
    """)
    for u in range(4):
        a.vmem(f"buffer_load_dwordx4 v{VPF}, s[24:27], s54 offen offset:{u*1024} lds", "x")
    srd(a, 32, "s8", "s9", 2048*514)
    srd(a, 36, "s10", "s11", 2048*514)
    WL = ACC + 32
    a(f"""
    s_lshr_b32 s62, s2, 2
    s_lshl_b32 s62, s62, 2
    s_lshr_b32 s63, s3, 1
    s_add_u32 s62, s62, s63
    s_lshr_b32 s63, s62, 4
    s_lshl_b32 s63, s63, 7
    s_and_b32 s62, s62, 15
    s_add_u32 s63, s63, s62
    s_and_b32 s62, s3, 1
    s_lshl_b32 s62, s62, 4
    s_add_u32 s63, s63, s62
    s_mul_i32 s63, s63, 514
    s_and_b32 s62, s2, 3
    s_lshl_b32 s62, s62, 7
    s_add_u32 s63, s63, s62
    v_lshlrev_b32 v5, 1, v2
    """)
    for i in range(4):
        if i: a(f"s_add_u32 s63, s63, {32*514}")
        a.vmem(f"buffer_load_ushort v{WL+i}, v5, s[32:35], s63 offen", "w")
        a.vmem(f"buffer_load_ushort v{WL+4+i}, v5, s[36:39], s63 offen", "w")
    a(f"""
    v_mov_b32 v{WL+10}, 0x7fffff00
    s_cmp_eq_u32 s3, 7
    s_cbranch_scc0 k1_nosp1
    s_lshr_b32 s62, s2, 4
    s_lshl_b32 s62, s62, 7
    s_and_b32 s63, s2, 15
    s_add_u32 s62, s62, s63
    v_and_b32 v4, 3, v2
    v_lshlrev_b32 v4, 5, v4
    v_and_b32 v5, 4, v2
    v_lshl_add_u32 v4, v5, 2, v4
    v_add_u32 v4, s62, v4
    s_movk_i32 s63, 514
    v_mul_lo_u32 v5, v4, s63
    v_lshrrev_b32 v6, 3, v2
    v_cmp_eq_u32 vcc, 1, v6
    v_add_u32 v30, 512, v5
    s_nop 0
    v_cndmask_b32 v5, v30, v5, vcc
    v_mov_b32 v30, 0x7fffff00
    v_cmp_gt_u32 vcc, 24, v2
    s_nop 1
    v_cndmask_b32 v5, v30, v5, vcc
    buffer_load_ushort v{WL+8}, v5, s[32:35], 0 offen
    buffer_load_ushort v{WL+9}, v5, s[36:39], 0 offen
    v_sub_u32 v5, 2048, v4
    v_and_b32 v5, 2047, v5
    v_cmp_eq_u32 s[62:63], 0, v6
    s_nop 1
    v_cndmask_b32 v4, v5, v4, s[62:63]
    v_lshrrev_b32 v5, 7, v4
    v_lshlrev_b32 v5, 9, v5
    v_and_b32 v31, 15, v4
    v_lshl_add_u32 v5, v31, 5, v5
    v_and_b32 v31, 16, v4
    v_add_u32 v5, v5, v31
    v_bfe_u32 v31, v4, 5, 2
    v_lshl_add_u32 v5, v31, 2, v5
    v_lshl_add_u32 v5, v6, 13, v5
    v_add_u32 v5, {WS_W + 256*8192}, v5
    v_cndmask_b32 v{WL+10}, v30, v5, vcc
    k1_nosp1:
    """)
    srd(a, 40, "s6", "s7", WS_SIZE)
    CS = ACC + 48
    getpc_tab(a, 32, "tab_G")
    a(f"""
    s_mov_b32 s34, {524288 + TSZ}
    s_lshl_b32 s62, s19, 7
    s_lshl_b32 s63, s21, 6
    s_add_u32 s62, s62, s63
    s_add_u32 s62, s62, {524288 + TCS}
    v_lshrrev_b32 v5, 5, v2
    v_lshlrev_b32 v5, 4, v5
    """)
    a.vmem(f"buffer_load_dwordx4 v[{CS}:{CS+3}], v5, s[32:35], s62 offen", "cs")
    a.vmem(f"buffer_load_dwordx4 v[{CS+4}:{CS+7}], v5, s[32:35], s62 offen offset:32", "cs")
    a(f"""
    s_and_b32 s23, s3, 1
    s_cmp_eq_u32 s23, 0
    s_cselect_b32 s44, s12, s14
    s_cselect_b32 s45, s13, s15
    s_mov_b32 s46, 1835008
    s_mov_b32 s47, 0x20000
    s_movk_i32 s48, 3584
    s_mul_i32 s49, s19, 224
    v_lshrrev_b32 v8, 4, v2
    v_and_b32 v6, 15, v2
    v_lshrrev_b32 v6, 1, v6
    v_lshlrev_b32 v10, 1, v8
    v_xor_b32 v6, v6, v10
    v_xor_b32 v6, s23, v6
    v_lshlrev_b32 v6, 5, v6
    v_and_b32 v10, 1, v2
    v_lshlrev_b32 v10, 4, v10
    v_add_u32 v6, v6, v10
    v_mul_lo_u32 v8, v8, s48
    v_add_u32 v6, v6, v8
    v_add_u32 v{VD}, s49, v6
    s_lshr_b32 s50, s3, 1
    s_lshl_b32 s50, s50, 3
    s_mul_i32 s52, s50, s48
    s_lshl_b32 s53, s50, 8
    s_lshl_b32 s54, s23, 13
    s_add_u32 s53, s53, s54
    s_lshl_b32 s54, s48, 2
    s_lshl_b32 s55, s48, 5
    s_lshl_b32 s58, s58, 1
    v_add_u32 v{VD}, s52, v{VD}
    v_add_u32 v{VD2}, s54, v{VD}
    """)
    RING = [0, 1, 2, 3, 6, 7, 8, 9]
    SPARE = 65536
    YT = SPARE + 512
    def dma_one(c, u):
        if u == 0:
            a(f"s_xor_b32 s56, s58, {c}")
        a(f"s_add_u32 m0, s53, {RING[c % 8]*16384 + u*1024}")
        if u == 0: a("s_mul_i32 s56, s56, s55")
        else: a("s_nop 0")
        a.vmem(f"buffer_load_dwordx4 v{VD if u == 0 else VD2}, s[44:47], s56 offen lds", f"c{c}")
    a(f"""
    v_lshrrev_b32 v10, 4, v2
    v_and_b32 v6, 15, v2
    v_lshrrev_b32 v31, 2, v6
    v_and_b32 v6, 3, v6
    v_lshrrev_b32 v30, 1, v10
    v_lshlrev_b32 v30, 3, v30
    v_add_u32 v30, v30, v31
    v_lshlrev_b32 v30, 8, v30
    v_lshl_add_u32 v30, v6, 3, v30
    v_and_b32 v10, 1, v10
    v_lshl_add_u32 v30, v10, 13, v30
    v_lshlrev_b32 v31, 1, v31
    v_xor_b32 v31, v31, v10
    s_mul_i32 s57, s21, 3
    """)
    for k in range(4):
        a(f"""
        v_xor_b32 v10, s57, v31
        v_lshl_add_u32 v{TR+k}, v10, 5, v30
        v_add_u32 v{TR+4+k}, 98304, v{TR+k}
        s_add_u32 s57, s57, 1
        """)
    a(f"""
    v_and_b32 v10, 31, v2
    v_lshrrev_b32 v6, 5, v2
    v_and_b32 v31, 15, v2
    v_xor_b32 v6, v6, v31
    s_lshl_b32 s57, s20, 15
    v_lshlrev_b32 v10, 10, v10
    v_add_u32 v10, s57, v10
    """)
    for tt in range(8):
        a(f"v_xor_b32 v31, {2*tt}, v6")
        a(f"v_lshl_add_u32 v{ACC+16+tt}, v31, 4, v10")
    a(f"""
    s_mov_b32 s26, 0x3f803f80
    s_mov_b32 s27, 0xffff0000
    v_mov_b32 v24, 0
    v_mov_b32 v25, 0
    v_mov_b32 v26, 0
    v_mov_b32 v27, 0
    s_lshl_b32 s57, s21, 6
    s_lshl_b32 s62, s21, 14
    s_add_u32 s62, s62, {RR}
    v_add_u32 v5, s62, v{VPF}
    """)
    for c in range(BWARM):
        a(f"s_xor_b32 s56, s58, {c}")
        a("s_mul_i32 s56, s56, s55")
        a.vmem(f"buffer_load_dwordx4 v[{PFD}:{PFD+3}], v{VD}, s[44:47], s56 offen", "bw")
        a.vmem(f"buffer_load_dwordx4 v[{PFD}:{PFD+3}], v{VD2}, s[44:47], s56 offen", "bw")
    a.stamp()
    a.wait_vm("x")
    a("s_barrier")
    a.stamp()
    for t in range(32):
        a(f"ds_read_b128 v[{A0+4*t}:{A0+4*t+3}], v{ACC + 16 + t%8} offset:{(t//8)*256}")
    a.wait_vm("w")
    for i in range(4):
        a(f"v_lshl_or_b32 v{WL+12+i}, v{WL+4+i}, 16, v{WL+i}")
    a(f"""
    s_cmp_eq_u32 s3, 7
    s_cbranch_scc0 k1_nosp2
    v_lshl_or_b32 v{WL+8}, v{WL+9}, 16, v{WL+8}
    buffer_store_dword v{WL+8}, v{WL+10}, s[40:43], 0 offen sc1
    v_mov_b32 v30, 0
    v_mov_b32 v31, 0x7fffff00
    v_cmp_eq_u32 vcc, 0, v2
    s_lshl_b32 s51, s2, 4
    s_add_u32 s51, s51, {WS_FL}
    v_cndmask_b32 v31, v31, v30, vcc
    buffer_store_dword v30, v31, s[40:43], s51 offen sc1
    s_add_u32 s51, s51, 8192
    buffer_store_dword v30, v31, s[40:43], s51 offen sc1
    s_add_u32 s51, s51, 8192
    buffer_store_dword v30, v31, s[40:43], s51 offen sc1
    s_cmp_eq_u32 s2, 0
    s_cbranch_scc0 k1_nosp2
    s_or_b32 s70, s70, 1
    v_mov_b32 v31, s70
    s_mov_b64 exec, 1
    global_store_dword v30, v31, s[68:69] sc1
    s_mov_b64 exec, -1
    k1_nosp2:
    """)
    a("s_waitcnt lgkmcnt(14)")
    a("s_set_gpr_idx_on s57, gpr_idx(SRC0,SRC1)")
    for t in range(16):
        if t % 2 == 0 and t > 0 and t <= P1BAR:
            a(f"s_waitcnt lgkmcnt({max(14 - t, 0)})")
        for r in range(4):
            reg = A0 + 4*t + r
            a(f"v_dot2_f32_bf16 v{24 + r%2}, v{reg}, s26, v{24 + r%2}")
            a(f"v_dot2_f32_bf16 v{26 + r%2}, v{reg}, v{reg}, v{26 + r%2}")
        if t == P1BAR:
            a("s_waitcnt lgkmcnt(0)")
            a("s_barrier")
            a("s_set_gpr_idx_off")
            pend = [(c, u) for c in range(16) for u in range(2)]
            for _ in range(2*K1_PRE): dma_one(*pend.pop(0))
            for tt in range(8):
                a(f"ds_read_b128 v[{BF+4*tt}:{BF+4*tt+3}], v5 offset:{tt*1024}")
            a("s_set_gpr_idx_on s57, gpr_idx(SRC0,SRC1)")
    a("s_set_gpr_idx_off")
    a.stamp()
    def mini(ch):
        for t in range(16):
            fb = BF + 4*(t % 8)
            if t < 8: a(f"s_waitcnt lgkmcnt({7})" if t > 0 else "s_waitcnt lgkmcnt(0)")
            else: a(f"s_waitcnt lgkmcnt({15 - t})")
            ar = A0 + 4*(16*ch + t)
            cin = "0" if t == 0 else f"v[{ACC}:{ACC+15}]"
            a(f"v_mfma_f32_32x32x16_bf16 v[{ACC}:{ACC+15}], v[{fb}:{fb+3}], v[{ar}:{ar+3}], {cin}")
            if t < 8:
                a(f"ds_read_b128 v[{fb}:{fb+3}], v5 offset:{(t+8)*1024}")
    a("s_cmp_eq_u32 s21, 0")
    a("s_cbranch_scc0 k1_mini1")
    mini(0)
    a("s_branch k1_minid")
    a.raw("k1_mini1:")
    mini(1)
    a.raw("k1_minid:")
    for _ in range(2*K1_PRE2): dma_one(*pend.pop(0))
    a(f"""
    v_add_f32 v24, v24, v25
    v_add_f32 v25, v26, v27
    v_mov_b32 v26, v24
    v_mov_b32 v27, v25
    s_lshl_b32 s57, s3, 9
    s_add_u32 s57, s57, {SPARE + 4096}
    v_lshlrev_b32 v10, 3, v2
    v_permlane32_swap_b32 v24, v26
    v_permlane32_swap_b32 v25, v27
    v_add_u32 v10, s57, v10
    v_add_f32 v24, v24, v26
    v_add_f32 v25, v25, v27
    v_xor_b32 v6, 0x800, v10
    ds_write_b64 v10, v[24:25]
    s_lshl_b32 s57, s3, 2
    s_add_u32 s57, s57, {SPARE}
    v_mov_b32 v{VFA}, s57
    v_mov_b32 v{VPG}, 0
    ds_write_b32 v{VFA}, v{VPG}
    v_and_b32 v{VFL}, 7, v2
    v_xor_b32 v30, s3, v{VFL}
    v_lshlrev_b32 v30, 4, v30
    v_lshl_add_u32 v30, v2, 7, v30
    v_add_u32 v30, {SPARE + 8192}, v30
    ds_write_b128 v30, v[{WL+12}:{WL+15}]
    v_lshlrev_b32 v{VFL}, 2, v{VFL}
    v_add_u32 v{VFL}, {SPARE}, v{VFL}
    s_lshl_b32 s57, s3, 11
    s_add_u32 s57, s57, {SPARE + 16384}
    v_add_u32 v30, s57, v{VPF}
    v_xor_b32 v31, 0x2000, v30
    s_cmp_eq_u32 s21, 0
    s_cbranch_scc0 k1_px1
    ds_write_b128 v30, v[{ACC+8}:{ACC+11}]
    ds_write_b128 v30, v[{ACC+12}:{ACC+15}] offset:1024
    s_branch k1_pxd
    k1_px1:
    ds_write_b128 v30, v[{ACC}:{ACC+3}]
    ds_write_b128 v30, v[{ACC+4}:{ACC+7}] offset:1024
    """)
    for r in range(8): a(f"v_mov_b32 v{ACC+r}, v{ACC+8+r}")
    a(f"""
    k1_pxd:
    s_mov_b32 s28, s60
    s_mov_b32 s29, s61
    s_mov_b32 s30, {1792*1024}
    s_lshr_b32 s50, s2, 3
    s_lshl_b32 s50, s50, 3
    s_add_u32 s50, s50, s3
    s_mul_i32 s62, s50, 7168
    s_mul_i32 s63, s50, 3072
    v_lshrrev_b32 v28, 3, v2
    v_and_b32 v5, 7, v2
    v_xor_b32 v29, v28, v5
    v_lshlrev_b32 v29, 4, v29
    v_lshl_add_u32 v29, v28, 7, v29
    s_lshl_b32 s57, s3, 10
    s_add_u32 s57, s57, {SPARE + 8192}
    v_add_u32 v29, s57, v29
    v_lshlrev_b32 v5, 4, v5
    v_lshl_add_u32 v5, v28, 13, v5
    s_and_b32 s57, s2, 3
    s_lshl_b32 s57, s57, 3
    s_add_u32 s57, s57, s3
    s_lshl_b32 s57, s57, 16
    s_lshr_b32 s51, s2, 2
    s_lshl_b32 s51, s51, 7
    s_add_u32 s57, s57, s51
    s_add_u32 s51, s57, {WS_W}
    """)
    a.stamp()
    a.wait_vm("c1")
    a("s_waitcnt lgkmcnt(0)")
    a("s_barrier")
    a.stamp()
    YT = RR + 16384 + 8192
    a(f"""
    ds_read_b64 v[26:27], v6
    ds_read_b128 v[{WL}:{WL+3}], v29
    ds_read_b128 v[{ACC+8}:{ACC+11}], v31
    ds_read_b128 v[{ACC+12}:{ACC+15}], v31 offset:1024
    s_waitcnt lgkmcnt(2)
    v_add_f32 v24, v24, v26
    v_add_f32 v25, v25, v27
    v_mul_f32 v24, 0x3b000000, v24
    v_mul_f32 v25, 0x3b000000, v25
    v_fma_f32 v{VRI}, -v24, v24, v25
    v_cvt_pk_bf16_f32 v27, v24, v24
    v_lshlrev_b32 v27, 16, v27
    v_sub_f32 v{VNM}, 0, v27
    v_mul_f32 v29, v24, v24
    v_mul_f32 v30, 0x43800000, v{VRI}
    v_cmp_gt_f32 vcc, v29, v30
    """)
    a.vmem(f"buffer_store_dwordx4 v[{WL}:{WL+3}], v5, s[40:43], s51 offen sc1", "ws")
    a(f"""
    s_cbranch_vccz k1_fast
    v_mov_b32 v28, 0
    v_mov_b32 v29, 0
    s_mov_b32 s56, 0
    k1_slow:
    s_set_gpr_idx_on s56, gpr_idx(SRC1)
    v_lshlrev_b32 v30, 16, v{A0}
    v_and_b32 v31, s27, v{A0}
    s_set_gpr_idx_off
    v_add_f32 v30, v{VNM}, v30
    v_add_f32 v31, v{VNM}, v31
    v_fma_f32 v28, v30, v30, v28
    v_fma_f32 v29, v31, v31, v29
    s_add_u32 s56, s56, 1
    s_cmp_lt_u32 s56, 128
    s_cbranch_scc1 k1_slow
    v_add_f32 v28, v28, v29
    v_mov_b32 v29, v28
    v_sub_f32 v26, v24, v27
    s_nop 0
    v_permlane32_swap_b32 v28, v29
    v_add_f32 v28, v28, v29
    v_mul_f32 v28, 0x3b000000, v28
    v_fma_f32 v{VRI}, -v26, v26, v28
    k1_fast:
    v_max_f32 v28, 0, v{VRI}
    v_cvt_pk_bf16_f32 v28, v28, v28
    v_lshlrev_b32 v28, 16, v28
    v_add_f32 v28, 0x3727c5ac, v28
    v_cvt_pk_bf16_f32 v28, v28, v28
    v_lshlrev_b32 v28, 16, v28
    v_sqrt_f32 v28, v28
    v_and_b32 v30, 31, v2
    v_cvt_pk_bf16_f32 v28, v28, v28
    v_lshlrev_b32 v28, 16, v28
    v_rcp_f32 v{VRI}, v28
    v_lshlrev_b32 v30, 1, v30
    v_lshrrev_b32 v31, 5, v2
    v_lshl_add_u32 v30, v31, 10, v30
    s_lshl_b32 s57, s20, 6
    s_lshl_b32 s56, s21, 12
    s_add_u32 s57, s57, s56
    s_add_u32 s57, s57, {YT}
    v_add_u32 v30, s57, v30
    s_waitcnt lgkmcnt(0)
    """)
    a.wait_vm("cs")
    for r in range(8): a(f"v_add_f32 v{ACC+r}, v{ACC+r}, v{ACC+8+r}")
    for r in range(8): a(f"v_fma_f32 v{ACC+r}, v{VNM}, v{CS+r}, v{ACC+r}")
    for r in range(8): a(f"v_mul_f32 v{ACC+r}, v{VRI}, v{ACC+r}")
    for r in range(8): a(f"v_cvt_f16_f32 v{ACC+r}, v{ACC+r}")
    for r in range(8):
        a(f"ds_write_b16 v30, v{ACC+r} offset:{(8*(r//4) + r%4)*256}")
    a(f"""
    s_lshl_b32 s57, s3, 10
    s_add_u32 s57, s57, {YT}
    v_add_u32 v5, s57, v{VPF}
    v_lshrrev_b32 v6, 4, v2
    v_lshlrev_b32 v6, 12, v6
    v_and_b32 v31, 15, v2
    v_lshl_add_u32 v6, v31, 4, v6
    s_lshl_b32 s51, s19, 5
    s_lshl_b32 s57, s3, 2
    s_add_u32 s51, s51, s57
    s_lshl_b32 s51, s51, 12
    s_lshl_b32 s57, s18, 8
    s_add_u32 s51, s51, s57
    s_add_u32 s51, s51, {WS_Y}
    """)
    vm_save = list(a.vm); nst_save = a.nst; pend_save = list(pend)

    def p2(i, r):
        reg = A0 + i*4 + r
        t0, t1 = PT + 2*r, PT + 2*r + 1
        return [f"v_lshlrev_b32 v{t0}, 16, v{reg}", f"v_and_b32 v{t1}, s27, v{reg}",
                f"v_add_f32 v{t0}, v{VNM}, v{t0}", f"v_add_f32 v{t1}, v{VNM}, v{t1}",
                f"v_cvt_pk_bf16_f32 v{reg}, v{t0}, v{t1}"]
    def p2_seq(i):
        o = [p2(i, r) for r in range(4)]
        return [o[0][0], o[0][1], o[1][0], o[1][1], o[2][0], o[2][1], o[3][0], o[3][1], o[0][2], o[0][3],
                o[1][2], o[1][3], o[2][2], o[2][3], o[3][2], o[3][3], o[0][4], o[1][4], o[2][4], o[3][4]]

    def mainloop(ch):
        NT = 3 + ch
        a.vm = list(vm_save); a.nst = nst_save
        pend = list(pend_save)
        lab = str(ch)
        NR = 2 * NT
        def reads(i, buf):
            c, s_ = i // 2, i % 2
            pos = RING[c % 8] * 16384
            win = 1 if pos >= 98304 else 0
            base = pos - 98304 * win
            for k in range(NT):
                fr = BF + buf*16 + k*4
                for t in range(2):
                    a(f"ds_read_b64_tr_b16 v[{fr+2*t}:{fr+2*t+1}], v{TR+4*win+k} offset:{base + (16*s_ + 4*t)*256}")
        def mfma(i, buf, k):
            areg = A0 + 4*i
            fr = BF + buf*16 + k*4
            acc = ACC + k*16
            cin = "0" if i == 0 else f"v[{acc}:{acc+15}]"
            a(f"v_mfma_f32_32x32x16_bf16 v[{acc}:{acc+15}], v[{fr}:{fr+3}], v[{areg}:{areg+3}], {cin}")
        reads(0, 0)
        for ins in p2_seq(0): a(ins)
        a.stamp()
        limit = 6
        npf = 0
        for i in range(32):
            c, s_ = i // 2, i % 2
            buf = i & 1
            if s_ == 0:
                if c >= 1 and c < 15: a(f"ds_read_b32 v0, v{VFL}")
                reads(i + 1, buf ^ 1)
                a(f"s_waitcnt lgkmcnt({NR})")
                if c == 2:
                    a.vmem(f"buffer_store_dwordx4 v[{PFD}:{PFD+3}], v6, s[40:43], s51 offen sc1", "ys")
                    a("v_mov_b32 v5, 0")
                    a.vmem("global_load_dword v5, v5, s[68:69] sc1", "nonce")
                if c + 2 < 16:
                    assert not pend or pend[0][0] > c + 2
                    a.wait_vm(f"c{c+2}")
                    if c == 5: a.wait_vm("nonce")
                    a(f"v_mov_b32 v{VPG}, {c+1}")
                    a(f"ds_write_b32 v{VFA}, v{VPG}")
            else:
                if i + 1 < 32:
                    if c >= 1:
                        a(f"""
                        k1_spin{lab}_{c}:
                        v_cmp_gt_u32 vcc, {c}, v0
                        s_cbranch_vccz k1_ok{lab}_{c}
                        ds_read_b32 v0, v{VFL}
                        s_waitcnt lgkmcnt(0)
                        s_branch k1_spin{lab}_{c}
                        k1_ok{lab}_{c}:
                        """)
                        if c >= 3: limit = c + 6
                        if c == 1:
                            a(f"ds_read_b128 v[{PFD}:{PFD+3}], v5")
                        if c == 6:
                            a(f"""
                            s_mov_b32 s57, 0
                            k1_nn{lab}:
                            v_readfirstlane_b32 s6, v5
                            s_cmp_lg_u32 s6, 0
                            s_cbranch_scc1 k1_nh{lab}
                            s_add_u32 s57, s57, 1
                            s_cmp_ge_u32 s57, 0x8000
                            s_cbranch_scc1 k1_nh{lab}
                            v_mov_b32 v5, 0
                            global_load_dword v5, v5, s[68:69] sc1
                            s_waitcnt vmcnt(0)
                            s_branch k1_nn{lab}
                            k1_nh{lab}:
                            """)
                            if ch == 0:
                                a(f"""
                                s_cmp_eq_u32 s3, 0
                                s_cbranch_scc0 k1_nofy
                                s_lshl_b32 s57, s2, 4
                                s_add_u32 s57, s57, {WS_FL + 16384}
                                v_mov_b32 v6, 0
                                s_mov_b64 exec, 1
                                buffer_store_dword v5, v6, s[40:43], s57 offen sc1
                                s_mov_b64 exec, -1
                                k1_nofy:
                                """)
                    reads(i + 1, buf ^ 1)
                    a(f"s_waitcnt lgkmcnt({NR})")
                else:
                    a("s_waitcnt lgkmcnt(0)")
            seq = p2_seq(i + 1) if i + 1 < 32 else []
            per = (20 + NT - 1) // NT
            for k in range(NT):
                mfma(i, buf, k)
                for ins in seq[k*per:(k+1)*per]: a(ins)
                if k in (0, 2) and pend and pend[0][0] <= limit:
                    dma_one(*pend.pop(0))
                if PREF and k == 1 and i >= PFS and npf < 10:
                    if npf < 7:
                        a.vmem(f"buffer_load_dwordx4 v[{PFD}:{PFD+3}], v{VPF}, s[28:31], s62 offen offset:{(npf % 4)*1024}", "pf")
                        if npf == 3: a("s_add_u32 s62, s62, 4096")
                    else:
                        a.vmem(f"buffer_load_dwordx4 v[{PFD}:{PFD+3}], v{VPF}, s[32:35], s63 offen offset:{(npf-7)*1024}", "pf")
                    npf += 1
            if i % 8 == 7 and i < 31: a.stamp()
        assert not pend
        a(f"""
        s_mul_i32 s50, s22, 112
        s_mul_i32 s51, s19, 7
        s_add_u32 s50, s50, s51
        s_add_u32 s50, s50, {3*ch}
        s_lshl_b32 s50, s50, 10
        s_add_u32 s50, s50, {WS_H}
        v_mov_b32 v10, v{VRI}
        v_mov_b32 v11, v{VRI}
        s_nop 7
        """)
        a.stamp()
        for k in range(NT):
            G = ACC + k*16; U = G + 8
            O = BF + k*4; Q = A0 + k*8
            for p in range(8):
                a(f"v_pk_mul_f32 v[{G+2*p}:{G+2*p+1}], v[{G+2*p}:{G+2*p+1}], v[10:11]")
            for p in range(8):
                a(f"v_max_f32 v{G+p}, 0, v{G+p}")
            for p in range(8):
                a(f"v_cvt_pk_bf16_f32 v{Q+p}, v{G+2*p}, v{G+2*p+1}")
            for p in range(8):
                a(f"v_lshlrev_b32 v{G+2*p}, 16, v{Q+p}")
                a(f"v_and_b32 v{G+2*p+1}, s27, v{Q+p}")
            for p in range(4):
                a(f"v_pk_mul_f32 v[{G+2*p}:{G+2*p+1}], v[{G+2*p}:{G+2*p+1}], v[{U+2*p}:{U+2*p+1}]")
            for p in range(4):
                a(f"v_cvt_pk_bf16_f32 v{O+p}, v{G+2*p}, v{G+2*p+1}")
            a(f"buffer_store_dwordx4 v[{O}:{O+3}], v{VPF}, s[40:43], s50 offen offset:{k*1024} sc1")
        a.stamp()
        a.stamp_store(0)
        a("s_branch ph2")
    a("""
    s_cmp_eq_u32 s21, 0
    s_cbranch_scc0 k1_ch1
    """)
    mainloop(0)
    a.raw("k1_ch1:")
    mainloop(1)
    a.raw("k1_end:")
    a("s_endpgm")
    return a.text()

TE1, TE2, TE3, TE4, TT1, TT2, TCS, TSZ = 0, 4096, 20480, 36864, 40960, 49152, 57344, 59392
def small_tables():
    buf = np.zeros(TSZ // 2, np.uint16)
    l = np.arange(64); c = l % 16; g = l // 16; j = np.arange(8)
    for t in range(2):
        ang = -2*np.pi*((8*g[:,None]+j[None,:])*(16*t+c)[:,None] % 32)/32
        buf[(TE1 + (0*2+t)*1024)//2:][:512] = f16(np.cos(ang)/8).ravel()
        buf[(TE1 + (1*2+t)*1024)//2:][:512] = f16(np.sin(ang)/8).ravel()
    for w in range(4):
        for st in range(2):
            ang = -2*np.pi*((32*st+8*g[:,None]+j[None,:])*(16*w+c)[:,None] % 64)/64
            buf[(TE2 + ((w*2+0)*2+st)*1024)//2:][:512] = f16(np.cos(ang)/8).ravel()
            buf[(TE2 + ((w*2+1)*2+st)*1024)//2:][:512] = f16(np.sin(ang)/8).ravel()
            buf[(TE3 + ((w*2+0)*2+st)*1024)//2:][:512] = bf16(np.cos(-ang)/8).ravel()
            buf[(TE3 + ((w*2+1)*2+st)*1024)//2:][:512] = bf16(np.sin(-ang)/8).ravel()
    sig = 16*(j[None,:]//4) + 4*g[:,None] + (j[None,:] % 4)
    for tp in range(2):
        ang = 2*np.pi*((sig*(16*tp+c)[:,None]) % 32)/32
        buf[(TE4 + (0*2+tp)*1024)//2:][:512] = bf16(np.cos(ang)/8).ravel()
        buf[(TE4 + (1*2+tp)*1024)//2:][:512] = bf16(np.sin(ang)/8).ravel()
    for w in range(4):
        for e in range(8):
            t, i = e // 4, e % 4
            a1 = -2*np.pi*(((16*w+4*g+i)*(16*t+c)) % 2048)/2048
            a2 = 2*np.pi*(((16*w+c)*(16*t+4*g+i)) % 2048)/2048
            for (base, an) in ((TT1, a1), (TT2, a2)):
                o = (base + (w*2 + e//4)*1024)//2 + l*8 + (e % 4)*2
                buf[o] = f16(np.cos(an)); buf[o+1] = f16(np.sin(an))
    jj = np.arange(512); c1 = bf16(np.cos(2*np.pi*jj/512) / 16); c1[np.abs(np.cos(2*np.pi*jj/512)) < 1e-9] = 0
    cf = (c1.astype(np.uint32) << 16).view(np.float32).astype(np.float64)
    cs = np.zeros(512)
    for n in range(512):
        kk, off = (256, 0) if n == 1 else (n >> 1, 128*(n & 1))
        cs[n] = cf[(jj*kk + off) & 511].sum()
    buf.view(np.float32)[TCS//4:TCS//4+512] = cs.astype(np.float32)
    return buf

K3_NS = 5
CSTR = int(os.environ.get('CSTR','2'))
NUP = int(os.environ.get('NUP','16'))
ZSC = os.environ.get('ZSC','sc1')
HSC = 'sc1' if MERGE else ''
MPRE = int(os.environ.get('MPRE','16'))
PSLEEP = int(os.environ.get('PSLEEP','4'))
GLAG = int(os.environ.get('GLAG','5'))
ZMIN = int(os.environ.get('ZMIN','40'))
POLLD = int(os.environ.get('POLLD','5'))
HDIST = int(os.environ.get('HDIST','12'))
ZSTART = int(os.environ.get('ZSTART','28'))
ZTAIL = int(os.environ.get('ZTAIL','0'))
NIDLE = int(os.environ.get('NIDLE','2'))
NZB = int(os.environ.get('NZB','1'))
LOADALL = os.environ.get('LOADALL','1') == '1'
CPRIO = int(os.environ.get('CPRIO','2'))
LATEC = int(os.environ.get('LATEC','1'))
def gen_k23_main():
    a = Asm()
    if MERGE:
        a.raw("ph2:")
        a(f"""
        s_load_dwordx4 s[8:11], s[0:1], 48
        s_load_dwordx2 s[14:15], s[0:1], 72
        s_waitcnt vmcnt(0) lgkmcnt(0)
        s_barrier
        s_cmp_eq_u32 s3, 0
        s_cbranch_scc0 ph2_nopub
        s_lshl_b32 s26, s2, 4
        s_add_u32 s26, s26, {WS_FL + 8192}
        v_mov_b32 v7, 0
        v_mov_b32 v23, s6
        s_mov_b64 exec, 1
        buffer_store_dword v23, v7, s[40:43], s26 offen sc1
        s_mov_b64 exec, -1
        ph2_nopub:
        s_lshl_b32 s26, s3, 6
        v_add_u32 v0, s26, v2
        """)
    else:
        a.raw(".p2align 8\nk23_kernel:")
        a("""
        s_cmp_ge_u32 s2, 256
        s_cbranch_scc1 k23_end
        s_load_dwordx2 s[4:5], s[0:1], 0
        s_load_dwordx4 s[8:11], s[0:1], 48
        s_load_dwordx2 s[14:15], s[0:1], 72
        v_lshrrev_b32 v1, 6, v0
        v_and_b32 v2, 63, v0
        s_mov_b32 s6, 1
        v_readfirstlane_b32 s3, v1
        """)
    a("""
    v_and_b32 v3, 15, v2
    v_lshrrev_b32 v4, 4, v2
    s_mov_b32 s48, 0x80008000
    s_mov_b32 s49, 0xffff0000
    s_cmp_ge_u32 s3, 4
    s_cbranch_scc1 k23_conv
    """)
    SB = 131072
    NCB = 5 + NIDLE + NZB
    getpc_tab(a, 24, "tab_G")
    srd(a, 44, "s24", "s25", 524288)
    if os.environ.get("K3_MAP", "1") == "0":
        a("""
    s_and_b32 s16, s2, 7
    s_lshr_b32 s17, s2, 3
    s_lshr_b32 s18, s16, 1
    s_lshl_b32 s18, s18, 3
    s_and_b32 s19, s17, 7
    s_add_u32 s18, s18, s19
    s_lshl_b32 s58, s19, 1
    s_and_b32 s19, s16, 1
    s_lshl_b32 s19, s19, 2
    s_lshr_b32 s20, s17, 3
    s_add_u32 s19, s19, s20
    s_lshl_b32 s20, s20, 2
    s_add_u32 s58, s58, s20
    """)
    else:
        a("""
    s_and_b32 s16, s2, 7
    s_lshr_b32 s17, s2, 3
    s_lshl_b32 s18, s16, 2
    s_and_b32 s19, s17, 3
    s_add_u32 s18, s18, s19
    s_lshl_b32 s58, s19, 2
    s_lshr_b32 s19, s17, 2
    s_lshl_b32 s20, s19, 1
    s_add_u32 s58, s58, s20
    """)
    a.sb = 92; a.maxst = 5
    XR = 8; PV = 16; VO, VF, VW, VZ, VH = 20, 21, 22, 23, 24
    VPG, VFA, VFL, VFV = 25, 26, 27, 28
    TRW = 29
    TRZ = 37
    GFR = 39
    VW2, VZ2 = 41, 42
    ACG, ACS = 44, 60
    FB = 76
    HB = 136; NHB = 28
    PW = SB + 28672
    NCH = 36
    a(f"""
    s_cmp_ge_u32 s58, 14
    s_cselect_b32 s20, 14, 0
    s_sub_u32 s58, s58, s20
    s_lshl_b32 s58, s58, 1
    s_add_u32 s12, s18, s19
    s_and_b32 s12, s12, 7
    s_and_b32 s20, s3, 1
    s_lshr_b32 s21, s3, 1
    s_lshl_b32 s22, s18, 1
    s_add_u32 s22, s22, s21
    v_lshlrev_b32 v{VF}, 4, v2
    v_lshrrev_b32 v6, 3, v2
    v_and_b32 v5, 7, v2
    v_lshrrev_b32 v5, 1, v5
    v_lshrrev_b32 v1, 1, v6
    v_xor_b32 v5, v5, v1
    v_lshlrev_b32 v5, 5, v5
    v_and_b32 v1, 1, v2
    v_lshl_add_u32 v5, v1, 4, v5
    v_lshl_add_u32 v{VW}, v6, 10, v5
    v_lshl_add_u32 v{VZ}, v6, 12, v5
    s_lshl_b32 s27, s19, 7
    v_add_u32 v{VW}, s27, v{VW}
    s_lshl_b32 s27, s18, 7
    s_add_u32 s27, s27, {WS_Z}
    v_add_u32 v{VZ}, s27, v{VZ}
    v_add_u32 v{VW2}, 8192, v{VW}
    v_add_u32 v{VZ2}, 32768, v{VZ}
    v_lshlrev_b32 v{VH}, 9, v4
    v_lshl_add_u32 v{VH}, v3, 4, v{VH}
    s_mul_i32 s50, s22, 112
    s_lshl_b32 s50, s50, 10
    s_lshl_b32 s27, s20, 8
    s_add_u32 s50, s50, s27
    s_add_u32 s50, s50, {WS_H}
    s_lshl_b32 s51, s19, 1
    s_add_u32 s51, s51, s21
    s_lshl_b32 s51, s51, 5
    s_lshl_b32 s27, s20, 1
    s_add_u32 s51, s51, s27
    s_lshl_b32 s51, s51, 10
    s_lshl_b32 s52, s3, 11
    s_lshl_b32 s54, s3, 14
    s_lshl_b32 s55, s3, 16
    s_mov_b32 s59, {WS_FL}
    s_lshl_b32 s27, s3, 2
    s_add_u32 s27, s27, {PW}
    v_mov_b32 v{VFA}, s27
    v_mov_b32 v{VPG}, 0
    v_and_b32 v{VFL}, 3, v2
    v_lshlrev_b32 v{VFL}, 2, v{VFL}
    v_add_u32 v{VFL}, {PW}, v{VFL}
    ds_write_b32 v{VFA}, v{VPG}
    s_waitcnt lgkmcnt(0)
    """)
    a.stamp()
    srd(a, 40, "s14", "s15", WS_SIZE)
    srd(a, 32, "s8", "s9", 1792*1024)
    isd = lambda c: c < 28
    upos = {}; p_ = 0
    for c in range(NCH):
        upos[c] = p_ % 16; p_ += 1 if isd(c) else 2
    ustart = {}; p_ = 0
    for c in range(NCH):
        ustart[c] = p_; p_ += 1 if isd(c) else 2
    uend = lambda c: ustart[c] + (1 if isd(c) else 2)
    a(f"""
    v_add_u32 v{VW}, s54, v{VW}
    v_add_u32 v{VW2}, s54, v{VW2}
    v_add_u32 v43, s50, v{VH}
    s_lshl_b32 s64, s58, 12
    """)
    def tab(c):
        a(f"s_add_u32 s{64+c}, s{63+c}, 4096")
        a(f"s_cmp_eq_u32 s{64+c}, {28*4096}")
        a(f"s_cselect_b32 s{64+c}, 0, s{64+c}")
    def dma_one(c, u):
        if isd(c):
            a(f"s_add_u32 m0, s52, {upos[c]*8192 + u*1024}")
            if u == 0: a(f"s_lshl_b32 s63, s{64+c}, 4")
            else: a("s_nop 0")
            a.vmem(f"buffer_load_dwordx4 v{VW if u == 0 else VW2}, s[32:35], s63 offen lds", f"c{c}")
            return
        if u == 0:
            a(f"s_xor_b32 s57, s12, {c-28}")
            a(f"s_lshl_b32 s62, s57, 12"); a(f"s_add_u32 s62, s62, s51")
            a(f"s_lshl_b32 s63, s57, 18"); a(f"s_add_u32 s63, s63, s55")
        if u < 2:
            a(f"s_add_u32 m0, s52, {upos[c]*8192 + u*1024}")
            a("s_nop 0")
            a.vmem(f"buffer_load_dwordx4 v{VZ if u == 0 else VZ2}, s[40:43], s63 offen {ZSC} lds", f"c{c}")
        else:
            if u == 2:
                a(f"s_add_u32 m0, s52, {((upos[c]+1) % 16)*8192}")
                a("s_nop 0")
            else:
                a(f"s_add_u32 m0, s52, {((upos[c]+1) % 16)*8192}")
                a("s_nop 0")
            a.vmem(f"buffer_load_dwordx4 v{VF}, s[44:47], s62 offen offset:{(u-2)*1024} lds", f"c{c}")
    def hload(j):
        c, s_ = j // 2, j % 2
        hb = HB + (j % NHB) * 4
        a.vmem(f"buffer_load_dwordx4 v[{hb}:{hb+3}], v43, s[40:43], s{64+c} offen offset:{s_*2048} {HSC}", f"h{j}")
    tab(1)
    pend = [(c, u) for c in range(NCH) for u in range(2 if isd(c) else 4)]
    hp = [0]
    if MERGE:
        a("s_barrier")
        for c in range(2, 28): tab(c)
        for c in range(MPRE):
            for u in range(2): dma_one(*pend.pop(0))
    else:
        for c in range(2):
            for u in range(2): dma_one(*pend.pop(0))
            for _ in range(2): hload(hp[0]); hp[0] += 1
        for c in range(2, 28): tab(c)
        a("s_barrier")
        for c in range(NUP // 4):
            for u in range(2): dma_one(*pend.pop(0))
            for _ in range(2): hload(hp[0]); hp[0] += 1
    srd(a, 36, "s10", "s11", 2048*1024)
    srd(a, 28, "s4", "s5", 2048*1024)
    a(f"""
    v_lshrrev_b32 v{PV}, 2, v3
    v_and_b32 v{PV+1}, 3, v3
    v_lshrrev_b32 v{PV+2}, 1, v4
    v_lshlrev_b32 v{PV+2}, 4, v{PV+2}
    v_and_b32 v{PV+3}, 1, v4
    v_lshl_add_u32 v{PV+2}, v{PV+3}, 2, v{PV+2}
    v_add_u32 v{PV+2}, v{PV+2}, v{PV}
    v_lshlrev_b32 v{PV+2}, 7, v{PV+2}
    v_lshl_add_u32 v{PV+2}, v{PV+1}, 3, v{PV+2}
    v_lshrrev_b32 v{PV}, 1, v{PV}
    v_lshl_add_u32 v{PV}, v{PV+3}, 1, v{PV}
    """)
    for dt in range(4):
        a(f"v_xor_b32 v{PV+1}, {dt}, v{PV}")
        a(f"v_lshl_add_u32 v{TRW+dt}, v{PV+1}, 5, v{PV+2}")
        a(f"v_add_u32 v{TRW+4+dt}, 0x10000, v{TRW+dt}")
    a(f"""
    v_xor_b32 v{PV+1}, s3, v{PV}
    v_lshl_add_u32 v{TRZ}, v{PV+1}, 5, v{PV+2}
    v_add_u32 v{TRZ+1}, 0x10000, v{TRZ}
    v_mov_b32 v{GFR}, v{VH}
    v_add_u32 v{GFR+1}, 0x10000, v{VH}
    v_lshrrev_b32 v1, 3, v2
    v_and_b32 v{VO}, 7, v2
    v_lshlrev_b32 v{VO}, 4, v{VO}
    v_lshl_add_u32 v{VO}, v1, 16, v{VO}
    s_lshl_b32 s23, s22, 10
    s_lshl_b32 s26, s19, 7
    s_add_u32 s23, s23, s26
    s_lshl_b32 s26, s20, 20
    s_add_u32 s23, s23, s26
    s_add_u32 s13, s23, 0x80000
    """)
    if MERGE:
        a(f"""
        s_lshr_b32 s26, s18, 1
        s_lshr_b32 s27, s26, 3
        s_and_b32 s26, s26, 7
        s_lshl_b32 s26, s26, 3
        s_add_u32 s26, s26, s27
        s_lshl_b32 s26, s26, 4
        s_add_u32 s26, s26, {WS_FL + 8192}
        v_lshrrev_b32 v{PV}, 2, v3
        v_and_b32 v{PV+1}, 3, v3
        v_lshlrev_b32 v{PV}, 5, v{PV}
        v_lshl_add_u32 v{PV}, v{PV+1}, 10, v{PV}
        s_mov_b32 s27, 0
        ph2_gpoll:
        buffer_load_dword v{PV+1}, v{PV}, s[40:43], s26 offen sc1
        s_waitcnt vmcnt(0)
        v_cmp_ne_u32 vcc, s6, v{PV+1}
        s_cbranch_vccz ph2_ggo
        s_add_u32 s27, s27, 1
        s_cmp_ge_u32 s27, 0x8000
        s_cbranch_scc1 ph2_ggo
        s_sleep {PSLEEP}
        s_branch ph2_gpoll
        ph2_ggo:
        """)
        a.vm = []
        for _ in range(HDIST): hload(hp[0]); hp[0] += 1
    DEPTH = 3
    NST = NCH * 2
    LAG = GLAG
    pubs = []
    def full_issued():
        return (pend[0][0] - 1) if pend else NCH - 1
    def arrive(want, rdone):
        q = min(want, full_issued(), NCH - 1)
        for cc in range(q, -1, -1):
            if f"c{cc}" in a.vm:
                a.wait_vm(f"c{cc}"); break
        pubs.append((q, rdone))
        a(f"v_mov_b32 v{VPG}, {len(pubs)}")
        a.lds(f"ds_write_b32 v{VFA}, v{VPG}", "pw")
    nspin = [0]
    checked = [0]
    fvp = [False]
    def check(k):
        n = nspin[0]; nspin[0] += 1
        if not fvp[0]:
            a.lds(f"ds_read_b32 v{VFV}, v{VFL}", "fv")
        fvp[0] = False
        a.wait_lds("fv")
        a(f"""
        k23_gs{n}:
        v_cmp_gt_u32 vcc, {k}, v{VFV}
        s_cbranch_vccz k23_go{n}
        ds_read_b32 v{VFV}, v{VFL}
        s_waitcnt lgkmcnt(0)
        s_branch k23_gs{n}
        k23_go{n}:
        """)
        checked[0] = k
        rd = pubs[k-1][1]
        if rd >= 0: ulimit[0] = max(ulimit[0], uend(rd) + 16)
    ulimit = [16]
    def reads(i):
        c, s_ = i // 2, i % 2
        if s_ == 0:
            have = pubs[checked[0]-1][0] if checked[0] else -1
            if have < c or c % 2 == 0:
                need = min(c + 1, NCH - 1) if c % 2 == 0 else c
                ks = [k+1 for k, (q, r) in enumerate(pubs) if q >= need]
                if not ks: ks = [k+1 for k, (q, r) in enumerate(pubs) if q >= c]
                assert ks, ("no publish covers chunk", c, pubs)
                k = max(ks[0], checked[0])
                if k > checked[0]: check(k)
            if c in (0, 12, 28): a.stamp()
            if c % 2 == 1 and c + 1 < NCH and c >= 3:
                a.lds(f"ds_read_b32 v{VFV}, v{VFL}", "fv"); fvp[0] = True
        fb = FB + (i % DEPTH) * 20
        u0 = upos[c] * 8192
        w0, b0 = u0 >> 16, u0 & 0xffff
        if isd(c):
            for dt in range(4):
                for t in range(2):
                    a.lds(f"ds_read_b64_tr_b16 v[{fb+4*dt+2*t}:{fb+4*dt+2*t+1}], v{TRW+4*w0+dt} offset:{b0 + (32*s_ + 8*t)*128}", f"g{i}")
        else:
            for t in range(2):
                a.lds(f"ds_read_b64_tr_b16 v[{fb+16+2*t}:{fb+17+2*t}], v{TRZ+w0} offset:{b0 + (32*s_ + 8*t)*128}", f"g{i}")
            u1 = ((upos[c] + 1) % 16) * 8192
            w1, b1 = u1 >> 16, u1 & 0xffff
            for dt in range(4):
                a.lds(f"ds_read_b128 v[{fb+4*dt}:{fb+4*dt+3}], v{GFR+w1} offset:{b1 + (dt>>1)*4096 + s_*2048 + (dt&1)*256}", f"g{i}")
    def mfma(i, dt):
        c, s_ = i // 2, i % 2
        fb = FB + (i % DEPTH) * 20
        if isd(c):
            hb = HB + (i % NHB) * 4
            cin = "0" if i == 0 else f"v[{ACG+4*dt}:{ACG+4*dt+3}]"
            a(f"v_mfma_f32_16x16x32_bf16 v[{ACG+4*dt}:{ACG+4*dt+3}], v[{fb+4*dt}:{fb+4*dt+3}], v[{hb}:{hb+3}], {cin}")
        else:
            cin = "0" if i == 56 else f"v[{ACS+4*dt}:{ACS+4*dt+3}]"
            a(f"v_mfma_f32_16x16x32_bf16 v[{ACS+4*dt}:{ACS+4*dt+3}], v[{fb+4*dt}:{fb+4*dt+3}], v[{fb+16}:{fb+19}], {cin}")
    def silu():
        G_ = ACG; T_ = HB
        for p in range(8): a(f"v_cvt_pk_bf16_f32 v{T_+p}, v{G_+2*p}, v{G_+2*p+1}")
        yield
        for p in range(8):
            a(f"v_lshlrev_b32 v{G_+2*p}, 16, v{T_+p}")
            a(f"v_and_b32 v{G_+2*p+1}, s49, v{T_+p}")
            if p % 4 == 3: yield
        for p in range(16):
            a(f"v_mul_f32 v{T_+p}, 0xbfb8aa3b, v{G_+p}")
            if p % 8 == 7: yield
        for p in range(16):
            a(f"v_exp_f32 v{T_+p}, v{T_+p}")
            if p % 4 == 3: yield
        for p in range(16):
            a(f"v_add_f32 v{T_+p}, 1.0, v{T_+p}")
            if p % 8 == 7: yield
        for p in range(16):
            a(f"v_rcp_f32 v{T_+p}, v{T_+p}")
            if p % 4 == 3: yield
        for p in range(16):
            a(f"v_mul_f32 v{G_+p}, v{G_+p}, v{T_+p}")
            if p % 8 == 7: yield
        for p in range(8): a(f"v_cvt_pk_bf16_f32 v{T_+p}, v{G_+2*p}, v{G_+2*p+1}")
        yield
        for p in range(8):
            a(f"v_lshlrev_b32 v{G_+2*p}, 16, v{T_+p}")
            a(f"v_and_b32 v{G_+2*p+1}, s49, v{T_+p}")
            if p % 4 == 3: yield
    sl = silu()
    polled = False
    arrive(1, -1)
    early = list(range(3, LAG, 2))
    for k in range(DEPTH - 1): reads(k)
    for i in range(NST):
        c, s_ = i // 2, i % 2
        if early: arrive(early.pop(0), -1)
        if i + DEPTH - 1 < NST: reads(i + DEPTH - 1)
        a.wait_lds(f"g{i}")
        if isd(c): a.wait_vm(f"h{i}")
        if s_ == 1 and c < NCH - 1 and pubs[-1][0] < NCH - 1 and (c % 2 == 0 or c >= 24):
            arrive(c + LAG, c)
        for dt in range(4):
            mfma(i, dt)
            if dt in (0, 2):
                if pend:
                    pc, pu = pend[0]
                    need = ustart[pc] + (1 if pu < 2 else 2)
                    if need <= ulimit[0] and len(a.vm) < 56 and not (pc >= 28 and i < ZMIN):
                        if pend[0] == (28, 0):
                            a.wait_vm("poll")
                            a(f"""
                            s_mov_b32 s27, 0
                            k23_spin:
                            v_xor_b32 v{PV}, s6, v{PV}
                            v_xor_b32 v{PV+1}, s6, v{PV+1}
                            v_xor_b32 v{PV+2}, s6, v{PV+2}
                            v_xor_b32 v{PV+3}, s6, v{PV+3}
                            v_or3_b32 v{PV}, v{PV}, v{PV+1}, v{PV+2}
                            v_or_b32 v{PV}, v{PV}, v{PV+3}
                            v_cmp_ne_u32 vcc, 0, v{PV}
                            s_cbranch_vccz k23_go
                            s_add_u32 s27, s27, 1
                            s_cmp_ge_u32 s27, 0x4000
                            s_cbranch_scc1 k23_go
                            s_sleep 8
                            buffer_load_dword v{PV}, v{VF}, s[40:43], s59 offen sc1
                            buffer_load_dword v{PV+1}, v{VF}, s[40:43], s59 offen offset:1024 sc1
                            buffer_load_dword v{PV+2}, v{VF}, s[40:43], s59 offen offset:2048 sc1
                            buffer_load_dword v{PV+3}, v{VF}, s[40:43], s59 offen offset:3072 sc1
                            s_waitcnt vmcnt(0)
                            s_branch k23_spin
                            k23_go:
                            """)
                            print("Z issue at step", i, file=sys.stderr)
                        dma_one(*pend.pop(0))
            if dt in (1, 3):
                if hp[0] < 56 and hp[0] - NHB < i and len(a.vm) < 56 and hp[0] <= i + HDIST:
                    hload(hp[0]); hp[0] += 1
            if i >= 58: next(sl, None)
        if i == ZMIN - POLLD and not polled:
            polled = True
            for q in range(4):
                a.vmem(f"buffer_load_dword v{PV+q}, v{VF}, s[40:43], s59 offen offset:{q*1024} sc1", "poll")
        if i == 50:
            a.vmem(f"buffer_load_dwordx4 v[{XR}:{XR+3}], v{VO}, s[28:31], s23 offen", "x")
            a.vmem(f"buffer_load_dwordx4 v[{XR+4}:{XR+7}], v{VO}, s[28:31], s13 offen", "x")
    assert not pend and hp[0] == 56
    for _ in sl: a("s_nop 0")
    a("s_nop 7")
    O = HB + 16; SV = ACS; GV = ACG; Q = HB + 24
    for p in range(8):
        a(f"v_cvt_pk_bf16_f32 v{Q+p}, v{SV+2*p}, v{SV+2*p+1}")
    for p in range(8):
        a(f"v_lshlrev_b32 v{SV+2*p}, 16, v{Q+p}")
        a(f"v_and_b32 v{SV+2*p+1}, s49, v{Q+p}")
    for p in range(16):
        a(f"v_mul_f32 v{SV+p}, v{SV+p}, v{GV+p}")
    for p in range(8):
        a(f"v_cvt_pk_bf16_f32 v{O+p}, v{SV+2*p}, v{SV+2*p+1}")
    a(f"""
    v_lshrrev_b32 v5, 1, v4
    v_and_b32 v6, 7, v2
    v_xor_b32 v5, v5, v6
    v_and_b32 v7, 1, v4
    v_lshlrev_b32 v7, 3, v7
    v_lshl_add_u32 v7, v3, 7, v7
    s_lshl_b32 s26, s3, 11
    s_add_u32 s26, s26, {SB}
    v_add_u32 v7, s26, v7
    s_barrier
    """)
    for dt in range(4):
        a(f"v_xor_b32 v1, {2*dt}, v5")
        a(f"v_lshl_add_u32 v1, v1, 4, v7")
        a(f"ds_write_b64 v1, v[{O+2*dt}:{O+2*dt+1}]")
    a(f"""
    v_lshrrev_b32 v4, 3, v2
    v_xor_b32 v6, v6, v4
    v_lshlrev_b32 v6, 4, v6
    v_lshl_add_u32 v6, v4, 7, v6
    v_add_u32 v6, s26, v6
    s_waitcnt lgkmcnt(0)
    ds_read_b128 v[{Q}:{Q+3}], v6
    ds_read_b128 v[{Q+4}:{Q+7}], v6 offset:1024
    """)
    a.wait_vm_all()
    for p in range(8):
        a(f"v_lshlrev_b32 v{GV+2*p}, 16, v{XR+p}")
        a(f"v_and_b32 v{GV+2*p+1}, s49, v{XR+p}")
    a("s_waitcnt lgkmcnt(0)")
    for p in range(8):
        a(f"v_lshlrev_b32 v{SV+2*p}, 16, v{Q+p}")
        a(f"v_and_b32 v{SV+2*p+1}, s49, v{Q+p}")
    for p in range(16):
        a(f"v_add_f32 v{SV+p}, v{SV+p}, v{GV+p}")
    for p in range(8):
        a(f"v_cvt_pk_bf16_f32 v{O+p}, v{SV+2*p}, v{SV+2*p+1}")
    a(f"buffer_store_dwordx4 v[{O}:{O+3}], v{VO}, s[36:39], s23 offen {OSP}")
    a(f"buffer_store_dwordx4 v[{O+4}:{O+7}], v{VO}, s[36:39], s13 offen {OSP}")
    a.stamp()
    if STAMP: a("s_waitcnt vmcnt(0)")
    a.stamp()
    a.stamp_store(1)
    a("s_endpgm")

    a.raw("k23_conv:")
    a.vm = []; a.lq = []; a.nst = 0; a.sb = 74; a.maxst = 14
    YR, YI = 8, 12
    E1 = 16; T1 = 32; E2 = 48; WW = 64; E3 = 80; T2 = 96; E4 = 112
    D = 128; F = 144; N = 176; TMP = 184; WM = 200; VL = 7
    getpc_tab(a, 24, "tab_S")
    srd(a, 28, "s24", "s25", TSZ)
    a(f"""
    s_sub_u32 s13, s3, 4
    v_lshlrev_b32 v5, 6, v3
    v_lshl_add_u32 v5, v4, 4, v5
    s_lshl_b32 s60, s2, 13
    s_lshl_b32 s61, s13, 10
    s_add_u32 s60, s60, s61
    s_add_u32 s60, s60, {WS_Y}
    s_add_u32 s61, s60, 4096
    v_lshlrev_b32 v{VL}, 4, v2
    s_lshl_b32 s26, s13, 12
    s_lshl_b32 s12, s13, 11
    v_subrev_u32 v6, 256, v0
    v_lshlrev_b32 v6, 5, v6
    s_waitcnt lgkmcnt(0)
    """)
    a.stamp()
    srd(a, 40, "s14", "s15", WS_SIZE)
    def tload(dst, n, soff, base, tag):
        for q in range(n):
            a.vmem(f"buffer_load_dwordx4 v[{dst+4*q}:{dst+4*q+3}], v{VL}, s[28:31], {soff} offen offset:{base+q*1024}", tag)
    a("v_mov_b32 v215, v5")
    def yloads():
        a.vmem(f"buffer_load_dwordx4 v[{YR}:{YR+3}], v215, s[40:43], s60 offen {HSC}", "y")
        a.vmem(f"buffer_load_dwordx4 v[{YI}:{YI+3}], v215, s[40:43], s61 offen {HSC}", "y")
    if not MERGE: yloads()
    tload(E1, 4, "0", TE1, "e1")
    a(f"s_add_u32 s27, s12, {TT1}")
    tload(T1, 2, "s27", 0, "t1")
    def loads2a():
        a(f"s_add_u32 s27, s26, {TE2}")
        tload(E2, 4, "s27", 0, "e2")
    def loads2():
        a(f"""
        s_lshl_b32 s27, s2, 13
        s_add_u32 s27, s27, {WS_W}
        s_cmp_eq_u32 s2, 0
        s_cbranch_scc0 k23_now256
        s_mov_b32 s56, {WS_W + 256*8192}
        buffer_load_dwordx4 v[{WW+8}:{WW+11}], v{VWT}, s[40:43], s56 offen {HSC}
        buffer_load_dwordx4 v[{WW+12}:{WW+15}], v{VWT}, s[40:43], s56 offen offset:16 {HSC}
        s_add_u32 s56, s56, 8192
        buffer_load_dwordx4 v[{WM}:{WM+3}], v{VWT}, s[40:43], s56 offen {HSC}
        buffer_load_dwordx4 v[{WM+4}:{WM+7}], v{VWT}, s[40:43], s56 offen offset:16 {HSC}
        s_add_u32 s56, s56, 8192
        buffer_load_dwordx4 v[{WM+8}:{WM+11}], v{VWT}, s[40:43], s56 offen {HSC}
        buffer_load_dwordx4 v[{WM+12}:{WM+15}], v{VWT}, s[40:43], s56 offen offset:16 {HSC}
        k23_now256:
        """)
        a.vmem(f"buffer_load_dwordx4 v[{WW}:{WW+3}], v{VWT}, s[40:43], s27 offen {HSC}", "w")
        a.vmem(f"buffer_load_dwordx4 v[{WW+4}:{WW+7}], v{VWT}, s[40:43], s27 offen offset:16 {HSC}", "w")
    def loads3():
        a(f"s_add_u32 s27, s26, {TE3}")
        tload(E3, 4, "s27", 0, "e3")
        a(f"s_add_u32 s27, s12, {TT2}")
        tload(T2, 2, "s27", 0, "t2")
        a(f"s_mov_b32 s27, {TE4}")
        tload(E4, 4, "s27", 0, "e4")
    VWT = 216; PQ = 220
    a(f"""
    v_mov_b32 v{VWT}, v6
    s_lshl_b32 s27, s13, 9
    v_lshlrev_b32 v1, 7, v4
    v_add3_u32 v1, v1, v3, s27
    s_movk_i32 s27, 144
    v_mul_lo_u32 v6, v3, s27
    v_add_u32 v6, {SB}, v6
    v_lshl_add_u32 v5, v4, 3, v6
    s_lshl_b32 s27, s13, 5
    v_add_u32 v5, s27, v5
    v_lshl_add_u32 v6, v4, 4, v6
    """)
    UB, XB, MB = 0, 9216, 18432
    PL = 4608
    def R(x): return f"v[{x}:{x+3}]"
    def fr(pl, t, st): return F + ((pl*2+t)*2+st)*4
    def cmul_tw(tw):
        for e in range(8):
            r = D + e; im = D + 8 + e; tq = tw + e
            t = TMP + 2*(e % 4)
            a(f"""
            v_fma_mix_f32 v{t}, v{im}, v{tq}, 0 op_sel:[0,1,0] op_sel_hi:[0,1,0]
            v_fma_mix_f32 v{t+1}, v{r}, v{tq}, 0 op_sel:[0,1,0] op_sel_hi:[0,1,0]
            """)
            if e % 4 == 3:
                for e2 in range(e-3, e+1):
                    r = D + e2; im = D + 8 + e2; tq = tw + e2
                    t = TMP + 2*(e2 % 4)
                    a(f"""
                    v_fma_mix_f32 v{r}, v{r}, v{tq}, -v{t} op_sel:[0,0,0] op_sel_hi:[0,1,0]
                    v_fma_mix_f32 v{im}, v{im}, v{tq}, v{t+1} op_sel:[0,0,0] op_sel_hi:[0,1,0]
                    """)
    def pack(cvt, dst):
        for e in range(8):
            a(f"{cvt} v{dst+e}, v{D+2*e}, v{D+2*e+1}")
    def lds_write(base, src):
        for pl in range(2):
            for t in range(2):
                a(f"ds_write_b64 v5, v[{src+pl*4+t*2}:{src+pl*4+t*2+1}] offset:{base + pl*PL + t*16*144}")
    def lds_read(base):
        for pl in range(2):
            for t in range(2):
                for st in range(2):
                    f_ = fr(pl, t, st)
                    a(f"ds_read_b128 v[{f_}:{f_+3}], v6 offset:{base + pl*PL + t*16*144 + st*64}")
    nbar = [0]
    CA, CL, CV = 217, 218, 219
    def bar(tag=""):
        nbar[0] += 1
        p = nbar[0]
        a(f"""
        v_mov_b32 v{CV}, {p}
        s_waitcnt lgkmcnt(0)
        ds_write_b32 v{CA}, v{CV}
        k23_cs{p}{tag}:
        ds_read_b32 v{CV}, v{CL}
        s_waitcnt lgkmcnt(0)
        v_cmp_gt_u32 vcc, {p}, v{CV}
        s_cbranch_vccnz k23_cs{p}{tag}
        """)
        a.stamp()
    a(f"""
    s_setprio {CPRIO}
    s_lshl_b32 s27, s13, 2
    s_add_u32 s27, s27, {PW + 16}
    v_mov_b32 v{CA}, s27
    v_mov_b32 v{CV}, 0
    v_and_b32 v{CL}, 3, v2
    v_lshlrev_b32 v{CL}, 2, v{CL}
    v_add_u32 v{CL}, {PW + 16}, v{CL}
    ds_write_b32 v{CA}, v{CV}
    """)
    if MERGE:
        a(f"""
        s_waitcnt lgkmcnt(0)
        s_barrier
        s_mov_b32 s27, 0
        s_mov_b32 s56, {WS_FL + 16384}
        ph2_poll:
        buffer_load_dword v{TMP}, v{VL}, s[40:43], s56 offen sc1
        buffer_load_dword v{TMP+1}, v{VL}, s[40:43], s56 offen offset:1024 sc1
        buffer_load_dword v{TMP+2}, v{VL}, s[40:43], s56 offen offset:2048 sc1
        buffer_load_dword v{TMP+3}, v{VL}, s[40:43], s56 offen offset:3072 sc1
        s_waitcnt vmcnt(0)
        v_xor_b32 v{TMP}, s6, v{TMP}
        v_xor_b32 v{TMP+1}, s6, v{TMP+1}
        v_xor_b32 v{TMP+2}, s6, v{TMP+2}
        v_xor_b32 v{TMP+3}, s6, v{TMP+3}
        v_or3_b32 v{TMP}, v{TMP}, v{TMP+1}, v{TMP+2}
        v_or_b32 v{TMP}, v{TMP}, v{TMP+3}
        v_cmp_ne_u32 vcc, 0, v{TMP}
        s_cbranch_vccz ph2_gate
        s_add_u32 s27, s27, 1
        s_cmp_ge_u32 s27, 0x8000
        s_cbranch_scc1 ph2_gate
        s_sleep {PSLEEP}
        s_branch ph2_poll
        ph2_gate:
        """)
        a.vm = []
        a.stamp()
        yloads(); loads2a(); loads2(); loads3()
        a.wait_vm("y")
    else:
        loads2a(); loads2(); loads3()
        a("s_waitcnt lgkmcnt(0)")
        a("s_barrier")
        a.stamp()
    a.wait_vm("e1")
    for r in range(4):
        a(f"v_xor_b32 v{N+r}, s48, v{YI+r}")
    a("s_nop 1")
    for t in range(2):
        er = E1 + 4*t; ei = E1 + 8 + 4*t
        a(f"v_mfma_f32_16x16x32_f16 {R(D+4*t)}, {R(YR)}, {R(er)}, 0")
        a(f"v_mfma_f32_16x16x32_f16 {R(D+8+4*t)}, {R(YR)}, {R(ei)}, 0")
    for t in range(2):
        er = E1 + 4*t; ei = E1 + 8 + 4*t
        a(f"v_mfma_f32_16x16x32_f16 {R(D+4*t)}, {R(N)}, {R(ei)}, {R(D+4*t)}")
        a(f"v_mfma_f32_16x16x32_f16 {R(D+8+4*t)}, {R(YI)}, {R(er)}, {R(D+8+4*t)}")
    a.wait_vm("t1")
    a("s_nop 7")
    cmul_tw(T1)
    pack("v_cvt_pk_f16_f32", TMP + 8)
    lds_write(UB, TMP + 8)
    bar()
    lds_read(UB)
    a.wait_vm("e2")
    for r in range(8):
        a(f"v_xor_b32 v{N+r}, s48, v{E2+8+r}")
    a("s_waitcnt lgkmcnt(0)")
    for st in range(2):
        for t in range(2):
            cr = "0" if st == 0 else R(D+4*t); ci = "0" if st == 0 else R(D+8+4*t)
            a(f"v_mfma_f32_16x16x32_f16 {R(D+4*t)}, {R(E2+4*st)}, {R(fr(0,t,st))}, {cr}")
            a(f"v_mfma_f32_16x16x32_f16 {R(D+8+4*t)}, {R(E2+8+4*st)}, {R(fr(0,t,st))}, {ci}")
        for t in range(2):
            a(f"v_mfma_f32_16x16x32_f16 {R(D+4*t)}, {R(N+4*st)}, {R(fr(1,t,st))}, {R(D+4*t)}")
            a(f"v_mfma_f32_16x16x32_f16 {R(D+8+4*t)}, {R(E2+4*st)}, {R(fr(1,t,st))}, {R(D+8+4*t)}")
    a("""
    s_cmp_eq_u32 s2, 0
    s_cbranch_scc1 k2_special
    """)
    vm_keep = list(a.vm)
    a.wait_vm("w")
    a("s_nop 7")
    for e in range(8):
        r = D + e; im = D + 8 + e
        t = TMP + 4*(e % 2)
        a(f"""
        v_lshlrev_b32 v{t+2}, 16, v{WW+e}
        v_and_b32 v{t+3}, s49, v{WW+e}
        v_mul_f32 v{t}, v{im}, v{t+3}
        v_mul_f32 v{t+1}, v{r}, v{t+3}
        v_fma_f32 v{r}, v{r}, v{t+2}, -v{t}
        v_fma_f32 v{im}, v{im}, v{t+2}, v{t+1}
        """)
    a("s_branch k2_join")
    a.raw("k2_special:")
    a.vm = vm_keep
    a.wait_vm("w")
    TA_ = 8
    for e in range(8):
        q = PQ + 4*e; t = TA_ + 4*e
        a(f"""
        v_lshlrev_b32 v{q}, 16, v{WW+e}
        v_and_b32 v{q+1}, s49, v{WW+e}
        v_lshlrev_b32 v{q+2}, 16, v{WM+e}
        v_and_b32 v{q+3}, s49, v{WM+e}
        v_lshlrev_b32 v{t}, 16, v{WW+8+e}
        v_and_b32 v{t+1}, s49, v{WW+8+e}
        v_lshlrev_b32 v{t+2}, 16, v{WM+8+e}
        v_and_b32 v{t+3}, s49, v{WM+8+e}
        """)
    for e in range(8):
        q = PQ + 4*e; t = TA_ + 4*e
        a(f"""
        v_add_f32 v{q}, v{q}, v{q+2}
        v_sub_f32 v{q+1}, v{q+1}, v{q+3}
        v_add_f32 v{t}, v{t}, v{t+2}
        v_sub_f32 v{t+1}, v{t+1}, v{t+3}
        """)
    for e in range(8):
        q = PQ + 4*e; t = TA_ + 4*e
        a(f"""
        v_sub_f32 v{q+2}, v{q}, v{t}
        v_sub_f32 v{q+3}, v{q+1}, v{t+1}
        v_add_f32 v{q}, v{q}, v{t}
        v_add_f32 v{q+1}, v{q+1}, v{t+1}
        """)
    for e in range(32):
        a(f"v_mul_f32 v{PQ+e}, 0x3e800000, v{PQ+e}")
    for e in range(8):
        t, i = e // 4, e % 4
        q = TMP + 2*(e % 2)
        a(f"""
        v_cvt_pk_f16_f32 v{q}, v{D+e}, v{D+8+e}
        v_add_u32 v{q+1}, {32*i+16*t+(SB+MB)//4}, v1
        v_lshlrev_b32 v{q+1}, 2, v{q+1}
        ds_write_b32 v{q+1}, v{q}
        """)
    for e in range(8):
        r = D + e; q = PQ + 4*e; t = F + 8 + 2*e
        a(f"v_mul_f32 v{t}, v{r}, v{q}")
        a(f"v_mul_f32 v{t+1}, v{r}, v{q+1}")
    for e in range(8):
        im = D + 8 + e; q = PQ + 4*e; t = F + 8 + 2*e
        a(f"v_fma_f32 v{t}, -v{im}, v{q+1}, v{t}")
        a(f"v_fma_f32 v{t+1}, v{im}, v{q}, v{t+1}")
    nst_keep = a.nst
    bar("s")
    a.nst = nst_keep
    for e in range(8):
        t, i = e // 4, e % 4
        a(f"""
        v_add_u32 v{TMP+4}, {32*i+16*t}, v1
        v_sub_u32 v{TMP+4}, 2048, v{TMP+4}
        v_and_b32 v{TMP+4}, 2047, v{TMP+4}
        v_lshlrev_b32 v{TMP+4}, 2, v{TMP+4}
        v_add_u32 v{TMP+4}, {SB+MB}, v{TMP+4}
        ds_read_b32 v{F+e}, v{TMP+4}
        """)
    a("s_waitcnt lgkmcnt(0)")
    for e in range(8):
        xm = F + e; q = PQ + 4*e; t = F + 8 + 2*e
        a(f"""
        v_fma_mix_f32 v{t}, v{q+2}, v{xm}, v{t} op_sel:[0,0,0] op_sel_hi:[0,1,0]
        v_fma_mix_f32 v{t+1}, v{q+3}, v{xm}, v{t+1} op_sel:[0,0,0] op_sel_hi:[0,1,0]
        """)
    for e in range(8):
        r = D + e; im = D + 8 + e
        xm = F + e; q = PQ + 4*e; t = F + 8 + 2*e
        a(f"""
        v_fma_mix_f32 v{r}, v{q+3}, v{xm}, v{t} op_sel:[0,1,0] op_sel_hi:[0,1,0]
        v_fma_mix_f32 v{im}, -v{q+2}, v{xm}, v{t+1} op_sel:[0,1,0] op_sel_hi:[0,1,0]
        """)
    a.raw("k2_join:")
    a.stamp()
    pack("v_cvt_pk_bf16_f32", TMP + 8)
    lds_write(XB, TMP + 8)
    bar()
    lds_read(XB)
    a.wait_vm("e3")
    for r in range(8):
        a(f"v_xor_b32 v{N+r}, s48, v{E3+8+r}")
    a("s_waitcnt lgkmcnt(0)")
    for st in range(2):
        for t in range(2):
            cr = "0" if st == 0 else R(D+4*t); ci = "0" if st == 0 else R(D+8+4*t)
            a(f"v_mfma_f32_16x16x32_bf16 {R(D+4*t)}, {R(fr(0,t,st))}, {R(E3+4*st)}, {cr}")
            a(f"v_mfma_f32_16x16x32_bf16 {R(D+8+4*t)}, {R(fr(0,t,st))}, {R(E3+8+4*st)}, {ci}")
        for t in range(2):
            a(f"v_mfma_f32_16x16x32_bf16 {R(D+4*t)}, {R(fr(1,t,st))}, {R(N+4*st)}, {R(D+4*t)}")
            a(f"v_mfma_f32_16x16x32_bf16 {R(D+8+4*t)}, {R(fr(1,t,st))}, {R(E3+4*st)}, {R(D+8+4*t)}")
    a.wait_vm("t2")
    a("s_nop 7")
    cmul_tw(T2)
    pack("v_cvt_pk_bf16_f32", TMP + 8)
    VR, VI = TMP + 8, TMP + 12
    for r in range(4):
        a(f"v_xor_b32 v{N+r}, s48, v{VI+r}")
    a.wait_vm("e4")
    a("s_nop 1")
    for tp in range(2):
        a(f"v_mfma_f32_16x16x32_bf16 {R(D+4*tp)}, {R(E4+4*tp)}, {R(VR)}, 0")
        a(f"v_mfma_f32_16x16x32_bf16 {R(D+8+4*tp)}, {R(E4+8+4*tp)}, {R(VR)}, 0")
    for tp in range(2):
        a(f"v_mfma_f32_16x16x32_bf16 {R(D+4*tp)}, {R(E4+8+4*tp)}, {R(N)}, {R(D+4*tp)}")
        a(f"v_mfma_f32_16x16x32_bf16 {R(D+8+4*tp)}, {R(E4+4*tp)}, {R(VI)}, {R(D+8+4*tp)}")
    a(f"""
    v_lshlrev_b32 v5, 6, v3
    v_and_b32 v1, 1, v4
    v_lshl_add_u32 v5, v1, 5, v5
    v_lshrrev_b32 v1, 1, v4
    v_lshl_add_u32 v5, v1, 4, v5
    s_add_u32 s60, s60, {WS_Z - WS_Y}
    s_add_u32 s61, s61, {WS_Z - WS_Y}
    s_nop 3
    """)
    pack("v_cvt_pk_bf16_f32", TMP + 8)
    a("s_nop 1")
    for pl in range(2):
        b = TMP + 8 + pl*4
        a(f"v_permlane16_swap_b32 v{b}, v{b+2}")
        a(f"v_permlane16_swap_b32 v{b+1}, v{b+3}")
    for pl in range(2):
        b = TMP + 8 + pl*4
        a.vmem(f"buffer_store_dwordx4 v[{b}:{b+3}], v5, s[40:43], s{60+pl} offen sc1", "z")
    a.stamp()
    a.wait_vm_all()
    bar()
    a(f"""
    s_cmp_eq_u32 s13, 0
    s_cbranch_scc0 k23_nosig
    s_lshl_b32 s26, s2, 4
    s_add_u32 s26, s26, {WS_FL}
    v_mov_b32 v1, s6
    v_mov_b32 v7, 0
    s_mov_b64 exec, 1
    buffer_store_dword v1, v7, s[40:43], s26 offen sc1
    s_mov_b64 exec, -1
    k23_nosig:
    """)
    if os.environ.get("CSTAMP", "0") == "1": a.stamp_store(1)
    a.raw("k23_end:")
    a("s_endpgm")
    return a.text()

def tables_asm():
    o = []
    j = np.arange(512)
    c1 = bf16(np.cos(2*np.pi*j/512) / 16); c2 = bf16(np.cos(2*np.pi*j/512) / 8)
    c1[np.abs(np.cos(2*np.pi*j/512)) < 1e-9] = 0; c2[np.abs(np.cos(2*np.pi*j/512)) < 1e-9] = 0
    for i in range(512):
        o.append(f".set CA{i}, 0x{c1[i]:04x}")
        o.append(f".set CB{i}, 0x{c2[i]:04x}")
    o.append(".altmacro")
    o.append(""".macro f8 a,b,c,d,e,f,g,h
.short CA\\a, CA\\b, CA\\c, CA\\d, CA\\e, CA\\f, CA\\g, CA\\h
.endm
.macro g8 a,b,c,d,e,f,g,h
.short CB\\a, CB\\b, CB\\c, CB\\d, CB\\e, CB\\f, CB\\g, CB\\h
.endm
.macro g8s a,b,c,d,e,f,g,h
.short CA\\a, CA\\b, CB\\c, CB\\d, CB\\e, CB\\f, CB\\g, CB\\h
.endm
.macro flane k, o, d
f8 %((\\d*\\k+\\o)&511), %(((\\d+1)*\\k+\\o)&511), %(((\\d+2)*\\k+\\o)&511), %(((\\d+3)*\\k+\\o)&511), %(((\\d+4)*\\k+\\o)&511), %(((\\d+5)*\\k+\\o)&511), %(((\\d+6)*\\k+\\o)&511), %(((\\d+7)*\\k+\\o)&511)
.endm
.macro fhalf n0, d
.set nn, \\n0
.rept 32
flane %((nn>>1)-256*(nn==1)), %(128*(nn&1)*(1+(nn==1))), \\d
.set nn, nn+1
.endr
.endm
.macro ftile n0
.set dd, 0
.rept 64
fhalf \\n0, %dd
.set dd, dd+8
.endr
.endm
.section .rodata,"a"
.p2align 8
tab_F:
.set tt, 0
.rept 16
ftile %(32*tt)
.set tt, tt+1
.endr
""")
    o.append(""".macro glane d, k
g8 %((\\d*\\k)&511), %((\\d*\\k+128)&511), %((\\d*(\\k+1))&511), %((\\d*(\\k+1)+128)&511), %((\\d*(\\k+4))&511), %((\\d*(\\k+4)+128)&511), %((\\d*(\\k+5))&511), %((\\d*(\\k+5)+128)&511)
.endm
.macro glane0 d
g8s 0, %((\\d*256)&511), %((\\d*1)&511), %((\\d+128)&511), %((\\d*4)&511), %((\\d*4+128)&511), %((\\d*5)&511), %((\\d*5+128)&511)
.endm
.macro ghalf d0, k
.set ll, 0
.rept 32
glane %(\\d0+ll), \\k
.set ll, ll+1
.endr
.endm
.macro ghalf0 d0
.set ll, 0
.rept 32
glane0 %(\\d0+ll)
.set ll, ll+1
.endr
.endm
.macro gtile d0
ghalf0 \\d0
ghalf \\d0, 2
.set gg, 1
.rept 31
ghalf \\d0, %(8*gg)
ghalf \\d0, %(8*gg+2)
.set gg, gg+1
.endr
.endm
.p2align 8
tab_G:
.set tt, 0
.rept 16
gtile %(32*tt)
.set tt, tt+1
.endr
.noaltmacro
.p2align 8
tab_S:
""")
    st = small_tables().view(np.uint64)
    for i in range(0, len(st), 8):
        o.append(".quad " + ",".join(f"0x{v:x}" for v in st[i:i+8]))
    return "\n".join(o) + "\n"

if MERGE:
    hdr = f"""; fused LN + GFNet spectral filter + ReGLU, single persistent launch (256 co-resident workgroups)
; @launch kernel={KNAME} grid=(256,1,1) block=(512,1,1) lds=163840
.amdgcn_target "amdgcn-amd-amdhsa--gfx950"
.text
.globl {KNAME}
.type {KNAME},@function
"""
    src = hdr + gen_k1() + gen_k23_main() + "code_end:\n" + tables_asm()
    src += '.section .rodata,"a"\n.p2align 6\n' + kd(KNAME, 256)
else:
    hdr = """; fused LN + GFNet spectral filter + ReGLU, 2 launches
; @launch kernel=k1_kernel grid=(256,1,1) block=(512,1,1) lds=163840
; @launch kernel=k23_kernel grid=(256,1,1) block=(512,1,1) lds=163840
.amdgcn_target "amdgcn-amd-amdhsa--gfx950"
.text
.globl k1_kernel
.type k1_kernel,@function
.globl k23_kernel
.type k23_kernel,@function
"""
    src = hdr + gen_k1() + gen_k23_main() + "code_end:\n" + tables_asm()
    src += '.section .rodata,"a"\n.p2align 6\n' + kd("k1_kernel", 256) + ".p2align 6\n" + kd("k23_kernel", 256)
open(OUT, "w").write(src)
print("wrote", OUT, len(src))
```

```python
import numpy as np, sys, math

OUT = sys.argv[1] if len(sys.argv) > 1 else "recurrent_scan__spectral_gfnet__glu_gated_reglu__prompt.s"

WS_H = 0
WS_Y = 8 << 20
WS_Z = 10 << 20
WS_W = 12 << 20
WS_SIZE = 268435456
WS_FL = 15 << 20

def bf16(x):
    u = np.asarray(x, np.float32).view(np.uint32).astype(np.uint64)
    r = ((u + 0x7fff + ((u >> 16) & 1)) >> 16).astype(np.uint16)
    return r
def f16(x):
    return np.asarray(x, np.float64).astype(np.float16).view(np.uint16)

import os
STAMP = os.environ.get("STAMP", "0") == "1"
MERGE = os.environ.get('MERGE','1') == '1'
DIAG = os.environ.get('DIAG','0') == '1'
KNAME = 'recurrent_scan__spectral_gfnet__glu_gated_reglu__prompt_kernel'
WS_ST = 16 << 20
class Asm:
    def __init__(self):
        self.lines = []
        self.vm = []
        self.nst = 0
        self.issued = set()
        self.lq = []
        self.sb = 74
        self.maxst = 14
    def stamp(self):
        if not STAMP or self.nst >= self.maxst: return
        self(f"s_memtime s[{self.sb+2*self.nst}:{self.sb+1+2*self.nst}]")
        self("s_waitcnt lgkmcnt(0)")
        self.lq = []
        self.nst += 1
    def stamp_store(self, kidx, wavereg="s3"):
        if not STAMP: return
        self("s_waitcnt lgkmcnt(0)")
        self(f"s_lshl_b32 s62, s2, 4")
        self(f"s_add_u32 s62, s62, {wavereg}")
        self(f"s_lshl_b32 s62, s62, 7")
        self(f"s_add_u32 s62, s62, {WS_ST + kidx*(1<<20)}")
        self("v_mov_b32 v0, 0")
        for i in range(self.nst):
            self(f"v_mov_b32 v1, s{self.sb+2*i}")
            self(f"buffer_store_dword v1, v0, s[40:43], s62 offen offset:{4*i}")
    def __call__(self, s):
        for ln in s.strip("\n").split("\n"):
            self.lines.append("  " + ln.strip() if not ln.strip().endswith(":") else ln.strip())
    def raw(self, s):
        self.lines.append(s)
    def vmem(self, s, tag):
        self(s); self.vm.append(tag); self.issued.add(tag)
        assert len(self.vm) <= 63, "vmcnt overflow"
    def wait_vm(self, tag):
        assert tag in self.issued, tag
        if tag not in self.vm: return
        idx = max(i for i, t in enumerate(self.vm) if t == tag)
        n = len(self.vm) - 1 - idx
        self(f"s_waitcnt vmcnt({n})")
        self.vm = self.vm[idx + 1:]
    def lds(self, s, tag):
        self(s); self.lq.append(tag)
    def wait_lds(self, tag):
        if tag not in self.lq: return
        idx = max(i for i, t in enumerate(self.lq) if t == tag)
        n = min(len(self.lq) - 1 - idx, 15)
        self(f"s_waitcnt lgkmcnt({n})")
        self.lq = self.lq[len(self.lq) - n:] if n else []
    def wait_lds_all(self):
        self("s_waitcnt lgkmcnt(0)"); self.lq = []
    def wait_vm_all(self):
        self("s_waitcnt vmcnt(0)"); self.vm = []
    def text(self):
        return "\n".join(self.lines) + "\n"

def srd(a, s, lo, hi, nbytes):
    a(f"s_mov_b32 s{s}, {lo}")
    a(f"s_mov_b32 s{s+1}, {hi}")
    a(f"s_mov_b32 s{s+2}, {nbytes}")
    a(f"s_mov_b32 s{s+3}, 0x20000")

def getpc_tab(a, s, sym):
    a(f"s_getpc_b64 s[{s}:{s+1}]")
    a(f"s_add_u32 s{s}, s{s}, {sym}@rel32@lo+4")
    a(f"s_addc_u32 s{s+1}, s{s+1}, {sym}@rel32@hi+12")

def kd(name, vgpr, sgpr=102):
    acc = min((vgpr + 3) // 4 * 4, 256)
    return f""".amdhsa_kernel {name}
  .amdhsa_next_free_vgpr {vgpr}
  .amdhsa_next_free_sgpr {sgpr}
  .amdhsa_accum_offset {acc}
  .amdhsa_group_segment_fixed_size 0
  .amdhsa_kernarg_size 80
  .amdhsa_user_sgpr_count 2
  .amdhsa_user_sgpr_kernarg_segment_ptr 1
  .amdhsa_system_sgpr_workgroup_id_x 1
.end_amdhsa_kernel
"""

K1_NS = 5
PREF = os.environ.get('PREF','1') == '1'
K1_PRE = int(os.environ.get('K1_PRE','2'))
K1_PRE2 = int(os.environ.get('K1_PRE2','2'))
P1BAR = int(os.environ.get('P1BAR','7'))
CODEPF = int(os.environ.get('CODEPF','5'))
PFS = int(os.environ.get('PFS','16'))
BWARM = int(os.environ.get('BWARM','0'))
STP = os.environ.get('STP','sc1')
OSP = os.environ.get('OSP','sc1')
BNREV = os.environ.get('BNREV','1') == '1'
X_NOP2 = os.environ.get('X_NOP2','0')=='1'
X_NODMA = os.environ.get('X_NODMA','0')=='1'
X_NOBAR = os.environ.get('X_NOBAR','0')=='1'
def gen_k1():
    a = Asm()
    A0 = 128; ACC = 64; BF = 32
    PT = 24; TR = 16; PFD = 12
    VD, VFL, VD2, VNM, VRI, VPF, VPG, VFA = 1, 3, 4, 7, 8, 9, 10, 11
    a.raw(".p2align 8\n" + KNAME + ":\nk1_kernel:")
    a("""
    s_cmp_ge_u32 s2, 256
    s_cbranch_scc1 k1_end
    s_load_dwordx2 s[4:5], s[0:1], 0
    s_load_dwordx4 s[8:11], s[0:1], 8
    s_load_dwordx4 s[12:15], s[0:1], 32
    s_load_dwordx2 s[6:7], s[0:1], 72
    s_load_dwordx2 s[60:61], s[0:1], 48
    s_load_dwordx2 s[68:69], s[0:1], 64
    s_memrealtime s[70:71]
    v_lshrrev_b32 v1, 6, v0
    v_and_b32 v2, 63, v0
    s_nop 0
    v_readfirstlane_b32 s3, v1
    """)
    a(f"""
    s_and_b32 s16, s2, 7
    s_lshr_b32 s17, s2, 3
    s_and_b32 s18, s16, 1
    s_lshl_b32 s18, s18, 3
    s_and_b32 s58, s17, 7
    s_add_u32 s18, s18, s58
    s_lshr_b32 s19, s16, 1
    s_lshl_b32 s19, s19, 2
    s_lshr_b32 s20, s17, 3
    s_add_u32 s19, s19, s20
    s_lshl_b32 s59, s20, 2
    s_and_b32 s20, s3, 3
    s_lshr_b32 s21, s3, 2
    s_lshl_b32 s22, s18, 2
    s_add_u32 s22, s22, s20
    v_lshlrev_b32 v{VPF}, 4, v2
    """)
    getpc_tab(a, 64, "k1_kernel")
    a(f"""
    s_mov_b32 s66, code_end-k1_kernel
    s_mov_b32 s67, 0x20000
    s_lshl_b32 s57, s17, 1
    s_add_u32 s57, s57, s3
    s_lshl_b32 s57, s57, 10
    s_cmp_lt_u32 s3, 2
    s_cselect_b32 s57, s57, 0x7f000000
    """)
    a.vmem(f"buffer_load_dwordx4 v[{PFD}:{PFD+3}], v{VPF}, s[64:67], s57 offen", "cpf")
    getpc_tab(a, 24, "tab_F")
    a("""
    s_mov_b32 s26, 524288
    s_mov_b32 s27, 0x20000
    s_lshl_b32 s50, s21, 4
    s_lshl_b32 s51, s50, 6
    s_add_u32 s51, s51, s22
    s_lshl_b32 s51, s51, 10
    s_lshl_b32 s52, s20, 5
    s_add_u32 s52, s52, s50
    s_lshl_b32 s52, s52, 10
    s_lshl_b32 s53, s58, 3
    v_xor_b32 v3, s53, v2
    s_waitcnt lgkmcnt(0)
    """)
    a.stamp()
    srd(a, 28, "s4", "s5", 2048*1024)
    for u in range(16):
        a(f"""
        s_xor_b32 s54, s59, {u}
        v_xor_b32 v4, s54, v3
        v_lshlrev_b32 v4, 4, v4
        s_lshl_b32 s55, s54, 10
        s_add_u32 m0, s52, s55
        s_lshl_b32 s55, s54, 16
        s_add_u32 s53, s51, s55
        """)
        a.vmem("buffer_load_dwordx4 v4, s[28:31], s53 offen lds", "x")
    RR = 131072
    a(f"""
    s_xor_b32 s54, s3, s58
    s_lshl_b32 s54, s54, 12
    s_lshl_b32 s55, s19, 15
    s_add_u32 s54, s54, s55
    s_lshl_b32 s55, s3, 12
    s_add_u32 m0, s55, {RR}
    s_nop 0
    """)
    for u in range(4):
        a.vmem(f"buffer_load_dwordx4 v{VPF}, s[24:27], s54 offen offset:{u*1024} lds", "x")
    srd(a, 32, "s8", "s9", 2048*514)
    srd(a, 36, "s10", "s11", 2048*514)
    WL = ACC + 32
    a(f"""
    s_lshr_b32 s62, s2, 2
    s_lshl_b32 s62, s62, 2
    s_lshr_b32 s63, s3, 1
    s_add_u32 s62, s62, s63
    s_lshr_b32 s63, s62, 4
    s_lshl_b32 s63, s63, 7
    s_and_b32 s62, s62, 15
    s_add_u32 s63, s63, s62
    s_and_b32 s62, s3, 1
    s_lshl_b32 s62, s62, 4
    s_add_u32 s63, s63, s62
    s_mul_i32 s63, s63, 514
    s_and_b32 s62, s2, 3
    s_lshl_b32 s62, s62, 7
    s_add_u32 s63, s63, s62
    v_lshlrev_b32 v5, 1, v2
    """)
    for i in range(4):
        if i: a(f"s_add_u32 s63, s63, {32*514}")
        a.vmem(f"buffer_load_ushort v{WL+i}, v5, s[32:35], s63 offen", "w")
        a.vmem(f"buffer_load_ushort v{WL+4+i}, v5, s[36:39], s63 offen", "w")
    a(f"""
    v_mov_b32 v{WL+10}, 0x7fffff00
    s_cmp_eq_u32 s3, 7
    s_cbranch_scc0 k1_nosp1
    s_lshr_b32 s62, s2, 4
    s_lshl_b32 s62, s62, 7
    s_and_b32 s63, s2, 15
    s_add_u32 s62, s62, s63
    v_and_b32 v4, 3, v2
    v_lshlrev_b32 v4, 5, v4
    v_and_b32 v5, 4, v2
    v_lshl_add_u32 v4, v5, 2, v4
    v_add_u32 v4, s62, v4
    s_movk_i32 s63, 514
    v_mul_lo_u32 v5, v4, s63
    v_lshrrev_b32 v6, 3, v2
    v_cmp_eq_u32 vcc, 1, v6
    v_add_u32 v30, 512, v5
    s_nop 0
    v_cndmask_b32 v5, v30, v5, vcc
    v_mov_b32 v30, 0x7fffff00
    v_cmp_gt_u32 vcc, 24, v2
    s_nop 1
    v_cndmask_b32 v5, v30, v5, vcc
    buffer_load_ushort v{WL+8}, v5, s[32:35], 0 offen
    buffer_load_ushort v{WL+9}, v5, s[36:39], 0 offen
    v_sub_u32 v5, 2048, v4
    v_and_b32 v5, 2047, v5
    v_cmp_eq_u32 s[62:63], 0, v6
    s_nop 1
    v_cndmask_b32 v4, v5, v4, s[62:63]
    v_lshrrev_b32 v5, 7, v4
    v_lshlrev_b32 v5, 9, v5
    v_and_b32 v31, 15, v4
    v_lshl_add_u32 v5, v31, 5, v5
    v_and_b32 v31, 16, v4
    v_add_u32 v5, v5, v31
    v_bfe_u32 v31, v4, 5, 2
    v_lshl_add_u32 v5, v31, 2, v5
    v_lshl_add_u32 v5, v6, 13, v5
    v_add_u32 v5, {WS_W + 256*8192}, v5
    v_cndmask_b32 v{WL+10}, v30, v5, vcc
    k1_nosp1:
    """)
    srd(a, 40, "s6", "s7", WS_SIZE)
    CS = ACC + 48
    getpc_tab(a, 32, "tab_G")
    a(f"""
    s_mov_b32 s34, {524288 + TSZ}
    s_lshl_b32 s62, s19, 7
    s_lshl_b32 s63, s21, 6
    s_add_u32 s62, s62, s63
    s_add_u32 s62, s62, {524288 + TCS}
    v_lshrrev_b32 v5, 5, v2
    v_lshlrev_b32 v5, 4, v5
    """)
    a.vmem(f"buffer_load_dwordx4 v[{CS}:{CS+3}], v5, s[32:35], s62 offen", "cs")
    a.vmem(f"buffer_load_dwordx4 v[{CS+4}:{CS+7}], v5, s[32:35], s62 offen offset:32", "cs")
    a(f"""
    s_and_b32 s23, s3, 1
    s_cmp_eq_u32 s23, 0
    s_cselect_b32 s44, s12, s14
    s_cselect_b32 s45, s13, s15
    s_mov_b32 s46, 1835008
    s_mov_b32 s47, 0x20000
    s_movk_i32 s48, 3584
    s_mul_i32 s49, s19, 224
    v_lshrrev_b32 v8, 4, v2
    v_and_b32 v6, 15, v2
    v_lshrrev_b32 v6, 1, v6
    v_lshlrev_b32 v10, 1, v8
    v_xor_b32 v6, v6, v10
    v_xor_b32 v6, s23, v6
    v_lshlrev_b32 v6, 5, v6
    v_and_b32 v10, 1, v2
    v_lshlrev_b32 v10, 4, v10
    v_add_u32 v6, v6, v10
    v_mul_lo_u32 v8, v8, s48
    v_add_u32 v6, v6, v8
    v_add_u32 v{VD}, s49, v6
    s_lshr_b32 s50, s3, 1
    s_lshl_b32 s50, s50, 3
    s_mul_i32 s52, s50, s48
    s_lshl_b32 s53, s50, 8
    s_lshl_b32 s54, s23, 13
    s_add_u32 s53, s53, s54
    s_lshl_b32 s54, s48, 2
    s_lshl_b32 s55, s48, 5
    s_lshl_b32 s58, s58, 1
    v_add_u32 v{VD}, s52, v{VD}
    v_add_u32 v{VD2}, s54, v{VD}
    """)
    RING = [0, 1, 2, 3, 6, 7, 8, 9]
    SPARE = 65536
    YT = SPARE + 512
    def dma_one(c, u):
        if u == 0:
            a(f"s_xor_b32 s56, s58, {c}")
        a(f"s_add_u32 m0, s53, {RING[c % 8]*16384 + u*1024}")
        if u == 0: a("s_mul_i32 s56, s56, s55")
        else: a("s_nop 0")
        a.vmem(f"buffer_load_dwordx4 v{VD if u == 0 else VD2}, s[44:47], s56 offen lds", f"c{c}")
    a(f"""
    v_lshrrev_b32 v10, 4, v2
    v_and_b32 v6, 15, v2
    v_lshrrev_b32 v31, 2, v6
    v_and_b32 v6, 3, v6
    v_lshrrev_b32 v30, 1, v10
    v_lshlrev_b32 v30, 3, v30
    v_add_u32 v30, v30, v31
    v_lshlrev_b32 v30, 8, v30
    v_lshl_add_u32 v30, v6, 3, v30
    v_and_b32 v10, 1, v10
    v_lshl_add_u32 v30, v10, 13, v30
    v_lshlrev_b32 v31, 1, v31
    v_xor_b32 v31, v31, v10
    s_mul_i32 s57, s21, 3
    """)
    for k in range(4):
        a(f"""
        v_xor_b32 v10, s57, v31
        v_lshl_add_u32 v{TR+k}, v10, 5, v30
        v_add_u32 v{TR+4+k}, 98304, v{TR+k}
        s_add_u32 s57, s57, 1
        """)
    a(f"""
    v_and_b32 v10, 31, v2
    v_lshrrev_b32 v6, 5, v2
    v_and_b32 v31, 15, v2
    v_xor_b32 v6, v6, v31
    s_lshl_b32 s57, s20, 15
    v_lshlrev_b32 v10, 10, v10
    v_add_u32 v10, s57, v10
    """)
    for tt in range(8):
        a(f"v_xor_b32 v31, {2*tt}, v6")
        a(f"v_lshl_add_u32 v{ACC+16+tt}, v31, 4, v10")
    a(f"""
    s_mov_b32 s26, 0x3f803f80
    s_mov_b32 s27, 0xffff0000
    v_mov_b32 v24, 0
    v_mov_b32 v25, 0
    v_mov_b32 v26, 0
    v_mov_b32 v27, 0
    s_lshl_b32 s57, s21, 6
    s_lshl_b32 s62, s21, 14
    s_add_u32 s62, s62, {RR}
    v_add_u32 v5, s62, v{VPF}
    """)
    for c in range(BWARM):
        a(f"s_xor_b32 s56, s58, {c}")
        a("s_mul_i32 s56, s56, s55")
        a.vmem(f"buffer_load_dwordx4 v[{PFD}:{PFD+3}], v{VD}, s[44:47], s56 offen", "bw")
        a.vmem(f"buffer_load_dwordx4 v[{PFD}:{PFD+3}], v{VD2}, s[44:47], s56 offen", "bw")
    a.stamp()
    a.wait_vm("x")
    a("s_barrier")
    a.stamp()
    for t in range(32):
        a(f"ds_read_b128 v[{A0+4*t}:{A0+4*t+3}], v{ACC + 16 + t%8} offset:{(t//8)*256}")
    a.wait_vm("w")
    for i in range(4):
        a(f"v_lshl_or_b32 v{WL+12+i}, v{WL+4+i}, 16, v{WL+i}")
    a(f"""
    s_cmp_eq_u32 s3, 7
    s_cbranch_scc0 k1_nosp2
    v_lshl_or_b32 v{WL+8}, v{WL+9}, 16, v{WL+8}
    buffer_store_dword v{WL+8}, v{WL+10}, s[40:43], 0 offen sc1
    v_mov_b32 v30, 0
    v_mov_b32 v31, 0x7fffff00
    v_cmp_eq_u32 vcc, 0, v2
    s_lshl_b32 s51, s2, 4
    s_add_u32 s51, s51, {WS_FL}
    v_cndmask_b32 v31, v31, v30, vcc
    buffer_store_dword v30, v31, s[40:43], s51 offen sc1
    s_add_u32 s51, s51, 8192
    buffer_store_dword v30, v31, s[40:43], s51 offen sc1
    s_add_u32 s51, s51, 8192
    buffer_store_dword v30, v31, s[40:43], s51 offen sc1
    s_cmp_eq_u32 s2, 0
    s_cbranch_scc0 k1_nosp2
    s_or_b32 s70, s70, 1
    v_mov_b32 v31, s70
    s_mov_b64 exec, 1
    global_store_dword v30, v31, s[68:69] sc1
    s_mov_b64 exec, -1
    k1_nosp2:
    """)
    a("s_waitcnt lgkmcnt(14)")
    a("s_set_gpr_idx_on s57, gpr_idx(SRC0,SRC1)")
    for t in range(16):
        if t % 2 == 0 and t > 0 and t <= P1BAR:
            a(f"s_waitcnt lgkmcnt({max(14 - t, 0)})")
        for r in range(4):
            reg = A0 + 4*t + r
            a(f"v_dot2_f32_bf16 v{24 + r%2}, v{reg}, s26, v{24 + r%2}")
            a(f"v_dot2_f32_bf16 v{26 + r%2}, v{reg}, v{reg}, v{26 + r%2}")
        if t == P1BAR:
            a("s_waitcnt lgkmcnt(0)")
            a("s_barrier")
            a("s_set_gpr_idx_off")
            pend = [(c, u) for c in range(16) for u in range(2)]
            for _ in range(2*K1_PRE): dma_one(*pend.pop(0))
            for tt in range(8):
                a(f"ds_read_b128 v[{BF+4*tt}:{BF+4*tt+3}], v5 offset:{tt*1024}")
            a("s_set_gpr_idx_on s57, gpr_idx(SRC0,SRC1)")
    a("s_set_gpr_idx_off")
    a.stamp()
    def mini(ch):
        for t in range(16):
            fb = BF + 4*(t % 8)
            if t < 8: a(f"s_waitcnt lgkmcnt({7})" if t > 0 else "s_waitcnt lgkmcnt(0)")
            else: a(f"s_waitcnt lgkmcnt({15 - t})")
            ar = A0 + 4*(16*ch + t)
            cin = "0" if t == 0 else f"v[{ACC}:{ACC+15}]"
            a(f"v_mfma_f32_32x32x16_bf16 v[{ACC}:{ACC+15}], v[{fb}:{fb+3}], v[{ar}:{ar+3}], {cin}")
            if t < 8:
                a(f"ds_read_b128 v[{fb}:{fb+3}], v5 offset:{(t+8)*1024}")
    a("s_cmp_eq_u32 s21, 0")
    a("s_cbranch_scc0 k1_mini1")
    mini(0)
    a("s_branch k1_minid")
    a.raw("k1_mini1:")
    mini(1)
    a.raw("k1_minid:")
    for _ in range(2*K1_PRE2): dma_one(*pend.pop(0))
    a(f"""
    v_add_f32 v24, v24, v25
    v_add_f32 v25, v26, v27
    v_mov_b32 v26, v24
    v_mov_b32 v27, v25
    s_lshl_b32 s57, s3, 9
    s_add_u32 s57, s57, {SPARE + 4096}
    v_lshlrev_b32 v10, 3, v2
    v_permlane32_swap_b32 v24, v26
    v_permlane32_swap_b32 v25, v27
    v_add_u32 v10, s57, v10
    v_add_f32 v24, v24, v26
    v_add_f32 v25, v25, v27
    v_xor_b32 v6, 0x800, v10
    ds_write_b64 v10, v[24:25]
    s_lshl_b32 s57, s3, 2
    s_add_u32 s57, s57, {SPARE}
    v_mov_b32 v{VFA}, s57
    v_mov_b32 v{VPG}, 0
    ds_write_b32 v{VFA}, v{VPG}
    v_and_b32 v{VFL}, 7, v2
    v_xor_b32 v30, s3, v{VFL}
    v_lshlrev_b32 v30, 4, v30
    v_lshl_add_u32 v30, v2, 7, v30
    v_add_u32 v30, {SPARE + 8192}, v30
    ds_write_b128 v30, v[{WL+12}:{WL+15}]
    v_lshlrev_b32 v{VFL}, 2, v{VFL}
    v_add_u32 v{VFL}, {SPARE}, v{VFL}
    s_lshl_b32 s57, s3, 11
    s_add_u32 s57, s57, {SPARE + 16384}
    v_add_u32 v30, s57, v{VPF}
    v_xor_b32 v31, 0x2000, v30
    s_cmp_eq_u32 s21, 0
    s_cbranch_scc0 k1_px1
    ds_write_b128 v30, v[{ACC+8}:{ACC+11}]
    ds_write_b128 v30, v[{ACC+12}:{ACC+15}] offset:1024
    s_branch k1_pxd
    k1_px1:
    ds_write_b128 v30, v[{ACC}:{ACC+3}]
    ds_write_b128 v30, v[{ACC+4}:{ACC+7}] offset:1024
    """)
    for r in range(8): a(f"v_mov_b32 v{ACC+r}, v{ACC+8+r}")
    a(f"""
    k1_pxd:
    s_mov_b32 s28, s60
    s_mov_b32 s29, s61
    s_mov_b32 s30, {1792*1024}
    s_lshr_b32 s50, s2, 3
    s_lshl_b32 s50, s50, 3
    s_add_u32 s50, s50, s3
    s_mul_i32 s62, s50, 7168
    s_mul_i32 s63, s50, 3072
    v_lshrrev_b32 v28, 3, v2
    v_and_b32 v5, 7, v2
    v_xor_b32 v29, v28, v5
    v_lshlrev_b32 v29, 4, v29
    v_lshl_add_u32 v29, v28, 7, v29
    s_lshl_b32 s57, s3, 10
    s_add_u32 s57, s57, {SPARE + 8192}
    v_add_u32 v29, s57, v29
    v_lshlrev_b32 v5, 4, v5
    v_lshl_add_u32 v5, v28, 13, v5
    s_and_b32 s57, s2, 3
    s_lshl_b32 s57, s57, 3
    s_add_u32 s57, s57, s3
    s_lshl_b32 s57, s57, 16
    s_lshr_b32 s51, s2, 2
    s_lshl_b32 s51, s51, 7
    s_add_u32 s57, s57, s51
    s_add_u32 s51, s57, {WS_W}
    """)
    a.stamp()
    a.wait_vm("c1")
    a("s_waitcnt lgkmcnt(0)")
    a("s_barrier")
    a.stamp()
    YT = RR + 16384 + 8192
    a(f"""
    ds_read_b64 v[26:27], v6
    ds_read_b128 v[{WL}:{WL+3}], v29
    ds_read_b128 v[{ACC+8}:{ACC+11}], v31
    ds_read_b128 v[{ACC+12}:{ACC+15}], v31 offset:1024
    s_waitcnt lgkmcnt(2)
    v_add_f32 v24, v24, v26
    v_add_f32 v25, v25, v27
    v_mul_f32 v24, 0x3b000000, v24
    v_mul_f32 v25, 0x3b000000, v25
    v_fma_f32 v{VRI}, -v24, v24, v25
    v_cvt_pk_bf16_f32 v27, v24, v24
    v_lshlrev_b32 v27, 16, v27
    v_sub_f32 v{VNM}, 0, v27
    v_mul_f32 v29, v24, v24
    v_mul_f32 v30, 0x43800000, v{VRI}
    v_cmp_gt_f32 vcc, v29, v30
    """)
    a.vmem(f"buffer_store_dwordx4 v[{WL}:{WL+3}], v5, s[40:43], s51 offen sc1", "ws")
    a(f"""
    s_cbranch_vccz k1_fast
    v_mov_b32 v28, 0
    v_mov_b32 v29, 0
    s_mov_b32 s56, 0
    k1_slow:
    s_set_gpr_idx_on s56, gpr_idx(SRC1)
    v_lshlrev_b32 v30, 16, v{A0}
    v_and_b32 v31, s27, v{A0}
    s_set_gpr_idx_off
    v_add_f32 v30, v{VNM}, v30
    v_add_f32 v31, v{VNM}, v31
    v_fma_f32 v28, v30, v30, v28
    v_fma_f32 v29, v31, v31, v29
    s_add_u32 s56, s56, 1
    s_cmp_lt_u32 s56, 128
    s_cbranch_scc1 k1_slow
    v_add_f32 v28, v28, v29
    v_mov_b32 v29, v28
    v_sub_f32 v26, v24, v27
    s_nop 0
    v_permlane32_swap_b32 v28, v29
    v_add_f32 v28, v28, v29
    v_mul_f32 v28, 0x3b000000, v28
    v_fma_f32 v{VRI}, -v26, v26, v28
    k1_fast:
    v_max_f32 v28, 0, v{VRI}
    v_cvt_pk_bf16_f32 v28, v28, v28
    v_lshlrev_b32 v28, 16, v28
    v_add_f32 v28, 0x3727c5ac, v28
    v_cvt_pk_bf16_f32 v28, v28, v28
    v_lshlrev_b32 v28, 16, v28
    v_sqrt_f32 v28, v28
    v_and_b32 v30, 31, v2
    v_cvt_pk_bf16_f32 v28, v28, v28
    v_lshlrev_b32 v28, 16, v28
    v_rcp_f32 v{VRI}, v28
    v_lshlrev_b32 v30, 1, v30
    v_lshrrev_b32 v31, 5, v2
    v_lshl_add_u32 v30, v31, 10, v30
    s_lshl_b32 s57, s20, 6
    s_lshl_b32 s56, s21, 12
    s_add_u32 s57, s57, s56
    s_add_u32 s57, s57, {YT}
    v_add_u32 v30, s57, v30
    s_waitcnt lgkmcnt(0)
    """)
    a.wait_vm("cs")
    for r in range(8): a(f"v_add_f32 v{ACC+r}, v{ACC+r}, v{ACC+8+r}")
    for r in range(8): a(f"v_fma_f32 v{ACC+r}, v{VNM}, v{CS+r}, v{ACC+r}")
    for r in range(8): a(f"v_mul_f32 v{ACC+r}, v{VRI}, v{ACC+r}")
    for r in range(8): a(f"v_cvt_f16_f32 v{ACC+r}, v{ACC+r}")
    for r in range(8):
        a(f"ds_write_b16 v30, v{ACC+r} offset:{(8*(r//4) + r%4)*256}")
    a(f"""
    s_lshl_b32 s57, s3, 10
    s_add_u32 s57, s57, {YT}
    v_add_u32 v5, s57, v{VPF}
    v_lshrrev_b32 v6, 4, v2
    v_lshlrev_b32 v6, 12, v6
    v_and_b32 v31, 15, v2
    v_lshl_add_u32 v6, v31, 4, v6
    s_lshl_b32 s51, s19, 5
    s_lshl_b32 s57, s3, 2
    s_add_u32 s51, s51, s57
    s_lshl_b32 s51, s51, 12
    s_lshl_b32 s57, s18, 8
    s_add_u32 s51, s51, s57
    s_add_u32 s51, s51, {WS_Y}
    """)
    if DIAG: a("s_memrealtime s[92:93]"); a("s_waitcnt lgkmcnt(0)")
    vm_save = list(a.vm); nst_save = a.nst; pend_save = list(pend)

    def p2(i, r):
        reg = A0 + i*4 + r
        t0, t1 = PT + 2*r, PT + 2*r + 1
        return [f"v_lshlrev_b32 v{t0}, 16, v{reg}", f"v_and_b32 v{t1}, s27, v{reg}",
                f"v_add_f32 v{t0}, v{VNM}, v{t0}", f"v_add_f32 v{t1}, v{VNM}, v{t1}",
                f"v_cvt_pk_bf16_f32 v{reg}, v{t0}, v{t1}"]
    def p2_seq(i):
        o = [p2(i, r) for r in range(4)]
        return [o[0][0], o[0][1], o[1][0], o[1][1], o[2][0], o[2][1], o[3][0], o[3][1], o[0][2], o[0][3],
                o[1][2], o[1][3], o[2][2], o[2][3], o[3][2], o[3][3], o[0][4], o[1][4], o[2][4], o[3][4]]

    def mainloop(ch):
        NT = 3 + ch
        a.vm = list(vm_save); a.nst = nst_save
        pend = list(pend_save)
        lab = str(ch)
        NR = 2 * NT
        def reads(i, buf):
            c, s_ = i // 2, i % 2
            pos = RING[c % 8] * 16384
            win = 1 if pos >= 98304 else 0
            base = pos - 98304 * win
            for k in range(NT):
                fr = BF + buf*16 + k*4
                for t in range(2):
                    a(f"ds_read_b64_tr_b16 v[{fr+2*t}:{fr+2*t+1}], v{TR+4*win+k} offset:{base + (16*s_ + 4*t)*256}")
        def mfma(i, buf, k):
            areg = A0 + 4*i
            fr = BF + buf*16 + k*4
            acc = ACC + k*16
            cin = "0" if i == 0 else f"v[{acc}:{acc+15}]"
            a(f"v_mfma_f32_32x32x16_bf16 v[{acc}:{acc+15}], v[{fr}:{fr+3}], v[{areg}:{areg+3}], {cin}")
        reads(0, 0)
        for ins in p2_seq(0): a(ins)
        a.stamp()
        limit = 6
        npf = 0
        for i in range(32):
            c, s_ = i // 2, i % 2
            buf = i & 1
            if s_ == 0:
                if c >= 1 and c < 15: a(f"ds_read_b32 v0, v{VFL}")
                reads(i + 1, buf ^ 1)
                a(f"s_waitcnt lgkmcnt({NR})")
                if c == 2:
                    a.vmem(f"buffer_store_dwordx4 v[{PFD}:{PFD+3}], v6, s[40:43], s51 offen sc1", "ys")
                    a("v_mov_b32 v5, 0")
                    a.vmem("global_load_dword v5, v5, s[68:69] sc1", "nonce")
                if c + 2 < 16:
                    assert not pend or pend[0][0] > c + 2
                    a.wait_vm(f"c{c+2}")
                    if c == 5: a.wait_vm("nonce")
                    a(f"v_mov_b32 v{VPG}, {c+1}")
                    a(f"ds_write_b32 v{VFA}, v{VPG}")
            else:
                if i + 1 < 32:
                    if c >= 1:
                        a(f"""
                        k1_spin{lab}_{c}:
                        v_cmp_gt_u32 vcc, {c}, v0
                        s_cbranch_vccz k1_ok{lab}_{c}
                        ds_read_b32 v0, v{VFL}
                        s_waitcnt lgkmcnt(0)
                        s_branch k1_spin{lab}_{c}
                        k1_ok{lab}_{c}:
                        """)
                        if c >= 3: limit = c + 6
                        if c == 1:
                            a(f"ds_read_b128 v[{PFD}:{PFD+3}], v5")
                        if c == 6:
                            a(f"""
                            s_mov_b32 s57, 0
                            k1_nn{lab}:
                            v_readfirstlane_b32 s6, v5
                            s_cmp_lg_u32 s6, 0
                            s_cbranch_scc1 k1_nh{lab}
                            s_add_u32 s57, s57, 1
                            s_cmp_ge_u32 s57, 0x8000
                            s_cbranch_scc1 k1_nh{lab}
                            v_mov_b32 v5, 0
                            global_load_dword v5, v5, s[68:69] sc1
                            s_waitcnt vmcnt(0)
                            s_branch k1_nn{lab}
                            k1_nh{lab}:
                            """)
                            if ch == 0:
                                a(f"""
                                s_cmp_eq_u32 s3, 0
                                s_cbranch_scc0 k1_nofy
                                s_lshl_b32 s57, s2, 4
                                s_add_u32 s57, s57, {WS_FL + 16384}
                                v_mov_b32 v6, 0
                                s_mov_b64 exec, 1
                                buffer_store_dword v5, v6, s[40:43], s57 offen sc1
                                s_mov_b64 exec, -1
                                k1_nofy:
                                """)
                    reads(i + 1, buf ^ 1)
                    a(f"s_waitcnt lgkmcnt({NR})")
                else:
                    a("s_waitcnt lgkmcnt(0)")
            seq = p2_seq(i + 1) if i + 1 < 32 else []
            per = (20 + NT - 1) // NT
            for k in range(NT):
                mfma(i, buf, k)
                for ins in seq[k*per:(k+1)*per]: a(ins)
                if k in (0, 2) and pend and pend[0][0] <= limit:
                    dma_one(*pend.pop(0))
                if PREF and k == 1 and i >= PFS and npf < 10:
                    if npf < 7:
                        a.vmem(f"buffer_load_dwordx4 v[{PFD}:{PFD+3}], v{VPF}, s[28:31], s62 offen offset:{(npf % 4)*1024}", "pf")
                        if npf == 3: a("s_add_u32 s62, s62, 4096")
                    else:
                        a.vmem(f"buffer_load_dwordx4 v[{PFD}:{PFD+3}], v{VPF}, s[32:35], s63 offen offset:{(npf-7)*1024}", "pf")
                    npf += 1
            if i % 8 == 7 and i < 31: a.stamp()
        assert not pend
        a(f"""
        s_mul_i32 s50, s22, 112
        s_mul_i32 s51, s19, 7
        s_add_u32 s50, s50, s51
        s_add_u32 s50, s50, {3*ch}
        s_lshl_b32 s50, s50, 10
        s_add_u32 s50, s50, {WS_H}
        v_mov_b32 v10, v{VRI}
        v_mov_b32 v11, v{VRI}
        s_nop 7
        """)
        a.stamp()
        for k in range(NT):
            G = ACC + k*16; U = G + 8
            O = BF + k*4; Q = A0 + k*8
            for p in range(8):
                a(f"v_pk_mul_f32 v[{G+2*p}:{G+2*p+1}], v[{G+2*p}:{G+2*p+1}], v[10:11]")
            for p in range(8):
                a(f"v_max_f32 v{G+p}, 0, v{G+p}")
            for p in range(8):
                a(f"v_cvt_pk_bf16_f32 v{Q+p}, v{G+2*p}, v{G+2*p+1}")
            for p in range(8):
                a(f"v_lshlrev_b32 v{G+2*p}, 16, v{Q+p}")
                a(f"v_and_b32 v{G+2*p+1}, s27, v{Q+p}")
            for p in range(4):
                a(f"v_pk_mul_f32 v[{G+2*p}:{G+2*p+1}], v[{G+2*p}:{G+2*p+1}], v[{U+2*p}:{U+2*p+1}]")
            for p in range(4):
                a(f"v_cvt_pk_bf16_f32 v{O+p}, v{G+2*p}, v{G+2*p+1}")
            a(f"buffer_store_dwordx4 v[{O}:{O+3}], v{VPF}, s[40:43], s50 offen offset:{k*1024} sc1")
        a.stamp()
        a.stamp_store(0)
        a("s_branch ph2")
    a("""
    s_cmp_eq_u32 s21, 0
    s_cbranch_scc0 k1_ch1
    """)
    mainloop(0)
    a.raw("k1_ch1:")
    mainloop(1)
    a.raw("k1_end:")
    a("s_endpgm")
    return a.text()

TE1, TE2, TE3, TE4, TT1, TT2, TCS, TSZ = 0, 4096, 20480, 36864, 40960, 49152, 57344, 59392
def small_tables():
    buf = np.zeros(TSZ // 2, np.uint16)
    l = np.arange(64); c = l % 16; g = l // 16; j = np.arange(8)
    for t in range(2):
        ang = -2*np.pi*((8*g[:,None]+j[None,:])*(16*t+c)[:,None] % 32)/32
        buf[(TE1 + (0*2+t)*1024)//2:][:512] = f16(np.cos(ang)/8).ravel()
        buf[(TE1 + (1*2+t)*1024)//2:][:512] = f16(np.sin(ang)/8).ravel()
    for w in range(4):
        for st in range(2):
            ang = -2*np.pi*((32*st+8*g[:,None]+j[None,:])*(16*w+c)[:,None] % 64)/64
            buf[(TE2 + ((w*2+0)*2+st)*1024)//2:][:512] = f16(np.cos(ang)/8).ravel()
            buf[(TE2 + ((w*2+1)*2+st)*1024)//2:][:512] = f16(np.sin(ang)/8).ravel()
            buf[(TE3 + ((w*2+0)*2+st)*1024)//2:][:512] = bf16(np.cos(-ang)/8).ravel()
            buf[(TE3 + ((w*2+1)*2+st)*1024)//2:][:512] = bf16(np.sin(-ang)/8).ravel()
    sig = 16*(j[None,:]//4) + 4*g[:,None] + (j[None,:] % 4)
    for tp in range(2):
        ang = 2*np.pi*((sig*(16*tp+c)[:,None]) % 32)/32
        buf[(TE4 + (0*2+tp)*1024)//2:][:512] = bf16(np.cos(ang)/8).ravel()
        buf[(TE4 + (1*2+tp)*1024)//2:][:512] = bf16(np.sin(ang)/8).ravel()
    for w in range(4):
        for e in range(8):
            t, i = e // 4, e % 4
            a1 = -2*np.pi*(((16*w+4*g+i)*(16*t+c)) % 2048)/2048
            a2 = 2*np.pi*(((16*w+c)*(16*t+4*g+i)) % 2048)/2048
            for (base, an) in ((TT1, a1), (TT2, a2)):
                o = (base + (w*2 + e//4)*1024)//2 + l*8 + (e % 4)*2
                buf[o] = f16(np.cos(an)); buf[o+1] = f16(np.sin(an))
    jj = np.arange(512); c1 = bf16(np.cos(2*np.pi*jj/512) / 16); c1[np.abs(np.cos(2*np.pi*jj/512)) < 1e-9] = 0
    cf = (c1.astype(np.uint32) << 16).view(np.float32).astype(np.float64)
    cs = np.zeros(512)
    for n in range(512):
        kk, off = (256, 0) if n == 1 else (n >> 1, 128*(n & 1))
        cs[n] = cf[(jj*kk + off) & 511].sum()
    buf.view(np.float32)[TCS//4:TCS//4+512] = cs.astype(np.float32)
    return buf

K3_NS = 5
CSTR = int(os.environ.get('CSTR','2'))
NUP = int(os.environ.get('NUP','16'))
ZSC = os.environ.get('ZSC','sc1')
HSC = 'sc1' if MERGE else ''
MPRE = int(os.environ.get('MPRE','16'))
PSLEEP = int(os.environ.get('PSLEEP','4'))
GLAG = int(os.environ.get('GLAG','5'))
ZMIN = int(os.environ.get('ZMIN','40'))
POLLD = int(os.environ.get('POLLD','5'))
HDIST = int(os.environ.get('HDIST','12'))
ZSTART = int(os.environ.get('ZSTART','28'))
ZTAIL = int(os.environ.get('ZTAIL','0'))
NIDLE = int(os.environ.get('NIDLE','2'))
NZB = int(os.environ.get('NZB','1'))
LOADALL = os.environ.get('LOADALL','1') == '1'
CPRIO = int(os.environ.get('CPRIO','2'))
LATEC = int(os.environ.get('LATEC','1'))
def gen_k23_main():
    a = Asm()
    if MERGE:
        a.raw("ph2:")
        a(f"""
        s_load_dwordx4 s[8:11], s[0:1], 48
        s_load_dwordx2 s[14:15], s[0:1], 72
        s_waitcnt vmcnt(0) lgkmcnt(0)
        s_barrier
        s_cmp_eq_u32 s3, 0
        s_cbranch_scc0 ph2_nopub
        s_lshl_b32 s26, s2, 4
        s_add_u32 s26, s26, {WS_FL + 8192}
        v_mov_b32 v7, 0
        v_mov_b32 v23, s6
        s_mov_b64 exec, 1
        buffer_store_dword v23, v7, s[40:43], s26 offen sc1
        s_mov_b64 exec, -1
        ph2_nopub:
        {"s_memrealtime s[94:95]" if DIAG else "s_nop 0"}
        {"s_mov_b32 s100, s70" if DIAG else "s_nop 0"}
        {"s_mov_b32 s7, s68" if DIAG else "s_nop 0"}
        {"s_mov_b32 s101, s69" if DIAG else "s_nop 0"}
        s_lshl_b32 s26, s3, 6
        v_add_u32 v0, s26, v2
        """)
    else:
        a.raw(".p2align 8\nk23_kernel:")
        a("""
        s_cmp_ge_u32 s2, 256
        s_cbranch_scc1 k23_end
        s_load_dwordx2 s[4:5], s[0:1], 0
        s_load_dwordx4 s[8:11], s[0:1], 48
        s_load_dwordx2 s[14:15], s[0:1], 72
        v_lshrrev_b32 v1, 6, v0
        v_and_b32 v2, 63, v0
        s_mov_b32 s6, 1
        v_readfirstlane_b32 s3, v1
        """)
    a("""
    v_and_b32 v3, 15, v2
    v_lshrrev_b32 v4, 4, v2
    s_mov_b32 s48, 0x80008000
    s_mov_b32 s49, 0xffff0000
    s_cmp_ge_u32 s3, 4
    s_cbranch_scc1 k23_conv
    """)
    SB = 131072
    NCB = 5 + NIDLE + NZB
    getpc_tab(a, 24, "tab_G")
    srd(a, 44, "s24", "s25", 524288)
    if os.environ.get("K3_MAP", "1") == "0":
        a("""
    s_and_b32 s16, s2, 7
    s_lshr_b32 s17, s2, 3
    s_lshr_b32 s18, s16, 1
    s_lshl_b32 s18, s18, 3
    s_and_b32 s19, s17, 7
    s_add_u32 s18, s18, s19
    s_lshl_b32 s58, s19, 1
    s_and_b32 s19, s16, 1
    s_lshl_b32 s19, s19, 2
    s_lshr_b32 s20, s17, 3
    s_add_u32 s19, s19, s20
    s_lshl_b32 s20, s20, 2
    s_add_u32 s58, s58, s20
    """)
    else:
        a("""
    s_and_b32 s16, s2, 7
    s_lshr_b32 s17, s2, 3
    s_lshl_b32 s18, s16, 2
    s_and_b32 s19, s17, 3
    s_add_u32 s18, s18, s19
    s_lshl_b32 s58, s19, 2
    s_lshr_b32 s19, s17, 2
    s_lshl_b32 s20, s19, 1
    s_add_u32 s58, s58, s20
    """)
    a.sb = 92; a.maxst = 5
    XR = 8; PV = 16; VO, VF, VW, VZ, VH = 20, 21, 22, 23, 24
    VPG, VFA, VFL, VFV = 25, 26, 27, 28
    TRW = 29
    TRZ = 37
    GFR = 39
    VW2, VZ2 = 41, 42
    ACG, ACS = 44, 60
    FB = 76
    HB = 136; NHB = 28
    PW = SB + 28672
    NCH = 36
    a(f"""
    s_cmp_ge_u32 s58, 14
    s_cselect_b32 s20, 14, 0
    s_sub_u32 s58, s58, s20
    s_lshl_b32 s58, s58, 1
    s_add_u32 s12, s18, s19
    s_and_b32 s12, s12, 7
    s_and_b32 s20, s3, 1
    s_lshr_b32 s21, s3, 1
    s_lshl_b32 s22, s18, 1
    s_add_u32 s22, s22, s21
    v_lshlrev_b32 v{VF}, 4, v2
    v_lshrrev_b32 v6, 3, v2
    v_and_b32 v5, 7, v2
    v_lshrrev_b32 v5, 1, v5
    v_lshrrev_b32 v1, 1, v6
    v_xor_b32 v5, v5, v1
    v_lshlrev_b32 v5, 5, v5
    v_and_b32 v1, 1, v2
    v_lshl_add_u32 v5, v1, 4, v5
    v_lshl_add_u32 v{VW}, v6, 10, v5
    v_lshl_add_u32 v{VZ}, v6, 12, v5
    s_lshl_b32 s27, s19, 7
    v_add_u32 v{VW}, s27, v{VW}
    s_lshl_b32 s27, s18, 7
    s_add_u32 s27, s27, {WS_Z}
    v_add_u32 v{VZ}, s27, v{VZ}
    v_add_u32 v{VW2}, 8192, v{VW}
    v_add_u32 v{VZ2}, 32768, v{VZ}
    v_lshlrev_b32 v{VH}, 9, v4
    v_lshl_add_u32 v{VH}, v3, 4, v{VH}
    s_mul_i32 s50, s22, 112
    s_lshl_b32 s50, s50, 10
    s_lshl_b32 s27, s20, 8
    s_add_u32 s50, s50, s27
    s_add_u32 s50, s50, {WS_H}
    s_lshl_b32 s51, s19, 1
    s_add_u32 s51, s51, s21
    s_lshl_b32 s51, s51, 5
    s_lshl_b32 s27, s20, 1
    s_add_u32 s51, s51, s27
    s_lshl_b32 s51, s51, 10
    s_lshl_b32 s52, s3, 11
    s_lshl_b32 s54, s3, 14
    s_lshl_b32 s55, s3, 16
    s_mov_b32 s59, {WS_FL}
    s_lshl_b32 s27, s3, 2
    s_add_u32 s27, s27, {PW}
    v_mov_b32 v{VFA}, s27
    v_mov_b32 v{VPG}, 0
    v_and_b32 v{VFL}, 3, v2
    v_lshlrev_b32 v{VFL}, 2, v{VFL}
    v_add_u32 v{VFL}, {PW}, v{VFL}
    ds_write_b32 v{VFA}, v{VPG}
    s_waitcnt lgkmcnt(0)
    """)
    a.stamp()
    srd(a, 40, "s14", "s15", WS_SIZE)
    srd(a, 32, "s8", "s9", 1792*1024)
    isd = lambda c: c < 28
    upos = {}; p_ = 0
    for c in range(NCH):
        upos[c] = p_ % 16; p_ += 1 if isd(c) else 2
    ustart = {}; p_ = 0
    for c in range(NCH):
        ustart[c] = p_; p_ += 1 if isd(c) else 2
    uend = lambda c: ustart[c] + (1 if isd(c) else 2)
    a(f"""
    v_add_u32 v{VW}, s54, v{VW}
    v_add_u32 v{VW2}, s54, v{VW2}
    v_add_u32 v43, s50, v{VH}
    s_lshl_b32 s64, s58, 12
    """)
    def tab(c):
        a(f"s_add_u32 s{64+c}, s{63+c}, 4096")
        a(f"s_cmp_eq_u32 s{64+c}, {28*4096}")
        a(f"s_cselect_b32 s{64+c}, 0, s{64+c}")
    def dma_one(c, u):
        if isd(c):
            a(f"s_add_u32 m0, s52, {upos[c]*8192 + u*1024}")
            if u == 0: a(f"s_lshl_b32 s63, s{64+c}, 4")
            else: a("s_nop 0")
            a.vmem(f"buffer_load_dwordx4 v{VW if u == 0 else VW2}, s[32:35], s63 offen lds", f"c{c}")
            return
        if u == 0:
            a(f"s_xor_b32 s57, s12, {c-28}")
            a(f"s_lshl_b32 s62, s57, 12"); a(f"s_add_u32 s62, s62, s51")
            a(f"s_lshl_b32 s63, s57, 18"); a(f"s_add_u32 s63, s63, s55")
        if u < 2:
            a(f"s_add_u32 m0, s52, {upos[c]*8192 + u*1024}")
            a("s_nop 0")
            a.vmem(f"buffer_load_dwordx4 v{VZ if u == 0 else VZ2}, s[40:43], s63 offen {ZSC} lds", f"c{c}")
        else:
            if u == 2:
                a(f"s_add_u32 m0, s52, {((upos[c]+1) % 16)*8192}")
                a("s_nop 0")
            else:
                a(f"s_add_u32 m0, s52, {((upos[c]+1) % 16)*8192}")
                a("s_nop 0")
            a.vmem(f"buffer_load_dwordx4 v{VF}, s[44:47], s62 offen offset:{(u-2)*1024} lds", f"c{c}")
    def hload(j):
        c, s_ = j // 2, j % 2
        hb = HB + (j % NHB) * 4
        a.vmem(f"buffer_load_dwordx4 v[{hb}:{hb+3}], v43, s[40:43], s{64+c} offen offset:{s_*2048} {HSC}", f"h{j}")
    tab(1)
    pend = [(c, u) for c in range(NCH) for u in range(2 if isd(c) else 4)]
    hp = [0]
    if MERGE:
        a("s_barrier")
        for c in range(2, 28): tab(c)
        for c in range(MPRE):
            for u in range(2): dma_one(*pend.pop(0))
    else:
        for c in range(2):
            for u in range(2): dma_one(*pend.pop(0))
            for _ in range(2): hload(hp[0]); hp[0] += 1
        for c in range(2, 28): tab(c)
        a("s_barrier")
        for c in range(NUP // 4):
            for u in range(2): dma_one(*pend.pop(0))
            for _ in range(2): hload(hp[0]); hp[0] += 1
    srd(a, 36, "s10", "s11", 2048*1024)
    srd(a, 28, "s4", "s5", 2048*1024)
    a(f"""
    v_lshrrev_b32 v{PV}, 2, v3
    v_and_b32 v{PV+1}, 3, v3
    v_lshrrev_b32 v{PV+2}, 1, v4
    v_lshlrev_b32 v{PV+2}, 4, v{PV+2}
    v_and_b32 v{PV+3}, 1, v4
    v_lshl_add_u32 v{PV+2}, v{PV+3}, 2, v{PV+2}
    v_add_u32 v{PV+2}, v{PV+2}, v{PV}
    v_lshlrev_b32 v{PV+2}, 7, v{PV+2}
    v_lshl_add_u32 v{PV+2}, v{PV+1}, 3, v{PV+2}
    v_lshrrev_b32 v{PV}, 1, v{PV}
    v_lshl_add_u32 v{PV}, v{PV+3}, 1, v{PV}
    """)
    for dt in range(4):
        a(f"v_xor_b32 v{PV+1}, {dt}, v{PV}")
        a(f"v_lshl_add_u32 v{TRW+dt}, v{PV+1}, 5, v{PV+2}")
        a(f"v_add_u32 v{TRW+4+dt}, 0x10000, v{TRW+dt}")
    a(f"""
    v_xor_b32 v{PV+1}, s3, v{PV}
    v_lshl_add_u32 v{TRZ}, v{PV+1}, 5, v{PV+2}
    v_add_u32 v{TRZ+1}, 0x10000, v{TRZ}
    v_mov_b32 v{GFR}, v{VH}
    v_add_u32 v{GFR+1}, 0x10000, v{VH}
    v_lshrrev_b32 v1, 3, v2
    v_and_b32 v{VO}, 7, v2
    v_lshlrev_b32 v{VO}, 4, v{VO}
    v_lshl_add_u32 v{VO}, v1, 16, v{VO}
    s_lshl_b32 s23, s22, 10
    s_lshl_b32 s26, s19, 7
    s_add_u32 s23, s23, s26
    s_lshl_b32 s26, s20, 20
    s_add_u32 s23, s23, s26
    s_add_u32 s13, s23, 0x80000
    """)
    if MERGE:
        a(f"""
        s_lshr_b32 s26, s18, 1
        s_lshr_b32 s27, s26, 3
        s_and_b32 s26, s26, 7
        s_lshl_b32 s26, s26, 3
        s_add_u32 s26, s26, s27
        s_lshl_b32 s26, s26, 4
        s_add_u32 s26, s26, {WS_FL + 8192}
        v_lshrrev_b32 v{PV}, 2, v3
        v_and_b32 v{PV+1}, 3, v3
        v_lshlrev_b32 v{PV}, 5, v{PV}
        v_lshl_add_u32 v{PV}, v{PV+1}, 10, v{PV}
        s_mov_b32 s27, 0
        ph2_gpoll:
        buffer_load_dword v{PV+1}, v{PV}, s[40:43], s26 offen sc1
        s_waitcnt vmcnt(0)
        v_cmp_ne_u32 vcc, s6, v{PV+1}
        s_cbranch_vccz ph2_ggo
        s_add_u32 s27, s27, 1
        s_cmp_ge_u32 s27, 0x8000
        s_cbranch_scc1 ph2_ggo
        s_sleep {PSLEEP}
        s_branch ph2_gpoll
        ph2_ggo:
        {"s_memrealtime s[96:97]" if DIAG else "s_nop 0"}
        {"s_waitcnt lgkmcnt(0)" if DIAG else "s_nop 0"}
        """)
        a.vm = []
        for _ in range(HDIST): hload(hp[0]); hp[0] += 1
    DEPTH = 3
    NST = NCH * 2
    LAG = GLAG
    pubs = []
    def full_issued():
        return (pend[0][0] - 1) if pend else NCH - 1
    def arrive(want, rdone):
        q = min(want, full_issued(), NCH - 1)
        for cc in range(q, -1, -1):
            if f"c{cc}" in a.vm:
                a.wait_vm(f"c{cc}"); break
        pubs.append((q, rdone))
        a(f"v_mov_b32 v{VPG}, {len(pubs)}")
        a.lds(f"ds_write_b32 v{VFA}, v{VPG}", "pw")
    nspin = [0]
    checked = [0]
    fvp = [False]
    def check(k):
        n = nspin[0]; nspin[0] += 1
        if not fvp[0]:
            a.lds(f"ds_read_b32 v{VFV}, v{VFL}", "fv")
        fvp[0] = False
        a.wait_lds("fv")
        a(f"""
        k23_gs{n}:
        v_cmp_gt_u32 vcc, {k}, v{VFV}
        s_cbranch_vccz k23_go{n}
        ds_read_b32 v{VFV}, v{VFL}
        s_waitcnt lgkmcnt(0)
        s_branch k23_gs{n}
        k23_go{n}:
        """)
        checked[0] = k
        rd = pubs[k-1][1]
        if rd >= 0: ulimit[0] = max(ulimit[0], uend(rd) + 16)
    ulimit = [16]
    def reads(i):
        c, s_ = i // 2, i % 2
        if s_ == 0:
            have = pubs[checked[0]-1][0] if checked[0] else -1
            if have < c or c % 2 == 0:
                need = min(c + 1, NCH - 1) if c % 2 == 0 else c
                ks = [k+1 for k, (q, r) in enumerate(pubs) if q >= need]
                if not ks: ks = [k+1 for k, (q, r) in enumerate(pubs) if q >= c]
                assert ks, ("no publish covers chunk", c, pubs)
                k = max(ks[0], checked[0])
                if k > checked[0]: check(k)
            if c in (0, 12, 28): a.stamp()
            if c % 2 == 1 and c + 1 < NCH and c >= 3:
                a.lds(f"ds_read_b32 v{VFV}, v{VFL}", "fv"); fvp[0] = True
        fb = FB + (i % DEPTH) * 20
        u0 = upos[c] * 8192
        w0, b0 = u0 >> 16, u0 & 0xffff
        if isd(c):
            for dt in range(4):
                for t in range(2):
                    a.lds(f"ds_read_b64_tr_b16 v[{fb+4*dt+2*t}:{fb+4*dt+2*t+1}], v{TRW+4*w0+dt} offset:{b0 + (32*s_ + 8*t)*128}", f"g{i}")
        else:
            for t in range(2):
                a.lds(f"ds_read_b64_tr_b16 v[{fb+16+2*t}:{fb+17+2*t}], v{TRZ+w0} offset:{b0 + (32*s_ + 8*t)*128}", f"g{i}")
            u1 = ((upos[c] + 1) % 16) * 8192
            w1, b1 = u1 >> 16, u1 & 0xffff
            for dt in range(4):
                a.lds(f"ds_read_b128 v[{fb+4*dt}:{fb+4*dt+3}], v{GFR+w1} offset:{b1 + (dt>>1)*4096 + s_*2048 + (dt&1)*256}", f"g{i}")
    def mfma(i, dt):
        c, s_ = i // 2, i % 2
        fb = FB + (i % DEPTH) * 20
        if isd(c):
            hb = HB + (i % NHB) * 4
            cin = "0" if i == 0 else f"v[{ACG+4*dt}:{ACG+4*dt+3}]"
            a(f"v_mfma_f32_16x16x32_bf16 v[{ACG+4*dt}:{ACG+4*dt+3}], v[{fb+4*dt}:{fb+4*dt+3}], v[{hb}:{hb+3}], {cin}")
        else:
            cin = "0" if i == 56 else f"v[{ACS+4*dt}:{ACS+4*dt+3}]"
            a(f"v_mfma_f32_16x16x32_bf16 v[{ACS+4*dt}:{ACS+4*dt+3}], v[{fb+4*dt}:{fb+4*dt+3}], v[{fb+16}:{fb+19}], {cin}")
    def silu():
        G_ = ACG; T_ = HB
        for p in range(8): a(f"v_cvt_pk_bf16_f32 v{T_+p}, v{G_+2*p}, v{G_+2*p+1}")
        yield
        for p in range(8):
            a(f"v_lshlrev_b32 v{G_+2*p}, 16, v{T_+p}")
            a(f"v_and_b32 v{G_+2*p+1}, s49, v{T_+p}")
            if p % 4 == 3: yield
        for p in range(16):
            a(f"v_mul_f32 v{T_+p}, 0xbfb8aa3b, v{G_+p}")
            if p % 8 == 7: yield
        for p in range(16):
            a(f"v_exp_f32 v{T_+p}, v{T_+p}")
            if p % 4 == 3: yield
        for p in range(16):
            a(f"v_add_f32 v{T_+p}, 1.0, v{T_+p}")
            if p % 8 == 7: yield
        for p in range(16):
            a(f"v_rcp_f32 v{T_+p}, v{T_+p}")
            if p % 4 == 3: yield
        for p in range(16):
            a(f"v_mul_f32 v{G_+p}, v{G_+p}, v{T_+p}")
            if p % 8 == 7: yield
        for p in range(8): a(f"v_cvt_pk_bf16_f32 v{T_+p}, v{G_+2*p}, v{G_+2*p+1}")
        yield
        for p in range(8):
            a(f"v_lshlrev_b32 v{G_+2*p}, 16, v{T_+p}")
            a(f"v_and_b32 v{G_+2*p+1}, s49, v{T_+p}")
            if p % 4 == 3: yield
    sl = silu()
    polled = False
    arrive(1, -1)
    early = list(range(3, LAG, 2))
    for k in range(DEPTH - 1): reads(k)
    for i in range(NST):
        c, s_ = i // 2, i % 2
        if early: arrive(early.pop(0), -1)
        if i + DEPTH - 1 < NST: reads(i + DEPTH - 1)
        a.wait_lds(f"g{i}")
        if isd(c): a.wait_vm(f"h{i}")
        if s_ == 1 and c < NCH - 1 and pubs[-1][0] < NCH - 1 and (c % 2 == 0 or c >= 24):
            arrive(c + LAG, c)
        for dt in range(4):
            mfma(i, dt)
            if dt in (0, 2):
                if pend:
                    pc, pu = pend[0]
                    need = ustart[pc] + (1 if pu < 2 else 2)
                    if need <= ulimit[0] and len(a.vm) < 56 and not (pc >= 28 and i < ZMIN):
                        if pend[0] == (28, 0):
                            a.wait_vm("poll")
                            a(f"""
                            s_mov_b32 s27, 0
                            k23_spin:
                            v_xor_b32 v{PV}, s6, v{PV}
                            v_xor_b32 v{PV+1}, s6, v{PV+1}
                            v_xor_b32 v{PV+2}, s6, v{PV+2}
                            v_xor_b32 v{PV+3}, s6, v{PV+3}
                            v_or3_b32 v{PV}, v{PV}, v{PV+1}, v{PV+2}
                            v_or_b32 v{PV}, v{PV}, v{PV+3}
                            v_cmp_ne_u32 vcc, 0, v{PV}
                            s_cbranch_vccz k23_go
                            s_add_u32 s27, s27, 1
                            s_cmp_ge_u32 s27, 0x4000
                            s_cbranch_scc1 k23_go
                            s_sleep 8
                            buffer_load_dword v{PV}, v{VF}, s[40:43], s59 offen sc1
                            buffer_load_dword v{PV+1}, v{VF}, s[40:43], s59 offen offset:1024 sc1
                            buffer_load_dword v{PV+2}, v{VF}, s[40:43], s59 offen offset:2048 sc1
                            buffer_load_dword v{PV+3}, v{VF}, s[40:43], s59 offen offset:3072 sc1
                            s_waitcnt vmcnt(0)
                            s_branch k23_spin
                            k23_go:
                            """)
                            print("Z issue at step", i, file=sys.stderr)
                        dma_one(*pend.pop(0))
            if dt in (1, 3):
                if hp[0] < 56 and hp[0] - NHB < i and len(a.vm) < 56 and hp[0] <= i + HDIST:
                    hload(hp[0]); hp[0] += 1
            if i >= 58: next(sl, None)
        if i == ZMIN - POLLD and not polled:
            polled = True
            for q in range(4):
                a.vmem(f"buffer_load_dword v{PV+q}, v{VF}, s[40:43], s59 offen offset:{q*1024} sc1", "poll")
        if i == 50:
            a.vmem(f"buffer_load_dwordx4 v[{XR}:{XR+3}], v{VO}, s[28:31], s23 offen", "x")
            a.vmem(f"buffer_load_dwordx4 v[{XR+4}:{XR+7}], v{VO}, s[28:31], s13 offen", "x")
    assert not pend and hp[0] == 56
    for _ in sl: a("s_nop 0")
    a("s_nop 7")
    O = HB + 16; SV = ACS; GV = ACG; Q = HB + 24
    for p in range(8):
        a(f"v_cvt_pk_bf16_f32 v{Q+p}, v{SV+2*p}, v{SV+2*p+1}")
    for p in range(8):
        a(f"v_lshlrev_b32 v{SV+2*p}, 16, v{Q+p}")
        a(f"v_and_b32 v{SV+2*p+1}, s49, v{Q+p}")
    for p in range(16):
        a(f"v_mul_f32 v{SV+p}, v{SV+p}, v{GV+p}")
    for p in range(8):
        a(f"v_cvt_pk_bf16_f32 v{O+p}, v{SV+2*p}, v{SV+2*p+1}")
    a(f"""
    v_lshrrev_b32 v5, 1, v4
    v_and_b32 v6, 7, v2
    v_xor_b32 v5, v5, v6
    v_and_b32 v7, 1, v4
    v_lshlrev_b32 v7, 3, v7
    v_lshl_add_u32 v7, v3, 7, v7
    s_lshl_b32 s26, s3, 11
    s_add_u32 s26, s26, {SB}
    v_add_u32 v7, s26, v7
    s_barrier
    """)
    for dt in range(4):
        a(f"v_xor_b32 v1, {2*dt}, v5")
        a(f"v_lshl_add_u32 v1, v1, 4, v7")
        a(f"ds_write_b64 v1, v[{O+2*dt}:{O+2*dt+1}]")
    a(f"""
    v_lshrrev_b32 v4, 3, v2
    v_xor_b32 v6, v6, v4
    v_lshlrev_b32 v6, 4, v6
    v_lshl_add_u32 v6, v4, 7, v6
    v_add_u32 v6, s26, v6
    s_waitcnt lgkmcnt(0)
    ds_read_b128 v[{Q}:{Q+3}], v6
    ds_read_b128 v[{Q+4}:{Q+7}], v6 offset:1024
    """)
    a.wait_vm_all()
    for p in range(8):
        a(f"v_lshlrev_b32 v{GV+2*p}, 16, v{XR+p}")
        a(f"v_and_b32 v{GV+2*p+1}, s49, v{XR+p}")
    a("s_waitcnt lgkmcnt(0)")
    for p in range(8):
        a(f"v_lshlrev_b32 v{SV+2*p}, 16, v{Q+p}")
        a(f"v_and_b32 v{SV+2*p+1}, s49, v{Q+p}")
    for p in range(16):
        a(f"v_add_f32 v{SV+p}, v{SV+p}, v{GV+p}")
    for p in range(8):
        a(f"v_cvt_pk_bf16_f32 v{O+p}, v{SV+2*p}, v{SV+2*p+1}")
    a(f"buffer_store_dwordx4 v[{O}:{O+3}], v{VO}, s[36:39], s23 offen {OSP}")
    a(f"buffer_store_dwordx4 v[{O+4}:{O+7}], v{VO}, s[36:39], s13 offen {OSP}")
    a.stamp()
    if STAMP: a("s_waitcnt vmcnt(0)")
    a.stamp()
    a.stamp_store(1)
    if DIAG:
        a(f"""
        s_waitcnt vmcnt(0)
        s_memrealtime s[98:99]
        s_load_dwordx2 s[60:61], s[0:1], 64
        s_waitcnt lgkmcnt(0)
        s_cmp_eq_u32 s3, 0
        s_cbranch_scc0 dg_skip
        s_and_b32 s26, s2, 63
        s_cmp_eq_u32 s26, 1
        s_cbranch_scc0 dg_skip
        s_lshr_b32 s26, s2, 6
        s_cmp_ge_u32 s26, 3
        s_cbranch_scc1 dg_skip
        s_lshl_b32 s26, s26, 4
        s_add_u32 s26, s26, 4
        s_mov_b32 s62, 256
        s_mov_b32 s63, 0x20000
        s_sub_u32 s92, s92, s100
        s_sub_u32 s94, s94, s100
        s_sub_u32 s96, s96, s100
        s_sub_u32 s98, s98, s100
        v_mov_b32 v0, 0
        v_mov_b32 v4, s92
        v_mov_b32 v5, s94
        v_mov_b32 v6, s96
        v_mov_b32 v7, s98
        buffer_store_dword v4, v0, s[60:63], s26 offen
        buffer_store_dword v5, v0, s[60:63], s26 offen offset:4
        buffer_store_dword v6, v0, s[60:63], s26 offen offset:8
        buffer_store_dword v7, v0, s[60:63], s26 offen offset:12
        dg_skip:
        """)
    a("s_endpgm")

    a.raw("k23_conv:")
    a.vm = []; a.lq = []; a.nst = 0; a.sb = 74; a.maxst = 14
    YR, YI = 8, 12
    E1 = 16; T1 = 32; E2 = 48; WW = 64; E3 = 80; T2 = 96; E4 = 112
    D = 128; F = 144; N = 176; TMP = 184; WM = 200; VL = 7
    getpc_tab(a, 24, "tab_S")
    srd(a, 28, "s24", "s25", TSZ)
    a(f"""
    s_sub_u32 s13, s3, 4
    v_lshlrev_b32 v5, 6, v3
    v_lshl_add_u32 v5, v4, 4, v5
    s_lshl_b32 s60, s2, 13
    s_lshl_b32 s61, s13, 10
    s_add_u32 s60, s60, s61
    s_add_u32 s60, s60, {WS_Y}
    s_add_u32 s61, s60, 4096
    v_lshlrev_b32 v{VL}, 4, v2
    s_lshl_b32 s26, s13, 12
    s_lshl_b32 s12, s13, 11
    v_subrev_u32 v6, 256, v0
    v_lshlrev_b32 v6, 5, v6
    s_waitcnt lgkmcnt(0)
    """)
    a.stamp()
    srd(a, 40, "s14", "s15", WS_SIZE)
    def tload(dst, n, soff, base, tag):
        for q in range(n):
            a.vmem(f"buffer_load_dwordx4 v[{dst+4*q}:{dst+4*q+3}], v{VL}, s[28:31], {soff} offen offset:{base+q*1024}", tag)
    a("v_mov_b32 v215, v5")
    def yloads():
        a.vmem(f"buffer_load_dwordx4 v[{YR}:{YR+3}], v215, s[40:43], s60 offen {HSC}", "y")
        a.vmem(f"buffer_load_dwordx4 v[{YI}:{YI+3}], v215, s[40:43], s61 offen {HSC}", "y")
    if not MERGE: yloads()
    tload(E1, 4, "0", TE1, "e1")
    a(f"s_add_u32 s27, s12, {TT1}")
    tload(T1, 2, "s27", 0, "t1")
    def loads2a():
        a(f"s_add_u32 s27, s26, {TE2}")
        tload(E2, 4, "s27", 0, "e2")
    def loads2():
        a(f"""
        s_lshl_b32 s27, s2, 13
        s_add_u32 s27, s27, {WS_W}
        s_cmp_eq_u32 s2, 0
        s_cbranch_scc0 k23_now256
        s_mov_b32 s56, {WS_W + 256*8192}
        buffer_load_dwordx4 v[{WW+8}:{WW+11}], v{VWT}, s[40:43], s56 offen {HSC}
        buffer_load_dwordx4 v[{WW+12}:{WW+15}], v{VWT}, s[40:43], s56 offen offset:16 {HSC}
        s_add_u32 s56, s56, 8192
        buffer_load_dwordx4 v[{WM}:{WM+3}], v{VWT}, s[40:43], s56 offen {HSC}
        buffer_load_dwordx4 v[{WM+4}:{WM+7}], v{VWT}, s[40:43], s56 offen offset:16 {HSC}
        s_add_u32 s56, s56, 8192
        buffer_load_dwordx4 v[{WM+8}:{WM+11}], v{VWT}, s[40:43], s56 offen {HSC}
        buffer_load_dwordx4 v[{WM+12}:{WM+15}], v{VWT}, s[40:43], s56 offen offset:16 {HSC}
        k23_now256:
        """)
        a.vmem(f"buffer_load_dwordx4 v[{WW}:{WW+3}], v{VWT}, s[40:43], s27 offen {HSC}", "w")
        a.vmem(f"buffer_load_dwordx4 v[{WW+4}:{WW+7}], v{VWT}, s[40:43], s27 offen offset:16 {HSC}", "w")
    def loads3():
        a(f"s_add_u32 s27, s26, {TE3}")
        tload(E3, 4, "s27", 0, "e3")
        a(f"s_add_u32 s27, s12, {TT2}")
        tload(T2, 2, "s27", 0, "t2")
        a(f"s_mov_b32 s27, {TE4}")
        tload(E4, 4, "s27", 0, "e4")
    VWT = 216; PQ = 220
    a(f"""
    v_mov_b32 v{VWT}, v6
    s_lshl_b32 s27, s13, 9
    v_lshlrev_b32 v1, 7, v4
    v_add3_u32 v1, v1, v3, s27
    s_movk_i32 s27, 144
    v_mul_lo_u32 v6, v3, s27
    v_add_u32 v6, {SB}, v6
    v_lshl_add_u32 v5, v4, 3, v6
    s_lshl_b32 s27, s13, 5
    v_add_u32 v5, s27, v5
    v_lshl_add_u32 v6, v4, 4, v6
    """)
    UB, XB, MB = 0, 9216, 18432
    PL = 4608
    def R(x): return f"v[{x}:{x+3}]"
    def fr(pl, t, st): return F + ((pl*2+t)*2+st)*4
    def cmul_tw(tw):
        for e in range(8):
            r = D + e; im = D + 8 + e; tq = tw + e
            t = TMP + 2*(e % 4)
            a(f"""
            v_fma_mix_f32 v{t}, v{im}, v{tq}, 0 op_sel:[0,1,0] op_sel_hi:[0,1,0]
            v_fma_mix_f32 v{t+1}, v{r}, v{tq}, 0 op_sel:[0,1,0] op_sel_hi:[0,1,0]
            """)
            if e % 4 == 3:
                for e2 in range(e-3, e+1):
                    r = D + e2; im = D + 8 + e2; tq = tw + e2
                    t = TMP + 2*(e2 % 4)
                    a(f"""
                    v_fma_mix_f32 v{r}, v{r}, v{tq}, -v{t} op_sel:[0,0,0] op_sel_hi:[0,1,0]
                    v_fma_mix_f32 v{im}, v{im}, v{tq}, v{t+1} op_sel:[0,0,0] op_sel_hi:[0,1,0]
                    """)
    def pack(cvt, dst):
        for e in range(8):
            a(f"{cvt} v{dst+e}, v{D+2*e}, v{D+2*e+1}")
    def lds_write(base, src):
        for pl in range(2):
            for t in range(2):
                a(f"ds_write_b64 v5, v[{src+pl*4+t*2}:{src+pl*4+t*2+1}] offset:{base + pl*PL + t*16*144}")
    def lds_read(base):
        for pl in range(2):
            for t in range(2):
                for st in range(2):
                    f_ = fr(pl, t, st)
                    a(f"ds_read_b128 v[{f_}:{f_+3}], v6 offset:{base + pl*PL + t*16*144 + st*64}")
    nbar = [0]
    CA, CL, CV = 217, 218, 219
    def bar(tag=""):
        nbar[0] += 1
        p = nbar[0]
        a(f"""
        v_mov_b32 v{CV}, {p}
        s_waitcnt lgkmcnt(0)
        ds_write_b32 v{CA}, v{CV}
        k23_cs{p}{tag}:
        ds_read_b32 v{CV}, v{CL}
        s_waitcnt lgkmcnt(0)
        v_cmp_gt_u32 vcc, {p}, v{CV}
        s_cbranch_vccnz k23_cs{p}{tag}
        """)
        a.stamp()
    a(f"""
    s_setprio {CPRIO}
    s_lshl_b32 s27, s13, 2
    s_add_u32 s27, s27, {PW + 16}
    v_mov_b32 v{CA}, s27
    v_mov_b32 v{CV}, 0
    v_and_b32 v{CL}, 3, v2
    v_lshlrev_b32 v{CL}, 2, v{CL}
    v_add_u32 v{CL}, {PW + 16}, v{CL}
    ds_write_b32 v{CA}, v{CV}
    """)
    if MERGE:
        a(f"""
        s_waitcnt lgkmcnt(0)
        s_barrier
        s_mov_b32 s27, 0
        s_mov_b32 s56, {WS_FL + 16384}
        ph2_poll:
        buffer_load_dword v{TMP}, v{VL}, s[40:43], s56 offen sc1
        buffer_load_dword v{TMP+1}, v{VL}, s[40:43], s56 offen offset:1024 sc1
        buffer_load_dword v{TMP+2}, v{VL}, s[40:43], s56 offen offset:2048 sc1
        buffer_load_dword v{TMP+3}, v{VL}, s[40:43], s56 offen offset:3072 sc1
        s_waitcnt vmcnt(0)
        v_xor_b32 v{TMP}, s6, v{TMP}
        v_xor_b32 v{TMP+1}, s6, v{TMP+1}
        v_xor_b32 v{TMP+2}, s6, v{TMP+2}
        v_xor_b32 v{TMP+3}, s6, v{TMP+3}
        v_or3_b32 v{TMP}, v{TMP}, v{TMP+1}, v{TMP+2}
        v_or_b32 v{TMP}, v{TMP}, v{TMP+3}
        v_cmp_ne_u32 vcc, 0, v{TMP}
        s_cbranch_vccz ph2_gate
        s_add_u32 s27, s27, 1
        s_cmp_ge_u32 s27, 0x8000
        s_cbranch_scc1 ph2_gate
        s_sleep {PSLEEP}
        s_branch ph2_poll
        ph2_gate:
        """)
        a.vm = []
        a.stamp()
        yloads(); loads2a(); loads2(); loads3()
        a.wait_vm("y")
    else:
        loads2a(); loads2(); loads3()
        a("s_waitcnt lgkmcnt(0)")
        a("s_barrier")
        a.stamp()
    a.wait_vm("e1")
    for r in range(4):
        a(f"v_xor_b32 v{N+r}, s48, v{YI+r}")
    a("s_nop 1")
    for t in range(2):
        er = E1 + 4*t; ei = E1 + 8 + 4*t
        a(f"v_mfma_f32_16x16x32_f16 {R(D+4*t)}, {R(YR)}, {R(er)}, 0")
        a(f"v_mfma_f32_16x16x32_f16 {R(D+8+4*t)}, {R(YR)}, {R(ei)}, 0")
    for t in range(2):
        er = E1 + 4*t; ei = E1 + 8 + 4*t
        a(f"v_mfma_f32_16x16x32_f16 {R(D+4*t)}, {R(N)}, {R(ei)}, {R(D+4*t)}")
        a(f"v_mfma_f32_16x16x32_f16 {R(D+8+4*t)}, {R(YI)}, {R(er)}, {R(D+8+4*t)}")
    a.wait_vm("t1")
    a("s_nop 7")
    cmul_tw(T1)
    pack("v_cvt_pk_f16_f32", TMP + 8)
    lds_write(UB, TMP + 8)
    bar()
    lds_read(UB)
    a.wait_vm("e2")
    for r in range(8):
        a(f"v_xor_b32 v{N+r}, s48, v{E2+8+r}")
    a("s_waitcnt lgkmcnt(0)")
    for st in range(2):
        for t in range(2):
            cr = "0" if st == 0 else R(D+4*t); ci = "0" if st == 0 else R(D+8+4*t)
            a(f"v_mfma_f32_16x16x32_f16 {R(D+4*t)}, {R(E2+4*st)}, {R(fr(0,t,st))}, {cr}")
            a(f"v_mfma_f32_16x16x32_f16 {R(D+8+4*t)}, {R(E2+8+4*st)}, {R(fr(0,t,st))}, {ci}")
        for t in range(2):
            a(f"v_mfma_f32_16x16x32_f16 {R(D+4*t)}, {R(N+4*st)}, {R(fr(1,t,st))}, {R(D+4*t)}")
            a(f"v_mfma_f32_16x16x32_f16 {R(D+8+4*t)}, {R(E2+4*st)}, {R(fr(1,t,st))}, {R(D+8+4*t)}")
    a("""
    s_cmp_eq_u32 s2, 0
    s_cbranch_scc1 k2_special
    """)
    vm_keep = list(a.vm)
    a.wait_vm("w")
    a("s_nop 7")
    for e in range(8):
        r = D + e; im = D + 8 + e
        t = TMP + 4*(e % 2)
        a(f"""
        v_lshlrev_b32 v{t+2}, 16, v{WW+e}
        v_and_b32 v{t+3}, s49, v{WW+e}
        v_mul_f32 v{t}, v{im}, v{t+3}
        v_mul_f32 v{t+1}, v{r}, v{t+3}
        v_fma_f32 v{r}, v{r}, v{t+2}, -v{t}
        v_fma_f32 v{im}, v{im}, v{t+2}, v{t+1}
        """)
    a("s_branch k2_join")
    a.raw("k2_special:")
    a.vm = vm_keep
    a.wait_vm("w")
    TA_ = 8
    for e in range(8):
        q = PQ + 4*e; t = TA_ + 4*e
        a(f"""
        v_lshlrev_b32 v{q}, 16, v{WW+e}
        v_and_b32 v{q+1}, s49, v{WW+e}
        v_lshlrev_b32 v{q+2}, 16, v{WM+e}
        v_and_b32 v{q+3}, s49, v{WM+e}
        v_lshlrev_b32 v{t}, 16, v{WW+8+e}
        v_and_b32 v{t+1}, s49, v{WW+8+e}
        v_lshlrev_b32 v{t+2}, 16, v{WM+8+e}
        v_and_b32 v{t+3}, s49, v{WM+8+e}
        """)
    for e in range(8):
        q = PQ + 4*e; t = TA_ + 4*e
        a(f"""
        v_add_f32 v{q}, v{q}, v{q+2}
        v_sub_f32 v{q+1}, v{q+1}, v{q+3}
        v_add_f32 v{t}, v{t}, v{t+2}
        v_sub_f32 v{t+1}, v{t+1}, v{t+3}
        """)
    for e in range(8):
        q = PQ + 4*e; t = TA_ + 4*e
        a(f"""
        v_sub_f32 v{q+2}, v{q}, v{t}
        v_sub_f32 v{q+3}, v{q+1}, v{t+1}
        v_add_f32 v{q}, v{q}, v{t}
        v_add_f32 v{q+1}, v{q+1}, v{t+1}
        """)
    for e in range(32):
        a(f"v_mul_f32 v{PQ+e}, 0x3e800000, v{PQ+e}")
    for e in range(8):
        t, i = e // 4, e % 4
        q = TMP + 2*(e % 2)
        a(f"""
        v_cvt_pk_f16_f32 v{q}, v{D+e}, v{D+8+e}
        v_add_u32 v{q+1}, {32*i+16*t+(SB+MB)//4}, v1
        v_lshlrev_b32 v{q+1}, 2, v{q+1}
        ds_write_b32 v{q+1}, v{q}
        """)
    for e in range(8):
        r = D + e; q = PQ + 4*e; t = F + 8 + 2*e
        a(f"v_mul_f32 v{t}, v{r}, v{q}")
        a(f"v_mul_f32 v{t+1}, v{r}, v{q+1}")
    for e in range(8):
        im = D + 8 + e; q = PQ + 4*e; t = F + 8 + 2*e
        a(f"v_fma_f32 v{t}, -v{im}, v{q+1}, v{t}")
        a(f"v_fma_f32 v{t+1}, v{im}, v{q}, v{t+1}")
    nst_keep = a.nst
    bar("s")
    a.nst = nst_keep
    for e in range(8):
        t, i = e // 4, e % 4
        a(f"""
        v_add_u32 v{TMP+4}, {32*i+16*t}, v1
        v_sub_u32 v{TMP+4}, 2048, v{TMP+4}
        v_and_b32 v{TMP+4}, 2047, v{TMP+4}
        v_lshlrev_b32 v{TMP+4}, 2, v{TMP+4}
        v_add_u32 v{TMP+4}, {SB+MB}, v{TMP+4}
        ds_read_b32 v{F+e}, v{TMP+4}
        """)
    a("s_waitcnt lgkmcnt(0)")
    for e in range(8):
        xm = F + e; q = PQ + 4*e; t = F + 8 + 2*e
        a(f"""
        v_fma_mix_f32 v{t}, v{q+2}, v{xm}, v{t} op_sel:[0,0,0] op_sel_hi:[0,1,0]
        v_fma_mix_f32 v{t+1}, v{q+3}, v{xm}, v{t+1} op_sel:[0,0,0] op_sel_hi:[0,1,0]
        """)
    for e in range(8):
        r = D + e; im = D + 8 + e
        xm = F + e; q = PQ + 4*e; t = F + 8 + 2*e
        a(f"""
        v_fma_mix_f32 v{r}, v{q+3}, v{xm}, v{t} op_sel:[0,1,0] op_sel_hi:[0,1,0]
        v_fma_mix_f32 v{im}, -v{q+2}, v{xm}, v{t+1} op_sel:[0,1,0] op_sel_hi:[0,1,0]
        """)
    a.raw("k2_join:")
    a.stamp()
    pack("v_cvt_pk_bf16_f32", TMP + 8)
    lds_write(XB, TMP + 8)
    bar()
    lds_read(XB)
    a.wait_vm("e3")
    for r in range(8):
        a(f"v_xor_b32 v{N+r}, s48, v{E3+8+r}")
    a("s_waitcnt lgkmcnt(0)")
    for st in range(2):
        for t in range(2):
            cr = "0" if st == 0 else R(D+4*t); ci = "0" if st == 0 else R(D+8+4*t)
            a(f"v_mfma_f32_16x16x32_bf16 {R(D+4*t)}, {R(fr(0,t,st))}, {R(E3+4*st)}, {cr}")
            a(f"v_mfma_f32_16x16x32_bf16 {R(D+8+4*t)}, {R(fr(0,t,st))}, {R(E3+8+4*st)}, {ci}")
        for t in range(2):
            a(f"v_mfma_f32_16x16x32_bf16 {R(D+4*t)}, {R(fr(1,t,st))}, {R(N+4*st)}, {R(D+4*t)}")
            a(f"v_mfma_f32_16x16x32_bf16 {R(D+8+4*t)}, {R(fr(1,t,st))}, {R(E3+4*st)}, {R(D+8+4*t)}")
    a.wait_vm("t2")
    a("s_nop 7")
    cmul_tw(T2)
    pack("v_cvt_pk_bf16_f32", TMP + 8)
    VR, VI = TMP + 8, TMP + 12
    for r in range(4):
        a(f"v_xor_b32 v{N+r}, s48, v{VI+r}")
    a.wait_vm("e4")
    a("s_nop 1")
    for tp in range(2):
        a(f"v_mfma_f32_16x16x32_bf16 {R(D+4*tp)}, {R(E4+4*tp)}, {R(VR)}, 0")
        a(f"v_mfma_f32_16x16x32_bf16 {R(D+8+4*tp)}, {R(E4+8+4*tp)}, {R(VR)}, 0")
    for tp in range(2):
        a(f"v_mfma_f32_16x16x32_bf16 {R(D+4*tp)}, {R(E4+8+4*tp)}, {R(N)}, {R(D+4*tp)}")
        a(f"v_mfma_f32_16x16x32_bf16 {R(D+8+4*tp)}, {R(E4+4*tp)}, {R(VI)}, {R(D+8+4*tp)}")
    a(f"""
    v_lshlrev_b32 v5, 6, v3
    v_and_b32 v1, 1, v4
    v_lshl_add_u32 v5, v1, 5, v5
    v_lshrrev_b32 v1, 1, v4
    v_lshl_add_u32 v5, v1, 4, v5
    s_add_u32 s60, s60, {WS_Z - WS_Y}
    s_add_u32 s61, s61, {WS_Z - WS_Y}
    s_nop 3
    """)
    pack("v_cvt_pk_bf16_f32", TMP + 8)
    a("s_nop 1")
    for pl in range(2):
        b = TMP + 8 + pl*4
        a(f"v_permlane16_swap_b32 v{b}, v{b+2}")
        a(f"v_permlane16_swap_b32 v{b+1}, v{b+3}")
    for pl in range(2):
        b = TMP + 8 + pl*4
        a.vmem(f"buffer_store_dwordx4 v[{b}:{b+3}], v5, s[40:43], s{60+pl} offen sc1", "z")
    a.stamp()
    a.wait_vm_all()
    bar()
    a(f"""
    s_cmp_eq_u32 s13, 0
    s_cbranch_scc0 k23_nosig
    s_lshl_b32 s26, s2, 4
    s_add_u32 s26, s26, {WS_FL}
    v_mov_b32 v1, s6
    v_mov_b32 v7, 0
    s_mov_b64 exec, 1
    buffer_store_dword v1, v7, s[40:43], s26 offen sc1
    s_mov_b64 exec, -1
    k23_nosig:
    """)
    if os.environ.get("CSTAMP", "0") == "1": a.stamp_store(1)
    a.raw("k23_end:")
    a("s_endpgm")
    return a.text()

def tables_asm():
    o = []
    j = np.arange(512)
    c1 = bf16(np.cos(2*np.pi*j/512) / 16); c2 = bf16(np.cos(2*np.pi*j/512) / 8)
    c1[np.abs(np.cos(2*np.pi*j/512)) < 1e-9] = 0; c2[np.abs(np.cos(2*np.pi*j/512)) < 1e-9] = 0
    for i in range(512):
        o.append(f".set CA{i}, 0x{c1[i]:04x}")
        o.append(f".set CB{i}, 0x{c2[i]:04x}")
    o.append(".altmacro")
    o.append(""".macro f8 a,b,c,d,e,f,g,h
.short CA\\a, CA\\b, CA\\c, CA\\d, CA\\e, CA\\f, CA\\g, CA\\h
.endm
.macro g8 a,b,c,d,e,f,g,h
.short CB\\a, CB\\b, CB\\c, CB\\d, CB\\e, CB\\f, CB\\g, CB\\h
.endm
.macro g8s a,b,c,d,e,f,g,h
.short CA\\a, CA\\b, CB\\c, CB\\d, CB\\e, CB\\f, CB\\g, CB\\h
.endm
.macro flane k, o, d
f8 %((\\d*\\k+\\o)&511), %(((\\d+1)*\\k+\\o)&511), %(((\\d+2)*\\k+\\o)&511), %(((\\d+3)*\\k+\\o)&511), %(((\\d+4)*\\k+\\o)&511), %(((\\d+5)*\\k+\\o)&511), %(((\\d+6)*\\k+\\o)&511), %(((\\d+7)*\\k+\\o)&511)
.endm
.macro fhalf n0, d
.set nn, \\n0
.rept 32
flane %((nn>>1)-256*(nn==1)), %(128*(nn&1)*(1+(nn==1))), \\d
.set nn, nn+1
.endr
.endm
.macro ftile n0
.set dd, 0
.rept 64
fhalf \\n0, %dd
.set dd, dd+8
.endr
.endm
.section .rodata,"a"
.p2align 8
tab_F:
.set tt, 0
.rept 16
ftile %(32*tt)
.set tt, tt+1
.endr
""")
    o.append(""".macro glane d, k
g8 %((\\d*\\k)&511), %((\\d*\\k+128)&511), %((\\d*(\\k+1))&511), %((\\d*(\\k+1)+128)&511), %((\\d*(\\k+4))&511), %((\\d*(\\k+4)+128)&511), %((\\d*(\\k+5))&511), %((\\d*(\\k+5)+128)&511)
.endm
.macro glane0 d
g8s 0, %((\\d*256)&511), %((\\d*1)&511), %((\\d+128)&511), %((\\d*4)&511), %((\\d*4+128)&511), %((\\d*5)&511), %((\\d*5+128)&511)
.endm
.macro ghalf d0, k
.set ll, 0
.rept 32
glane %(\\d0+ll), \\k
.set ll, ll+1
.endr
.endm
.macro ghalf0 d0
.set ll, 0
.rept 32
glane0 %(\\d0+ll)
.set ll, ll+1
.endr
.endm
.macro gtile d0
ghalf0 \\d0
ghalf \\d0, 2
.set gg, 1
.rept 31
ghalf \\d0, %(8*gg)
ghalf \\d0, %(8*gg+2)
.set gg, gg+1
.endr
.endm
.p2align 8
tab_G:
.set tt, 0
.rept 16
gtile %(32*tt)
.set tt, tt+1
.endr
.noaltmacro
.p2align 8
tab_S:
""")
    st = small_tables().view(np.uint64)
    for i in range(0, len(st), 8):
        o.append(".quad " + ",".join(f"0x{v:x}" for v in st[i:i+8]))
    return "\n".join(o) + "\n"

if MERGE:
    hdr = f"""; fused LN + GFNet spectral filter + ReGLU, single persistent launch (256 co-resident workgroups)
; @launch kernel={KNAME} grid=(256,1,1) block=(512,1,1) lds=163840
.amdgcn_target "amdgcn-amd-amdhsa--gfx950"
.text
.globl {KNAME}
.type {KNAME},@function
"""
    src = hdr + gen_k1() + gen_k23_main() + "code_end:\n" + tables_asm()
    src += '.section .rodata,"a"\n.p2align 6\n' + kd(KNAME, 256)
else:
    hdr = """; fused LN + GFNet spectral filter + ReGLU, 2 launches
; @launch kernel=k1_kernel grid=(256,1,1) block=(512,1,1) lds=163840
; @launch kernel=k23_kernel grid=(256,1,1) block=(512,1,1) lds=163840
.amdgcn_target "amdgcn-amd-amdhsa--gfx950"
.text
.globl k1_kernel
.type k1_kernel,@function
.globl k23_kernel
.type k23_kernel,@function
"""
    src = hdr + gen_k1() + gen_k23_main() + "code_end:\n" + tables_asm()
    src += '.section .rodata,"a"\n.p2align 6\n' + kd("k1_kernel", 256) + ".p2align 6\n" + kd("k23_kernel", 256)
open(OUT, "w").write(src)
print("wrote", OUT, len(src))
```

```python
import numpy as np, sys, math

OUT = sys.argv[1] if len(sys.argv) > 1 else "recurrent_scan__spectral_gfnet__glu_gated_reglu__prompt.s"

WS_H = 0
WS_Y = 8 << 20
WS_Z = 10 << 20
WS_W = 12 << 20
WS_SIZE = 268435456
WS_FL = 15 << 20

def bf16(x):
    u = np.asarray(x, np.float32).view(np.uint32).astype(np.uint64)
    r = ((u + 0x7fff + ((u >> 16) & 1)) >> 16).astype(np.uint16)
    return r
def f16(x):
    return np.asarray(x, np.float64).astype(np.float16).view(np.uint16)

import os
STAMP = os.environ.get("STAMP", "0") == "1"
MERGE = os.environ.get('MERGE','1') == '1'
DIAG = os.environ.get('DIAG','0') == '1'
KNAME = 'recurrent_scan__spectral_gfnet__glu_gated_reglu__prompt_kernel'
WS_ST = 16 << 20
class Asm:
    def __init__(self):
        self.lines = []
        self.vm = []
        self.nst = 0
        self.issued = set()
        self.lq = []
        self.sb = 74
        self.maxst = 14
    def stamp(self):
        if not STAMP or self.nst >= self.maxst: return
        self(f"s_memtime s[{self.sb+2*self.nst}:{self.sb+1+2*self.nst}]")
        self("s_waitcnt lgkmcnt(0)")
        self.lq = []
        self.nst += 1
    def stamp_store(self, kidx, wavereg="s3"):
        if not STAMP: return
        self("s_waitcnt lgkmcnt(0)")
        self(f"s_lshl_b32 s62, s2, 4")
        self(f"s_add_u32 s62, s62, {wavereg}")
        self(f"s_lshl_b32 s62, s62, 7")
        self(f"s_add_u32 s62, s62, {WS_ST + kidx*(1<<20)}")
        self("v_mov_b32 v0, 0")
        for i in range(self.nst):
            self(f"v_mov_b32 v1, s{self.sb+2*i}")
            self(f"buffer_store_dword v1, v0, s[40:43], s62 offen offset:{4*i}")
    def __call__(self, s):
        for ln in s.strip("\n").split("\n"):
            self.lines.append("  " + ln.strip() if not ln.strip().endswith(":") else ln.strip())
    def raw(self, s):
        self.lines.append(s)
    def vmem(self, s, tag):
        self(s); self.vm.append(tag); self.issued.add(tag)
        assert len(self.vm) <= 63, "vmcnt overflow"
    def wait_vm(self, tag):
        assert tag in self.issued, tag
        if tag not in self.vm: return
        idx = max(i for i, t in enumerate(self.vm) if t == tag)
        n = len(self.vm) - 1 - idx
        self(f"s_waitcnt vmcnt({n})")
        self.vm = self.vm[idx + 1:]
    def lds(self, s, tag):
        self(s); self.lq.append(tag)
    def wait_lds(self, tag):
        if tag not in self.lq: return
        idx = max(i for i, t in enumerate(self.lq) if t == tag)
        n = min(len(self.lq) - 1 - idx, 15)
        self(f"s_waitcnt lgkmcnt({n})")
        self.lq = self.lq[len(self.lq) - n:] if n else []
    def wait_lds_all(self):
        self("s_waitcnt lgkmcnt(0)"); self.lq = []
    def wait_vm_all(self):
        self("s_waitcnt vmcnt(0)"); self.vm = []
    def text(self):
        return "\n".join(self.lines) + "\n"

def srd(a, s, lo, hi, nbytes):
    a(f"s_mov_b32 s{s}, {lo}")
    a(f"s_mov_b32 s{s+1}, {hi}")
    a(f"s_mov_b32 s{s+2}, {nbytes}")
    a(f"s_mov_b32 s{s+3}, 0x20000")

def getpc_tab(a, s, sym):
    a(f"s_getpc_b64 s[{s}:{s+1}]")
    a(f"s_add_u32 s{s}, s{s}, {sym}@rel32@lo+4")
    a(f"s_addc_u32 s{s+1}, s{s+1}, {sym}@rel32@hi+12")

def kd(name, vgpr, sgpr=102):
    acc = min((vgpr + 3) // 4 * 4, 256)
    return f""".amdhsa_kernel {name}
  .amdhsa_next_free_vgpr {vgpr}
  .amdhsa_next_free_sgpr {sgpr}
  .amdhsa_accum_offset {acc}
  .amdhsa_group_segment_fixed_size 0
  .amdhsa_kernarg_size 80
  .amdhsa_user_sgpr_count 2
  .amdhsa_user_sgpr_kernarg_segment_ptr 1
  .amdhsa_system_sgpr_workgroup_id_x 1
.end_amdhsa_kernel
"""

K1_NS = 5
PREF = os.environ.get('PREF','1') == '1'
K1_PRE = int(os.environ.get('K1_PRE','2'))
K1_PRE2 = int(os.environ.get('K1_PRE2','2'))
P1BAR = int(os.environ.get('P1BAR','7'))
CODEPF = int(os.environ.get('CODEPF','5'))
PFS = int(os.environ.get('PFS','16'))
BWARM = int(os.environ.get('BWARM','0'))
STP = os.environ.get('STP','sc1')
OSP = os.environ.get('OSP','sc1')
BNREV = os.environ.get('BNREV','1') == '1'
X_NOP2 = os.environ.get('X_NOP2','0')=='1'
X_NODMA = os.environ.get('X_NODMA','0')=='1'
X_NOBAR = os.environ.get('X_NOBAR','0')=='1'
cE1, cT1, cE2, cE3, cT2, cE4, cYR, cYI, cWW, cWM = 128, 144, 152, 168, 184, 192, 208, 212, 216, 232
def gen_k1():
    a = Asm()
    A0 = 128; ACC = 64; BF = 32
    PT = 24; TR = 16; PFD = 12
    VD, VFL, VD2, VNM, VRI, VPF, VPG, VFA = 1, 3, 4, 7, 8, 9, 10, 11
    a.raw(".p2align 8\n" + KNAME + ":\nk1_kernel:")
    a("""
    s_cmp_ge_u32 s2, 256
    s_cbranch_scc1 k1_end
    s_load_dwordx2 s[4:5], s[0:1], 0
    s_load_dwordx4 s[8:11], s[0:1], 8
    s_load_dwordx4 s[12:15], s[0:1], 32
    s_load_dwordx2 s[6:7], s[0:1], 72
    s_load_dwordx2 s[60:61], s[0:1], 48
    s_load_dwordx2 s[68:69], s[0:1], 64
    s_memrealtime s[70:71]
    v_lshrrev_b32 v1, 6, v0
    v_and_b32 v2, 63, v0
    s_nop 0
    v_readfirstlane_b32 s3, v1
    """)
    a(f"""
    s_and_b32 s16, s2, 7
    s_lshr_b32 s17, s2, 3
    s_and_b32 s18, s16, 1
    s_lshl_b32 s18, s18, 3
    s_and_b32 s58, s17, 7
    s_add_u32 s18, s18, s58
    s_lshr_b32 s19, s16, 1
    s_lshl_b32 s19, s19, 2
    s_lshr_b32 s20, s17, 3
    s_add_u32 s19, s19, s20
    s_lshl_b32 s59, s20, 2
    s_and_b32 s20, s3, 3
    s_lshr_b32 s21, s3, 2
    s_lshl_b32 s22, s18, 2
    s_add_u32 s22, s22, s20
    v_lshlrev_b32 v{VPF}, 4, v2
    """)
    getpc_tab(a, 64, "k1_kernel")
    a(f"""
    s_mov_b32 s66, code_end-k1_kernel
    s_mov_b32 s67, 0x20000
    s_lshl_b32 s57, s17, 1
    s_add_u32 s57, s57, s3
    s_lshl_b32 s57, s57, 10
    s_cmp_lt_u32 s3, 2
    s_cselect_b32 s57, s57, 0x7f000000
    """)
    a.vmem(f"buffer_load_dwordx4 v[{PFD}:{PFD+3}], v{VPF}, s[64:67], s57 offen", "cpf")
    getpc_tab(a, 24, "tab_F")
    a("""
    s_mov_b32 s26, 524288
    s_mov_b32 s27, 0x20000
    s_lshl_b32 s50, s21, 4
    s_lshl_b32 s51, s50, 6
    s_add_u32 s51, s51, s22
    s_lshl_b32 s51, s51, 10
    s_lshl_b32 s52, s20, 5
    s_add_u32 s52, s52, s50
    s_lshl_b32 s52, s52, 10
    s_lshl_b32 s53, s58, 3
    v_xor_b32 v3, s53, v2
    s_waitcnt lgkmcnt(0)
    """)
    a.stamp()
    srd(a, 28, "s4", "s5", 2048*1024)
    for u in range(16):
        a(f"""
        s_xor_b32 s54, s59, {u}
        v_xor_b32 v4, s54, v3
        v_lshlrev_b32 v4, 4, v4
        s_lshl_b32 s55, s54, 10
        s_add_u32 m0, s52, s55
        s_lshl_b32 s55, s54, 16
        s_add_u32 s53, s51, s55
        """)
        a.vmem("buffer_load_dwordx4 v4, s[28:31], s53 offen lds", "x")
    RR = 131072
    a(f"""
    s_xor_b32 s54, s3, s58
    s_lshl_b32 s54, s54, 12
    s_lshl_b32 s55, s19, 15
    s_add_u32 s54, s54, s55
    s_lshl_b32 s55, s3, 12
    s_add_u32 m0, s55, {RR}
    s_nop 0
    """)
    for u in range(4):
        a.vmem(f"buffer_load_dwordx4 v{VPF}, s[24:27], s54 offen offset:{u*1024} lds", "x")
    srd(a, 32, "s8", "s9", 2048*514)
    srd(a, 36, "s10", "s11", 2048*514)
    WL = ACC + 32
    a(f"""
    s_lshr_b32 s62, s2, 2
    s_lshl_b32 s62, s62, 2
    s_lshr_b32 s63, s3, 1
    s_add_u32 s62, s62, s63
    s_lshr_b32 s63, s62, 4
    s_lshl_b32 s63, s63, 7
    s_and_b32 s62, s62, 15
    s_add_u32 s63, s63, s62
    s_and_b32 s62, s3, 1
    s_lshl_b32 s62, s62, 4
    s_add_u32 s63, s63, s62
    s_mul_i32 s63, s63, 514
    s_and_b32 s62, s2, 3
    s_lshl_b32 s62, s62, 7
    s_add_u32 s63, s63, s62
    v_lshlrev_b32 v5, 1, v2
    """)
    for i in range(4):
        if i: a(f"s_add_u32 s63, s63, {32*514}")
        a.vmem(f"buffer_load_ushort v{WL+i}, v5, s[32:35], s63 offen", "w")
        a.vmem(f"buffer_load_ushort v{WL+4+i}, v5, s[36:39], s63 offen", "w")
    a(f"""
    v_mov_b32 v{WL+10}, 0x7fffff00
    s_cmp_eq_u32 s3, 7
    s_cbranch_scc0 k1_nosp1
    s_lshr_b32 s62, s2, 4
    s_lshl_b32 s62, s62, 7
    s_and_b32 s63, s2, 15
    s_add_u32 s62, s62, s63
    v_and_b32 v4, 3, v2
    v_lshlrev_b32 v4, 5, v4
    v_and_b32 v5, 4, v2
    v_lshl_add_u32 v4, v5, 2, v4
    v_add_u32 v4, s62, v4
    s_movk_i32 s63, 514
    v_mul_lo_u32 v5, v4, s63
    v_lshrrev_b32 v6, 3, v2
    v_cmp_eq_u32 vcc, 1, v6
    v_add_u32 v30, 512, v5
    s_nop 0
    v_cndmask_b32 v5, v30, v5, vcc
    v_mov_b32 v30, 0x7fffff00
    v_cmp_gt_u32 vcc, 24, v2
    s_nop 1
    v_cndmask_b32 v5, v30, v5, vcc
    buffer_load_ushort v{WL+8}, v5, s[32:35], 0 offen
    buffer_load_ushort v{WL+9}, v5, s[36:39], 0 offen
    v_sub_u32 v5, 2048, v4
    v_and_b32 v5, 2047, v5
    v_cmp_eq_u32 s[62:63], 0, v6
    s_nop 1
    v_cndmask_b32 v4, v5, v4, s[62:63]
    v_lshrrev_b32 v5, 7, v4
    v_lshlrev_b32 v5, 9, v5
    v_and_b32 v31, 15, v4
    v_lshl_add_u32 v5, v31, 5, v5
    v_and_b32 v31, 16, v4
    v_add_u32 v5, v5, v31
    v_bfe_u32 v31, v4, 5, 2
    v_lshl_add_u32 v5, v31, 2, v5
    v_lshl_add_u32 v5, v6, 13, v5
    v_add_u32 v5, {WS_W + 256*8192}, v5
    v_cndmask_b32 v{WL+10}, v30, v5, vcc
    k1_nosp1:
    """)
    srd(a, 40, "s6", "s7", WS_SIZE)
    CS = ACC + 48
    getpc_tab(a, 32, "tab_G")
    a(f"""
    s_mov_b32 s34, {524288 + TSZ}
    s_lshl_b32 s62, s19, 7
    s_lshl_b32 s63, s21, 6
    s_add_u32 s62, s62, s63
    s_add_u32 s62, s62, {524288 + TCS}
    v_lshrrev_b32 v5, 5, v2
    v_lshlrev_b32 v5, 4, v5
    """)
    a.vmem(f"buffer_load_dwordx4 v[{CS}:{CS+3}], v5, s[32:35], s62 offen", "cs")
    a.vmem(f"buffer_load_dwordx4 v[{CS+4}:{CS+7}], v5, s[32:35], s62 offen offset:32", "cs")
    a(f"""
    s_and_b32 s23, s3, 1
    s_cmp_eq_u32 s23, 0
    s_cselect_b32 s44, s12, s14
    s_cselect_b32 s45, s13, s15
    s_mov_b32 s46, 1835008
    s_mov_b32 s47, 0x20000
    s_movk_i32 s48, 3584
    s_mul_i32 s49, s19, 224
    v_lshrrev_b32 v8, 4, v2
    v_and_b32 v6, 15, v2
    v_lshrrev_b32 v6, 1, v6
    v_lshlrev_b32 v10, 1, v8
    v_xor_b32 v6, v6, v10
    v_xor_b32 v6, s23, v6
    v_lshlrev_b32 v6, 5, v6
    v_and_b32 v10, 1, v2
    v_lshlrev_b32 v10, 4, v10
    v_add_u32 v6, v6, v10
    v_mul_lo_u32 v8, v8, s48
    v_add_u32 v6, v6, v8
    v_add_u32 v{VD}, s49, v6
    s_lshr_b32 s50, s3, 1
    s_lshl_b32 s50, s50, 3
    s_mul_i32 s52, s50, s48
    s_lshl_b32 s53, s50, 8
    s_lshl_b32 s54, s23, 13
    s_add_u32 s53, s53, s54
    s_lshl_b32 s54, s48, 2
    s_lshl_b32 s55, s48, 5
    s_lshl_b32 s58, s58, 1
    v_add_u32 v{VD}, s52, v{VD}
    v_add_u32 v{VD2}, s54, v{VD}
    """)
    RING = [0, 1, 2, 3, 6, 7, 8, 9]
    SPARE = 65536
    YT = SPARE + 512
    def dma_one(c, u):
        if u == 0:
            a(f"s_xor_b32 s56, s58, {c}")
        a(f"s_add_u32 m0, s53, {RING[c % 8]*16384 + u*1024}")
        if u == 0: a("s_mul_i32 s56, s56, s55")
        else: a("s_nop 0")
        a.vmem(f"buffer_load_dwordx4 v{VD if u == 0 else VD2}, s[44:47], s56 offen lds", f"c{c}")
    a(f"""
    v_lshrrev_b32 v10, 4, v2
    v_and_b32 v6, 15, v2
    v_lshrrev_b32 v31, 2, v6
    v_and_b32 v6, 3, v6
    v_lshrrev_b32 v30, 1, v10
    v_lshlrev_b32 v30, 3, v30
    v_add_u32 v30, v30, v31
    v_lshlrev_b32 v30, 8, v30
    v_lshl_add_u32 v30, v6, 3, v30
    v_and_b32 v10, 1, v10
    v_lshl_add_u32 v30, v10, 13, v30
    v_lshlrev_b32 v31, 1, v31
    v_xor_b32 v31, v31, v10
    s_mul_i32 s57, s21, 3
    """)
    for k in range(4):
        a(f"""
        v_xor_b32 v10, s57, v31
        v_lshl_add_u32 v{TR+k}, v10, 5, v30
        v_add_u32 v{TR+4+k}, 98304, v{TR+k}
        s_add_u32 s57, s57, 1
        """)
    a(f"""
    v_and_b32 v10, 31, v2
    v_lshrrev_b32 v6, 5, v2
    v_and_b32 v31, 15, v2
    v_xor_b32 v6, v6, v31
    s_lshl_b32 s57, s20, 15
    v_lshlrev_b32 v10, 10, v10
    v_add_u32 v10, s57, v10
    """)
    for tt in range(8):
        a(f"v_xor_b32 v31, {2*tt}, v6")
        a(f"v_lshl_add_u32 v{ACC+16+tt}, v31, 4, v10")
    a(f"""
    s_mov_b32 s26, 0x3f803f80
    s_mov_b32 s27, 0xffff0000
    v_mov_b32 v24, 0
    v_mov_b32 v25, 0
    v_mov_b32 v26, 0
    v_mov_b32 v27, 0
    s_lshl_b32 s57, s21, 6
    s_lshl_b32 s62, s21, 14
    s_add_u32 s62, s62, {RR}
    v_add_u32 v5, s62, v{VPF}
    """)
    for c in range(BWARM):
        a(f"s_xor_b32 s56, s58, {c}")
        a("s_mul_i32 s56, s56, s55")
        a.vmem(f"buffer_load_dwordx4 v[{PFD}:{PFD+3}], v{VD}, s[44:47], s56 offen", "bw")
        a.vmem(f"buffer_load_dwordx4 v[{PFD}:{PFD+3}], v{VD2}, s[44:47], s56 offen", "bw")
    a.stamp()
    a.wait_vm("x")
    a("s_barrier")
    a.stamp()
    for t in range(32):
        a(f"ds_read_b128 v[{A0+4*t}:{A0+4*t+3}], v{ACC + 16 + t%8} offset:{(t//8)*256}")
    a.wait_vm("w")
    for i in range(4):
        a(f"v_lshl_or_b32 v{WL+12+i}, v{WL+4+i}, 16, v{WL+i}")
    a(f"""
    s_cmp_eq_u32 s3, 7
    s_cbranch_scc0 k1_nosp2
    v_lshl_or_b32 v{WL+8}, v{WL+9}, 16, v{WL+8}
    buffer_store_dword v{WL+8}, v{WL+10}, s[40:43], 0 offen sc1
    v_mov_b32 v30, 0
    v_mov_b32 v31, 0x7fffff00
    v_cmp_eq_u32 vcc, 0, v2
    s_lshl_b32 s51, s2, 4
    s_add_u32 s51, s51, {WS_FL}
    v_cndmask_b32 v31, v31, v30, vcc
    buffer_store_dword v30, v31, s[40:43], s51 offen sc1
    s_add_u32 s51, s51, 8192
    buffer_store_dword v30, v31, s[40:43], s51 offen sc1
    s_add_u32 s51, s51, 8192
    buffer_store_dword v30, v31, s[40:43], s51 offen sc1
    s_cmp_eq_u32 s2, 0
    s_cbranch_scc0 k1_nosp2
    s_or_b32 s70, s70, 1
    v_mov_b32 v31, s70
    s_mov_b64 exec, 1
    global_store_dword v30, v31, s[68:69] sc1
    s_mov_b64 exec, -1
    k1_nosp2:
    """)
    a("s_waitcnt lgkmcnt(14)")
    a("s_set_gpr_idx_on s57, gpr_idx(SRC0,SRC1)")
    for t in range(16):
        if t % 2 == 0 and t > 0 and t <= P1BAR:
            a(f"s_waitcnt lgkmcnt({max(14 - t, 0)})")
        for r in range(4):
            reg = A0 + 4*t + r
            a(f"v_dot2_f32_bf16 v{24 + r%2}, v{reg}, s26, v{24 + r%2}")
            a(f"v_dot2_f32_bf16 v{26 + r%2}, v{reg}, v{reg}, v{26 + r%2}")
        if t == P1BAR:
            a("s_waitcnt lgkmcnt(0)")
            a("s_barrier")
            a("s_set_gpr_idx_off")
            pend = [(c, u) for c in range(16) for u in range(2)]
            for _ in range(2*K1_PRE): dma_one(*pend.pop(0))
            for tt in range(8):
                a(f"ds_read_b128 v[{BF+4*tt}:{BF+4*tt+3}], v5 offset:{tt*1024}")
            a("s_set_gpr_idx_on s57, gpr_idx(SRC0,SRC1)")
    a("s_set_gpr_idx_off")
    a.stamp()
    def mini(ch):
        for t in range(16):
            fb = BF + 4*(t % 8)
            if t < 8: a(f"s_waitcnt lgkmcnt({7})" if t > 0 else "s_waitcnt lgkmcnt(0)")
            else: a(f"s_waitcnt lgkmcnt({15 - t})")
            ar = A0 + 4*(16*ch + t)
            cin = "0" if t == 0 else f"v[{ACC}:{ACC+15}]"
            a(f"v_mfma_f32_32x32x16_bf16 v[{ACC}:{ACC+15}], v[{fb}:{fb+3}], v[{ar}:{ar+3}], {cin}")
            if t < 8:
                a(f"ds_read_b128 v[{fb}:{fb+3}], v5 offset:{(t+8)*1024}")
    a("s_cmp_eq_u32 s21, 0")
    a("s_cbranch_scc0 k1_mini1")
    mini(0)
    a("s_branch k1_minid")
    a.raw("k1_mini1:")
    mini(1)
    a.raw("k1_minid:")
    for _ in range(2*K1_PRE2): dma_one(*pend.pop(0))
    a(f"""
    v_add_f32 v24, v24, v25
    v_add_f32 v25, v26, v27
    v_mov_b32 v26, v24
    v_mov_b32 v27, v25
    s_lshl_b32 s57, s3, 9
    s_add_u32 s57, s57, {SPARE + 4096}
    v_lshlrev_b32 v10, 3, v2
    v_permlane32_swap_b32 v24, v26
    v_permlane32_swap_b32 v25, v27
    v_add_u32 v10, s57, v10
    v_add_f32 v24, v24, v26
    v_add_f32 v25, v25, v27
    v_xor_b32 v6, 0x800, v10
    ds_write_b64 v10, v[24:25]
    s_lshl_b32 s57, s3, 2
    s_add_u32 s57, s57, {SPARE}
    v_mov_b32 v{VFA}, s57
    v_mov_b32 v{VPG}, 0
    ds_write_b32 v{VFA}, v{VPG}
    v_and_b32 v{VFL}, 7, v2
    v_xor_b32 v30, s3, v{VFL}
    v_lshlrev_b32 v30, 4, v30
    v_lshl_add_u32 v30, v2, 7, v30
    v_add_u32 v30, {SPARE + 8192}, v30
    ds_write_b128 v30, v[{WL+12}:{WL+15}]
    v_lshlrev_b32 v{VFL}, 2, v{VFL}
    v_add_u32 v{VFL}, {SPARE}, v{VFL}
    s_lshl_b32 s57, s3, 11
    s_add_u32 s57, s57, {SPARE + 16384}
    v_add_u32 v30, s57, v{VPF}
    v_xor_b32 v31, 0x2000, v30
    s_cmp_eq_u32 s21, 0
    s_cbranch_scc0 k1_px1
    ds_write_b128 v30, v[{ACC+8}:{ACC+11}]
    ds_write_b128 v30, v[{ACC+12}:{ACC+15}] offset:1024
    s_branch k1_pxd
    k1_px1:
    ds_write_b128 v30, v[{ACC}:{ACC+3}]
    ds_write_b128 v30, v[{ACC+4}:{ACC+7}] offset:1024
    """)
    for r in range(8): a(f"v_mov_b32 v{ACC+r}, v{ACC+8+r}")
    a(f"""
    k1_pxd:
    s_mov_b32 s28, s60
    s_mov_b32 s29, s61
    s_mov_b32 s30, {1792*1024}
    s_lshr_b32 s50, s2, 3
    s_lshl_b32 s50, s50, 3
    s_add_u32 s50, s50, s3
    s_mul_i32 s62, s50, 7168
    s_mul_i32 s63, s50, 3072
    v_lshrrev_b32 v28, 3, v2
    v_and_b32 v5, 7, v2
    v_xor_b32 v29, v28, v5
    v_lshlrev_b32 v29, 4, v29
    v_lshl_add_u32 v29, v28, 7, v29
    s_lshl_b32 s57, s3, 10
    s_add_u32 s57, s57, {SPARE + 8192}
    v_add_u32 v29, s57, v29
    v_lshlrev_b32 v5, 4, v5
    v_lshl_add_u32 v5, v28, 13, v5
    s_and_b32 s57, s2, 3
    s_lshl_b32 s57, s57, 3
    s_add_u32 s57, s57, s3
    s_lshl_b32 s57, s57, 16
    s_lshr_b32 s51, s2, 2
    s_lshl_b32 s51, s51, 7
    s_add_u32 s57, s57, s51
    s_add_u32 s51, s57, {WS_W}
    """)
    a.stamp()
    a.wait_vm("c1")
    a("s_waitcnt lgkmcnt(0)")
    a("s_barrier")
    a.stamp()
    YT = RR + 16384 + 8192
    a(f"""
    ds_read_b64 v[26:27], v6
    ds_read_b128 v[{WL}:{WL+3}], v29
    ds_read_b128 v[{ACC+8}:{ACC+11}], v31
    ds_read_b128 v[{ACC+12}:{ACC+15}], v31 offset:1024
    s_waitcnt lgkmcnt(2)
    v_add_f32 v24, v24, v26
    v_add_f32 v25, v25, v27
    v_mul_f32 v24, 0x3b000000, v24
    v_mul_f32 v25, 0x3b000000, v25
    v_fma_f32 v{VRI}, -v24, v24, v25
    v_cvt_pk_bf16_f32 v27, v24, v24
    v_lshlrev_b32 v27, 16, v27
    v_sub_f32 v{VNM}, 0, v27
    v_mul_f32 v29, v24, v24
    v_mul_f32 v30, 0x43800000, v{VRI}
    v_cmp_gt_f32 vcc, v29, v30
    """)
    a.vmem(f"buffer_store_dwordx4 v[{WL}:{WL+3}], v5, s[40:43], s51 offen sc1", "ws")
    a(f"""
    s_cbranch_vccz k1_fast
    v_mov_b32 v28, 0
    v_mov_b32 v29, 0
    s_mov_b32 s56, 0
    k1_slow:
    s_set_gpr_idx_on s56, gpr_idx(SRC1)
    v_lshlrev_b32 v30, 16, v{A0}
    v_and_b32 v31, s27, v{A0}
    s_set_gpr_idx_off
    v_add_f32 v30, v{VNM}, v30
    v_add_f32 v31, v{VNM}, v31
    v_fma_f32 v28, v30, v30, v28
    v_fma_f32 v29, v31, v31, v29
    s_add_u32 s56, s56, 1
    s_cmp_lt_u32 s56, 128
    s_cbranch_scc1 k1_slow
    v_add_f32 v28, v28, v29
    v_mov_b32 v29, v28
    v_sub_f32 v26, v24, v27
    s_nop 0
    v_permlane32_swap_b32 v28, v29
    v_add_f32 v28, v28, v29
    v_mul_f32 v28, 0x3b000000, v28
    v_fma_f32 v{VRI}, -v26, v26, v28
    k1_fast:
    v_max_f32 v28, 0, v{VRI}
    v_cvt_pk_bf16_f32 v28, v28, v28
    v_lshlrev_b32 v28, 16, v28
    v_add_f32 v28, 0x3727c5ac, v28
    v_cvt_pk_bf16_f32 v28, v28, v28
    v_lshlrev_b32 v28, 16, v28
    v_sqrt_f32 v28, v28
    v_and_b32 v30, 31, v2
    v_cvt_pk_bf16_f32 v28, v28, v28
    v_lshlrev_b32 v28, 16, v28
    v_rcp_f32 v{VRI}, v28
    v_lshlrev_b32 v30, 1, v30
    v_lshrrev_b32 v31, 5, v2
    v_lshl_add_u32 v30, v31, 10, v30
    s_lshl_b32 s57, s20, 6
    s_lshl_b32 s56, s21, 12
    s_add_u32 s57, s57, s56
    s_add_u32 s57, s57, {YT}
    v_add_u32 v30, s57, v30
    s_waitcnt lgkmcnt(0)
    """)
    a.wait_vm("cs")
    for r in range(8): a(f"v_add_f32 v{ACC+r}, v{ACC+r}, v{ACC+8+r}")
    for r in range(8): a(f"v_fma_f32 v{ACC+r}, v{VNM}, v{CS+r}, v{ACC+r}")
    for r in range(8): a(f"v_mul_f32 v{ACC+r}, v{VRI}, v{ACC+r}")
    for r in range(8): a(f"v_cvt_f16_f32 v{ACC+r}, v{ACC+r}")
    for r in range(8):
        a(f"ds_write_b16 v30, v{ACC+r} offset:{(8*(r//4) + r%4)*256}")
    a(f"""
    s_lshl_b32 s57, s3, 10
    s_add_u32 s57, s57, {YT}
    v_add_u32 v5, s57, v{VPF}
    v_lshrrev_b32 v6, 4, v2
    v_lshlrev_b32 v6, 12, v6
    v_and_b32 v31, 15, v2
    v_lshl_add_u32 v6, v31, 4, v6
    s_lshl_b32 s51, s19, 5
    s_lshl_b32 s57, s3, 2
    s_add_u32 s51, s51, s57
    s_lshl_b32 s51, s51, 12
    s_lshl_b32 s57, s18, 8
    s_add_u32 s51, s51, s57
    s_add_u32 s51, s51, {WS_Y}
    """)
    if DIAG: a("s_memrealtime s[92:93]"); a("s_waitcnt lgkmcnt(0)")
    vm_save = list(a.vm); nst_save = a.nst; pend_save = list(pend)

    def p2(i, r):
        reg = A0 + i*4 + r
        t0, t1 = PT + 2*r, PT + 2*r + 1
        return [f"v_lshlrev_b32 v{t0}, 16, v{reg}", f"v_and_b32 v{t1}, s27, v{reg}",
                f"v_add_f32 v{t0}, v{VNM}, v{t0}", f"v_add_f32 v{t1}, v{VNM}, v{t1}",
                f"v_cvt_pk_bf16_f32 v{reg}, v{t0}, v{t1}"]
    def p2_seq(i):
        o = [p2(i, r) for r in range(4)]
        return [o[0][0], o[0][1], o[1][0], o[1][1], o[2][0], o[2][1], o[3][0], o[3][1], o[0][2], o[0][3],
                o[1][2], o[1][3], o[2][2], o[2][3], o[3][2], o[3][3], o[0][4], o[1][4], o[2][4], o[3][4]]

    def mainloop(ch):
        NT = 3 + ch
        a.vm = list(vm_save); a.nst = nst_save
        pend = list(pend_save)
        lab = str(ch)
        NR = 2 * NT
        def reads(i, buf):
            c, s_ = i // 2, i % 2
            pos = RING[c % 8] * 16384
            win = 1 if pos >= 98304 else 0
            base = pos - 98304 * win
            for k in range(NT):
                fr = BF + buf*16 + k*4
                for t in range(2):
                    a(f"ds_read_b64_tr_b16 v[{fr+2*t}:{fr+2*t+1}], v{TR+4*win+k} offset:{base + (16*s_ + 4*t)*256}")
        def mfma(i, buf, k):
            areg = A0 + 4*i
            fr = BF + buf*16 + k*4
            acc = ACC + k*16
            cin = "0" if i == 0 else f"v[{acc}:{acc+15}]"
            a(f"v_mfma_f32_32x32x16_bf16 v[{acc}:{acc+15}], v[{fr}:{fr+3}], v[{areg}:{areg+3}], {cin}")
        reads(0, 0)
        for ins in p2_seq(0): a(ins)
        a.stamp()
        limit = 6
        npf = 0
        for i in range(32):
            c, s_ = i // 2, i % 2
            buf = i & 1
            if s_ == 0:
                if c >= 1 and c < 15: a(f"ds_read_b32 v0, v{VFL}")
                reads(i + 1, buf ^ 1)
                a(f"s_waitcnt lgkmcnt({NR})")
                if c == 2:
                    a.vmem(f"buffer_store_dwordx4 v[{PFD}:{PFD+3}], v6, s[40:43], s51 offen sc1", "ys")
                    a("v_mov_b32 v5, 0")
                    a.vmem("global_load_dword v5, v5, s[68:69] sc1", "nonce")
                if c + 2 < 16:
                    assert not pend or pend[0][0] > c + 2
                    a.wait_vm(f"c{c+2}")
                    if c == 5: a.wait_vm("nonce")
                    a(f"v_mov_b32 v{VPG}, {c+1}")
                    a(f"ds_write_b32 v{VFA}, v{VPG}")
            else:
                if i + 1 < 32:
                    if c >= 1:
                        a(f"""
                        k1_spin{lab}_{c}:
                        v_cmp_gt_u32 vcc, {c}, v0
                        s_cbranch_vccz k1_ok{lab}_{c}
                        ds_read_b32 v0, v{VFL}
                        s_waitcnt lgkmcnt(0)
                        s_branch k1_spin{lab}_{c}
                        k1_ok{lab}_{c}:
                        """)
                        if c >= 3: limit = c + 6
                        if c == 1:
                            a(f"ds_read_b128 v[{PFD}:{PFD+3}], v5")
                        if c == 6:
                            a(f"""
                            s_mov_b32 s57, 0
                            k1_nn{lab}:
                            v_readfirstlane_b32 s6, v5
                            s_cmp_lg_u32 s6, 0
                            s_cbranch_scc1 k1_nh{lab}
                            s_add_u32 s57, s57, 1
                            s_cmp_ge_u32 s57, 0x8000
                            s_cbranch_scc1 k1_nh{lab}
                            v_mov_b32 v5, 0
                            global_load_dword v5, v5, s[68:69] sc1
                            s_waitcnt vmcnt(0)
                            s_branch k1_nn{lab}
                            k1_nh{lab}:
                            """)
                            if ch == 0:
                                a(f"""
                                s_cmp_eq_u32 s3, 0
                                s_cbranch_scc0 k1_nofy
                                s_lshl_b32 s57, s2, 4
                                s_add_u32 s57, s57, {WS_FL + 16384}
                                v_mov_b32 v6, 0
                                s_mov_b64 exec, 1
                                buffer_store_dword v5, v6, s[40:43], s57 offen sc1
                                s_mov_b64 exec, -1
                                k1_nofy:
                                """)
                    reads(i + 1, buf ^ 1)
                    a(f"s_waitcnt lgkmcnt({NR})")
                else:
                    a("s_waitcnt lgkmcnt(0)")
            seq = p2_seq(i + 1) if i + 1 < 32 else []
            per = (20 + NT - 1) // NT
            for k in range(NT):
                mfma(i, buf, k)
                for ins in seq[k*per:(k+1)*per]: a(ins)
                if k in (0, 2) and pend and pend[0][0] <= limit:
                    dma_one(*pend.pop(0))
                if PREF and k == 1 and i >= PFS and npf < 10:
                    if npf < 7:
                        a.vmem(f"buffer_load_dwordx4 v[{PFD}:{PFD+3}], v{VPF}, s[28:31], s62 offen offset:{(npf % 4)*1024}", "pf")
                        if npf == 3: a("s_add_u32 s62, s62, 4096")
                    else:
                        a.vmem(f"buffer_load_dwordx4 v[{PFD}:{PFD+3}], v{VPF}, s[32:35], s63 offen offset:{(npf-7)*1024}", "pf")
                    npf += 1
            if ch == 0:
                TB = 524288
                CL_ = [(cE1+4*q, "s72", TE1+q*1024) for q in range(4)] + [(cT1+4*q, "s73", q*1024) for q in range(2)] + \
                      [(cE2+4*q, "s16", q*1024) for q in range(4)] + [(cE3+4*q, "s17", q*1024) for q in range(4)] + \
                      [(cT2+4*q, "s24", q*1024) for q in range(2)] + [(cE4+4*q, "s25", q*1024) for q in range(4)]
                if i == 3:
                    a(f"""
                    s_mov_b32 s72, {TB}
                    s_lshl_b32 s57, s3, 11
                    s_add_u32 s73, s57, {TB + TT1}
                    s_add_u32 s24, s57, {TB + TT2}
                    s_lshl_b32 s57, s3, 12
                    s_add_u32 s16, s57, {TB + TE2}
                    s_add_u32 s17, s57, {TB + TE3}
                    s_mov_b32 s25, {TB + TE4}
                    """)
                if 4 <= i < 24:
                    d_, so, of = CL_[i - 4]
                    assert (d_ - A0) // 4 <= i
                    a.vmem(f"buffer_load_dwordx4 v[{d_}:{d_+3}], v{VPF}, s[32:35], {so} offen offset:{of}", "ct")
                X_ = ACC + 48
                if i == 21:
                    a(f"s_mov_b32 s57, {WS_FL + 16384}")
                    for q in range(4):
                        a.vmem(f"buffer_load_dword v{X_+q}, v{VPF}, s[40:43], s57 offen offset:{q*1024} sc1", "fy")
                    a(f"""
                    v_and_b32 v{X_+4}, 15, v2
                    v_lshlrev_b32 v{X_+4}, 6, v{X_+4}
                    v_lshrrev_b32 v{X_+5}, 4, v2
                    v_lshl_add_u32 v{X_+4}, v{X_+5}, 4, v{X_+4}
                    v_lshlrev_b32 v{X_+5}, 5, v2
                    s_lshl_b32 s72, s2, 13
                    s_lshl_b32 s73, s3, 10
                    s_add_u32 s16, s72, s73
                    s_add_u32 s16, s16, {WS_Y}
                    s_add_u32 s17, s16, 4096
                    s_lshl_b32 s73, s3, 11
                    s_add_u32 s72, s72, s73
                    s_add_u32 s72, s72, {WS_W}
                    s_add_u32 s73, s73, {WS_W + 256*8192}
                    """)
                if i == 25:
                    a.wait_vm("fy")
                    a(f"""
                    s_mov_b32 s56, 0
                    s_mov_b32 s57, {WS_FL + 16384}
                    k1_fys:
                    v_xor_b32 v{X_}, s6, v{X_}
                    v_xor_b32 v{X_+1}, s6, v{X_+1}
                    v_xor_b32 v{X_+2}, s6, v{X_+2}
                    v_xor_b32 v{X_+3}, s6, v{X_+3}
                    v_or3_b32 v{X_}, v{X_}, v{X_+1}, v{X_+2}
                    v_or_b32 v{X_}, v{X_}, v{X_+3}
                    v_cmp_ne_u32 vcc, 0, v{X_}
                    s_cbranch_vccz k1_fyok
                    s_add_u32 s56, s56, 1
                    s_cmp_ge_u32 s56, 0x4000
                    s_cbranch_scc1 k1_fyok
                    s_sleep 16
                    buffer_load_dword v{X_}, v{VPF}, s[40:43], s57 offen sc1
                    buffer_load_dword v{X_+1}, v{VPF}, s[40:43], s57 offen offset:1024 sc1
                    buffer_load_dword v{X_+2}, v{VPF}, s[40:43], s57 offen offset:2048 sc1
                    buffer_load_dword v{X_+3}, v{VPF}, s[40:43], s57 offen offset:3072 sc1
                    s_waitcnt vmcnt(0)
                    s_branch k1_fys
                    k1_fyok:
                    """)
                    a.vmem(f"buffer_load_dwordx4 v[{cYR}:{cYR+3}], v{X_+4}, s[40:43], s16 offen sc1", "ct")
                    a.vmem(f"buffer_load_dwordx4 v[{cYI}:{cYI+3}], v{X_+4}, s[40:43], s17 offen sc1", "ct")
                if i == 26:
                    a.vmem(f"buffer_load_dwordx4 v[{cWW}:{cWW+3}], v{X_+5}, s[40:43], s72 offen sc1", "ct")
                    a.vmem(f"buffer_load_dwordx4 v[{cWW+4}:{cWW+7}], v{X_+5}, s[40:43], s72 offen offset:16 sc1", "ct")
                if i == 30:
                    a(f"""
                    s_cmp_eq_u32 s2, 0
                    s_cbranch_scc0 k1_nosp3
                    buffer_load_dwordx4 v[{cWW+8}:{cWW+11}], v{X_+5}, s[40:43], s73 offen sc1
                    buffer_load_dwordx4 v[{cWW+12}:{cWW+15}], v{X_+5}, s[40:43], s73 offen offset:16 sc1
                    s_add_u32 s73, s73, 8192
                    buffer_load_dwordx4 v[{cWM}:{cWM+3}], v{X_+5}, s[40:43], s73 offen sc1
                    buffer_load_dwordx4 v[{cWM+4}:{cWM+7}], v{X_+5}, s[40:43], s73 offen offset:16 sc1
                    s_add_u32 s73, s73, 8192
                    buffer_load_dwordx4 v[{cWM+8}:{cWM+11}], v{X_+5}, s[40:43], s73 offen sc1
                    buffer_load_dwordx4 v[{cWM+12}:{cWM+15}], v{X_+5}, s[40:43], s73 offen offset:16 sc1
                    k1_nosp3:
                    """)
            if i % 8 == 7 and i < 31: a.stamp()
        assert not pend
        a(f"""
        s_mul_i32 s50, s22, 112
        s_mul_i32 s51, s19, 7
        s_add_u32 s50, s50, s51
        s_add_u32 s50, s50, {3*ch}
        s_lshl_b32 s50, s50, 10
        s_add_u32 s50, s50, {WS_H}
        v_mov_b32 v10, v{VRI}
        v_mov_b32 v11, v{VRI}
        s_nop 7
        """)
        a.stamp()
        for k in range(NT):
            G = ACC + k*16; U = G + 8
            O = BF + k*4; Q = (ACC + 56) if ch == 0 else (A0 + k*8)
            for p in range(8):
                a(f"v_pk_mul_f32 v[{G+2*p}:{G+2*p+1}], v[{G+2*p}:{G+2*p+1}], v[10:11]")
            for p in range(8):
                a(f"v_max_f32 v{G+p}, 0, v{G+p}")
            for p in range(8):
                a(f"v_cvt_pk_bf16_f32 v{Q+p}, v{G+2*p}, v{G+2*p+1}")
            for p in range(8):
                a(f"v_lshlrev_b32 v{G+2*p}, 16, v{Q+p}")
                a(f"v_and_b32 v{G+2*p+1}, s27, v{Q+p}")
            for p in range(4):
                a(f"v_pk_mul_f32 v[{G+2*p}:{G+2*p+1}], v[{G+2*p}:{G+2*p+1}], v[{U+2*p}:{U+2*p+1}]")
            for p in range(4):
                a(f"v_cvt_pk_bf16_f32 v{O+p}, v{G+2*p}, v{G+2*p+1}")
            a(f"buffer_store_dwordx4 v[{O}:{O+3}], v{VPF}, s[40:43], s50 offen offset:{k*1024} sc1")
        a.stamp()
        a.stamp_store(0)
        a("s_branch ph2")
    a("""
    s_cmp_eq_u32 s21, 0
    s_cbranch_scc0 k1_ch1
    """)
    mainloop(0)
    a.raw("k1_ch1:")
    mainloop(1)
    a.raw("k1_end:")
    a("s_endpgm")
    return a.text()

TE1, TE2, TE3, TE4, TT1, TT2, TCS, TSZ = 0, 4096, 20480, 36864, 40960, 49152, 57344, 59392
def small_tables():
    buf = np.zeros(TSZ // 2, np.uint16)
    l = np.arange(64); c = l % 16; g = l // 16; j = np.arange(8)
    for t in range(2):
        ang = -2*np.pi*((8*g[:,None]+j[None,:])*(16*t+c)[:,None] % 32)/32
        buf[(TE1 + (0*2+t)*1024)//2:][:512] = f16(np.cos(ang)/8).ravel()
        buf[(TE1 + (1*2+t)*1024)//2:][:512] = f16(np.sin(ang)/8).ravel()
    for w in range(4):
        for st in range(2):
            ang = -2*np.pi*((32*st+8*g[:,None]+j[None,:])*(16*w+c)[:,None] % 64)/64
            buf[(TE2 + ((w*2+0)*2+st)*1024)//2:][:512] = f16(np.cos(ang)/8).ravel()
            buf[(TE2 + ((w*2+1)*2+st)*1024)//2:][:512] = f16(np.sin(ang)/8).ravel()
            buf[(TE3 + ((w*2+0)*2+st)*1024)//2:][:512] = bf16(np.cos(-ang)/8).ravel()
            buf[(TE3 + ((w*2+1)*2+st)*1024)//2:][:512] = bf16(np.sin(-ang)/8).ravel()
    sig = 16*(j[None,:]//4) + 4*g[:,None] + (j[None,:] % 4)
    for tp in range(2):
        ang = 2*np.pi*((sig*(16*tp+c)[:,None]) % 32)/32
        buf[(TE4 + (0*2+tp)*1024)//2:][:512] = bf16(np.cos(ang)/8).ravel()
        buf[(TE4 + (1*2+tp)*1024)//2:][:512] = bf16(np.sin(ang)/8).ravel()
    for w in range(4):
        for e in range(8):
            t, i = e // 4, e % 4
            a1 = -2*np.pi*(((16*w+4*g+i)*(16*t+c)) % 2048)/2048
            a2 = 2*np.pi*(((16*w+c)*(16*t+4*g+i)) % 2048)/2048
            for (base, an) in ((TT1, a1), (TT2, a2)):
                o = (base + (w*2 + e//4)*1024)//2 + l*8 + (e % 4)*2
                buf[o] = f16(np.cos(an)); buf[o+1] = f16(np.sin(an))
    jj = np.arange(512); c1 = bf16(np.cos(2*np.pi*jj/512) / 16); c1[np.abs(np.cos(2*np.pi*jj/512)) < 1e-9] = 0
    cf = (c1.astype(np.uint32) << 16).view(np.float32).astype(np.float64)
    cs = np.zeros(512)
    for n in range(512):
        kk, off = (256, 0) if n == 1 else (n >> 1, 128*(n & 1))
        cs[n] = cf[(jj*kk + off) & 511].sum()
    buf.view(np.float32)[TCS//4:TCS//4+512] = cs.astype(np.float32)
    return buf

K3_NS = 5
CSTR = int(os.environ.get('CSTR','2'))
NUP = int(os.environ.get('NUP','16'))
ZSC = os.environ.get('ZSC','sc1')
HSC = 'sc1' if MERGE else ''
MPRE = int(os.environ.get('MPRE','16'))
PSLEEP = int(os.environ.get('PSLEEP','8'))
GLAG = int(os.environ.get('GLAG','5'))
GOLD = int(os.environ.get('GOLD','3'))
CPRE = True
ZSLEEP = int(os.environ.get('ZSLEEP','12'))
ZMIN = int(os.environ.get('ZMIN','30'))
POLLD = int(os.environ.get('POLLD','4'))
HDIST = int(os.environ.get('HDIST','12'))
ZSTART = int(os.environ.get('ZSTART','28'))
ZTAIL = int(os.environ.get('ZTAIL','0'))
NIDLE = int(os.environ.get('NIDLE','2'))
NZB = int(os.environ.get('NZB','1'))
LOADALL = os.environ.get('LOADALL','1') == '1'
CPRIO = int(os.environ.get('CPRIO','2'))
LATEC = int(os.environ.get('LATEC','1'))
def gen_k23_main():
    a = Asm()
    if MERGE:
        a.raw("ph2:")
        a(f"""
        s_load_dwordx4 s[8:11], s[0:1], 48
        s_load_dwordx2 s[14:15], s[0:1], 72
        s_waitcnt vmcnt(0) lgkmcnt(0)
        s_barrier
        s_cmp_eq_u32 s3, 4
        s_cbranch_scc0 ph2_nopub
        s_lshl_b32 s26, s2, 4
        s_add_u32 s26, s26, {WS_FL + 8192}
        v_mov_b32 v7, 0
        v_mov_b32 v23, s6
        s_mov_b64 exec, 1
        buffer_store_dword v23, v7, s[40:43], s26 offen sc1
        s_mov_b64 exec, -1
        ph2_nopub:
        {"s_memrealtime s[94:95]" if DIAG else "s_nop 0"}
        {"s_mov_b32 s100, s70" if DIAG else "s_nop 0"}
        s_lshl_b32 s26, s3, 6
        v_add_u32 v0, s26, v2
        """)
    else:
        a.raw(".p2align 8\nk23_kernel:")
        a("""
        s_cmp_ge_u32 s2, 256
        s_cbranch_scc1 k23_end
        s_load_dwordx2 s[4:5], s[0:1], 0
        s_load_dwordx4 s[8:11], s[0:1], 48
        s_load_dwordx2 s[14:15], s[0:1], 72
        v_lshrrev_b32 v1, 6, v0
        v_and_b32 v2, 63, v0
        s_mov_b32 s6, 1
        v_readfirstlane_b32 s3, v1
        """)
    a("""
    v_and_b32 v3, 15, v2
    v_lshrrev_b32 v4, 4, v2
    s_mov_b32 s48, 0x80008000
    s_mov_b32 s49, 0xffff0000
    s_cmp_lt_u32 s3, 4
    s_cbranch_scc1 k23_conv
    """)
    SB = 131072
    NCB = 5 + NIDLE + NZB
    a("s_and_b32 s7, s3, 3")
    getpc_tab(a, 24, "tab_G")
    srd(a, 44, "s24", "s25", 524288)
    if os.environ.get("K3_MAP", "1") == "0":
        a("""
    s_and_b32 s16, s2, 7
    s_lshr_b32 s17, s2, 3
    s_lshr_b32 s18, s16, 1
    s_lshl_b32 s18, s18, 3
    s_and_b32 s19, s17, 7
    s_add_u32 s18, s18, s19
    s_lshl_b32 s58, s19, 1
    s_and_b32 s19, s16, 1
    s_lshl_b32 s19, s19, 2
    s_lshr_b32 s20, s17, 3
    s_add_u32 s19, s19, s20
    s_lshl_b32 s20, s20, 2
    s_add_u32 s58, s58, s20
    """)
    else:
        a("""
    s_and_b32 s16, s2, 7
    s_lshr_b32 s17, s2, 3
    s_lshl_b32 s18, s16, 2
    s_and_b32 s19, s17, 3
    s_add_u32 s18, s18, s19
    s_lshl_b32 s58, s19, 2
    s_lshr_b32 s19, s17, 2
    s_lshl_b32 s20, s19, 1
    s_add_u32 s58, s58, s20
    """)
    a.sb = 92; a.maxst = 5
    XR = 8; PV = 16; VO, VF, VW, VZ, VH = 20, 21, 22, 23, 24
    VPG, VFA, VFL, VFV = 25, 26, 27, 28
    TRW = 29
    TRZ = 37
    GFR = 39
    VW2, VZ2 = 41, 42
    ACG, ACS = 44, 60
    FB = 76
    HB = 136; NHB = 28
    PW = SB + 28672
    NCH = 36
    a(f"""
    s_cmp_ge_u32 s58, 14
    s_cselect_b32 s20, 14, 0
    s_sub_u32 s58, s58, s20
    s_lshl_b32 s58, s58, 1
    s_add_u32 s12, s18, s19
    s_and_b32 s12, s12, 7
    s_and_b32 s20, s7, 1
    s_lshr_b32 s21, s7, 1
    s_lshl_b32 s22, s18, 1
    s_add_u32 s22, s22, s21
    v_lshlrev_b32 v{VF}, 4, v2
    v_lshrrev_b32 v6, 3, v2
    v_and_b32 v5, 7, v2
    v_lshrrev_b32 v5, 1, v5
    v_lshrrev_b32 v1, 1, v6
    v_xor_b32 v5, v5, v1
    v_lshlrev_b32 v5, 5, v5
    v_and_b32 v1, 1, v2
    v_lshl_add_u32 v5, v1, 4, v5
    v_lshl_add_u32 v{VW}, v6, 10, v5
    v_lshl_add_u32 v{VZ}, v6, 12, v5
    s_lshl_b32 s27, s19, 7
    v_add_u32 v{VW}, s27, v{VW}
    s_lshl_b32 s27, s18, 7
    s_add_u32 s27, s27, {WS_Z}
    v_add_u32 v{VZ}, s27, v{VZ}
    v_add_u32 v{VW2}, 8192, v{VW}
    v_add_u32 v{VZ2}, 32768, v{VZ}
    v_lshlrev_b32 v{VH}, 9, v4
    v_lshl_add_u32 v{VH}, v3, 4, v{VH}
    s_mul_i32 s50, s22, 112
    s_lshl_b32 s50, s50, 10
    s_lshl_b32 s27, s20, 8
    s_add_u32 s50, s50, s27
    s_add_u32 s50, s50, {WS_H}
    s_lshl_b32 s51, s19, 1
    s_add_u32 s51, s51, s21
    s_lshl_b32 s51, s51, 5
    s_lshl_b32 s27, s20, 1
    s_add_u32 s51, s51, s27
    s_lshl_b32 s51, s51, 10
    s_lshl_b32 s52, s7, 11
    s_lshl_b32 s54, s7, 14
    s_lshl_b32 s55, s7, 16
    s_mov_b32 s59, {WS_FL}
    s_lshl_b32 s27, s7, 2
    s_add_u32 s27, s27, {PW}
    v_mov_b32 v{VFA}, s27
    v_mov_b32 v{VPG}, 0
    v_and_b32 v{VFL}, 3, v2
    v_lshlrev_b32 v{VFL}, 2, v{VFL}
    v_add_u32 v{VFL}, {PW}, v{VFL}
    v_lshlrev_b32 v5, 2, v3
    v_add_u32 v5, {PW}, v5
    ds_write_b32 v5, v{VPG}
    s_waitcnt lgkmcnt(0)
    """)
    a.stamp()
    srd(a, 40, "s14", "s15", WS_SIZE)
    srd(a, 32, "s8", "s9", 1792*1024)
    isd = lambda c: c < 28
    upos = {}; p_ = 0
    for c in range(NCH):
        upos[c] = p_ % 16; p_ += 1 if isd(c) else 2
    ustart = {}; p_ = 0
    for c in range(NCH):
        ustart[c] = p_; p_ += 1 if isd(c) else 2
    uend = lambda c: ustart[c] + (1 if isd(c) else 2)
    a(f"""
    v_add_u32 v{VW}, s54, v{VW}
    v_add_u32 v{VW2}, s54, v{VW2}
    v_add_u32 v43, s50, v{VH}
    s_lshl_b32 s64, s58, 12
    """)
    def tab(c):
        a(f"s_add_u32 s{64+c}, s{63+c}, 4096")
        a(f"s_cmp_eq_u32 s{64+c}, {28*4096}")
        a(f"s_cselect_b32 s{64+c}, 0, s{64+c}")
    def dma_one(c, u):
        if isd(c):
            a(f"s_add_u32 m0, s52, {upos[c]*8192 + u*1024}")
            if u == 0: a(f"s_lshl_b32 s63, s{64+c}, 4")
            else: a("s_nop 0")
            a.vmem(f"buffer_load_dwordx4 v{VW if u == 0 else VW2}, s[32:35], s63 offen lds", f"c{c}")
            return
        if u == 0:
            a(f"s_xor_b32 s57, s12, {c-28}")
            a(f"s_lshl_b32 s62, s57, 12"); a(f"s_add_u32 s62, s62, s51")
            a(f"s_lshl_b32 s63, s57, 18"); a(f"s_add_u32 s63, s63, s55")
        if u < 2:
            a(f"s_add_u32 m0, s52, {upos[c]*8192 + u*1024}")
            a("s_nop 0")
            a.vmem(f"buffer_load_dwordx4 v{VZ if u == 0 else VZ2}, s[40:43], s63 offen {ZSC} lds", f"c{c}")
        else:
            if u == 2:
                a(f"s_add_u32 m0, s52, {((upos[c]+1) % 16)*8192}")
                a("s_nop 0")
            else:
                a(f"s_add_u32 m0, s52, {((upos[c]+1) % 16)*8192}")
                a("s_nop 0")
            a.vmem(f"buffer_load_dwordx4 v{VF}, s[44:47], s62 offen offset:{(u-2)*1024} lds", f"c{c}")
    def hload(j):
        c, s_ = j // 2, j % 2
        hb = HB + (j % NHB) * 4
        a.vmem(f"buffer_load_dwordx4 v[{hb}:{hb+3}], v43, s[40:43], s{64+c} offen offset:{s_*2048} {HSC}", f"h{j}")
    tab(1)
    pend = [(c, u) for c in range(NCH) for u in range(2 if isd(c) else 4)]
    hp = [0]
    if MERGE:
        a("s_barrier")
        for c in range(2, 28): tab(c)
        for c in range(MPRE):
            for u in range(2): dma_one(*pend.pop(0))
    else:
        for c in range(2):
            for u in range(2): dma_one(*pend.pop(0))
            for _ in range(2): hload(hp[0]); hp[0] += 1
        for c in range(2, 28): tab(c)
        a("s_barrier")
        for c in range(NUP // 4):
            for u in range(2): dma_one(*pend.pop(0))
            for _ in range(2): hload(hp[0]); hp[0] += 1
    srd(a, 36, "s10", "s11", 2048*1024)
    srd(a, 28, "s4", "s5", 2048*1024)
    a(f"""
    v_lshrrev_b32 v{PV}, 2, v3
    v_and_b32 v{PV+1}, 3, v3
    v_lshrrev_b32 v{PV+2}, 1, v4
    v_lshlrev_b32 v{PV+2}, 4, v{PV+2}
    v_and_b32 v{PV+3}, 1, v4
    v_lshl_add_u32 v{PV+2}, v{PV+3}, 2, v{PV+2}
    v_add_u32 v{PV+2}, v{PV+2}, v{PV}
    v_lshlrev_b32 v{PV+2}, 7, v{PV+2}
    v_lshl_add_u32 v{PV+2}, v{PV+1}, 3, v{PV+2}
    v_lshrrev_b32 v{PV}, 1, v{PV}
    v_lshl_add_u32 v{PV}, v{PV+3}, 1, v{PV}
    """)
    for dt in range(4):
        a(f"v_xor_b32 v{PV+1}, {dt}, v{PV}")
        a(f"v_lshl_add_u32 v{TRW+dt}, v{PV+1}, 5, v{PV+2}")
        a(f"v_add_u32 v{TRW+4+dt}, 0x10000, v{TRW+dt}")
    a(f"""
    v_xor_b32 v{PV+1}, s7, v{PV}
    v_lshl_add_u32 v{TRZ}, v{PV+1}, 5, v{PV+2}
    v_add_u32 v{TRZ+1}, 0x10000, v{TRZ}
    v_mov_b32 v{GFR}, v{VH}
    v_add_u32 v{GFR+1}, 0x10000, v{VH}
    v_lshrrev_b32 v1, 3, v2
    v_and_b32 v{VO}, 7, v2
    v_lshlrev_b32 v{VO}, 4, v{VO}
    v_lshl_add_u32 v{VO}, v1, 16, v{VO}
    s_lshl_b32 s23, s22, 10
    s_lshl_b32 s26, s19, 7
    s_add_u32 s23, s23, s26
    s_lshl_b32 s26, s20, 20
    s_add_u32 s23, s23, s26
    s_add_u32 s13, s23, 0x80000
    """)
    if MERGE:
        a(f"""
        s_cmp_eq_u32 s7, 0
        s_cbranch_scc0 ph2_ggo
        s_lshr_b32 s26, s18, 1
        s_lshr_b32 s27, s26, 3
        s_and_b32 s26, s26, 7
        s_lshl_b32 s26, s26, 3
        s_add_u32 s26, s26, s27
        s_lshl_b32 s26, s26, 4
        s_add_u32 s26, s26, {WS_FL + 8192}
        v_lshrrev_b32 v{PV}, 2, v3
        v_and_b32 v{PV+1}, 3, v3
        v_lshlrev_b32 v{PV}, 5, v{PV}
        v_lshl_add_u32 v{PV}, v{PV+1}, 10, v{PV}
        s_mov_b32 s27, 0
        ph2_gpoll:
        buffer_load_dword v{PV+1}, v{PV}, s[40:43], s26 offen sc1
        s_waitcnt vmcnt(0)
        v_cmp_ne_u32 vcc, s6, v{PV+1}
        s_cbranch_vccz ph2_ggo
        s_add_u32 s27, s27, 1
        s_cmp_ge_u32 s27, 0x8000
        s_cbranch_scc1 ph2_ggo
        s_sleep {PSLEEP}
        s_branch ph2_gpoll
        ph2_ggo:
        {"s_memrealtime s[96:97]" if DIAG else "s_nop 0"}
        s_waitcnt vmcnt(0) lgkmcnt(0)
        """)
        a.vm = []
    DEPTH = 3
    NST = NCH * 2
    LAG = GLAG
    pubs = []
    def full_issued():
        return (pend[0][0] - 1) if pend else NCH - 1
    def arrive(want, rdone):
        q = min(want, full_issued(), NCH - 1)
        for cc in range(q, -1, -1):
            if f"c{cc}" in a.vm:
                a.wait_vm(f"c{cc}"); break
        pubs.append((q, rdone))
        a(f"v_mov_b32 v{VPG}, {len(pubs)}")
        a.lds(f"ds_write_b32 v{VFA}, v{VPG}", "pw")
    nspin = [0]
    checked = [0]
    fvp = [False]
    def check(k):
        n = nspin[0]; nspin[0] += 1
        if not fvp[0]:
            a.lds(f"ds_read_b32 v{VFV}, v{VFL}", "fv")
        fvp[0] = False
        a.wait_lds("fv")
        a(f"""
        k23_gs{n}:
        v_cmp_gt_u32 vcc, {k}, v{VFV}
        s_cbranch_vccz k23_go{n}
        {"s_sleep 1" if n == 0 else "s_nop 0"}
        ds_read_b32 v{VFV}, v{VFL}
        s_waitcnt lgkmcnt(0)
        s_branch k23_gs{n}
        k23_go{n}:
        """)
        checked[0] = k
        rd = pubs[k-1][1]
        if rd >= 0: ulimit[0] = max(ulimit[0], uend(rd) + 16)
    ulimit = [16]
    def reads(i):
        c, s_ = i // 2, i % 2
        if s_ == 0:
            have = pubs[checked[0]-1][0] if checked[0] else -1
            if have < c or c % 2 == 0:
                need = min(c + 1, NCH - 1) if c % 2 == 0 else c
                ks = [k+1 for k, (q, r) in enumerate(pubs) if q >= need]
                if not ks: ks = [k+1 for k, (q, r) in enumerate(pubs) if q >= c]
                assert ks, ("no publish covers chunk", c, pubs)
                old_ = [k+1 for k, (q, r) in enumerate(pubs) if r <= c - 4]
                k = max([ks[0], checked[0]] + old_)
                if k > checked[0]: check(k)
            if c in (0, 12, 28): a.stamp()
            if c % 2 == 1 and c + 1 < NCH and c >= 3:
                a.lds(f"ds_read_b32 v{VFV}, v{VFL}", "fv"); fvp[0] = True
        fb = FB + (i % DEPTH) * 20
        u0 = upos[c] * 8192
        w0, b0 = u0 >> 16, u0 & 0xffff
        if isd(c):
            for dt in range(4):
                for t in range(2):
                    a.lds(f"ds_read_b64_tr_b16 v[{fb+4*dt+2*t}:{fb+4*dt+2*t+1}], v{TRW+4*w0+dt} offset:{b0 + (32*s_ + 8*t)*128}", f"g{i}")
        else:
            for t in range(2):
                a.lds(f"ds_read_b64_tr_b16 v[{fb+16+2*t}:{fb+17+2*t}], v{TRZ+w0} offset:{b0 + (32*s_ + 8*t)*128}", f"g{i}")
            u1 = ((upos[c] + 1) % 16) * 8192
            w1, b1 = u1 >> 16, u1 & 0xffff
            for dt in range(4):
                a.lds(f"ds_read_b128 v[{fb+4*dt}:{fb+4*dt+3}], v{GFR+w1} offset:{b1 + (dt>>1)*4096 + s_*2048 + (dt&1)*256}", f"g{i}")
    def mfma(i, dt):
        c, s_ = i // 2, i % 2
        fb = FB + (i % DEPTH) * 20
        if isd(c):
            hb = HB + (i % NHB) * 4
            cin = "0" if i == 0 else f"v[{ACG+4*dt}:{ACG+4*dt+3}]"
            a(f"v_mfma_f32_16x16x32_bf16 v[{ACG+4*dt}:{ACG+4*dt+3}], v[{fb+4*dt}:{fb+4*dt+3}], v[{hb}:{hb+3}], {cin}")
        else:
            cin = "0" if i == 56 else f"v[{ACS+4*dt}:{ACS+4*dt+3}]"
            a(f"v_mfma_f32_16x16x32_bf16 v[{ACS+4*dt}:{ACS+4*dt+3}], v[{fb+4*dt}:{fb+4*dt+3}], v[{fb+16}:{fb+19}], {cin}")
    def silu():
        G_ = ACG; T_ = HB
        for p in range(8): a(f"v_cvt_pk_bf16_f32 v{T_+p}, v{G_+2*p}, v{G_+2*p+1}")
        yield
        for p in range(8):
            a(f"v_lshlrev_b32 v{G_+2*p}, 16, v{T_+p}")
            a(f"v_and_b32 v{G_+2*p+1}, s49, v{T_+p}")
            if p % 4 == 3: yield
        for p in range(16):
            a(f"v_mul_f32 v{T_+p}, 0xbfb8aa3b, v{G_+p}")
            if p % 8 == 7: yield
        for p in range(16):
            a(f"v_exp_f32 v{T_+p}, v{T_+p}")
            if p % 4 == 3: yield
        for p in range(16):
            a(f"v_add_f32 v{T_+p}, 1.0, v{T_+p}")
            if p % 8 == 7: yield
        for p in range(16):
            a(f"v_rcp_f32 v{T_+p}, v{T_+p}")
            if p % 4 == 3: yield
        for p in range(16):
            a(f"v_mul_f32 v{G_+p}, v{G_+p}, v{T_+p}")
            if p % 8 == 7: yield
        for p in range(8): a(f"v_cvt_pk_bf16_f32 v{T_+p}, v{G_+2*p}, v{G_+2*p+1}")
        yield
        for p in range(8):
            a(f"v_lshlrev_b32 v{G_+2*p}, 16, v{T_+p}")
            a(f"v_and_b32 v{G_+2*p+1}, s49, v{T_+p}")
            if p % 4 == 3: yield
    sl = silu()
    polled = False
    arrive(MPRE - 1, -1)
    check(1)
    for _ in range(HDIST): hload(hp[0]); hp[0] += 1
    early = []
    for k in range(DEPTH - 1): reads(k)
    for i in range(NST):
        c, s_ = i // 2, i % 2
        if early: arrive(early.pop(0), -1)
        if i + DEPTH - 1 < NST: reads(i + DEPTH - 1)
        a.wait_lds(f"g{i}")
        if isd(c): a.wait_vm(f"h{i}")
        if s_ == 1 and c < NCH - 1 and pubs[-1][0] < NCH - 1 and (c % 2 == 0 or c >= 24):
            arrive(c + LAG, c)
        for dt in range(4):
            mfma(i, dt)
            if dt in (0, 2):
                if pend:
                    pc, pu = pend[0]
                    need = ustart[pc] + (1 if pu < 2 else 2)
                    if need <= ulimit[0] and len(a.vm) < 56 and not (pc >= 28 and i < ZMIN):
                        if pend[0] == (28, 0):
                            a(f"""
                            v_mov_b32 v{PV+1}, {PW + 48}
                            s_cmp_eq_u32 s3, 4
                            s_cbranch_scc0 k23_zw
                            s_mov_b32 s27, 0
                            k23_spin:
                            buffer_load_dword v{PV}, v{VF}, s[40:43], s59 offen sc1
                            buffer_load_dword v{PV+1}, v{VF}, s[40:43], s59 offen offset:1024 sc1
                            buffer_load_dword v{PV+2}, v{VF}, s[40:43], s59 offen offset:2048 sc1
                            buffer_load_dword v{PV+3}, v{VF}, s[40:43], s59 offen offset:3072 sc1
                            s_waitcnt vmcnt(0)
                            v_xor_b32 v{PV}, s6, v{PV}
                            v_xor_b32 v{PV+1}, s6, v{PV+1}
                            v_xor_b32 v{PV+2}, s6, v{PV+2}
                            v_xor_b32 v{PV+3}, s6, v{PV+3}
                            v_or3_b32 v{PV}, v{PV}, v{PV+1}, v{PV+2}
                            v_or_b32 v{PV}, v{PV}, v{PV+3}
                            v_cmp_ne_u32 vcc, 0, v{PV}
                            s_cbranch_vccz k23_go
                            s_add_u32 s27, s27, 1
                            s_cmp_ge_u32 s27, 0x4000
                            s_cbranch_scc1 k23_go
                            s_sleep {ZSLEEP}
                            s_branch k23_spin
                            k23_go:
                            v_mov_b32 v{PV+1}, {PW + 48}
                            v_mov_b32 v{PV}, 1
                            ds_write_b32 v{PV+1}, v{PV}
                            k23_zw:
                            ds_read_b32 v{PV}, v{PV+1}
                            s_waitcnt lgkmcnt(0)
                            v_cmp_ne_u32 vcc, 1, v{PV}
                            s_cbranch_vccz k23_zgo
                            s_sleep 2
                            s_branch k23_zw
                            k23_zgo:
                            """)
                            a.lq = []
                            print("Z issue at step", i, file=sys.stderr)
                        dma_one(*pend.pop(0))
            if dt in (1, 3):
                if hp[0] < 56 and hp[0] - NHB < i and len(a.vm) < 56 and hp[0] <= i + HDIST:
                    hload(hp[0]); hp[0] += 1
            if i >= 58: next(sl, None)
        if i == 50:
            a.vmem(f"buffer_load_dwordx4 v[{XR}:{XR+3}], v{VO}, s[28:31], s23 offen", "x")
            a.vmem(f"buffer_load_dwordx4 v[{XR+4}:{XR+7}], v{VO}, s[28:31], s13 offen", "x")
    assert not pend and hp[0] == 56
    for _ in sl: a("s_nop 0")
    a("s_nop 7")
    O = HB + 16; SV = ACS; GV = ACG; Q = HB + 24
    for p in range(8):
        a(f"v_cvt_pk_bf16_f32 v{Q+p}, v{SV+2*p}, v{SV+2*p+1}")
    for p in range(8):
        a(f"v_lshlrev_b32 v{SV+2*p}, 16, v{Q+p}")
        a(f"v_and_b32 v{SV+2*p+1}, s49, v{Q+p}")
    for p in range(16):
        a(f"v_mul_f32 v{SV+p}, v{SV+p}, v{GV+p}")
    for p in range(8):
        a(f"v_cvt_pk_bf16_f32 v{O+p}, v{SV+2*p}, v{SV+2*p+1}")
    a(f"""
    v_lshrrev_b32 v5, 1, v4
    v_and_b32 v6, 7, v2
    v_xor_b32 v5, v5, v6
    v_and_b32 v7, 1, v4
    v_lshlrev_b32 v7, 3, v7
    v_lshl_add_u32 v7, v3, 7, v7
    s_lshl_b32 s26, s7, 11
    s_add_u32 s26, s26, {SB}
    v_add_u32 v7, s26, v7
    s_barrier
    """)
    for dt in range(4):
        a(f"v_xor_b32 v1, {2*dt}, v5")
        a(f"v_lshl_add_u32 v1, v1, 4, v7")
        a(f"ds_write_b64 v1, v[{O+2*dt}:{O+2*dt+1}]")
    a(f"""
    v_lshrrev_b32 v4, 3, v2
    v_xor_b32 v6, v6, v4
    v_lshlrev_b32 v6, 4, v6
    v_lshl_add_u32 v6, v4, 7, v6
    v_add_u32 v6, s26, v6
    s_waitcnt lgkmcnt(0)
    ds_read_b128 v[{Q}:{Q+3}], v6
    ds_read_b128 v[{Q+4}:{Q+7}], v6 offset:1024
    """)
    a.wait_vm_all()
    for p in range(8):
        a(f"v_lshlrev_b32 v{GV+2*p}, 16, v{XR+p}")
        a(f"v_and_b32 v{GV+2*p+1}, s49, v{XR+p}")
    a("s_waitcnt lgkmcnt(0)")
    for p in range(8):
        a(f"v_lshlrev_b32 v{SV+2*p}, 16, v{Q+p}")
        a(f"v_and_b32 v{SV+2*p+1}, s49, v{Q+p}")
    for p in range(16):
        a(f"v_add_f32 v{SV+p}, v{SV+p}, v{GV+p}")
    for p in range(8):
        a(f"v_cvt_pk_bf16_f32 v{O+p}, v{SV+2*p}, v{SV+2*p+1}")
    a(f"buffer_store_dwordx4 v[{O}:{O+3}], v{VO}, s[36:39], s23 offen {OSP}")
    a(f"buffer_store_dwordx4 v[{O+4}:{O+7}], v{VO}, s[36:39], s13 offen {OSP}")
    a.stamp()
    if STAMP: a("s_waitcnt vmcnt(0)")
    a.stamp()
    a.stamp_store(1)
    if DIAG:
        a(f"""
        s_waitcnt vmcnt(0)
        s_memrealtime s[98:99]
        s_load_dwordx2 s[60:61], s[0:1], 64
        s_waitcnt lgkmcnt(0)
        s_cmp_eq_u32 s3, 4
        s_cbranch_scc0 dg_skip
        s_and_b32 s26, s2, 63
        s_cmp_eq_u32 s26, 1
        s_cbranch_scc0 dg_skip
        s_lshr_b32 s26, s2, 6
        s_cmp_ge_u32 s26, 3
        s_cbranch_scc1 dg_skip
        s_lshl_b32 s26, s26, 4
        s_add_u32 s26, s26, 4
        s_mov_b32 s62, 256
        s_mov_b32 s63, 0x20000
        s_sub_u32 s92, s92, s100
        s_sub_u32 s94, s94, s100
        s_sub_u32 s96, s96, s100
        s_sub_u32 s98, s98, s100
        v_mov_b32 v0, 0
        v_mov_b32 v4, s92
        v_mov_b32 v5, s94
        v_mov_b32 v6, s96
        v_mov_b32 v7, s98
        buffer_store_dword v4, v0, s[60:63], s26 offen
        buffer_store_dword v5, v0, s[60:63], s26 offen offset:4
        buffer_store_dword v6, v0, s[60:63], s26 offen offset:8
        buffer_store_dword v7, v0, s[60:63], s26 offen offset:12
        dg_skip:
        """)
    a("s_endpgm")

    a.raw("k23_conv:")
    a.vm = []; a.lq = []; a.nst = 0; a.sb = 74; a.maxst = 0
    YR, YI, E1, T1, E2, WW, E3, T2, E4, WM = cYR, cYI, cE1, cT1, cE2, cWW, cE3, cT2, cE4, cWM
    D = 8; F = 24; N = 56; TMP = 64; PQ = 80; VL = 7
    for tg_ in ("y", "e1", "t1", "e2", "w", "e3", "t2", "e4"): a.issued.add(tg_)
    a(f"""
    s_barrier
    s_mov_b32 s13, s3
    s_lshl_b32 s60, s2, 13
    s_lshl_b32 s61, s13, 10
    s_add_u32 s60, s60, s61
    s_add_u32 s60, s60, {WS_Y}
    s_add_u32 s61, s60, 4096
    s_lshl_b32 s27, s13, 9
    v_lshlrev_b32 v1, 7, v4
    v_add3_u32 v1, v1, v3, s27
    s_movk_i32 s27, 144
    v_mul_lo_u32 v6, v3, s27
    v_add_u32 v6, {SB}, v6
    v_lshl_add_u32 v5, v4, 3, v6
    s_lshl_b32 s27, s13, 5
    v_add_u32 v5, s27, v5
    v_lshl_add_u32 v6, v4, 4, v6
    """)
    UB, XB, MB = 0, 9216, 18432
    PL = 4608
    def R(x): return f"v[{x}:{x+3}]"
    def fr(pl, t, st): return F + ((pl*2+t)*2+st)*4
    def cmul_tw(tw):
        for e in range(8):
            r = D + e; im = D + 8 + e; tq = tw + e
            t = TMP + 2*(e % 4)
            a(f"""
            v_fma_mix_f32 v{t}, v{im}, v{tq}, 0 op_sel:[0,1,0] op_sel_hi:[0,1,0]
            v_fma_mix_f32 v{t+1}, v{r}, v{tq}, 0 op_sel:[0,1,0] op_sel_hi:[0,1,0]
            """)
            if e % 4 == 3:
                for e2 in range(e-3, e+1):
                    r = D + e2; im = D + 8 + e2; tq = tw + e2
                    t = TMP + 2*(e2 % 4)
                    a(f"""
                    v_fma_mix_f32 v{r}, v{r}, v{tq}, -v{t} op_sel:[0,0,0] op_sel_hi:[0,1,0]
                    v_fma_mix_f32 v{im}, v{im}, v{tq}, v{t+1} op_sel:[0,0,0] op_sel_hi:[0,1,0]
                    """)
    def pack(cvt, dst):
        for e in range(8):
            a(f"{cvt} v{dst+e}, v{D+2*e}, v{D+2*e+1}")
    def lds_write(base, src):
        for pl in range(2):
            for t in range(2):
                a(f"ds_write_b64 v5, v[{src+pl*4+t*2}:{src+pl*4+t*2+1}] offset:{base + pl*PL + t*16*144}")
    def lds_read(base):
        for pl in range(2):
            for t in range(2):
                for st in range(2):
                    f_ = fr(pl, t, st)
                    a(f"ds_read_b128 v[{f_}:{f_+3}], v6 offset:{base + pl*PL + t*16*144 + st*64}")
    nbar = [0]
    CA, CL, CV = 112, 113, 114
    def bar(tag=""):
        nbar[0] += 1
        p = nbar[0]
        a(f"""
        v_mov_b32 v{CV}, {p}
        s_waitcnt lgkmcnt(0)
        ds_write_b32 v{CA}, v{CV}
        """)
        a(f"""
        k23_cs{p}{tag}:
        ds_read_b32 v{CV}, v{CL}
        s_waitcnt lgkmcnt(0)
        v_cmp_gt_u32 vcc, {p}, v{CV}
        s_cbranch_vccnz k23_cs{p}{tag}
        """)
        a.stamp()
    a(f"""
    s_setprio {CPRIO}
    s_lshl_b32 s27, s13, 2
    s_add_u32 s27, s27, {PW + 16}
    v_mov_b32 v{CA}, s27
    v_mov_b32 v{CV}, 0
    v_and_b32 v{CL}, 3, v2
    v_lshlrev_b32 v{CL}, 2, v{CL}
    v_add_u32 v{CL}, {PW + 16}, v{CL}
    """)
    a.wait_vm("e1")
    for r in range(4):
        a(f"v_xor_b32 v{N+r}, s48, v{YI+r}")
    a("s_nop 1")
    for t in range(2):
        er = E1 + 4*t; ei = E1 + 8 + 4*t
        a(f"v_mfma_f32_16x16x32_f16 {R(D+4*t)}, {R(YR)}, {R(er)}, 0")
        a(f"v_mfma_f32_16x16x32_f16 {R(D+8+4*t)}, {R(YR)}, {R(ei)}, 0")
    for t in range(2):
        er = E1 + 4*t; ei = E1 + 8 + 4*t
        a(f"v_mfma_f32_16x16x32_f16 {R(D+4*t)}, {R(N)}, {R(ei)}, {R(D+4*t)}")
        a(f"v_mfma_f32_16x16x32_f16 {R(D+8+4*t)}, {R(YI)}, {R(er)}, {R(D+8+4*t)}")
    a.wait_vm("t1")
    a("s_nop 7")
    cmul_tw(T1)
    pack("v_cvt_pk_f16_f32", TMP + 8)
    lds_write(UB, TMP + 8)
    bar()
    lds_read(UB)
    a.wait_vm("e2")
    for r in range(8):
        a(f"v_xor_b32 v{N+r}, s48, v{E2+8+r}")
    a("s_waitcnt lgkmcnt(0)")
    for st in range(2):
        for t in range(2):
            cr = "0" if st == 0 else R(D+4*t); ci = "0" if st == 0 else R(D+8+4*t)
            a(f"v_mfma_f32_16x16x32_f16 {R(D+4*t)}, {R(E2+4*st)}, {R(fr(0,t,st))}, {cr}")
            a(f"v_mfma_f32_16x16x32_f16 {R(D+8+4*t)}, {R(E2+8+4*st)}, {R(fr(0,t,st))}, {ci}")
        for t in range(2):
            a(f"v_mfma_f32_16x16x32_f16 {R(D+4*t)}, {R(N+4*st)}, {R(fr(1,t,st))}, {R(D+4*t)}")
            a(f"v_mfma_f32_16x16x32_f16 {R(D+8+4*t)}, {R(E2+4*st)}, {R(fr(1,t,st))}, {R(D+8+4*t)}")
    a("""
    s_cmp_eq_u32 s2, 0
    s_cbranch_scc1 k2_special
    """)
    vm_keep = list(a.vm)
    a.wait_vm("w")
    a("s_nop 7")
    for e in range(8):
        r = D + e; im = D + 8 + e
        t = TMP + 4*(e % 2)
        a(f"""
        v_lshlrev_b32 v{t+2}, 16, v{WW+e}
        v_and_b32 v{t+3}, s49, v{WW+e}
        v_mul_f32 v{t}, v{im}, v{t+3}
        v_mul_f32 v{t+1}, v{r}, v{t+3}
        v_fma_f32 v{r}, v{r}, v{t+2}, -v{t}
        v_fma_f32 v{im}, v{im}, v{t+2}, v{t+1}
        """)
    a("s_branch k2_join")
    a.raw("k2_special:")
    a.vm = vm_keep
    a.wait_vm("w")
    TA_ = cE1
    for e in range(8):
        q = PQ + 4*e; t = TA_ + 4*e
        a(f"""
        v_lshlrev_b32 v{q}, 16, v{WW+e}
        v_and_b32 v{q+1}, s49, v{WW+e}
        v_lshlrev_b32 v{q+2}, 16, v{WM+e}
        v_and_b32 v{q+3}, s49, v{WM+e}
        v_lshlrev_b32 v{t}, 16, v{WW+8+e}
        v_and_b32 v{t+1}, s49, v{WW+8+e}
        v_lshlrev_b32 v{t+2}, 16, v{WM+8+e}
        v_and_b32 v{t+3}, s49, v{WM+8+e}
        """)
    for e in range(8):
        q = PQ + 4*e; t = TA_ + 4*e
        a(f"""
        v_add_f32 v{q}, v{q}, v{q+2}
        v_sub_f32 v{q+1}, v{q+1}, v{q+3}
        v_add_f32 v{t}, v{t}, v{t+2}
        v_sub_f32 v{t+1}, v{t+1}, v{t+3}
        """)
    for e in range(8):
        q = PQ + 4*e; t = TA_ + 4*e
        a(f"""
        v_sub_f32 v{q+2}, v{q}, v{t}
        v_sub_f32 v{q+3}, v{q+1}, v{t+1}
        v_add_f32 v{q}, v{q}, v{t}
        v_add_f32 v{q+1}, v{q+1}, v{t+1}
        """)
    for e in range(32):
        a(f"v_mul_f32 v{PQ+e}, 0x3e800000, v{PQ+e}")
    for e in range(8):
        t, i = e // 4, e % 4
        q = TMP + 2*(e % 2)
        a(f"""
        v_cvt_pk_f16_f32 v{q}, v{D+e}, v{D+8+e}
        v_add_u32 v{q+1}, {32*i+16*t+(SB+MB)//4}, v1
        v_lshlrev_b32 v{q+1}, 2, v{q+1}
        ds_write_b32 v{q+1}, v{q}
        """)
    for e in range(8):
        r = D + e; q = PQ + 4*e; t = F + 8 + 2*e
        a(f"v_mul_f32 v{t}, v{r}, v{q}")
        a(f"v_mul_f32 v{t+1}, v{r}, v{q+1}")
    for e in range(8):
        im = D + 8 + e; q = PQ + 4*e; t = F + 8 + 2*e
        a(f"v_fma_f32 v{t}, -v{im}, v{q+1}, v{t}")
        a(f"v_fma_f32 v{t+1}, v{im}, v{q}, v{t+1}")
    nst_keep = a.nst
    bar("s")
    a.nst = nst_keep
    for e in range(8):
        t, i = e // 4, e % 4
        a(f"""
        v_add_u32 v{TMP+4}, {32*i+16*t}, v1
        v_sub_u32 v{TMP+4}, 2048, v{TMP+4}
        v_and_b32 v{TMP+4}, 2047, v{TMP+4}
        v_lshlrev_b32 v{TMP+4}, 2, v{TMP+4}
        v_add_u32 v{TMP+4}, {SB+MB}, v{TMP+4}
        ds_read_b32 v{F+e}, v{TMP+4}
        """)
    a("s_waitcnt lgkmcnt(0)")
    for e in range(8):
        xm = F + e; q = PQ + 4*e; t = F + 8 + 2*e
        a(f"""
        v_fma_mix_f32 v{t}, v{q+2}, v{xm}, v{t} op_sel:[0,0,0] op_sel_hi:[0,1,0]
        v_fma_mix_f32 v{t+1}, v{q+3}, v{xm}, v{t+1} op_sel:[0,0,0] op_sel_hi:[0,1,0]
        """)
    for e in range(8):
        r = D + e; im = D + 8 + e
        xm = F + e; q = PQ + 4*e; t = F + 8 + 2*e
        a(f"""
        v_fma_mix_f32 v{r}, v{q+3}, v{xm}, v{t} op_sel:[0,1,0] op_sel_hi:[0,1,0]
        v_fma_mix_f32 v{im}, -v{q+2}, v{xm}, v{t+1} op_sel:[0,1,0] op_sel_hi:[0,1,0]
        """)
    a.raw("k2_join:")
    a.stamp()
    pack("v_cvt_pk_bf16_f32", TMP + 8)
    lds_write(XB, TMP + 8)
    bar()
    lds_read(XB)
    a.wait_vm("e3")
    for r in range(8):
        a(f"v_xor_b32 v{N+r}, s48, v{E3+8+r}")
    a("s_waitcnt lgkmcnt(0)")
    for st in range(2):
        for t in range(2):
            cr = "0" if st == 0 else R(D+4*t); ci = "0" if st == 0 else R(D+8+4*t)
            a(f"v_mfma_f32_16x16x32_bf16 {R(D+4*t)}, {R(fr(0,t,st))}, {R(E3+4*st)}, {cr}")
            a(f"v_mfma_f32_16x16x32_bf16 {R(D+8+4*t)}, {R(fr(0,t,st))}, {R(E3+8+4*st)}, {ci}")
        for t in range(2):
            a(f"v_mfma_f32_16x16x32_bf16 {R(D+4*t)}, {R(fr(1,t,st))}, {R(N+4*st)}, {R(D+4*t)}")
            a(f"v_mfma_f32_16x16x32_bf16 {R(D+8+4*t)}, {R(fr(1,t,st))}, {R(E3+4*st)}, {R(D+8+4*t)}")
    a.wait_vm("t2")
    a("s_nop 7")
    cmul_tw(T2)
    pack("v_cvt_pk_bf16_f32", TMP + 8)
    VR, VI = TMP + 8, TMP + 12
    for r in range(4):
        a(f"v_xor_b32 v{N+r}, s48, v{VI+r}")
    a.wait_vm("e4")
    a("s_nop 1")
    for tp in range(2):
        a(f"v_mfma_f32_16x16x32_bf16 {R(D+4*tp)}, {R(E4+4*tp)}, {R(VR)}, 0")
        a(f"v_mfma_f32_16x16x32_bf16 {R(D+8+4*tp)}, {R(E4+8+4*tp)}, {R(VR)}, 0")
    for tp in range(2):
        a(f"v_mfma_f32_16x16x32_bf16 {R(D+4*tp)}, {R(E4+8+4*tp)}, {R(N)}, {R(D+4*tp)}")
        a(f"v_mfma_f32_16x16x32_bf16 {R(D+8+4*tp)}, {R(E4+4*tp)}, {R(VI)}, {R(D+8+4*tp)}")
    a(f"""
    v_lshlrev_b32 v5, 6, v3
    v_and_b32 v1, 1, v4
    v_lshl_add_u32 v5, v1, 5, v5
    v_lshrrev_b32 v1, 1, v4
    v_lshl_add_u32 v5, v1, 4, v5
    s_add_u32 s60, s60, {WS_Z - WS_Y}
    s_add_u32 s61, s61, {WS_Z - WS_Y}
    s_nop 3
    """)
    pack("v_cvt_pk_bf16_f32", TMP + 8)
    a("s_nop 1")
    for pl in range(2):
        b = TMP + 8 + pl*4
        a(f"v_permlane16_swap_b32 v{b}, v{b+2}")
        a(f"v_permlane16_swap_b32 v{b+1}, v{b+3}")
    for pl in range(2):
        b = TMP + 8 + pl*4
        a.vmem(f"buffer_store_dwordx4 v[{b}:{b+3}], v5, s[40:43], s{60+pl} offen sc1", "z")
    a.stamp()
    a.wait_vm_all()
    bar()
    a(f"""
    s_cmp_eq_u32 s13, 0
    s_cbranch_scc0 k23_nosig
    s_lshl_b32 s26, s2, 4
    s_add_u32 s26, s26, {WS_FL}
    v_mov_b32 v1, s6
    v_mov_b32 v7, 0
    s_mov_b64 exec, 1
    buffer_store_dword v1, v7, s[40:43], s26 offen sc1
    s_mov_b64 exec, -1
    k23_nosig:
    """)
    a.raw("k23_end:")
    a("s_endpgm")
    return a.text()

def tables_asm():
    o = []
    j = np.arange(512)
    c1 = bf16(np.cos(2*np.pi*j/512) / 16); c2 = bf16(np.cos(2*np.pi*j/512) / 8)
    c1[np.abs(np.cos(2*np.pi*j/512)) < 1e-9] = 0; c2[np.abs(np.cos(2*np.pi*j/512)) < 1e-9] = 0
    for i in range(512):
        o.append(f".set CA{i}, 0x{c1[i]:04x}")
        o.append(f".set CB{i}, 0x{c2[i]:04x}")
    o.append(".altmacro")
    o.append(""".macro f8 a,b,c,d,e,f,g,h
.short CA\\a, CA\\b, CA\\c, CA\\d, CA\\e, CA\\f, CA\\g, CA\\h
.endm
.macro g8 a,b,c,d,e,f,g,h
.short CB\\a, CB\\b, CB\\c, CB\\d, CB\\e, CB\\f, CB\\g, CB\\h
.endm
.macro g8s a,b,c,d,e,f,g,h
.short CA\\a, CA\\b, CB\\c, CB\\d, CB\\e, CB\\f, CB\\g, CB\\h
.endm
.macro flane k, o, d
f8 %((\\d*\\k+\\o)&511), %(((\\d+1)*\\k+\\o)&511), %(((\\d+2)*\\k+\\o)&511), %(((\\d+3)*\\k+\\o)&511), %(((\\d+4)*\\k+\\o)&511), %(((\\d+5)*\\k+\\o)&511), %(((\\d+6)*\\k+\\o)&511), %(((\\d+7)*\\k+\\o)&511)
.endm
.macro fhalf n0, d
.set nn, \\n0
.rept 32
flane %((nn>>1)-256*(nn==1)), %(128*(nn&1)*(1+(nn==1))), \\d
.set nn, nn+1
.endr
.endm
.macro ftile n0
.set dd, 0
.rept 64
fhalf \\n0, %dd
.set dd, dd+8
.endr
.endm
.section .rodata,"a"
.p2align 8
tab_F:
.set tt, 0
.rept 16
ftile %(32*tt)
.set tt, tt+1
.endr
""")
    o.append(""".macro glane d, k
g8 %((\\d*\\k)&511), %((\\d*\\k+128)&511), %((\\d*(\\k+1))&511), %((\\d*(\\k+1)+128)&511), %((\\d*(\\k+4))&511), %((\\d*(\\k+4)+128)&511), %((\\d*(\\k+5))&511), %((\\d*(\\k+5)+128)&511)
.endm
.macro glane0 d
g8s 0, %((\\d*256)&511), %((\\d*1)&511), %((\\d+128)&511), %((\\d*4)&511), %((\\d*4+128)&511), %((\\d*5)&511), %((\\d*5+128)&511)
.endm
.macro ghalf d0, k
.set ll, 0
.rept 32
glane %(\\d0+ll), \\k
.set ll, ll+1
.endr
.endm
.macro ghalf0 d0
.set ll, 0
.rept 32
glane0 %(\\d0+ll)
.set ll, ll+1
.endr
.endm
.macro gtile d0
ghalf0 \\d0
ghalf \\d0, 2
.set gg, 1
.rept 31
ghalf \\d0, %(8*gg)
ghalf \\d0, %(8*gg+2)
.set gg, gg+1
.endr
.endm
.p2align 8
tab_G:
.set tt, 0
.rept 16
gtile %(32*tt)
.set tt, tt+1
.endr
.noaltmacro
.p2align 8
tab_S:
""")
    st = small_tables().view(np.uint64)
    for i in range(0, len(st), 8):
        o.append(".quad " + ",".join(f"0x{v:x}" for v in st[i:i+8]))
    return "\n".join(o) + "\n"

if MERGE:
    hdr = f"""; fused LN + GFNet spectral filter + ReGLU, single persistent launch (256 co-resident workgroups)
; @launch grid=(256,1,1) block=(512,1,1) lds=163840
.amdgcn_target "amdgcn-amd-amdhsa--gfx950"
.text
.globl {KNAME}
.type {KNAME},@function
"""
    src = hdr + gen_k1() + gen_k23_main() + "code_end:\n" + tables_asm()
    src += '.section .rodata,"a"\n.p2align 6\n' + kd(KNAME, 256)
else:
    hdr = """; fused LN + GFNet spectral filter + ReGLU, 2 launches
; @launch kernel=k1_kernel grid=(256,1,1) block=(512,1,1) lds=163840
; @launch kernel=k23_kernel grid=(256,1,1) block=(512,1,1) lds=163840
.amdgcn_target "amdgcn-amd-amdhsa--gfx950"
.text
.globl k1_kernel
.type k1_kernel,@function
.globl k23_kernel
.type k23_kernel,@function
"""
    src = hdr + gen_k1() + gen_k23_main() + "code_end:\n" + tables_asm()
    src += '.section .rodata,"a"\n.p2align 6\n' + kd("k1_kernel", 256) + ".p2align 6\n" + kd("k23_kernel", 256)
open(OUT, "w").write(src)
print("wrote", OUT, len(src))
```

```python
import numpy as np, sys, math

OUT = sys.argv[1] if len(sys.argv) > 1 else "recurrent_scan__spectral_gfnet__glu_gated_reglu__prompt.s"

WS_H = 0
WS_Y = 8 << 20
WS_Z = 10 << 20
WS_W = 12 << 20
WS_SIZE = 268435456
WS_FL = 15 << 20

def bf16(x):
    u = np.asarray(x, np.float32).view(np.uint32).astype(np.uint64)
    r = ((u + 0x7fff + ((u >> 16) & 1)) >> 16).astype(np.uint16)
    return r
def f16(x):
    return np.asarray(x, np.float64).astype(np.float16).view(np.uint16)

import os
STAMP = os.environ.get("STAMP", "0") == "1"
MERGE = os.environ.get('MERGE','1') == '1'
DIAG = os.environ.get('DIAG','0') == '1'
LK = '' if os.environ.get('PLAIN','0')=='1' else 'kernel=recurrent_scan__spectral_gfnet__glu_gated_reglu__prompt_kernel '
KNAME = 'recurrent_scan__spectral_gfnet__glu_gated_reglu__prompt_kernel'
WS_ST = 16 << 20
class Asm:
    def __init__(self):
        self.lines = []
        self.vm = []
        self.nst = 0
        self.issued = set()
        self.lq = []
        self.sb = 74
        self.maxst = 14
    def stamp(self):
        if not STAMP or self.nst >= self.maxst: return
        self(f"s_memtime s[{self.sb+2*self.nst}:{self.sb+1+2*self.nst}]")
        self("s_waitcnt lgkmcnt(0)")
        self.lq = []
        self.nst += 1
    def stamp_store(self, kidx, wavereg="s3"):
        if not STAMP: return
        self("s_waitcnt lgkmcnt(0)")
        self(f"s_lshl_b32 s62, s2, 4")
        self(f"s_add_u32 s62, s62, {wavereg}")
        self(f"s_lshl_b32 s62, s62, 7")
        self(f"s_add_u32 s62, s62, {WS_ST + kidx*(1<<20)}")
        self("v_mov_b32 v0, 0")
        for i in range(self.nst):
            self(f"v_mov_b32 v1, s{self.sb+2*i}")
            self(f"buffer_store_dword v1, v0, s[40:43], s62 offen offset:{4*i}")
    def __call__(self, s):
        for ln in s.strip("\n").split("\n"):
            self.lines.append("  " + ln.strip() if not ln.strip().endswith(":") else ln.strip())
    def raw(self, s):
        self.lines.append(s)
    def vmem(self, s, tag):
        self(s); self.vm.append(tag); self.issued.add(tag)
        assert len(self.vm) <= 63, "vmcnt overflow"
    def wait_vm(self, tag):
        assert tag in self.issued, tag
        if tag not in self.vm: return
        idx = max(i for i, t in enumerate(self.vm) if t == tag)
        n = len(self.vm) - 1 - idx
        self(f"s_waitcnt vmcnt({n})")
        self.vm = self.vm[idx + 1:]
    def lds(self, s, tag):
        self(s); self.lq.append(tag)
    def wait_lds(self, tag):
        if tag not in self.lq: return
        idx = max(i for i, t in enumerate(self.lq) if t == tag)
        n = min(len(self.lq) - 1 - idx, 15)
        self(f"s_waitcnt lgkmcnt({n})")
        self.lq = self.lq[len(self.lq) - n:] if n else []
    def wait_lds_all(self):
        self("s_waitcnt lgkmcnt(0)"); self.lq = []
    def wait_vm_all(self):
        self("s_waitcnt vmcnt(0)"); self.vm = []
    def text(self):
        return "\n".join(self.lines) + "\n"

def srd(a, s, lo, hi, nbytes):
    a(f"s_mov_b32 s{s}, {lo}")
    a(f"s_mov_b32 s{s+1}, {hi}")
    a(f"s_mov_b32 s{s+2}, {nbytes}")
    a(f"s_mov_b32 s{s+3}, 0x20000")

def getpc_tab(a, s, sym):
    a(f"s_getpc_b64 s[{s}:{s+1}]")
    a(f"s_add_u32 s{s}, s{s}, {sym}@rel32@lo+4")
    a(f"s_addc_u32 s{s+1}, s{s+1}, {sym}@rel32@hi+12")

def kd(name, vgpr, sgpr=102):
    acc = min((vgpr + 3) // 4 * 4, 256)
    return f""".amdhsa_kernel {name}
  .amdhsa_next_free_vgpr {vgpr}
  .amdhsa_next_free_sgpr {sgpr}
  .amdhsa_accum_offset {acc}
  .amdhsa_group_segment_fixed_size 0
  .amdhsa_kernarg_size 80
  .amdhsa_user_sgpr_count 2
  .amdhsa_user_sgpr_kernarg_segment_ptr 1
  .amdhsa_system_sgpr_workgroup_id_x 1
.end_amdhsa_kernel
"""

K1_NS = 5
PREF = os.environ.get('PREF','1') == '1'
K1_PRE = int(os.environ.get('K1_PRE','2'))
K1_PRE2 = int(os.environ.get('K1_PRE2','2'))
P1BAR = int(os.environ.get('P1BAR','7'))
CODEPF = int(os.environ.get('CODEPF','5'))
PFS = int(os.environ.get('PFS','16'))
BWARM = int(os.environ.get('BWARM','0'))
SHARE = os.environ.get('SHARE','1') == '1'
STP = os.environ.get('STP','sc1')
OSP = os.environ.get('OSP','sc1')
BNREV = os.environ.get('BNREV','1') == '1'
X_NOP2 = os.environ.get('X_NOP2','0')=='1'
X_NODMA = os.environ.get('X_NODMA','0')=='1'
X_NOBAR = os.environ.get('X_NOBAR','0')=='1'
cE1, cT1, cE2, cE3, cT2, cE4, cYR, cYI, cWW, cWM = 128, 144, 152, 168, 184, 192, 208, 212, 216, 232
def gen_k1():
    a = Asm()
    A0 = 128; ACC = 64; BF = 32
    PT = 24; TR = 16; PFD = 12
    VD, VFL, VD2, VNM, VRI, VPF, VPG, VFA = 1, 3, 4, 7, 8, 9, 10, 11
    a.raw(".p2align 8\n" + KNAME + ":\nk1_kernel:")
    a("""
    s_cmp_ge_u32 s2, 256
    s_cbranch_scc1 k1_end
    s_load_dwordx2 s[4:5], s[0:1], 0
    s_load_dwordx4 s[8:11], s[0:1], 8
    s_load_dwordx4 s[12:15], s[0:1], 32
    s_load_dwordx2 s[6:7], s[0:1], 72
    s_load_dwordx2 s[60:61], s[0:1], 48
    s_load_dwordx2 s[68:69], s[0:1], 64
    s_memrealtime s[70:71]
    v_lshrrev_b32 v1, 6, v0
    v_and_b32 v2, 63, v0
    s_nop 0
    v_readfirstlane_b32 s3, v1
    """)
    a(f"""
    s_and_b32 s16, s2, 7
    s_lshr_b32 s17, s2, 3
    s_and_b32 s18, s16, 1
    s_lshl_b32 s18, s18, 3
    s_and_b32 s58, s17, 7
    s_add_u32 s18, s18, s58
    s_lshr_b32 s19, s16, 1
    s_lshl_b32 s19, s19, 2
    s_lshr_b32 s20, s17, 3
    s_add_u32 s19, s19, s20
    s_lshl_b32 s59, s20, 2
    s_and_b32 s20, s3, 3
    s_lshr_b32 s21, s3, 2
    s_lshl_b32 s22, s18, 2
    s_add_u32 s22, s22, s20
    v_lshlrev_b32 v{VPF}, 4, v2
    """)
    getpc_tab(a, 64, "k1_kernel")
    a(f"""
    s_mov_b32 s66, code_end-k1_kernel
    s_mov_b32 s67, 0x20000
    s_lshl_b32 s57, s17, 1
    s_add_u32 s57, s57, s3
    s_lshl_b32 s57, s57, 10
    s_cmp_lt_u32 s3, 2
    s_cselect_b32 s57, s57, 0x7f000000
    """)
    a.vmem(f"buffer_load_dwordx4 v[{PFD}:{PFD+3}], v{VPF}, s[64:67], s57 offen", "cpf")
    getpc_tab(a, 24, "tab_F")
    a("""
    s_mov_b32 s26, 524288
    s_mov_b32 s27, 0x20000
    s_lshl_b32 s50, s21, 4
    s_lshl_b32 s51, s50, 6
    s_add_u32 s51, s51, s22
    s_lshl_b32 s51, s51, 10
    s_lshl_b32 s52, s20, 5
    s_add_u32 s52, s52, s50
    s_lshl_b32 s52, s52, 10
    s_lshl_b32 s53, s58, 3
    v_xor_b32 v3, s53, v2
    s_waitcnt lgkmcnt(0)
    """)
    a.stamp()
    srd(a, 28, "s4", "s5", 2048*1024)
    for u in range(16):
        a(f"""
        s_xor_b32 s54, s59, {u}
        v_xor_b32 v4, s54, v3
        v_lshlrev_b32 v4, 4, v4
        s_lshl_b32 s55, s54, 10
        s_add_u32 m0, s52, s55
        s_lshl_b32 s55, s54, 16
        s_add_u32 s53, s51, s55
        """)
        a.vmem("buffer_load_dwordx4 v4, s[28:31], s53 offen lds", "x")
    RR = 131072
    a(f"""
    s_xor_b32 s54, s3, s58
    s_lshl_b32 s54, s54, 12
    s_lshl_b32 s55, s19, 15
    s_add_u32 s54, s54, s55
    s_lshl_b32 s55, s3, 12
    s_add_u32 m0, s55, {RR}
    s_nop 0
    """)
    for u in range(4):
        a.vmem(f"buffer_load_dwordx4 v{VPF}, s[24:27], s54 offen offset:{u*1024} lds", "x")
    srd(a, 32, "s8", "s9", 2048*514)
    srd(a, 36, "s10", "s11", 2048*514)
    WL = ACC + 32
    a(f"""
    s_lshr_b32 s62, s2, 2
    s_lshl_b32 s62, s62, 2
    s_lshr_b32 s63, s3, 1
    s_add_u32 s62, s62, s63
    s_lshr_b32 s63, s62, 4
    s_lshl_b32 s63, s63, 7
    s_and_b32 s62, s62, 15
    s_add_u32 s63, s63, s62
    s_and_b32 s62, s3, 1
    s_lshl_b32 s62, s62, 4
    s_add_u32 s63, s63, s62
    s_mul_i32 s63, s63, 514
    s_and_b32 s62, s2, 3
    s_lshl_b32 s62, s62, 7
    s_add_u32 s63, s63, s62
    v_lshlrev_b32 v5, 1, v2
    """)
    for i in range(4):
        if i: a(f"s_add_u32 s63, s63, {32*514}")
        a.vmem(f"buffer_load_ushort v{WL+i}, v5, s[32:35], s63 offen", "w")
        a.vmem(f"buffer_load_ushort v{WL+4+i}, v5, s[36:39], s63 offen", "w")
    a(f"""
    v_mov_b32 v{WL+10}, 0x7fffff00
    s_cmp_eq_u32 s3, 7
    s_cbranch_scc0 k1_nosp1
    s_lshr_b32 s62, s2, 4
    s_lshl_b32 s62, s62, 7
    s_and_b32 s63, s2, 15
    s_add_u32 s62, s62, s63
    v_and_b32 v4, 3, v2
    v_lshlrev_b32 v4, 5, v4
    v_and_b32 v5, 4, v2
    v_lshl_add_u32 v4, v5, 2, v4
    v_add_u32 v4, s62, v4
    s_movk_i32 s63, 514
    v_mul_lo_u32 v5, v4, s63
    v_lshrrev_b32 v6, 3, v2
    v_cmp_eq_u32 vcc, 1, v6
    v_add_u32 v30, 512, v5
    s_nop 0
    v_cndmask_b32 v5, v30, v5, vcc
    v_mov_b32 v30, 0x7fffff00
    v_cmp_gt_u32 vcc, 24, v2
    s_nop 1
    v_cndmask_b32 v5, v30, v5, vcc
    buffer_load_ushort v{WL+8}, v5, s[32:35], 0 offen
    buffer_load_ushort v{WL+9}, v5, s[36:39], 0 offen
    v_sub_u32 v5, 2048, v4
    v_and_b32 v5, 2047, v5
    v_cmp_eq_u32 s[62:63], 0, v6
    s_nop 1
    v_cndmask_b32 v4, v5, v4, s[62:63]
    v_lshrrev_b32 v5, 7, v4
    v_lshlrev_b32 v5, 9, v5
    v_and_b32 v31, 15, v4
    v_lshl_add_u32 v5, v31, 5, v5
    v_and_b32 v31, 16, v4
    v_add_u32 v5, v5, v31
    v_bfe_u32 v31, v4, 5, 2
    v_lshl_add_u32 v5, v31, 2, v5
    v_lshl_add_u32 v5, v6, 13, v5
    v_add_u32 v5, {WS_W + 256*8192}, v5
    v_cndmask_b32 v{WL+10}, v30, v5, vcc
    k1_nosp1:
    """)
    srd(a, 40, "s6", "s7", WS_SIZE)
    CS = ACC + 48
    getpc_tab(a, 32, "tab_G")
    a(f"""
    s_mov_b32 s34, {524288 + TSZ}
    s_lshl_b32 s62, s19, 7
    s_lshl_b32 s63, s21, 6
    s_add_u32 s62, s62, s63
    s_add_u32 s62, s62, {524288 + TCS}
    v_lshrrev_b32 v5, 5, v2
    v_lshlrev_b32 v5, 4, v5
    """)
    a.vmem(f"buffer_load_dwordx4 v[{CS}:{CS+3}], v5, s[32:35], s62 offen", "cs")
    a.vmem(f"buffer_load_dwordx4 v[{CS+4}:{CS+7}], v5, s[32:35], s62 offen offset:32", "cs")
    a(f"""
    s_and_b32 s23, s3, 1
    s_cmp_eq_u32 s23, 0
    s_cselect_b32 s44, s12, s14
    s_cselect_b32 s45, s13, s15
    s_mov_b32 s46, 1835008
    s_mov_b32 s47, 0x20000
    s_movk_i32 s48, 3584
    s_mul_i32 s49, s19, 224
    v_lshrrev_b32 v8, 4, v2
    v_and_b32 v6, 15, v2
    v_lshrrev_b32 v6, 1, v6
    v_lshlrev_b32 v10, 1, v8
    v_xor_b32 v6, v6, v10
    v_xor_b32 v6, s23, v6
    v_lshlrev_b32 v6, 5, v6
    v_and_b32 v10, 1, v2
    v_lshlrev_b32 v10, 4, v10
    v_add_u32 v6, v6, v10
    v_mul_lo_u32 v8, v8, s48
    v_add_u32 v6, v6, v8
    v_add_u32 v{VD}, s49, v6
    s_lshr_b32 s50, s3, 1
    s_lshl_b32 s50, s50, 3
    s_mul_i32 s52, s50, s48
    s_lshl_b32 s53, s50, 8
    s_lshl_b32 s54, s23, 13
    s_add_u32 s53, s53, s54
    s_lshl_b32 s54, s48, 2
    s_lshl_b32 s55, s48, 5
    s_lshl_b32 s58, s58, 1
    v_add_u32 v{VD}, s52, v{VD}
    v_add_u32 v{VD2}, s54, v{VD}
    """)
    RING = [0, 1, 2, 3, 6, 7, 8] if SHARE else [0, 1, 2, 3, 6, 7, 8, 9]
    NRG = len(RING)
    SPARE = 65536
    YT = SPARE + 512
    def dma_one(c, u):
        if u == 0:
            a(f"s_xor_b32 s56, s58, {c}")
        a(f"s_add_u32 m0, s53, {RING[c % NRG]*16384 + u*1024}")
        if u == 0: a("s_mul_i32 s56, s56, s55")
        else: a("s_nop 0")
        a.vmem(f"buffer_load_dwordx4 v{VD if u == 0 else VD2}, s[44:47], s56 offen lds", f"c{c}")
    a(f"""
    v_lshrrev_b32 v10, 4, v2
    v_and_b32 v6, 15, v2
    v_lshrrev_b32 v31, 2, v6
    v_and_b32 v6, 3, v6
    v_lshrrev_b32 v30, 1, v10
    v_lshlrev_b32 v30, 3, v30
    v_add_u32 v30, v30, v31
    v_lshlrev_b32 v30, 8, v30
    v_lshl_add_u32 v30, v6, 3, v30
    v_and_b32 v10, 1, v10
    v_lshl_add_u32 v30, v10, 13, v30
    v_lshlrev_b32 v31, 1, v31
    v_xor_b32 v31, v31, v10
    s_mul_i32 s57, s21, 3
    """)
    for k in range(4):
        a(f"""
        v_xor_b32 v10, s57, v31
        v_lshl_add_u32 v{TR+k}, v10, 5, v30
        v_add_u32 v{TR+4+k}, 98304, v{TR+k}
        s_add_u32 s57, s57, 1
        """)
    a(f"""
    v_and_b32 v10, 31, v2
    v_lshrrev_b32 v6, 5, v2
    v_and_b32 v31, 15, v2
    v_xor_b32 v6, v6, v31
    s_lshl_b32 s57, s20, 15
    v_lshlrev_b32 v10, 10, v10
    v_add_u32 v10, s57, v10
    """)
    for tt in range(8):
        a(f"v_xor_b32 v31, {2*tt}, v6")
        a(f"v_lshl_add_u32 v{ACC+16+tt}, v31, 4, v10")
    a(f"""
    s_mov_b32 s26, 0x3f803f80
    s_mov_b32 s27, 0xffff0000
    v_mov_b32 v24, 0
    v_mov_b32 v25, 0
    v_mov_b32 v26, 0
    v_mov_b32 v27, 0
    s_lshl_b32 s57, s21, 6
    s_lshl_b32 s62, s21, 14
    s_add_u32 s62, s62, {RR}
    v_add_u32 v5, s62, v{VPF}
    """)
    for c in range(BWARM):
        a(f"s_xor_b32 s56, s58, {c}")
        a("s_mul_i32 s56, s56, s55")
        a.vmem(f"buffer_load_dwordx4 v[{PFD}:{PFD+3}], v{VD}, s[44:47], s56 offen", "bw")
        a.vmem(f"buffer_load_dwordx4 v[{PFD}:{PFD+3}], v{VD2}, s[44:47], s56 offen", "bw")
    a.stamp()
    a.wait_vm("x")
    a("s_barrier")
    a.stamp()
    for t in range(32):
        a(f"ds_read_b128 v[{A0+4*t}:{A0+4*t+3}], v{ACC + 16 + t%8} offset:{(t//8)*256}")
    a.wait_vm("w")
    for i in range(4):
        a(f"v_lshl_or_b32 v{WL+12+i}, v{WL+4+i}, 16, v{WL+i}")
    a(f"""
    s_cmp_eq_u32 s3, 7
    s_cbranch_scc0 k1_nosp2
    v_lshl_or_b32 v{WL+8}, v{WL+9}, 16, v{WL+8}
    buffer_store_dword v{WL+8}, v{WL+10}, s[40:43], 0 offen sc1
    v_mov_b32 v30, 0
    v_mov_b32 v31, 0x7fffff00
    v_cmp_eq_u32 vcc, 0, v2
    s_lshl_b32 s51, s2, 4
    s_add_u32 s51, s51, {WS_FL}
    v_cndmask_b32 v31, v31, v30, vcc
    buffer_store_dword v30, v31, s[40:43], s51 offen sc1
    s_add_u32 s51, s51, 8192
    buffer_store_dword v30, v31, s[40:43], s51 offen sc1
    s_add_u32 s51, s51, 8192
    buffer_store_dword v30, v31, s[40:43], s51 offen sc1
    s_cmp_eq_u32 s2, 0
    s_cbranch_scc0 k1_nosp2
    s_or_b32 s70, s70, 1
    v_mov_b32 v31, s70
    s_mov_b64 exec, 1
    global_store_dword v30, v31, s[68:69] sc1
    s_mov_b64 exec, -1
    k1_nosp2:
    """)
    a("s_waitcnt lgkmcnt(14)")
    a("s_set_gpr_idx_on s57, gpr_idx(SRC0,SRC1)")
    for t in range(16):
        if t % 2 == 0 and t > 0 and t <= P1BAR:
            a(f"s_waitcnt lgkmcnt({max(14 - t, 0)})")
        for r in range(4):
            reg = A0 + 4*t + r
            a(f"v_dot2_f32_bf16 v{24 + r%2}, v{reg}, s26, v{24 + r%2}")
            a(f"v_dot2_f32_bf16 v{26 + r%2}, v{reg}, v{reg}, v{26 + r%2}")
        if t == P1BAR:
            a("s_waitcnt lgkmcnt(0)")
            a("s_barrier")
            a("s_set_gpr_idx_off")
            pend = [(c, u) for c in range(16) for u in range(2)]
            for _ in range(2*K1_PRE): dma_one(*pend.pop(0))
            for tt in range(8):
                a(f"ds_read_b128 v[{BF+4*tt}:{BF+4*tt+3}], v5 offset:{tt*1024}")
            a("s_set_gpr_idx_on s57, gpr_idx(SRC0,SRC1)")
    a("s_set_gpr_idx_off")
    a.stamp()
    def mini(ch):
        for t in range(16):
            fb = BF + 4*(t % 8)
            if t < 8: a(f"s_waitcnt lgkmcnt({7})" if t > 0 else "s_waitcnt lgkmcnt(0)")
            else: a(f"s_waitcnt lgkmcnt({15 - t})")
            ar = A0 + 4*(16*ch + t)
            cin = "0" if t == 0 else f"v[{ACC}:{ACC+15}]"
            a(f"v_mfma_f32_32x32x16_bf16 v[{ACC}:{ACC+15}], v[{fb}:{fb+3}], v[{ar}:{ar+3}], {cin}")
            if t < 8:
                a(f"ds_read_b128 v[{fb}:{fb+3}], v5 offset:{(t+8)*1024}")
    a("s_cmp_eq_u32 s21, 0")
    a("s_cbranch_scc0 k1_mini1")
    mini(0)
    a("s_branch k1_minid")
    a.raw("k1_mini1:")
    mini(1)
    a.raw("k1_minid:")
    for _ in range(2*K1_PRE2): dma_one(*pend.pop(0))
    a(f"""
    v_add_f32 v24, v24, v25
    v_add_f32 v25, v26, v27
    v_mov_b32 v26, v24
    v_mov_b32 v27, v25
    s_lshl_b32 s57, s3, 9
    s_add_u32 s57, s57, {SPARE + 4096}
    v_lshlrev_b32 v10, 3, v2
    v_permlane32_swap_b32 v24, v26
    v_permlane32_swap_b32 v25, v27
    v_add_u32 v10, s57, v10
    v_add_f32 v24, v24, v26
    v_add_f32 v25, v25, v27
    v_xor_b32 v6, 0x800, v10
    ds_write_b64 v10, v[24:25]
    s_lshl_b32 s57, s3, 2
    s_add_u32 s57, s57, {SPARE}
    v_mov_b32 v{VFA}, s57
    v_mov_b32 v{VPG}, 0
    ds_write_b32 v{VFA}, v{VPG}
    v_and_b32 v{VFL}, 7, v2
    v_xor_b32 v30, s3, v{VFL}
    v_lshlrev_b32 v30, 4, v30
    v_lshl_add_u32 v30, v2, 7, v30
    v_add_u32 v30, {SPARE + 8192}, v30
    ds_write_b128 v30, v[{WL+12}:{WL+15}]
    v_lshlrev_b32 v{VFL}, 2, v{VFL}
    v_add_u32 v{VFL}, {SPARE}, v{VFL}
    s_lshl_b32 s57, s3, 11
    s_add_u32 s57, s57, {SPARE + 16384}
    v_add_u32 v30, s57, v{VPF}
    v_xor_b32 v31, 0x2000, v30
    s_cmp_eq_u32 s21, 0
    s_cbranch_scc0 k1_px1
    ds_write_b128 v30, v[{ACC+8}:{ACC+11}]
    ds_write_b128 v30, v[{ACC+12}:{ACC+15}] offset:1024
    s_branch k1_pxd
    k1_px1:
    ds_write_b128 v30, v[{ACC}:{ACC+3}]
    ds_write_b128 v30, v[{ACC+4}:{ACC+7}] offset:1024
    """)
    for r in range(8): a(f"v_mov_b32 v{ACC+r}, v{ACC+8+r}")
    a(f"""
    k1_pxd:
    s_mov_b32 s28, s60
    s_mov_b32 s29, s61
    s_mov_b32 s30, {1792*1024}
    s_lshr_b32 s50, s2, 3
    s_lshl_b32 s50, s50, 3
    s_add_u32 s50, s50, s3
    s_mul_i32 s62, s50, 7168
    s_mul_i32 s63, s50, 3072
    v_lshrrev_b32 v28, 3, v2
    v_and_b32 v5, 7, v2
    v_xor_b32 v29, v28, v5
    v_lshlrev_b32 v29, 4, v29
    v_lshl_add_u32 v29, v28, 7, v29
    s_lshl_b32 s57, s3, 10
    s_add_u32 s57, s57, {SPARE + 8192}
    v_add_u32 v29, s57, v29
    v_lshlrev_b32 v5, 4, v5
    v_lshl_add_u32 v5, v28, 13, v5
    s_and_b32 s57, s2, 3
    s_lshl_b32 s57, s57, 3
    s_add_u32 s57, s57, s3
    s_lshl_b32 s57, s57, 16
    s_lshr_b32 s51, s2, 2
    s_lshl_b32 s51, s51, 7
    s_add_u32 s57, s57, s51
    s_add_u32 s51, s57, {WS_W}
    """)
    a.stamp()
    a.wait_vm("c1")
    a("s_waitcnt lgkmcnt(0)")
    a("s_barrier")
    a.stamp()
    YT = RR + 16384 + 8192
    a(f"""
    ds_read_b64 v[26:27], v6
    ds_read_b128 v[{WL}:{WL+3}], v29
    ds_read_b128 v[{ACC+8}:{ACC+11}], v31
    ds_read_b128 v[{ACC+12}:{ACC+15}], v31 offset:1024
    s_waitcnt lgkmcnt(2)
    v_add_f32 v24, v24, v26
    v_add_f32 v25, v25, v27
    v_mul_f32 v24, 0x3b000000, v24
    v_mul_f32 v25, 0x3b000000, v25
    v_fma_f32 v{VRI}, -v24, v24, v25
    v_cvt_pk_bf16_f32 v27, v24, v24
    v_lshlrev_b32 v27, 16, v27
    v_sub_f32 v{VNM}, 0, v27
    v_mul_f32 v29, v24, v24
    v_mul_f32 v30, 0x43800000, v{VRI}
    v_cmp_gt_f32 vcc, v29, v30
    """)
    a.vmem(f"buffer_store_dwordx4 v[{WL}:{WL+3}], v5, s[40:43], s51 offen sc1", "ws")
    a(f"""
    s_cbranch_vccz k1_fast
    v_mov_b32 v28, 0
    v_mov_b32 v29, 0
    s_mov_b32 s56, 0
    k1_slow:
    s_set_gpr_idx_on s56, gpr_idx(SRC1)
    v_lshlrev_b32 v30, 16, v{A0}
    v_and_b32 v31, s27, v{A0}
    s_set_gpr_idx_off
    v_add_f32 v30, v{VNM}, v30
    v_add_f32 v31, v{VNM}, v31
    v_fma_f32 v28, v30, v30, v28
    v_fma_f32 v29, v31, v31, v29
    s_add_u32 s56, s56, 1
    s_cmp_lt_u32 s56, 128
    s_cbranch_scc1 k1_slow
    v_add_f32 v28, v28, v29
    v_mov_b32 v29, v28
    v_sub_f32 v26, v24, v27
    s_nop 0
    v_permlane32_swap_b32 v28, v29
    v_add_f32 v28, v28, v29
    v_mul_f32 v28, 0x3b000000, v28
    v_fma_f32 v{VRI}, -v26, v26, v28
    k1_fast:
    v_max_f32 v28, 0, v{VRI}
    v_cvt_pk_bf16_f32 v28, v28, v28
    v_lshlrev_b32 v28, 16, v28
    v_add_f32 v28, 0x3727c5ac, v28
    v_cvt_pk_bf16_f32 v28, v28, v28
    v_lshlrev_b32 v28, 16, v28
    v_sqrt_f32 v28, v28
    v_and_b32 v30, 31, v2
    v_cvt_pk_bf16_f32 v28, v28, v28
    v_lshlrev_b32 v28, 16, v28
    v_rcp_f32 v{VRI}, v28
    v_lshlrev_b32 v30, 1, v30
    v_lshrrev_b32 v31, 5, v2
    v_lshl_add_u32 v30, v31, 10, v30
    s_lshl_b32 s57, s20, 6
    s_lshl_b32 s56, s21, 12
    s_add_u32 s57, s57, s56
    s_add_u32 s57, s57, {YT}
    v_add_u32 v30, s57, v30
    s_waitcnt lgkmcnt(0)
    """)
    a.wait_vm("cs")
    for r in range(8): a(f"v_add_f32 v{ACC+r}, v{ACC+r}, v{ACC+8+r}")
    for r in range(8): a(f"v_fma_f32 v{ACC+r}, v{VNM}, v{CS+r}, v{ACC+r}")
    for r in range(8): a(f"v_mul_f32 v{ACC+r}, v{VRI}, v{ACC+r}")
    for r in range(8): a(f"v_cvt_f16_f32 v{ACC+r}, v{ACC+r}")
    for r in range(8):
        a(f"ds_write_b16 v30, v{ACC+r} offset:{(8*(r//4) + r%4)*256}")
    a(f"""
    s_lshl_b32 s57, s3, 10
    s_add_u32 s57, s57, {YT}
    v_add_u32 v5, s57, v{VPF}
    v_lshrrev_b32 v6, 4, v2
    v_lshlrev_b32 v6, 12, v6
    v_and_b32 v31, 15, v2
    v_lshl_add_u32 v6, v31, 4, v6
    s_lshl_b32 s51, s19, 5
    s_lshl_b32 s57, s3, 2
    s_add_u32 s51, s51, s57
    s_lshl_b32 s51, s51, 12
    s_lshl_b32 s57, s18, 8
    s_add_u32 s51, s51, s57
    s_add_u32 s51, s51, {WS_Y}
    """)
    if DIAG: a("s_memrealtime s[92:93]"); a("s_waitcnt lgkmcnt(0)")
    if SHARE:
        a(f"""
        s_lshl_b32 s48, s3, 12
        s_add_u32 s48, s48, {SPARE + 4096}
        s_cmp_eq_u32 s3, 7
        s_cselect_b32 s48, {RR + 16384}, s48
        s_xor_b32 s57, s3, 4
        s_lshl_b32 s49, s57, 12
        s_add_u32 s49, s49, {SPARE + 4096}
        s_cmp_eq_u32 s57, 7
        s_cselect_b32 s49, {RR + 16384}, s49
        """)
    vm_save = list(a.vm); nst_save = a.nst; pend_save = list(pend)

    def p2(i, r):
        reg = A0 + i*4 + r
        t0, t1 = PT + 2*r, PT + 2*r + 1
        return [f"v_lshlrev_b32 v{t0}, 16, v{reg}", f"v_and_b32 v{t1}, s27, v{reg}",
                f"v_add_f32 v{t0}, v{VNM}, v{t0}", f"v_add_f32 v{t1}, v{VNM}, v{t1}",
                f"v_cvt_pk_bf16_f32 v{reg}, v{t0}, v{t1}"]
    def p2_seq(i):
        o = [p2(i, r) for r in range(4)]
        return [o[0][0], o[0][1], o[1][0], o[1][1], o[2][0], o[2][1], o[3][0], o[3][1], o[0][2], o[0][3],
                o[1][2], o[1][3], o[2][2], o[2][3], o[3][2], o[3][3], o[0][4], o[1][4], o[2][4], o[3][4]]

    def mainloop(ch):
        NT = 3 + ch
        a.vm = list(vm_save); a.nst = nst_save
        pend = list(pend_save)
        lab = str(ch)
        NR = 2 * NT
        def reads(i, buf):
            c, s_ = i // 2, i % 2
            pos = RING[c % NRG] * 16384
            win = 1 if pos >= 98304 else 0
            base = pos - 98304 * win
            for k in range(NT):
                fr = BF + buf*16 + k*4
                for t in range(2):
                    a(f"ds_read_b64_tr_b16 v[{fr+2*t}:{fr+2*t+1}], v{TR+4*win+k} offset:{base + (16*s_ + 4*t)*256}")
        def mfma(i, buf, k):
            areg = A0 + 4*i
            fr = BF + buf*16 + k*4
            acc = ACC + k*16
            cin = "0" if i == 0 else f"v[{acc}:{acc+15}]"
            a(f"v_mfma_f32_32x32x16_bf16 v[{acc}:{acc+15}], v[{fr}:{fr+3}], v[{areg}:{areg+3}], {cin}")
        reads(0, 0)
        for ins in p2_seq(0): a(ins)
        a.stamp()
        limit = 6
        npf = 0
        for i in range(32):
            c, s_ = i // 2, i % 2
            buf = i & 1
            if s_ == 0:
                if c >= 1 and c < 15: a(f"ds_read_b32 v0, v{VFL}")
                reads(i + 1, buf ^ 1)
                a(f"s_waitcnt lgkmcnt({NR})")
                if c == 2:
                    a.vmem(f"buffer_store_dwordx4 v[{PFD}:{PFD+3}], v6, s[40:43], s51 offen sc1", "ys")
                    a("v_mov_b32 v5, 0")
                    a.vmem("global_load_dword v5, v5, s[68:69] sc1", "nonce")
                if c + 2 < 16:
                    assert not pend or pend[0][0] > c + 2
                    a.wait_vm(f"c{c+2}")
                    if c == 5: a.wait_vm("nonce")
                    a(f"v_mov_b32 v{VPG}, {c+1}")
                    a(f"ds_write_b32 v{VFA}, v{VPG}")
            else:
                if i + 1 < 32:
                    if c >= 1:
                        a(f"""
                        k1_spin{lab}_{c}:
                        v_cmp_gt_u32 vcc, {c}, v0
                        s_cbranch_vccz k1_ok{lab}_{c}
                        ds_read_b32 v0, v{VFL}
                        s_waitcnt lgkmcnt(0)
                        s_branch k1_spin{lab}_{c}
                        k1_ok{lab}_{c}:
                        """)
                        if SHARE: limit = max(limit, c + 5)
                        elif c >= 3: limit = c + 6
                        if c == 1:
                            a(f"ds_read_b128 v[{PFD}:{PFD+3}], v5")
                        if SHARE and 3 <= c <= 14:
                            fi = 2*(c + 1) + (1 - ch)
                            a(f"v_add_u32 v0, s49, v{VPF}")
                            a(f"ds_read_b128 v[{A0+4*fi}:{A0+4*fi+3}], v0 offset:{((c-2) % 4)*1024}")
                        if c == 6:
                            a(f"""
                            s_mov_b32 s57, 0
                            k1_nn{lab}:
                            v_readfirstlane_b32 s6, v5
                            s_cmp_lg_u32 s6, 0
                            s_cbranch_scc1 k1_nh{lab}
                            s_add_u32 s57, s57, 1
                            s_cmp_ge_u32 s57, 0x8000
                            s_cbranch_scc1 k1_nh{lab}
                            v_mov_b32 v5, 0
                            global_load_dword v5, v5, s[68:69] sc1
                            s_waitcnt vmcnt(0)
                            s_branch k1_nn{lab}
                            k1_nh{lab}:
                            """)
                            if ch == 0:
                                a(f"""
                                s_cmp_eq_u32 s3, 0
                                s_cbranch_scc0 k1_nofy
                                s_lshl_b32 s57, s2, 4
                                s_add_u32 s57, s57, {WS_FL + 16384}
                                v_mov_b32 v6, 0
                                s_mov_b64 exec, 1
                                buffer_store_dword v5, v6, s[40:43], s57 offen sc1
                                s_mov_b64 exec, -1
                                k1_nofy:
                                """)
                    reads(i + 1, buf ^ 1)
                    a(f"s_waitcnt lgkmcnt({NR})")
                else:
                    a("s_waitcnt lgkmcnt(0)")
            if not SHARE:
                seq = p2_seq(i + 1) if i + 1 < 32 else []
            else:
                seq = p2_seq(i + 1) if i + 1 < 8 else []
                if 1 <= c <= 12:
                    fo = 2*(c + 3) + ch
                    o_ = [p2(fo, r) for r in (2*s_, 2*s_ + 1)]
                    seq = seq + [o_[0][0], o_[0][1], o_[1][0], o_[1][1], o_[0][2], o_[0][3], o_[1][2], o_[1][3], o_[0][4], o_[1][4]]
                    if s_ == 1:
                        seq = seq + [f"v_add_u32 v{PT}, s48, v{VPF}", f"ds_write_b128 v{PT}, v[{A0+4*fo}:{A0+4*fo+3}] offset:{(c % 4)*1024}"]
            per = (len(seq) + NT - 1) // NT if seq else 1
            for k in range(NT):
                mfma(i, buf, k)
                for ins in seq[k*per:(k+1)*per]: a(ins)
                if k in (0, 2) and pend and pend[0][0] <= limit:
                    dma_one(*pend.pop(0))
                if PREF and k == 1 and i >= PFS and npf < 10:
                    if npf < 7:
                        a.vmem(f"buffer_load_dwordx4 v[{PFD}:{PFD+3}], v{VPF}, s[28:31], s62 offen offset:{(npf % 4)*1024}", "pf")
                        if npf == 3: a("s_add_u32 s62, s62, 4096")
                    else:
                        a.vmem(f"buffer_load_dwordx4 v[{PFD}:{PFD+3}], v{VPF}, s[32:35], s63 offen offset:{(npf-7)*1024}", "pf")
                    npf += 1
            if ch == 0:
                TB = 524288
                CL_ = [(cE1+4*q, "s72", TE1+q*1024) for q in range(4)] + [(cT1+4*q, "s73", q*1024) for q in range(2)] + \
                      [(cE2+4*q, "s16", q*1024) for q in range(4)] + [(cE3+4*q, "s17", q*1024) for q in range(4)] + \
                      [(cT2+4*q, "s24", q*1024) for q in range(2)] + [(cE4+4*q, "s25", q*1024) for q in range(4)]
                if i == 3:
                    a(f"""
                    s_mov_b32 s72, {TB}
                    s_lshl_b32 s57, s3, 11
                    s_add_u32 s73, s57, {TB + TT1}
                    s_add_u32 s24, s57, {TB + TT2}
                    s_lshl_b32 s57, s3, 12
                    s_add_u32 s16, s57, {TB + TE2}
                    s_add_u32 s17, s57, {TB + TE3}
                    s_mov_b32 s25, {TB + TE4}
                    """)
                if 4 <= i < 24:
                    d_, so, of = CL_[i - 4]
                    assert (d_ - A0) // 4 <= i
                    a.vmem(f"buffer_load_dwordx4 v[{d_}:{d_+3}], v{VPF}, s[32:35], {so} offen offset:{of}", "ct")
                X_ = ACC + 48
                if i == 21:
                    a(f"s_mov_b32 s57, {WS_FL + 16384}")
                    for q in range(4):
                        a.vmem(f"buffer_load_dword v{X_+q}, v{VPF}, s[40:43], s57 offen offset:{q*1024} sc1", "fy")
                    a(f"""
                    v_and_b32 v{X_+4}, 15, v2
                    v_lshlrev_b32 v{X_+4}, 6, v{X_+4}
                    v_lshrrev_b32 v{X_+5}, 4, v2
                    v_lshl_add_u32 v{X_+4}, v{X_+5}, 4, v{X_+4}
                    v_lshlrev_b32 v{X_+5}, 5, v2
                    s_lshl_b32 s72, s2, 13
                    s_lshl_b32 s73, s3, 10
                    s_add_u32 s16, s72, s73
                    s_add_u32 s16, s16, {WS_Y}
                    s_add_u32 s17, s16, 4096
                    s_lshl_b32 s73, s3, 11
                    s_add_u32 s72, s72, s73
                    s_add_u32 s72, s72, {WS_W}
                    s_add_u32 s73, s73, {WS_W + 256*8192}
                    """)
                if i == 25:
                    a.wait_vm("fy")
                    a(f"""
                    s_mov_b32 s56, 0
                    s_mov_b32 s57, {WS_FL + 16384}
                    k1_fys:
                    v_xor_b32 v{X_}, s6, v{X_}
                    v_xor_b32 v{X_+1}, s6, v{X_+1}
                    v_xor_b32 v{X_+2}, s6, v{X_+2}
                    v_xor_b32 v{X_+3}, s6, v{X_+3}
                    v_or3_b32 v{X_}, v{X_}, v{X_+1}, v{X_+2}
                    v_or_b32 v{X_}, v{X_}, v{X_+3}
                    v_cmp_ne_u32 vcc, 0, v{X_}
                    s_cbranch_vccz k1_fyok
                    s_add_u32 s56, s56, 1
                    s_cmp_ge_u32 s56, 0x4000
                    s_cbranch_scc1 k1_fyok
                    s_sleep 16
                    buffer_load_dword v{X_}, v{VPF}, s[40:43], s57 offen sc1
                    buffer_load_dword v{X_+1}, v{VPF}, s[40:43], s57 offen offset:1024 sc1
                    buffer_load_dword v{X_+2}, v{VPF}, s[40:43], s57 offen offset:2048 sc1
                    buffer_load_dword v{X_+3}, v{VPF}, s[40:43], s57 offen offset:3072 sc1
                    s_waitcnt vmcnt(0)
                    s_branch k1_fys
                    k1_fyok:
                    """)
                    a.vmem(f"buffer_load_dwordx4 v[{cYR}:{cYR+3}], v{X_+4}, s[40:43], s16 offen sc1", "ct")
                    a.vmem(f"buffer_load_dwordx4 v[{cYI}:{cYI+3}], v{X_+4}, s[40:43], s17 offen sc1", "ct")
                if i == 26:
                    a.vmem(f"buffer_load_dwordx4 v[{cWW}:{cWW+3}], v{X_+5}, s[40:43], s72 offen sc1", "ct")
                    a.vmem(f"buffer_load_dwordx4 v[{cWW+4}:{cWW+7}], v{X_+5}, s[40:43], s72 offen offset:16 sc1", "ct")
                if i == 30:
                    a(f"""
                    s_cmp_eq_u32 s2, 0
                    s_cbranch_scc0 k1_nosp3
                    buffer_load_dwordx4 v[{cWW+8}:{cWW+11}], v{X_+5}, s[40:43], s73 offen sc1
                    buffer_load_dwordx4 v[{cWW+12}:{cWW+15}], v{X_+5}, s[40:43], s73 offen offset:16 sc1
                    s_add_u32 s73, s73, 8192
                    buffer_load_dwordx4 v[{cWM}:{cWM+3}], v{X_+5}, s[40:43], s73 offen sc1
                    buffer_load_dwordx4 v[{cWM+4}:{cWM+7}], v{X_+5}, s[40:43], s73 offen offset:16 sc1
                    s_add_u32 s73, s73, 8192
                    buffer_load_dwordx4 v[{cWM+8}:{cWM+11}], v{X_+5}, s[40:43], s73 offen sc1
                    buffer_load_dwordx4 v[{cWM+12}:{cWM+15}], v{X_+5}, s[40:43], s73 offen offset:16 sc1
                    k1_nosp3:
                    """)
            if i % 8 == 7 and i < 31: a.stamp()
        assert not pend
        a(f"""
        s_mul_i32 s50, s22, 112
        s_mul_i32 s51, s19, 7
        s_add_u32 s50, s50, s51
        s_add_u32 s50, s50, {3*ch}
        s_lshl_b32 s50, s50, 10
        s_add_u32 s50, s50, {WS_H}
        v_mov_b32 v10, v{VRI}
        v_mov_b32 v11, v{VRI}
        s_nop 7
        """)
        a.stamp()
        for k in range(NT):
            G = ACC + k*16; U = G + 8
            O = BF + k*4; Q = (ACC + 56) if ch == 0 else (A0 + k*8)
            for p in range(8):
                a(f"v_pk_mul_f32 v[{G+2*p}:{G+2*p+1}], v[{G+2*p}:{G+2*p+1}], v[10:11]")
            for p in range(8):
                a(f"v_max_f32 v{G+p}, 0, v{G+p}")
            for p in range(8):
                a(f"v_cvt_pk_bf16_f32 v{Q+p}, v{G+2*p}, v{G+2*p+1}")
            for p in range(8):
                a(f"v_lshlrev_b32 v{G+2*p}, 16, v{Q+p}")
                a(f"v_and_b32 v{G+2*p+1}, s27, v{Q+p}")
            for p in range(4):
                a(f"v_pk_mul_f32 v[{G+2*p}:{G+2*p+1}], v[{G+2*p}:{G+2*p+1}], v[{U+2*p}:{U+2*p+1}]")
            for p in range(4):
                a(f"v_cvt_pk_bf16_f32 v{O+p}, v{G+2*p}, v{G+2*p+1}")
            a(f"buffer_store_dwordx4 v[{O}:{O+3}], v{VPF}, s[40:43], s50 offen offset:{k*1024} sc1")
        a.stamp()
        a.stamp_store(0)
        a("s_branch ph2")
    a("""
    s_cmp_eq_u32 s21, 0
    s_cbranch_scc0 k1_ch1
    """)
    mainloop(0)
    a.raw("k1_ch1:")
    mainloop(1)
    a.raw("k1_end:")
    a("s_endpgm")
    return a.text()

TE1, TE2, TE3, TE4, TT1, TT2, TCS, TSZ = 0, 4096, 20480, 36864, 40960, 49152, 57344, 59392
def small_tables():
    buf = np.zeros(TSZ // 2, np.uint16)
    l = np.arange(64); c = l % 16; g = l // 16; j = np.arange(8)
    for t in range(2):
        ang = -2*np.pi*((8*g[:,None]+j[None,:])*(16*t+c)[:,None] % 32)/32
        buf[(TE1 + (0*2+t)*1024)//2:][:512] = f16(np.cos(ang)/8).ravel()
        buf[(TE1 + (1*2+t)*1024)//2:][:512] = f16(np.sin(ang)/8).ravel()
    for w in range(4):
        for st in range(2):
            ang = -2*np.pi*((32*st+8*g[:,None]+j[None,:])*(16*w+c)[:,None] % 64)/64
            buf[(TE2 + ((w*2+0)*2+st)*1024)//2:][:512] = f16(np.cos(ang)/8).ravel()
            buf[(TE2 + ((w*2+1)*2+st)*1024)//2:][:512] = f16(np.sin(ang)/8).ravel()
            buf[(TE3 + ((w*2+0)*2+st)*1024)//2:][:512] = bf16(np.cos(-ang)/8).ravel()
            buf[(TE3 + ((w*2+1)*2+st)*1024)//2:][:512] = bf16(np.sin(-ang)/8).ravel()
    sig = 16*(j[None,:]//4) + 4*g[:,None] + (j[None,:] % 4)
    for tp in range(2):
        ang = 2*np.pi*((sig*(16*tp+c)[:,None]) % 32)/32
        buf[(TE4 + (0*2+tp)*1024)//2:][:512] = bf16(np.cos(ang)/8).ravel()
        buf[(TE4 + (1*2+tp)*1024)//2:][:512] = bf16(np.sin(ang)/8).ravel()
    for w in range(4):
        for e in range(8):
            t, i = e // 4, e % 4
            a1 = -2*np.pi*(((16*w+4*g+i)*(16*t+c)) % 2048)/2048
            a2 = 2*np.pi*(((16*w+c)*(16*t+4*g+i)) % 2048)/2048
            for (base, an) in ((TT1, a1), (TT2, a2)):
                o = (base + (w*2 + e//4)*1024)//2 + l*8 + (e % 4)*2
                buf[o] = f16(np.cos(an)); buf[o+1] = f16(np.sin(an))
    jj = np.arange(512); c1 = bf16(np.cos(2*np.pi*jj/512) / 16); c1[np.abs(np.cos(2*np.pi*jj/512)) < 1e-9] = 0
    cf = (c1.astype(np.uint32) << 16).view(np.float32).astype(np.float64)
    cs = np.zeros(512)
    for n in range(512):
        kk, off = (256, 0) if n == 1 else (n >> 1, 128*(n & 1))
        cs[n] = cf[(jj*kk + off) & 511].sum()
    buf.view(np.float32)[TCS//4:TCS//4+512] = cs.astype(np.float32)
    return buf

K3_NS = 5
CSTR = int(os.environ.get('CSTR','2'))
NUP = int(os.environ.get('NUP','16'))
ZSC = os.environ.get('ZSC','sc1')
HSC = os.environ.get('HSC','sc1')
MPRE = int(os.environ.get('MPRE','16'))
PSLEEP = int(os.environ.get('PSLEEP','8'))
GLAG = int(os.environ.get('GLAG','5'))
GOLD = int(os.environ.get('GOLD','3'))
CPRE = True
ZSLEEP = int(os.environ.get('ZSLEEP','12'))
ZMIN = int(os.environ.get('ZMIN','30'))
POLLD = int(os.environ.get('POLLD','4'))
HDIST = int(os.environ.get('HDIST','12'))
ZSTART = int(os.environ.get('ZSTART','28'))
ZTAIL = int(os.environ.get('ZTAIL','0'))
NIDLE = int(os.environ.get('NIDLE','2'))
NZB = int(os.environ.get('NZB','1'))
LOADALL = os.environ.get('LOADALL','1') == '1'
CPRIO = int(os.environ.get('CPRIO','2'))
LATEC = int(os.environ.get('LATEC','1'))
def gen_k23_main():
    a = Asm()
    if MERGE:
        a.raw("ph2:")
        a(f"""
        s_load_dwordx4 s[8:11], s[0:1], 48
        s_load_dwordx2 s[14:15], s[0:1], 72
        s_waitcnt vmcnt(0) lgkmcnt(0)
        s_barrier
        s_cmp_eq_u32 s3, 4
        s_cbranch_scc0 ph2_nopub
        s_lshl_b32 s26, s2, 4
        s_add_u32 s26, s26, {WS_FL + 8192}
        v_mov_b32 v7, 0
        v_mov_b32 v23, s6
        s_mov_b64 exec, 1
        buffer_store_dword v23, v7, s[40:43], s26 offen sc1
        s_mov_b64 exec, -1
        ph2_nopub:
        {"s_memrealtime s[94:95]" if DIAG else "s_nop 0"}
        {"s_mov_b32 s100, s70" if DIAG else "s_nop 0"}
        s_lshl_b32 s26, s3, 6
        v_add_u32 v0, s26, v2
        """)
    else:
        a.raw(".p2align 8\nk23_kernel:")
        a("""
        s_cmp_ge_u32 s2, 256
        s_cbranch_scc1 k23_end
        s_load_dwordx2 s[4:5], s[0:1], 0
        s_load_dwordx4 s[8:11], s[0:1], 48
        s_load_dwordx2 s[14:15], s[0:1], 72
        v_lshrrev_b32 v1, 6, v0
        v_and_b32 v2, 63, v0
        s_mov_b32 s6, 1
        v_readfirstlane_b32 s3, v1
        """)
    a("""
    v_and_b32 v3, 15, v2
    v_lshrrev_b32 v4, 4, v2
    s_mov_b32 s48, 0x80008000
    s_mov_b32 s49, 0xffff0000
    s_cmp_lt_u32 s3, 4
    s_cbranch_scc1 k23_conv
    """)
    SB = 131072
    NCB = 5 + NIDLE + NZB
    a("s_and_b32 s7, s3, 3")
    getpc_tab(a, 24, "tab_G")
    srd(a, 44, "s24", "s25", 524288)
    if os.environ.get("K3_MAP", "1") == "0":
        a("""
    s_and_b32 s16, s2, 7
    s_lshr_b32 s17, s2, 3
    s_lshr_b32 s18, s16, 1
    s_lshl_b32 s18, s18, 3
    s_and_b32 s19, s17, 7
    s_add_u32 s18, s18, s19
    s_lshl_b32 s58, s19, 1
    s_and_b32 s19, s16, 1
    s_lshl_b32 s19, s19, 2
    s_lshr_b32 s20, s17, 3
    s_add_u32 s19, s19, s20
    s_lshl_b32 s20, s20, 2
    s_add_u32 s58, s58, s20
    """)
    else:
        a("""
    s_and_b32 s16, s2, 7
    s_lshr_b32 s17, s2, 3
    s_lshl_b32 s18, s16, 2
    s_and_b32 s19, s17, 3
    s_add_u32 s18, s18, s19
    s_lshl_b32 s58, s19, 2
    s_lshr_b32 s19, s17, 2
    s_lshl_b32 s20, s19, 1
    s_add_u32 s58, s58, s20
    """)
    a.sb = 92; a.maxst = 5
    XR = 8; PV = 16; VO, VF, VW, VZ, VH = 20, 21, 22, 23, 24
    VPG, VFA, VFL, VFV = 25, 26, 27, 28
    TRW = 29
    TRZ = 37
    GFR = 39
    VW2, VZ2 = 41, 42
    ACG, ACS = 44, 60
    FB = 76
    HB = 136; NHB = 28
    PW = SB + 28672
    NCH = 36
    a(f"""
    s_cmp_ge_u32 s58, 14
    s_cselect_b32 s20, 14, 0
    s_sub_u32 s58, s58, s20
    s_lshl_b32 s58, s58, 1
    s_add_u32 s12, s18, s19
    s_and_b32 s12, s12, 7
    s_and_b32 s20, s7, 1
    s_lshr_b32 s21, s7, 1
    s_lshl_b32 s22, s18, 1
    s_add_u32 s22, s22, s21
    v_lshlrev_b32 v{VF}, 4, v2
    v_lshrrev_b32 v6, 3, v2
    v_and_b32 v5, 7, v2
    v_lshrrev_b32 v5, 1, v5
    v_lshrrev_b32 v1, 1, v6
    v_xor_b32 v5, v5, v1
    v_lshlrev_b32 v5, 5, v5
    v_and_b32 v1, 1, v2
    v_lshl_add_u32 v5, v1, 4, v5
    v_lshl_add_u32 v{VW}, v6, 10, v5
    v_lshl_add_u32 v{VZ}, v6, 12, v5
    s_lshl_b32 s27, s19, 7
    v_add_u32 v{VW}, s27, v{VW}
    s_lshl_b32 s27, s18, 7
    s_add_u32 s27, s27, {WS_Z}
    v_add_u32 v{VZ}, s27, v{VZ}
    v_add_u32 v{VW2}, 8192, v{VW}
    v_add_u32 v{VZ2}, 32768, v{VZ}
    v_lshlrev_b32 v{VH}, 9, v4
    v_lshl_add_u32 v{VH}, v3, 4, v{VH}
    s_mul_i32 s50, s22, 112
    s_lshl_b32 s50, s50, 10
    s_lshl_b32 s27, s20, 8
    s_add_u32 s50, s50, s27
    s_add_u32 s50, s50, {WS_H}
    s_lshl_b32 s51, s19, 1
    s_add_u32 s51, s51, s21
    s_lshl_b32 s51, s51, 5
    s_lshl_b32 s27, s20, 1
    s_add_u32 s51, s51, s27
    s_lshl_b32 s51, s51, 10
    s_lshl_b32 s52, s7, 11
    s_lshl_b32 s54, s7, 14
    s_lshl_b32 s55, s7, 16
    s_mov_b32 s59, {WS_FL}
    s_lshl_b32 s27, s7, 2
    s_add_u32 s27, s27, {PW}
    v_mov_b32 v{VFA}, s27
    v_mov_b32 v{VPG}, 0
    v_and_b32 v{VFL}, 3, v2
    v_lshlrev_b32 v{VFL}, 2, v{VFL}
    v_add_u32 v{VFL}, {PW}, v{VFL}
    v_lshlrev_b32 v5, 2, v3
    v_add_u32 v5, {PW}, v5
    ds_write_b32 v5, v{VPG}
    s_waitcnt lgkmcnt(0)
    """)
    a.stamp()
    srd(a, 40, "s14", "s15", WS_SIZE)
    srd(a, 32, "s8", "s9", 1792*1024)
    isd = lambda c: c < 28
    upos = {}; p_ = 0
    for c in range(NCH):
        upos[c] = p_ % 16; p_ += 1 if isd(c) else 2
    ustart = {}; p_ = 0
    for c in range(NCH):
        ustart[c] = p_; p_ += 1 if isd(c) else 2
    uend = lambda c: ustart[c] + (1 if isd(c) else 2)
    a(f"""
    v_add_u32 v{VW}, s54, v{VW}
    v_add_u32 v{VW2}, s54, v{VW2}
    v_add_u32 v43, s50, v{VH}
    s_lshl_b32 s64, s58, 12
    """)
    def tab(c):
        a(f"s_add_u32 s{64+c}, s{63+c}, 4096")
        a(f"s_cmp_eq_u32 s{64+c}, {28*4096}")
        a(f"s_cselect_b32 s{64+c}, 0, s{64+c}")
    def dma_one(c, u):
        if isd(c):
            a(f"s_add_u32 m0, s52, {upos[c]*8192 + u*1024}")
            if u == 0: a(f"s_lshl_b32 s63, s{64+c}, 4")
            else: a("s_nop 0")
            a.vmem(f"buffer_load_dwordx4 v{VW if u == 0 else VW2}, s[32:35], s63 offen lds", f"c{c}")
            return
        if u == 0:
            a(f"s_xor_b32 s57, s12, {c-28}")
            a(f"s_lshl_b32 s62, s57, 12"); a(f"s_add_u32 s62, s62, s51")
            a(f"s_lshl_b32 s63, s57, 18"); a(f"s_add_u32 s63, s63, s55")
        if u < 2:
            a(f"s_add_u32 m0, s52, {upos[c]*8192 + u*1024}")
            a("s_nop 0")
            a.vmem(f"buffer_load_dwordx4 v{VZ if u == 0 else VZ2}, s[40:43], s63 offen {ZSC} lds", f"c{c}")
        else:
            if u == 2:
                a(f"s_add_u32 m0, s52, {((upos[c]+1) % 16)*8192}")
                a("s_nop 0")
            else:
                a(f"s_add_u32 m0, s52, {((upos[c]+1) % 16)*8192}")
                a("s_nop 0")
            a.vmem(f"buffer_load_dwordx4 v{VF}, s[44:47], s62 offen offset:{(u-2)*1024} lds", f"c{c}")
    def hload(j):
        c, s_ = j // 2, j % 2
        hb = HB + (j % NHB) * 4
        a.vmem(f"buffer_load_dwordx4 v[{hb}:{hb+3}], v43, s[40:43], s{64+c} offen offset:{s_*2048} {HSC}", f"h{j}")
    tab(1)
    pend = [(c, u) for c in range(NCH) for u in range(2 if isd(c) else 4)]
    hp = [0]
    if MERGE:
        a("s_barrier")
        for c in range(2, 28): tab(c)
        for c in range(MPRE):
            for u in range(2): dma_one(*pend.pop(0))
    else:
        for c in range(2):
            for u in range(2): dma_one(*pend.pop(0))
            for _ in range(2): hload(hp[0]); hp[0] += 1
        for c in range(2, 28): tab(c)
        a("s_barrier")
        for c in range(NUP // 4):
            for u in range(2): dma_one(*pend.pop(0))
            for _ in range(2): hload(hp[0]); hp[0] += 1
    srd(a, 36, "s10", "s11", 2048*1024)
    srd(a, 28, "s4", "s5", 2048*1024)
    a(f"""
    v_lshrrev_b32 v{PV}, 2, v3
    v_and_b32 v{PV+1}, 3, v3
    v_lshrrev_b32 v{PV+2}, 1, v4
    v_lshlrev_b32 v{PV+2}, 4, v{PV+2}
    v_and_b32 v{PV+3}, 1, v4
    v_lshl_add_u32 v{PV+2}, v{PV+3}, 2, v{PV+2}
    v_add_u32 v{PV+2}, v{PV+2}, v{PV}
    v_lshlrev_b32 v{PV+2}, 7, v{PV+2}
    v_lshl_add_u32 v{PV+2}, v{PV+1}, 3, v{PV+2}
    v_lshrrev_b32 v{PV}, 1, v{PV}
    v_lshl_add_u32 v{PV}, v{PV+3}, 1, v{PV}
    """)
    for dt in range(4):
        a(f"v_xor_b32 v{PV+1}, {dt}, v{PV}")
        a(f"v_lshl_add_u32 v{TRW+dt}, v{PV+1}, 5, v{PV+2}")
        a(f"v_add_u32 v{TRW+4+dt}, 0x10000, v{TRW+dt}")
    a(f"""
    v_xor_b32 v{PV+1}, s7, v{PV}
    v_lshl_add_u32 v{TRZ}, v{PV+1}, 5, v{PV+2}
    v_add_u32 v{TRZ+1}, 0x10000, v{TRZ}
    v_mov_b32 v{GFR}, v{VH}
    v_add_u32 v{GFR+1}, 0x10000, v{VH}
    v_lshrrev_b32 v1, 3, v2
    v_and_b32 v{VO}, 7, v2
    v_lshlrev_b32 v{VO}, 4, v{VO}
    v_lshl_add_u32 v{VO}, v1, 16, v{VO}
    s_lshl_b32 s23, s22, 10
    s_lshl_b32 s26, s19, 7
    s_add_u32 s23, s23, s26
    s_lshl_b32 s26, s20, 20
    s_add_u32 s23, s23, s26
    s_add_u32 s13, s23, 0x80000
    """)
    if MERGE:
        a(f"""
        s_cmp_eq_u32 s7, 0
        s_cbranch_scc0 ph2_ggo
        s_lshr_b32 s26, s18, 1
        s_lshr_b32 s27, s26, 3
        s_and_b32 s26, s26, 7
        s_lshl_b32 s26, s26, 3
        s_add_u32 s26, s26, s27
        s_lshl_b32 s26, s26, 4
        s_add_u32 s26, s26, {WS_FL + 8192}
        v_lshrrev_b32 v{PV}, 2, v3
        v_and_b32 v{PV+1}, 3, v3
        v_lshlrev_b32 v{PV}, 5, v{PV}
        v_lshl_add_u32 v{PV}, v{PV+1}, 10, v{PV}
        s_mov_b32 s27, 0
        ph2_gpoll:
        buffer_load_dword v{PV+1}, v{PV}, s[40:43], s26 offen sc1
        s_waitcnt vmcnt(0)
        v_cmp_ne_u32 vcc, s6, v{PV+1}
        s_cbranch_vccz ph2_ggo
        s_add_u32 s27, s27, 1
        s_cmp_ge_u32 s27, 0x8000
        s_cbranch_scc1 ph2_ggo
        s_sleep {PSLEEP}
        s_branch ph2_gpoll
        ph2_ggo:
        {"s_memrealtime s[96:97]" if DIAG else "s_nop 0"}
        s_waitcnt vmcnt(0) lgkmcnt(0)
        """)
        a.vm = []
    DEPTH = 3
    NST = NCH * 2
    LAG = GLAG
    pubs = []
    def full_issued():
        return (pend[0][0] - 1) if pend else NCH - 1
    def arrive(want, rdone):
        q = min(want, full_issued(), NCH - 1)
        for cc in range(q, -1, -1):
            if f"c{cc}" in a.vm:
                a.wait_vm(f"c{cc}"); break
        pubs.append((q, rdone))
        a(f"v_mov_b32 v{VPG}, {len(pubs)}")
        a.lds(f"ds_write_b32 v{VFA}, v{VPG}", "pw")
    nspin = [0]
    checked = [0]
    fvp = [False]
    def check(k):
        n = nspin[0]; nspin[0] += 1
        if not fvp[0]:
            a.lds(f"ds_read_b32 v{VFV}, v{VFL}", "fv")
        fvp[0] = False
        a.wait_lds("fv")
        a(f"""
        k23_gs{n}:
        v_cmp_gt_u32 vcc, {k}, v{VFV}
        s_cbranch_vccz k23_go{n}
        {"s_sleep 1" if n == 0 else "s_nop 0"}
        ds_read_b32 v{VFV}, v{VFL}
        s_waitcnt lgkmcnt(0)
        s_branch k23_gs{n}
        k23_go{n}:
        """)
        checked[0] = k
        rd = pubs[k-1][1]
        if rd >= 0: ulimit[0] = max(ulimit[0], uend(rd) + 16)
    ulimit = [16]
    def reads(i):
        c, s_ = i // 2, i % 2
        if s_ == 0:
            have = pubs[checked[0]-1][0] if checked[0] else -1
            if have < c or c % 2 == 0:
                need = min(c + 1, NCH - 1) if c % 2 == 0 else c
                ks = [k+1 for k, (q, r) in enumerate(pubs) if q >= need]
                if not ks: ks = [k+1 for k, (q, r) in enumerate(pubs) if q >= c]
                assert ks, ("no publish covers chunk", c, pubs)
                old_ = [k+1 for k, (q, r) in enumerate(pubs) if r <= c - 4]
                k = max([ks[0], checked[0]] + old_)
                if k > checked[0]: check(k)
            if c in (0, 12, 28): a.stamp()
            if c % 2 == 1 and c + 1 < NCH and c >= 3:
                a.lds(f"ds_read_b32 v{VFV}, v{VFL}", "fv"); fvp[0] = True
        fb = FB + (i % DEPTH) * 20
        u0 = upos[c] * 8192
        w0, b0 = u0 >> 16, u0 & 0xffff
        if isd(c):
            for dt in range(4):
                for t in range(2):
                    a.lds(f"ds_read_b64_tr_b16 v[{fb+4*dt+2*t}:{fb+4*dt+2*t+1}], v{TRW+4*w0+dt} offset:{b0 + (32*s_ + 8*t)*128}", f"g{i}")
        else:
            for t in range(2):
                a.lds(f"ds_read_b64_tr_b16 v[{fb+16+2*t}:{fb+17+2*t}], v{TRZ+w0} offset:{b0 + (32*s_ + 8*t)*128}", f"g{i}")
            u1 = ((upos[c] + 1) % 16) * 8192
            w1, b1 = u1 >> 16, u1 & 0xffff
            for dt in range(4):
                a.lds(f"ds_read_b128 v[{fb+4*dt}:{fb+4*dt+3}], v{GFR+w1} offset:{b1 + (dt>>1)*4096 + s_*2048 + (dt&1)*256}", f"g{i}")
    def mfma(i, dt):
        c, s_ = i // 2, i % 2
        fb = FB + (i % DEPTH) * 20
        if isd(c):
            hb = HB + (i % NHB) * 4
            cin = "0" if i == 0 else f"v[{ACG+4*dt}:{ACG+4*dt+3}]"
            a(f"v_mfma_f32_16x16x32_bf16 v[{ACG+4*dt}:{ACG+4*dt+3}], v[{fb+4*dt}:{fb+4*dt+3}], v[{hb}:{hb+3}], {cin}")
        else:
            cin = "0" if i == 56 else f"v[{ACS+4*dt}:{ACS+4*dt+3}]"
            a(f"v_mfma_f32_16x16x32_bf16 v[{ACS+4*dt}:{ACS+4*dt+3}], v[{fb+4*dt}:{fb+4*dt+3}], v[{fb+16}:{fb+19}], {cin}")
    def silu():
        G_ = ACG; T_ = HB
        for p in range(8): a(f"v_cvt_pk_bf16_f32 v{T_+p}, v{G_+2*p}, v{G_+2*p+1}")
        yield
        for p in range(8):
            a(f"v_lshlrev_b32 v{G_+2*p}, 16, v{T_+p}")
            a(f"v_and_b32 v{G_+2*p+1}, s49, v{T_+p}")
            if p % 4 == 3: yield
        for p in range(16):
            a(f"v_mul_f32 v{T_+p}, 0xbfb8aa3b, v{G_+p}")
            if p % 8 == 7: yield
        for p in range(16):
            a(f"v_exp_f32 v{T_+p}, v{T_+p}")
            if p % 4 == 3: yield
        for p in range(16):
            a(f"v_add_f32 v{T_+p}, 1.0, v{T_+p}")
            if p % 8 == 7: yield
        for p in range(16):
            a(f"v_rcp_f32 v{T_+p}, v{T_+p}")
            if p % 4 == 3: yield
        for p in range(16):
            a(f"v_mul_f32 v{G_+p}, v{G_+p}, v{T_+p}")
            if p % 8 == 7: yield
        for p in range(8): a(f"v_cvt_pk_bf16_f32 v{T_+p}, v{G_+2*p}, v{G_+2*p+1}")
        yield
        for p in range(8):
            a(f"v_lshlrev_b32 v{G_+2*p}, 16, v{T_+p}")
            a(f"v_and_b32 v{G_+2*p+1}, s49, v{T_+p}")
            if p % 4 == 3: yield
    sl = silu()
    polled = False
    arrive(MPRE - 1, -1)
    check(1)
    for _ in range(HDIST): hload(hp[0]); hp[0] += 1
    early = []
    for k in range(DEPTH - 1): reads(k)
    for i in range(NST):
        c, s_ = i // 2, i % 2
        if early: arrive(early.pop(0), -1)
        if i + DEPTH - 1 < NST: reads(i + DEPTH - 1)
        a.wait_lds(f"g{i}")
        if isd(c): a.wait_vm(f"h{i}")
        if s_ == 1 and c < NCH - 1 and pubs[-1][0] < NCH - 1 and (c % 2 == 0 or c >= 24):
            arrive(c + LAG, c)
        for dt in range(4):
            mfma(i, dt)
            if dt in (0, 2):
                if pend:
                    pc, pu = pend[0]
                    need = ustart[pc] + (1 if pu < 2 else 2)
                    if need <= ulimit[0] and len(a.vm) < 56 and not (pc >= 28 and i < ZMIN):
                        if pend[0] == (28, 0):
                            a(f"""
                            v_mov_b32 v{PV+1}, {PW + 48}
                            s_cmp_eq_u32 s3, 4
                            s_cbranch_scc0 k23_zw
                            s_mov_b32 s27, 0
                            k23_spin:
                            buffer_load_dword v{PV}, v{VF}, s[40:43], s59 offen sc1
                            buffer_load_dword v{PV+1}, v{VF}, s[40:43], s59 offen offset:1024 sc1
                            buffer_load_dword v{PV+2}, v{VF}, s[40:43], s59 offen offset:2048 sc1
                            buffer_load_dword v{PV+3}, v{VF}, s[40:43], s59 offen offset:3072 sc1
                            s_waitcnt vmcnt(0)
                            v_xor_b32 v{PV}, s6, v{PV}
                            v_xor_b32 v{PV+1}, s6, v{PV+1}
                            v_xor_b32 v{PV+2}, s6, v{PV+2}
                            v_xor_b32 v{PV+3}, s6, v{PV+3}
                            v_or3_b32 v{PV}, v{PV}, v{PV+1}, v{PV+2}
                            v_or_b32 v{PV}, v{PV}, v{PV+3}
                            v_cmp_ne_u32 vcc, 0, v{PV}
                            s_cbranch_vccz k23_go
                            s_add_u32 s27, s27, 1
                            s_cmp_ge_u32 s27, 0x4000
                            s_cbranch_scc1 k23_go
                            s_sleep {ZSLEEP}
                            s_branch k23_spin
                            k23_go:
                            v_mov_b32 v{PV+1}, {PW + 48}
                            v_mov_b32 v{PV}, 1
                            ds_write_b32 v{PV+1}, v{PV}
                            k23_zw:
                            ds_read_b32 v{PV}, v{PV+1}
                            s_waitcnt lgkmcnt(0)
                            v_cmp_ne_u32 vcc, 1, v{PV}
                            s_cbranch_vccz k23_zgo
                            s_sleep 2
                            s_branch k23_zw
                            k23_zgo:
                            """)
                            a.lq = []
                            print("Z issue at step", i, file=sys.stderr)
                        dma_one(*pend.pop(0))
            if dt in (1, 3):
                if hp[0] < 56 and hp[0] - NHB < i and len(a.vm) < 56 and hp[0] <= i + HDIST:
                    hload(hp[0]); hp[0] += 1
            if i >= 58: next(sl, None)
        if i == 50:
            a.vmem(f"buffer_load_dwordx4 v[{XR}:{XR+3}], v{VO}, s[28:31], s23 offen", "x")
            a.vmem(f"buffer_load_dwordx4 v[{XR+4}:{XR+7}], v{VO}, s[28:31], s13 offen", "x")
    assert not pend and hp[0] == 56
    for _ in sl: a("s_nop 0")
    a("s_nop 7")
    O = HB + 16; SV = ACS; GV = ACG; Q = HB + 24
    for p in range(8):
        a(f"v_cvt_pk_bf16_f32 v{Q+p}, v{SV+2*p}, v{SV+2*p+1}")
    for p in range(8):
        a(f"v_lshlrev_b32 v{SV+2*p}, 16, v{Q+p}")
        a(f"v_and_b32 v{SV+2*p+1}, s49, v{Q+p}")
    for p in range(16):
        a(f"v_mul_f32 v{SV+p}, v{SV+p}, v{GV+p}")
    for p in range(8):
        a(f"v_cvt_pk_bf16_f32 v{O+p}, v{SV+2*p}, v{SV+2*p+1}")
    a(f"""
    v_lshrrev_b32 v5, 1, v4
    v_and_b32 v6, 7, v2
    v_xor_b32 v5, v5, v6
    v_and_b32 v7, 1, v4
    v_lshlrev_b32 v7, 3, v7
    v_lshl_add_u32 v7, v3, 7, v7
    s_lshl_b32 s26, s7, 11
    s_add_u32 s26, s26, {SB}
    v_add_u32 v7, s26, v7
    s_barrier
    """)
    for dt in range(4):
        a(f"v_xor_b32 v1, {2*dt}, v5")
        a(f"v_lshl_add_u32 v1, v1, 4, v7")
        a(f"ds_write_b64 v1, v[{O+2*dt}:{O+2*dt+1}]")
    a(f"""
    v_lshrrev_b32 v4, 3, v2
    v_xor_b32 v6, v6, v4
    v_lshlrev_b32 v6, 4, v6
    v_lshl_add_u32 v6, v4, 7, v6
    v_add_u32 v6, s26, v6
    s_waitcnt lgkmcnt(0)
    ds_read_b128 v[{Q}:{Q+3}], v6
    ds_read_b128 v[{Q+4}:{Q+7}], v6 offset:1024
    """)
    a.wait_vm_all()
    for p in range(8):
        a(f"v_lshlrev_b32 v{GV+2*p}, 16, v{XR+p}")
        a(f"v_and_b32 v{GV+2*p+1}, s49, v{XR+p}")
    a("s_waitcnt lgkmcnt(0)")
    for p in range(8):
        a(f"v_lshlrev_b32 v{SV+2*p}, 16, v{Q+p}")
        a(f"v_and_b32 v{SV+2*p+1}, s49, v{Q+p}")
    for p in range(16):
        a(f"v_add_f32 v{SV+p}, v{SV+p}, v{GV+p}")
    for p in range(8):
        a(f"v_cvt_pk_bf16_f32 v{O+p}, v{SV+2*p}, v{SV+2*p+1}")
    a(f"buffer_store_dwordx4 v[{O}:{O+3}], v{VO}, s[36:39], s23 offen {OSP}")
    a(f"buffer_store_dwordx4 v[{O+4}:{O+7}], v{VO}, s[36:39], s13 offen {OSP}")
    a.stamp()
    if STAMP: a("s_waitcnt vmcnt(0)")
    a.stamp()
    a.stamp_store(1)
    if DIAG:
        a(f"""
        s_waitcnt vmcnt(0)
        s_memrealtime s[98:99]
        s_load_dwordx2 s[60:61], s[0:1], 64
        s_waitcnt lgkmcnt(0)
        s_cmp_eq_u32 s3, 4
        s_cbranch_scc0 dg_skip
        s_and_b32 s26, s2, 63
        s_cmp_eq_u32 s26, 1
        s_cbranch_scc0 dg_skip
        s_lshr_b32 s26, s2, 6
        s_cmp_ge_u32 s26, 3
        s_cbranch_scc1 dg_skip
        s_lshl_b32 s26, s26, 4
        s_add_u32 s26, s26, 4
        s_mov_b32 s62, 256
        s_mov_b32 s63, 0x20000
        s_sub_u32 s92, s92, s100
        s_sub_u32 s94, s94, s100
        s_sub_u32 s96, s96, s100
        s_sub_u32 s98, s98, s100
        v_mov_b32 v0, 0
        v_mov_b32 v4, s92
        v_mov_b32 v5, s94
        v_mov_b32 v6, s96
        v_mov_b32 v7, s98
        buffer_store_dword v4, v0, s[60:63], s26 offen
        buffer_store_dword v5, v0, s[60:63], s26 offen offset:4
        buffer_store_dword v6, v0, s[60:63], s26 offen offset:8
        buffer_store_dword v7, v0, s[60:63], s26 offen offset:12
        dg_skip:
        """)
    a("s_endpgm")

    a.raw("k23_conv:")
    a.vm = []; a.lq = []; a.nst = 0; a.sb = 74; a.maxst = 0
    YR, YI, E1, T1, E2, WW, E3, T2, E4, WM = cYR, cYI, cE1, cT1, cE2, cWW, cE3, cT2, cE4, cWM
    D = 8; F = 24; N = 56; TMP = 64; PQ = 80; VL = 7
    for tg_ in ("y", "e1", "t1", "e2", "w", "e3", "t2", "e4"): a.issued.add(tg_)
    a(f"""
    s_barrier
    s_mov_b32 s13, s3
    s_lshl_b32 s60, s2, 13
    s_lshl_b32 s61, s13, 10
    s_add_u32 s60, s60, s61
    s_add_u32 s60, s60, {WS_Y}
    s_add_u32 s61, s60, 4096
    s_lshl_b32 s27, s13, 9
    v_lshlrev_b32 v1, 7, v4
    v_add3_u32 v1, v1, v3, s27
    s_movk_i32 s27, 144
    v_mul_lo_u32 v6, v3, s27
    v_add_u32 v6, {SB}, v6
    v_lshl_add_u32 v5, v4, 3, v6
    s_lshl_b32 s27, s13, 5
    v_add_u32 v5, s27, v5
    v_lshl_add_u32 v6, v4, 4, v6
    """)
    UB, XB, MB = 0, 9216, 18432
    PL = 4608
    def R(x): return f"v[{x}:{x+3}]"
    def fr(pl, t, st): return F + ((pl*2+t)*2+st)*4
    def cmul_tw(tw):
        for e in range(8):
            r = D + e; im = D + 8 + e; tq = tw + e
            t = TMP + 2*(e % 4)
            a(f"""
            v_fma_mix_f32 v{t}, v{im}, v{tq}, 0 op_sel:[0,1,0] op_sel_hi:[0,1,0]
            v_fma_mix_f32 v{t+1}, v{r}, v{tq}, 0 op_sel:[0,1,0] op_sel_hi:[0,1,0]
            """)
            if e % 4 == 3:
                for e2 in range(e-3, e+1):
                    r = D + e2; im = D + 8 + e2; tq = tw + e2
                    t = TMP + 2*(e2 % 4)
                    a(f"""
                    v_fma_mix_f32 v{r}, v{r}, v{tq}, -v{t} op_sel:[0,0,0] op_sel_hi:[0,1,0]
                    v_fma_mix_f32 v{im}, v{im}, v{tq}, v{t+1} op_sel:[0,0,0] op_sel_hi:[0,1,0]
                    """)
    def pack(cvt, dst):
        for e in range(8):
            a(f"{cvt} v{dst+e}, v{D+2*e}, v{D+2*e+1}")
    def lds_write(base, src):
        for pl in range(2):
            for t in range(2):
                a(f"ds_write_b64 v5, v[{src+pl*4+t*2}:{src+pl*4+t*2+1}] offset:{base + pl*PL + t*16*144}")
    def lds_read(base):
        for pl in range(2):
            for t in range(2):
                for st in range(2):
                    f_ = fr(pl, t, st)
                    a(f"ds_read_b128 v[{f_}:{f_+3}], v6 offset:{base + pl*PL + t*16*144 + st*64}")
    nbar = [0]
    CA, CL, CV = 112, 113, 114
    def bar(tag=""):
        nbar[0] += 1
        p = nbar[0]
        a(f"""
        v_mov_b32 v{CV}, {p}
        s_waitcnt lgkmcnt(0)
        ds_write_b32 v{CA}, v{CV}
        """)
        a(f"""
        k23_cs{p}{tag}:
        ds_read_b32 v{CV}, v{CL}
        s_waitcnt lgkmcnt(0)
        v_cmp_gt_u32 vcc, {p}, v{CV}
        s_cbranch_vccnz k23_cs{p}{tag}
        """)
        a.stamp()
    a(f"""
    s_setprio {CPRIO}
    s_lshl_b32 s27, s13, 2
    s_add_u32 s27, s27, {PW + 16}
    v_mov_b32 v{CA}, s27
    v_mov_b32 v{CV}, 0
    v_and_b32 v{CL}, 3, v2
    v_lshlrev_b32 v{CL}, 2, v{CL}
    v_add_u32 v{CL}, {PW + 16}, v{CL}
    """)
    a.wait_vm("e1")
    for r in range(4):
        a(f"v_xor_b32 v{N+r}, s48, v{YI+r}")
    a("s_nop 1")
    for t in range(2):
        er = E1 + 4*t; ei = E1 + 8 + 4*t
        a(f"v_mfma_f32_16x16x32_f16 {R(D+4*t)}, {R(YR)}, {R(er)}, 0")
        a(f"v_mfma_f32_16x16x32_f16 {R(D+8+4*t)}, {R(YR)}, {R(ei)}, 0")
    for t in range(2):
        er = E1 + 4*t; ei = E1 + 8 + 4*t
        a(f"v_mfma_f32_16x16x32_f16 {R(D+4*t)}, {R(N)}, {R(ei)}, {R(D+4*t)}")
        a(f"v_mfma_f32_16x16x32_f16 {R(D+8+4*t)}, {R(YI)}, {R(er)}, {R(D+8+4*t)}")
    a.wait_vm("t1")
    a("s_nop 7")
    cmul_tw(T1)
    pack("v_cvt_pk_f16_f32", TMP + 8)
    lds_write(UB, TMP + 8)
    bar()
    lds_read(UB)
    a.wait_vm("e2")
    for r in range(8):
        a(f"v_xor_b32 v{N+r}, s48, v{E2+8+r}")
    a("s_waitcnt lgkmcnt(0)")
    for st in range(2):
        for t in range(2):
            cr = "0" if st == 0 else R(D+4*t); ci = "0" if st == 0 else R(D+8+4*t)
            a(f"v_mfma_f32_16x16x32_f16 {R(D+4*t)}, {R(E2+4*st)}, {R(fr(0,t,st))}, {cr}")
            a(f"v_mfma_f32_16x16x32_f16 {R(D+8+4*t)}, {R(E2+8+4*st)}, {R(fr(0,t,st))}, {ci}")
        for t in range(2):
            a(f"v_mfma_f32_16x16x32_f16 {R(D+4*t)}, {R(N+4*st)}, {R(fr(1,t,st))}, {R(D+4*t)}")
            a(f"v_mfma_f32_16x16x32_f16 {R(D+8+4*t)}, {R(E2+4*st)}, {R(fr(1,t,st))}, {R(D+8+4*t)}")
    a("""
    s_cmp_eq_u32 s2, 0
    s_cbranch_scc1 k2_special
    """)
    vm_keep = list(a.vm)
    a.wait_vm("w")
    a("s_nop 7")
    for e in range(8):
        r = D + e; im = D + 8 + e
        t = TMP + 4*(e % 2)
        a(f"""
        v_lshlrev_b32 v{t+2}, 16, v{WW+e}
        v_and_b32 v{t+3}, s49, v{WW+e}
        v_mul_f32 v{t}, v{im}, v{t+3}
        v_mul_f32 v{t+1}, v{r}, v{t+3}
        v_fma_f32 v{r}, v{r}, v{t+2}, -v{t}
        v_fma_f32 v{im}, v{im}, v{t+2}, v{t+1}
        """)
    a("s_branch k2_join")
    a.raw("k2_special:")
    a.vm = vm_keep
    a.wait_vm("w")
    TA_ = cE1
    for e in range(8):
        q = PQ + 4*e; t = TA_ + 4*e
        a(f"""
        v_lshlrev_b32 v{q}, 16, v{WW+e}
        v_and_b32 v{q+1}, s49, v{WW+e}
        v_lshlrev_b32 v{q+2}, 16, v{WM+e}
        v_and_b32 v{q+3}, s49, v{WM+e}
        v_lshlrev_b32 v{t}, 16, v{WW+8+e}
        v_and_b32 v{t+1}, s49, v{WW+8+e}
        v_lshlrev_b32 v{t+2}, 16, v{WM+8+e}
        v_and_b32 v{t+3}, s49, v{WM+8+e}
        """)
    for e in range(8):
        q = PQ + 4*e; t = TA_ + 4*e
        a(f"""
        v_add_f32 v{q}, v{q}, v{q+2}
        v_sub_f32 v{q+1}, v{q+1}, v{q+3}
        v_add_f32 v{t}, v{t}, v{t+2}
        v_sub_f32 v{t+1}, v{t+1}, v{t+3}
        """)
    for e in range(8):
        q = PQ + 4*e; t = TA_ + 4*e
        a(f"""
        v_sub_f32 v{q+2}, v{q}, v{t}
        v_sub_f32 v{q+3}, v{q+1}, v{t+1}
        v_add_f32 v{q}, v{q}, v{t}
        v_add_f32 v{q+1}, v{q+1}, v{t+1}
        """)
    for e in range(32):
        a(f"v_mul_f32 v{PQ+e}, 0x3e800000, v{PQ+e}")
    for e in range(8):
        t, i = e // 4, e % 4
        q = TMP + 2*(e % 2)
        a(f"""
        v_cvt_pk_f16_f32 v{q}, v{D+e}, v{D+8+e}
        v_add_u32 v{q+1}, {32*i+16*t+(SB+MB)//4}, v1
        v_lshlrev_b32 v{q+1}, 2, v{q+1}
        ds_write_b32 v{q+1}, v{q}
        """)
    for e in range(8):
        r = D + e; q = PQ + 4*e; t = F + 8 + 2*e
        a(f"v_mul_f32 v{t}, v{r}, v{q}")
        a(f"v_mul_f32 v{t+1}, v{r}, v{q+1}")
    for e in range(8):
        im = D + 8 + e; q = PQ + 4*e; t = F + 8 + 2*e
        a(f"v_fma_f32 v{t}, -v{im}, v{q+1}, v{t}")
        a(f"v_fma_f32 v{t+1}, v{im}, v{q}, v{t+1}")
    nst_keep = a.nst
    bar("s")
    a.nst = nst_keep
    for e in range(8):
        t, i = e // 4, e % 4
        a(f"""
        v_add_u32 v{TMP+4}, {32*i+16*t}, v1
        v_sub_u32 v{TMP+4}, 2048, v{TMP+4}
        v_and_b32 v{TMP+4}, 2047, v{TMP+4}
        v_lshlrev_b32 v{TMP+4}, 2, v{TMP+4}
        v_add_u32 v{TMP+4}, {SB+MB}, v{TMP+4}
        ds_read_b32 v{F+e}, v{TMP+4}
        """)
    a("s_waitcnt lgkmcnt(0)")
    for e in range(8):
        xm = F + e; q = PQ + 4*e; t = F + 8 + 2*e
        a(f"""
        v_fma_mix_f32 v{t}, v{q+2}, v{xm}, v{t} op_sel:[0,0,0] op_sel_hi:[0,1,0]
        v_fma_mix_f32 v{t+1}, v{q+3}, v{xm}, v{t+1} op_sel:[0,0,0] op_sel_hi:[0,1,0]
        """)
    for e in range(8):
        r = D + e; im = D + 8 + e
        xm = F + e; q = PQ + 4*e; t = F + 8 + 2*e
        a(f"""
        v_fma_mix_f32 v{r}, v{q+3}, v{xm}, v{t} op_sel:[0,1,0] op_sel_hi:[0,1,0]
        v_fma_mix_f32 v{im}, -v{q+2}, v{xm}, v{t+1} op_sel:[0,1,0] op_sel_hi:[0,1,0]
        """)
    a.raw("k2_join:")
    a.stamp()
    pack("v_cvt_pk_bf16_f32", TMP + 8)
    lds_write(XB, TMP + 8)
    bar()
    lds_read(XB)
    a.wait_vm("e3")
    for r in range(8):
        a(f"v_xor_b32 v{N+r}, s48, v{E3+8+r}")
    a("s_waitcnt lgkmcnt(0)")
    for st in range(2):
        for t in range(2):
            cr = "0" if st == 0 else R(D+4*t); ci = "0" if st == 0 else R(D+8+4*t)
            a(f"v_mfma_f32_16x16x32_bf16 {R(D+4*t)}, {R(fr(0,t,st))}, {R(E3+4*st)}, {cr}")
            a(f"v_mfma_f32_16x16x32_bf16 {R(D+8+4*t)}, {R(fr(0,t,st))}, {R(E3+8+4*st)}, {ci}")
        for t in range(2):
            a(f"v_mfma_f32_16x16x32_bf16 {R(D+4*t)}, {R(fr(1,t,st))}, {R(N+4*st)}, {R(D+4*t)}")
            a(f"v_mfma_f32_16x16x32_bf16 {R(D+8+4*t)}, {R(fr(1,t,st))}, {R(E3+4*st)}, {R(D+8+4*t)}")
    a.wait_vm("t2")
    a("s_nop 7")
    cmul_tw(T2)
    pack("v_cvt_pk_bf16_f32", TMP + 8)
    VR, VI = TMP + 8, TMP + 12
    for r in range(4):
        a(f"v_xor_b32 v{N+r}, s48, v{VI+r}")
    a.wait_vm("e4")
    a("s_nop 1")
    for tp in range(2):
        a(f"v_mfma_f32_16x16x32_bf16 {R(D+4*tp)}, {R(E4+4*tp)}, {R(VR)}, 0")
        a(f"v_mfma_f32_16x16x32_bf16 {R(D+8+4*tp)}, {R(E4+8+4*tp)}, {R(VR)}, 0")
    for tp in range(2):
        a(f"v_mfma_f32_16x16x32_bf16 {R(D+4*tp)}, {R(E4+8+4*tp)}, {R(N)}, {R(D+4*tp)}")
        a(f"v_mfma_f32_16x16x32_bf16 {R(D+8+4*tp)}, {R(E4+4*tp)}, {R(VI)}, {R(D+8+4*tp)}")
    a(f"""
    v_lshlrev_b32 v5, 6, v3
    v_and_b32 v1, 1, v4
    v_lshl_add_u32 v5, v1, 5, v5
    v_lshrrev_b32 v1, 1, v4
    v_lshl_add_u32 v5, v1, 4, v5
    s_add_u32 s60, s60, {WS_Z - WS_Y}
    s_add_u32 s61, s61, {WS_Z - WS_Y}
    s_nop 3
    """)
    pack("v_cvt_pk_bf16_f32", TMP + 8)
    a("s_nop 1")
    for pl in range(2):
        b = TMP + 8 + pl*4
        a(f"v_permlane16_swap_b32 v{b}, v{b+2}")
        a(f"v_permlane16_swap_b32 v{b+1}, v{b+3}")
    for pl in range(2):
        b = TMP + 8 + pl*4
        a.vmem(f"buffer_store_dwordx4 v[{b}:{b+3}], v5, s[40:43], s{60+pl} offen sc1", "z")
    a.stamp()
    a.wait_vm_all()
    bar()
    a(f"""
    s_cmp_eq_u32 s13, 0
    s_cbranch_scc0 k23_nosig
    s_lshl_b32 s26, s2, 4
    s_add_u32 s26, s26, {WS_FL}
    v_mov_b32 v1, s6
    v_mov_b32 v7, 0
    s_mov_b64 exec, 1
    buffer_store_dword v1, v7, s[40:43], s26 offen sc1
    s_mov_b64 exec, -1
    k23_nosig:
    """)
    a.raw("k23_end:")
    a("s_endpgm")
    return a.text()

def tables_asm():
    o = []
    j = np.arange(512)
    c1 = bf16(np.cos(2*np.pi*j/512) / 16); c2 = bf16(np.cos(2*np.pi*j/512) / 8)
    c1[np.abs(np.cos(2*np.pi*j/512)) < 1e-9] = 0; c2[np.abs(np.cos(2*np.pi*j/512)) < 1e-9] = 0
    for i in range(512):
        o.append(f".set CA{i}, 0x{c1[i]:04x}")
        o.append(f".set CB{i}, 0x{c2[i]:04x}")
    o.append(".altmacro")
    o.append(""".macro f8 a,b,c,d,e,f,g,h
.short CA\\a, CA\\b, CA\\c, CA\\d, CA\\e, CA\\f, CA\\g, CA\\h
.endm
.macro g8 a,b,c,d,e,f,g,h
.short CB\\a, CB\\b, CB\\c, CB\\d, CB\\e, CB\\f, CB\\g, CB\\h
.endm
.macro g8s a,b,c,d,e,f,g,h
.short CA\\a, CA\\b, CB\\c, CB\\d, CB\\e, CB\\f, CB\\g, CB\\h
.endm
.macro flane k, o, d
f8 %((\\d*\\k+\\o)&511), %(((\\d+1)*\\k+\\o)&511), %(((\\d+2)*\\k+\\o)&511), %(((\\d+3)*\\k+\\o)&511), %(((\\d+4)*\\k+\\o)&511), %(((\\d+5)*\\k+\\o)&511), %(((\\d+6)*\\k+\\o)&511), %(((\\d+7)*\\k+\\o)&511)
.endm
.macro fhalf n0, d
.set nn, \\n0
.rept 32
flane %((nn>>1)-256*(nn==1)), %(128*(nn&1)*(1+(nn==1))), \\d
.set nn, nn+1
.endr
.endm
.macro ftile n0
.set dd, 0
.rept 64
fhalf \\n0, %dd
.set dd, dd+8
.endr
.endm
.section .rodata,"a"
.p2align 8
tab_F:
.set tt, 0
.rept 16
ftile %(32*tt)
.set tt, tt+1
.endr
""")
    o.append(""".macro glane d, k
g8 %((\\d*\\k)&511), %((\\d*\\k+128)&511), %((\\d*(\\k+1))&511), %((\\d*(\\k+1)+128)&511), %((\\d*(\\k+4))&511), %((\\d*(\\k+4)+128)&511), %((\\d*(\\k+5))&511), %((\\d*(\\k+5)+128)&511)
.endm
.macro glane0 d
g8s 0, %((\\d*256)&511), %((\\d*1)&511), %((\\d+128)&511), %((\\d*4)&511), %((\\d*4+128)&511), %((\\d*5)&511), %((\\d*5+128)&511)
.endm
.macro ghalf d0, k
.set ll, 0
.rept 32
glane %(\\d0+ll), \\k
.set ll, ll+1
.endr
.endm
.macro ghalf0 d0
.set ll, 0
.rept 32
glane0 %(\\d0+ll)
.set ll, ll+1
.endr
.endm
.macro gtile d0
ghalf0 \\d0
ghalf \\d0, 2
.set gg, 1
.rept 31
ghalf \\d0, %(8*gg)
ghalf \\d0, %(8*gg+2)
.set gg, gg+1
.endr
.endm
.p2align 8
tab_G:
.set tt, 0
.rept 16
gtile %(32*tt)
.set tt, tt+1
.endr
.noaltmacro
.p2align 8
tab_S:
""")
    st = small_tables().view(np.uint64)
    for i in range(0, len(st), 8):
        o.append(".quad " + ",".join(f"0x{v:x}" for v in st[i:i+8]))
    return "\n".join(o) + "\n"

if MERGE:
    hdr = f"""; fused LN + GFNet spectral filter + ReGLU, single persistent launch (256 co-resident workgroups)
; @launch {LK}grid=(256,1,1) block=(512,1,1) lds=163840
.amdgcn_target "amdgcn-amd-amdhsa--gfx950"
.text
.globl {KNAME}
.type {KNAME},@function
"""
    src = hdr + gen_k1() + gen_k23_main() + "code_end:\n" + tables_asm()
    src += '.section .rodata,"a"\n.p2align 6\n' + kd(KNAME, 256)
else:
    hdr = """; fused LN + GFNet spectral filter + ReGLU, 2 launches
; @launch kernel=k1_kernel grid=(256,1,1) block=(512,1,1) lds=163840
; @launch kernel=k23_kernel grid=(256,1,1) block=(512,1,1) lds=163840
.amdgcn_target "amdgcn-amd-amdhsa--gfx950"
.text
.globl k1_kernel
.type k1_kernel,@function
.globl k23_kernel
.type k23_kernel,@function
"""
    src = hdr + gen_k1() + gen_k23_main() + "code_end:\n" + tables_asm()
    src += '.section .rodata,"a"\n.p2align 6\n' + kd("k1_kernel", 256) + ".p2align 6\n" + kd("k23_kernel", 256)
open(OUT, "w").write(src)
print("wrote", OUT, len(src))
```

```python
import numpy as np, sys, math

OUT = sys.argv[1] if len(sys.argv) > 1 else "recurrent_scan__spectral_gfnet__glu_gated_reglu__prompt.s"

WS_H = 0
WS_Y = 8 << 20
WS_Z = 10 << 20
WS_W = 12 << 20
WS_SIZE = 268435456
WS_FL = 15 << 20

def bf16(x):
    u = np.asarray(x, np.float32).view(np.uint32).astype(np.uint64)
    r = ((u + 0x7fff + ((u >> 16) & 1)) >> 16).astype(np.uint16)
    return r
def f16(x):
    return np.asarray(x, np.float64).astype(np.float16).view(np.uint16)

import os
STAMP = os.environ.get("STAMP", "0") == "1"
MERGE = os.environ.get('MERGE','1') == '1'
DIAG = os.environ.get('DIAG','0') == '1'
LK = '' if os.environ.get('PLAIN','0')=='1' else 'kernel=recurrent_scan__spectral_gfnet__glu_gated_reglu__prompt_kernel '
KNAME = 'recurrent_scan__spectral_gfnet__glu_gated_reglu__prompt_kernel'
WS_ST = 16 << 20
class Asm:
    def __init__(self):
        self.lines = []
        self.vm = []
        self.nst = 0
        self.issued = set()
        self.lq = []
        self.sb = 74
        self.maxst = 14
    def stamp(self):
        if not STAMP or self.nst >= self.maxst: return
        self(f"s_memtime s[{self.sb+2*self.nst}:{self.sb+1+2*self.nst}]")
        self("s_waitcnt lgkmcnt(0)")
        self.lq = []
        self.nst += 1
    def stamp_store(self, kidx, wavereg="s3"):
        if not STAMP: return
        self("s_waitcnt lgkmcnt(0)")
        self(f"s_lshl_b32 s62, s2, 4")
        self(f"s_add_u32 s62, s62, {wavereg}")
        self(f"s_lshl_b32 s62, s62, 7")
        self(f"s_add_u32 s62, s62, {WS_ST + kidx*(1<<20)}")
        self("v_mov_b32 v0, 0")
        for i in range(self.nst):
            self(f"v_mov_b32 v1, s{self.sb+2*i}")
            self(f"buffer_store_dword v1, v0, s[40:43], s62 offen offset:{4*i}")
    def __call__(self, s):
        for ln in s.strip("\n").split("\n"):
            self.lines.append("  " + ln.strip() if not ln.strip().endswith(":") else ln.strip())
    def raw(self, s):
        self.lines.append(s)
    def vmem(self, s, tag):
        self(s); self.vm.append(tag); self.issued.add(tag)
        assert len(self.vm) <= 63, "vmcnt overflow"
    def wait_vm(self, tag):
        assert tag in self.issued, tag
        if tag not in self.vm: return
        idx = max(i for i, t in enumerate(self.vm) if t == tag)
        n = len(self.vm) - 1 - idx
        self(f"s_waitcnt vmcnt({n})")
        self.vm = self.vm[idx + 1:]
    def lds(self, s, tag):
        self(s); self.lq.append(tag)
    def wait_lds(self, tag):
        if tag not in self.lq: return
        idx = max(i for i, t in enumerate(self.lq) if t == tag)
        n = min(len(self.lq) - 1 - idx, 15)
        self(f"s_waitcnt lgkmcnt({n})")
        self.lq = self.lq[len(self.lq) - n:] if n else []
    def wait_lds_all(self):
        self("s_waitcnt lgkmcnt(0)"); self.lq = []
    def wait_vm_all(self):
        self("s_waitcnt vmcnt(0)"); self.vm = []
    def text(self):
        return "\n".join(self.lines) + "\n"

def srd(a, s, lo, hi, nbytes):
    a(f"s_mov_b32 s{s}, {lo}")
    a(f"s_mov_b32 s{s+1}, {hi}")
    a(f"s_mov_b32 s{s+2}, {nbytes}")
    a(f"s_mov_b32 s{s+3}, 0x20000")

def getpc_tab(a, s, sym):
    a(f"s_getpc_b64 s[{s}:{s+1}]")
    a(f"s_add_u32 s{s}, s{s}, {sym}@rel32@lo+4")
    a(f"s_addc_u32 s{s+1}, s{s+1}, {sym}@rel32@hi+12")

def kd(name, vgpr, sgpr=102):
    acc = min((vgpr + 3) // 4 * 4, 256)
    return f""".amdhsa_kernel {name}
  .amdhsa_next_free_vgpr {vgpr}
  .amdhsa_next_free_sgpr {sgpr}
  .amdhsa_accum_offset {acc}
  .amdhsa_group_segment_fixed_size 0
  .amdhsa_kernarg_size 80
  .amdhsa_user_sgpr_count 2
  .amdhsa_user_sgpr_kernarg_segment_ptr 1
  .amdhsa_system_sgpr_workgroup_id_x 1
.end_amdhsa_kernel
"""

K1_NS = 5
PREF = os.environ.get('PREF','1') == '1'
K1_PRE = int(os.environ.get('K1_PRE','2'))
K1_PRE2 = int(os.environ.get('K1_PRE2','2'))
P1BAR = int(os.environ.get('P1BAR','11'))
CODEPF = int(os.environ.get('CODEPF','5'))
PFS = int(os.environ.get('PFS','16'))
BWARM = int(os.environ.get('BWARM','0'))
SHARE = os.environ.get('SHARE','0') == '1'
FLATE = os.environ.get('FLATE','1') == '1'
PFSTR = int(os.environ.get('PFSTR','1'))
STP = os.environ.get('STP','sc1')
OSP = os.environ.get('OSP','sc1')
BNREV = os.environ.get('BNREV','1') == '1'
X_NOP2 = os.environ.get('X_NOP2','0')=='1'
X_NODMA = os.environ.get('X_NODMA','0')=='1'
X_NOBAR = os.environ.get('X_NOBAR','0')=='1'
cE1, cT1, cE2, cE3, cT2, cE4, cYR, cYI, cWW, cWM = 128, 144, 152, 168, 184, 192, 208, 212, 216, 232
def gen_k1():
    a = Asm()
    A0 = 128; ACC = 64; BF = 32
    PT = 24; TR = 16; PFD = 12
    VD, VFL, VD2, VNM, VRI, VPF, VPG, VFA = 1, 3, 4, 7, 8, 9, 10, 11
    a.raw(".p2align 8\n" + KNAME + ":\nk1_kernel:")
    a("""
    s_cmp_ge_u32 s2, 256
    s_cbranch_scc1 k1_end
    s_load_dwordx2 s[4:5], s[0:1], 0
    s_load_dwordx4 s[8:11], s[0:1], 8
    s_load_dwordx4 s[12:15], s[0:1], 32
    s_load_dwordx2 s[6:7], s[0:1], 72
    s_load_dwordx2 s[60:61], s[0:1], 48
    s_load_dwordx2 s[68:69], s[0:1], 64
    s_memrealtime s[70:71]
    v_lshrrev_b32 v1, 6, v0
    v_and_b32 v2, 63, v0
    s_nop 0
    v_readfirstlane_b32 s3, v1
    """)
    a(f"""
    s_and_b32 s16, s2, 7
    s_lshr_b32 s17, s2, 3
    s_and_b32 s18, s16, 1
    s_lshl_b32 s18, s18, 3
    s_and_b32 s58, s17, 7
    s_add_u32 s18, s18, s58
    s_lshr_b32 s19, s16, 1
    s_lshl_b32 s19, s19, 2
    s_lshr_b32 s20, s17, 3
    s_add_u32 s19, s19, s20
    s_lshl_b32 s59, s20, 2
    s_and_b32 s20, s3, 3
    s_lshr_b32 s21, s3, 2
    s_lshl_b32 s22, s18, 2
    s_add_u32 s22, s22, s20
    v_lshlrev_b32 v{VPF}, 4, v2
    """)
    getpc_tab(a, 64, "k1_kernel")
    a(f"""
    s_mov_b32 s66, code_end-k1_kernel
    s_mov_b32 s67, 0x20000
    s_lshl_b32 s57, s17, 1
    s_add_u32 s57, s57, s3
    s_lshl_b32 s57, s57, 10
    s_cmp_lt_u32 s3, 2
    s_cselect_b32 s57, s57, 0x7f000000
    """)
    a.vmem(f"buffer_load_dwordx4 v[{PFD}:{PFD+3}], v{VPF}, s[64:67], s57 offen", "cpf")
    getpc_tab(a, 24, "tab_F")
    a("""
    s_mov_b32 s26, 524288
    s_mov_b32 s27, 0x20000
    s_lshl_b32 s50, s21, 4
    s_lshl_b32 s51, s50, 6
    s_add_u32 s51, s51, s22
    s_lshl_b32 s51, s51, 10
    s_lshl_b32 s52, s20, 5
    s_add_u32 s52, s52, s50
    s_lshl_b32 s52, s52, 10
    s_lshl_b32 s53, s58, 3
    v_xor_b32 v3, s53, v2
    s_waitcnt lgkmcnt(0)
    """)
    a.stamp()
    srd(a, 28, "s4", "s5", 2048*1024)
    for u in range(16):
        a(f"""
        s_xor_b32 s54, s59, {u}
        v_xor_b32 v4, s54, v3
        v_lshlrev_b32 v4, 4, v4
        s_lshl_b32 s55, s54, 10
        s_add_u32 m0, s52, s55
        s_lshl_b32 s55, s54, 16
        s_add_u32 s53, s51, s55
        """)
        a.vmem("buffer_load_dwordx4 v4, s[28:31], s53 offen lds", "x")
    RR = 131072
    a(f"""
    s_xor_b32 s54, s3, s58
    s_lshl_b32 s54, s54, 12
    s_lshl_b32 s55, s19, 15
    s_add_u32 s54, s54, s55
    s_lshl_b32 s55, s3, 12
    s_add_u32 m0, s55, {RR}
    s_nop 0
    """)
    if not FLATE:
        for u in range(4):
            a.vmem(f"buffer_load_dwordx4 v{VPF}, s[24:27], s54 offen offset:{u*1024} lds", "x")
    else:
        a("s_mov_b32 s72, s54")
        a("s_mov_b32 s73, m0")
        a("s_mov_b32 s64, s24"); a("s_mov_b32 s65, s25"); a("s_mov_b32 s66, 524288")
    srd(a, 32, "s8", "s9", 2048*514)
    srd(a, 36, "s10", "s11", 2048*514)
    WL = ACC + 32
    a(f"""
    s_lshr_b32 s62, s2, 2
    s_lshl_b32 s62, s62, 2
    s_lshr_b32 s63, s3, 1
    s_add_u32 s62, s62, s63
    s_lshr_b32 s63, s62, 4
    s_lshl_b32 s63, s63, 7
    s_and_b32 s62, s62, 15
    s_add_u32 s63, s63, s62
    s_and_b32 s62, s3, 1
    s_lshl_b32 s62, s62, 4
    s_add_u32 s63, s63, s62
    s_mul_i32 s63, s63, 514
    s_and_b32 s62, s2, 3
    s_lshl_b32 s62, s62, 7
    s_add_u32 s63, s63, s62
    v_lshlrev_b32 v5, 1, v2
    """)
    for i in range(4):
        if i: a(f"s_add_u32 s63, s63, {32*514}")
        a.vmem(f"buffer_load_ushort v{WL+i}, v5, s[32:35], s63 offen", "w")
        a.vmem(f"buffer_load_ushort v{WL+4+i}, v5, s[36:39], s63 offen", "w")
    a(f"""
    v_mov_b32 v{WL+10}, 0x7fffff00
    s_cmp_eq_u32 s3, 7
    s_cbranch_scc0 k1_nosp1
    s_lshr_b32 s62, s2, 4
    s_lshl_b32 s62, s62, 7
    s_and_b32 s63, s2, 15
    s_add_u32 s62, s62, s63
    v_and_b32 v4, 3, v2
    v_lshlrev_b32 v4, 5, v4
    v_and_b32 v5, 4, v2
    v_lshl_add_u32 v4, v5, 2, v4
    v_add_u32 v4, s62, v4
    s_movk_i32 s63, 514
    v_mul_lo_u32 v5, v4, s63
    v_lshrrev_b32 v6, 3, v2
    v_cmp_eq_u32 vcc, 1, v6
    v_add_u32 v30, 512, v5
    s_nop 0
    v_cndmask_b32 v5, v30, v5, vcc
    v_mov_b32 v30, 0x7fffff00
    v_cmp_gt_u32 vcc, 24, v2
    s_nop 1
    v_cndmask_b32 v5, v30, v5, vcc
    buffer_load_ushort v{WL+8}, v5, s[32:35], 0 offen
    buffer_load_ushort v{WL+9}, v5, s[36:39], 0 offen
    v_sub_u32 v5, 2048, v4
    v_and_b32 v5, 2047, v5
    v_cmp_eq_u32 s[62:63], 0, v6
    s_nop 1
    v_cndmask_b32 v4, v5, v4, s[62:63]
    v_lshrrev_b32 v5, 7, v4
    v_lshlrev_b32 v5, 9, v5
    v_and_b32 v31, 15, v4
    v_lshl_add_u32 v5, v31, 5, v5
    v_and_b32 v31, 16, v4
    v_add_u32 v5, v5, v31
    v_bfe_u32 v31, v4, 5, 2
    v_lshl_add_u32 v5, v31, 2, v5
    v_lshl_add_u32 v5, v6, 13, v5
    v_add_u32 v5, {WS_W + 256*8192}, v5
    v_cndmask_b32 v{WL+10}, v30, v5, vcc
    k1_nosp1:
    """)
    srd(a, 40, "s6", "s7", WS_SIZE)
    CS = ACC + 48
    getpc_tab(a, 32, "tab_G")
    a(f"""
    s_mov_b32 s34, {524288 + TSZ}
    s_lshl_b32 s62, s19, 7
    s_lshl_b32 s63, s21, 6
    s_add_u32 s62, s62, s63
    s_add_u32 s62, s62, {524288 + TCS}
    v_lshrrev_b32 v5, 5, v2
    v_lshlrev_b32 v5, 4, v5
    """)
    a.vmem(f"buffer_load_dwordx4 v[{CS}:{CS+3}], v5, s[32:35], s62 offen", "cs")
    a.vmem(f"buffer_load_dwordx4 v[{CS+4}:{CS+7}], v5, s[32:35], s62 offen offset:32", "cs")
    a(f"""
    s_and_b32 s23, s3, 1
    s_cmp_eq_u32 s23, 0
    s_cselect_b32 s44, s12, s14
    s_cselect_b32 s45, s13, s15
    s_mov_b32 s46, 1835008
    s_mov_b32 s47, 0x20000
    s_movk_i32 s48, 3584
    s_mul_i32 s49, s19, 224
    v_lshrrev_b32 v8, 4, v2
    v_and_b32 v6, 15, v2
    v_lshrrev_b32 v6, 1, v6
    v_lshlrev_b32 v10, 1, v8
    v_xor_b32 v6, v6, v10
    v_xor_b32 v6, s23, v6
    v_lshlrev_b32 v6, 5, v6
    v_and_b32 v10, 1, v2
    v_lshlrev_b32 v10, 4, v10
    v_add_u32 v6, v6, v10
    v_mul_lo_u32 v8, v8, s48
    v_add_u32 v6, v6, v8
    v_add_u32 v{VD}, s49, v6
    s_lshr_b32 s50, s3, 1
    s_lshl_b32 s50, s50, 3
    s_mul_i32 s52, s50, s48
    s_lshl_b32 s53, s50, 8
    s_lshl_b32 s54, s23, 13
    s_add_u32 s53, s53, s54
    s_lshl_b32 s54, s48, 2
    s_lshl_b32 s55, s48, 5
    s_lshl_b32 s58, s58, 1
    v_add_u32 v{VD}, s52, v{VD}
    v_add_u32 v{VD2}, s54, v{VD}
    """)
    RING = [0, 1, 2, 3, 6, 7, 8] if SHARE else [0, 1, 2, 3, 6, 7, 8, 9]
    NRG = len(RING)
    SPARE = 65536
    YT = SPARE + 512
    def dma_one(c, u):
        if u == 0:
            a(f"s_xor_b32 s56, s58, {c}")
        a(f"s_add_u32 m0, s53, {RING[c % NRG]*16384 + u*1024}")
        if u == 0: a("s_mul_i32 s56, s56, s55")
        else: a("s_nop 0")
        a.vmem(f"buffer_load_dwordx4 v{VD if u == 0 else VD2}, s[44:47], s56 offen lds", f"c{c}")
    a(f"""
    v_lshrrev_b32 v10, 4, v2
    v_and_b32 v6, 15, v2
    v_lshrrev_b32 v31, 2, v6
    v_and_b32 v6, 3, v6
    v_lshrrev_b32 v30, 1, v10
    v_lshlrev_b32 v30, 3, v30
    v_add_u32 v30, v30, v31
    v_lshlrev_b32 v30, 8, v30
    v_lshl_add_u32 v30, v6, 3, v30
    v_and_b32 v10, 1, v10
    v_lshl_add_u32 v30, v10, 13, v30
    v_lshlrev_b32 v31, 1, v31
    v_xor_b32 v31, v31, v10
    s_mul_i32 s57, s21, 3
    """)
    for k in range(4):
        a(f"""
        v_xor_b32 v10, s57, v31
        v_lshl_add_u32 v{TR+k}, v10, 5, v30
        v_add_u32 v{TR+4+k}, 98304, v{TR+k}
        s_add_u32 s57, s57, 1
        """)
    a(f"""
    v_and_b32 v10, 31, v2
    v_lshrrev_b32 v6, 5, v2
    v_and_b32 v31, 15, v2
    v_xor_b32 v6, v6, v31
    s_lshl_b32 s57, s20, 15
    v_lshlrev_b32 v10, 10, v10
    v_add_u32 v10, s57, v10
    """)
    for tt in range(8):
        a(f"v_xor_b32 v31, {2*tt}, v6")
        a(f"v_lshl_add_u32 v{ACC+16+tt}, v31, 4, v10")
    a(f"""
    s_mov_b32 s26, 0x3f803f80
    s_mov_b32 s27, 0xffff0000
    v_mov_b32 v24, 0
    v_mov_b32 v25, 0
    v_mov_b32 v26, 0
    v_mov_b32 v27, 0
    s_lshl_b32 s57, s21, 6
    s_lshl_b32 s62, s21, 14
    s_add_u32 s62, s62, {RR}
    v_add_u32 v5, s62, v{VPF}
    """)
    for c in range(BWARM):
        a(f"s_xor_b32 s56, s58, {c}")
        a("s_mul_i32 s56, s56, s55")
        a.vmem(f"buffer_load_dwordx4 v[{PFD}:{PFD+3}], v{VD}, s[44:47], s56 offen", "bw")
        a.vmem(f"buffer_load_dwordx4 v[{PFD}:{PFD+3}], v{VD2}, s[44:47], s56 offen", "bw")
    a.stamp()
    a.wait_vm("x")
    a("s_barrier")
    a.stamp()
    if FLATE:
        a("s_mov_b32 m0, s73")
        a("s_nop 0")
        for u in range(4):
            a.vmem(f"buffer_load_dwordx4 v{VPF}, s[64:67], s72 offen offset:{u*1024} lds", "f")
    for t in range(32):
        a(f"ds_read_b128 v[{A0+4*t}:{A0+4*t+3}], v{ACC + 16 + t%8} offset:{(t//8)*256}")
    a.wait_vm("w")
    for i in range(4):
        a(f"v_lshl_or_b32 v{WL+12+i}, v{WL+4+i}, 16, v{WL+i}")
    a(f"""
    s_cmp_eq_u32 s3, 7
    s_cbranch_scc0 k1_nosp2
    v_lshl_or_b32 v{WL+8}, v{WL+9}, 16, v{WL+8}
    buffer_store_dword v{WL+8}, v{WL+10}, s[40:43], 0 offen sc1
    v_mov_b32 v30, 0
    v_mov_b32 v31, 0x7fffff00
    v_cmp_eq_u32 vcc, 0, v2
    s_lshl_b32 s51, s2, 4
    s_add_u32 s51, s51, {WS_FL}
    v_cndmask_b32 v31, v31, v30, vcc
    buffer_store_dword v30, v31, s[40:43], s51 offen sc1
    s_add_u32 s51, s51, 8192
    buffer_store_dword v30, v31, s[40:43], s51 offen sc1
    s_add_u32 s51, s51, 8192
    buffer_store_dword v30, v31, s[40:43], s51 offen sc1
    s_cmp_eq_u32 s2, 0
    s_cbranch_scc0 k1_nosp2
    s_or_b32 s70, s70, 1
    v_mov_b32 v31, s70
    s_mov_b64 exec, 1
    global_store_dword v30, v31, s[68:69] sc1
    s_mov_b64 exec, -1
    k1_nosp2:
    """)
    a("s_waitcnt lgkmcnt(14)")
    a("s_set_gpr_idx_on s57, gpr_idx(SRC0,SRC1)")
    for t in range(16):
        if t % 2 == 0 and t > 0 and t <= P1BAR:
            a(f"s_waitcnt lgkmcnt({max(14 - t, 0)})")
        for r in range(4):
            reg = A0 + 4*t + r
            a(f"v_dot2_f32_bf16 v{24 + r%2}, v{reg}, s26, v{24 + r%2}")
            a(f"v_dot2_f32_bf16 v{26 + r%2}, v{reg}, v{reg}, v{26 + r%2}")
        if t == P1BAR:
            if FLATE: a.wait_vm("f")
            a("s_waitcnt lgkmcnt(0)")
            a("s_barrier")
            a("s_set_gpr_idx_off")
            pend = [(c, u) for c in range(16) for u in range(2)]
            for _ in range(2*K1_PRE): dma_one(*pend.pop(0))
            for tt in range(8):
                a(f"ds_read_b128 v[{BF+4*tt}:{BF+4*tt+3}], v5 offset:{tt*1024}")
            a("s_set_gpr_idx_on s57, gpr_idx(SRC0,SRC1)")
    a("s_set_gpr_idx_off")
    a.stamp()
    def mini(ch):
        for t in range(16):
            fb = BF + 4*(t % 8)
            if t < 8: a(f"s_waitcnt lgkmcnt({7})" if t > 0 else "s_waitcnt lgkmcnt(0)")
            else: a(f"s_waitcnt lgkmcnt({15 - t})")
            ar = A0 + 4*(16*ch + t)
            cin = "0" if t == 0 else f"v[{ACC}:{ACC+15}]"
            a(f"v_mfma_f32_32x32x16_bf16 v[{ACC}:{ACC+15}], v[{fb}:{fb+3}], v[{ar}:{ar+3}], {cin}")
            if t < 8:
                a(f"ds_read_b128 v[{fb}:{fb+3}], v5 offset:{(t+8)*1024}")
    a("s_cmp_eq_u32 s21, 0")
    a("s_cbranch_scc0 k1_mini1")
    mini(0)
    a("s_branch k1_minid")
    a.raw("k1_mini1:")
    mini(1)
    a.raw("k1_minid:")
    for _ in range(2*K1_PRE2): dma_one(*pend.pop(0))
    a(f"""
    v_add_f32 v24, v24, v25
    v_add_f32 v25, v26, v27
    v_mov_b32 v26, v24
    v_mov_b32 v27, v25
    s_lshl_b32 s57, s3, 9
    s_add_u32 s57, s57, {SPARE + 4096}
    v_lshlrev_b32 v10, 3, v2
    v_permlane32_swap_b32 v24, v26
    v_permlane32_swap_b32 v25, v27
    v_add_u32 v10, s57, v10
    v_add_f32 v24, v24, v26
    v_add_f32 v25, v25, v27
    v_xor_b32 v6, 0x800, v10
    ds_write_b64 v10, v[24:25]
    s_lshl_b32 s57, s3, 2
    s_add_u32 s57, s57, {SPARE}
    v_mov_b32 v{VFA}, s57
    v_mov_b32 v{VPG}, 0
    ds_write_b32 v{VFA}, v{VPG}
    v_and_b32 v{VFL}, 7, v2
    v_xor_b32 v30, s3, v{VFL}
    v_lshlrev_b32 v30, 4, v30
    v_lshl_add_u32 v30, v2, 7, v30
    v_add_u32 v30, {SPARE + 8192}, v30
    ds_write_b128 v30, v[{WL+12}:{WL+15}]
    v_lshlrev_b32 v{VFL}, 2, v{VFL}
    v_add_u32 v{VFL}, {SPARE}, v{VFL}
    s_lshl_b32 s57, s3, 11
    s_add_u32 s57, s57, {SPARE + 16384}
    v_add_u32 v30, s57, v{VPF}
    v_xor_b32 v31, 0x2000, v30
    s_cmp_eq_u32 s21, 0
    s_cbranch_scc0 k1_px1
    ds_write_b128 v30, v[{ACC+8}:{ACC+11}]
    ds_write_b128 v30, v[{ACC+12}:{ACC+15}] offset:1024
    s_branch k1_pxd
    k1_px1:
    ds_write_b128 v30, v[{ACC}:{ACC+3}]
    ds_write_b128 v30, v[{ACC+4}:{ACC+7}] offset:1024
    """)
    for r in range(8): a(f"v_mov_b32 v{ACC+r}, v{ACC+8+r}")
    a(f"""
    k1_pxd:
    s_mov_b32 s28, s60
    s_mov_b32 s29, s61
    s_mov_b32 s30, {1792*1024}
    s_lshr_b32 s50, s2, 3
    s_lshl_b32 s50, s50, 3
    s_add_u32 s50, s50, s3
    s_mul_i32 s62, s50, 7168
    s_mul_i32 s63, s50, 3072
    v_lshrrev_b32 v28, 3, v2
    v_and_b32 v5, 7, v2
    v_xor_b32 v29, v28, v5
    v_lshlrev_b32 v29, 4, v29
    v_lshl_add_u32 v29, v28, 7, v29
    s_lshl_b32 s57, s3, 10
    s_add_u32 s57, s57, {SPARE + 8192}
    v_add_u32 v29, s57, v29
    v_lshlrev_b32 v5, 4, v5
    v_lshl_add_u32 v5, v28, 13, v5
    s_and_b32 s57, s2, 3
    s_lshl_b32 s57, s57, 3
    s_add_u32 s57, s57, s3
    s_lshl_b32 s57, s57, 16
    s_lshr_b32 s51, s2, 2
    s_lshl_b32 s51, s51, 7
    s_add_u32 s57, s57, s51
    s_add_u32 s51, s57, {WS_W}
    """)
    a.stamp()
    a.wait_vm("c1")
    a("s_waitcnt lgkmcnt(0)")
    a("s_barrier")
    a.stamp()
    YT = RR + 16384 + 8192
    a(f"""
    ds_read_b64 v[26:27], v6
    ds_read_b128 v[{WL}:{WL+3}], v29
    ds_read_b128 v[{ACC+8}:{ACC+11}], v31
    ds_read_b128 v[{ACC+12}:{ACC+15}], v31 offset:1024
    s_waitcnt lgkmcnt(2)
    v_add_f32 v24, v24, v26
    v_add_f32 v25, v25, v27
    v_mul_f32 v24, 0x3b000000, v24
    v_mul_f32 v25, 0x3b000000, v25
    v_fma_f32 v{VRI}, -v24, v24, v25
    v_cvt_pk_bf16_f32 v27, v24, v24
    v_lshlrev_b32 v27, 16, v27
    v_sub_f32 v{VNM}, 0, v27
    v_mul_f32 v29, v24, v24
    v_mul_f32 v30, 0x43800000, v{VRI}
    v_cmp_gt_f32 vcc, v29, v30
    """)
    a.vmem(f"buffer_store_dwordx4 v[{WL}:{WL+3}], v5, s[40:43], s51 offen sc1", "ws")
    a(f"""
    s_cbranch_vccz k1_fast
    v_mov_b32 v28, 0
    v_mov_b32 v29, 0
    s_mov_b32 s56, 0
    k1_slow:
    s_set_gpr_idx_on s56, gpr_idx(SRC1)
    v_lshlrev_b32 v30, 16, v{A0}
    v_and_b32 v31, s27, v{A0}
    s_set_gpr_idx_off
    v_add_f32 v30, v{VNM}, v30
    v_add_f32 v31, v{VNM}, v31
    v_fma_f32 v28, v30, v30, v28
    v_fma_f32 v29, v31, v31, v29
    s_add_u32 s56, s56, 1
    s_cmp_lt_u32 s56, 128
    s_cbranch_scc1 k1_slow
    v_add_f32 v28, v28, v29
    v_mov_b32 v29, v28
    v_sub_f32 v26, v24, v27
    s_nop 0
    v_permlane32_swap_b32 v28, v29
    v_add_f32 v28, v28, v29
    v_mul_f32 v28, 0x3b000000, v28
    v_fma_f32 v{VRI}, -v26, v26, v28
    k1_fast:
    v_max_f32 v28, 0, v{VRI}
    v_cvt_pk_bf16_f32 v28, v28, v28
    v_lshlrev_b32 v28, 16, v28
    v_add_f32 v28, 0x3727c5ac, v28
    v_cvt_pk_bf16_f32 v28, v28, v28
    v_lshlrev_b32 v28, 16, v28
    v_sqrt_f32 v28, v28
    v_and_b32 v30, 31, v2
    v_cvt_pk_bf16_f32 v28, v28, v28
    v_lshlrev_b32 v28, 16, v28
    v_rcp_f32 v{VRI}, v28
    v_lshlrev_b32 v30, 1, v30
    v_lshrrev_b32 v31, 5, v2
    v_lshl_add_u32 v30, v31, 10, v30
    s_lshl_b32 s57, s20, 6
    s_lshl_b32 s56, s21, 12
    s_add_u32 s57, s57, s56
    s_add_u32 s57, s57, {YT}
    v_add_u32 v30, s57, v30
    s_waitcnt lgkmcnt(0)
    """)
    a.wait_vm("cs")
    for r in range(8): a(f"v_add_f32 v{ACC+r}, v{ACC+r}, v{ACC+8+r}")
    for r in range(8): a(f"v_fma_f32 v{ACC+r}, v{VNM}, v{CS+r}, v{ACC+r}")
    for r in range(8): a(f"v_mul_f32 v{ACC+r}, v{VRI}, v{ACC+r}")
    for r in range(8): a(f"v_cvt_f16_f32 v{ACC+r}, v{ACC+r}")
    for r in range(8):
        a(f"ds_write_b16 v30, v{ACC+r} offset:{(8*(r//4) + r%4)*256}")
    a(f"""
    s_lshl_b32 s57, s3, 10
    s_add_u32 s57, s57, {YT}
    v_add_u32 v5, s57, v{VPF}
    v_lshrrev_b32 v6, 4, v2
    v_lshlrev_b32 v6, 12, v6
    v_and_b32 v31, 15, v2
    v_lshl_add_u32 v6, v31, 4, v6
    s_lshl_b32 s51, s19, 5
    s_lshl_b32 s57, s3, 2
    s_add_u32 s51, s51, s57
    s_lshl_b32 s51, s51, 12
    s_lshl_b32 s57, s18, 8
    s_add_u32 s51, s51, s57
    s_add_u32 s51, s51, {WS_Y}
    """)
    if DIAG: a("s_memrealtime s[92:93]"); a("s_waitcnt lgkmcnt(0)")
    if SHARE:
        a(f"""
        s_lshl_b32 s48, s3, 12
        s_add_u32 s48, s48, {SPARE + 4096}
        s_cmp_eq_u32 s3, 7
        s_cselect_b32 s48, {RR + 16384}, s48
        s_xor_b32 s57, s3, 4
        s_lshl_b32 s49, s57, 12
        s_add_u32 s49, s49, {SPARE + 4096}
        s_cmp_eq_u32 s57, 7
        s_cselect_b32 s49, {RR + 16384}, s49
        """)
    vm_save = list(a.vm); nst_save = a.nst; pend_save = list(pend)

    def p2(i, r):
        reg = A0 + i*4 + r
        t0, t1 = PT + 2*r, PT + 2*r + 1
        return [f"v_lshlrev_b32 v{t0}, 16, v{reg}", f"v_and_b32 v{t1}, s27, v{reg}",
                f"v_add_f32 v{t0}, v{VNM}, v{t0}", f"v_add_f32 v{t1}, v{VNM}, v{t1}",
                f"v_cvt_pk_bf16_f32 v{reg}, v{t0}, v{t1}"]
    def p2_seq(i):
        o = [p2(i, r) for r in range(4)]
        return [o[0][0], o[0][1], o[1][0], o[1][1], o[2][0], o[2][1], o[3][0], o[3][1], o[0][2], o[0][3],
                o[1][2], o[1][3], o[2][2], o[2][3], o[3][2], o[3][3], o[0][4], o[1][4], o[2][4], o[3][4]]

    def mainloop(ch):
        NT = 3 + ch
        a.vm = list(vm_save); a.nst = nst_save
        pend = list(pend_save)
        lab = str(ch)
        NR = 2 * NT
        def reads(i, buf):
            c, s_ = i // 2, i % 2
            pos = RING[c % NRG] * 16384
            win = 1 if pos >= 98304 else 0
            base = pos - 98304 * win
            for k in range(NT):
                fr = BF + buf*16 + k*4
                for t in range(2):
                    a(f"ds_read_b64_tr_b16 v[{fr+2*t}:{fr+2*t+1}], v{TR+4*win+k} offset:{base + (16*s_ + 4*t)*256}")
        def mfma(i, buf, k):
            areg = A0 + 4*i
            fr = BF + buf*16 + k*4
            acc = ACC + k*16
            cin = "0" if i == 0 else f"v[{acc}:{acc+15}]"
            a(f"v_mfma_f32_32x32x16_bf16 v[{acc}:{acc+15}], v[{fr}:{fr+3}], v[{areg}:{areg+3}], {cin}")
        reads(0, 0)
        for ins in p2_seq(0): a(ins)
        a.stamp()
        limit = 6
        npf = 0
        for i in range(32):
            c, s_ = i // 2, i % 2
            buf = i & 1
            if s_ == 0:
                if c >= 1 and c < 15: a(f"ds_read_b32 v0, v{VFL}")
                reads(i + 1, buf ^ 1)
                a(f"s_waitcnt lgkmcnt({NR})")
                if c == 2:
                    a.vmem(f"buffer_store_dwordx4 v[{PFD}:{PFD+3}], v6, s[40:43], s51 offen sc1", "ys")
                    a("v_mov_b32 v5, 0")
                    a.vmem("global_load_dword v5, v5, s[68:69] sc1", "nonce")
                if c + 2 < 16:
                    assert not pend or pend[0][0] > c + 2
                    a.wait_vm(f"c{c+2}")
                    if c == 5: a.wait_vm("nonce")
                    a(f"v_mov_b32 v{VPG}, {c+1}")
                    a(f"ds_write_b32 v{VFA}, v{VPG}")
            else:
                if i + 1 < 32:
                    if c >= 1:
                        a(f"""
                        k1_spin{lab}_{c}:
                        v_cmp_gt_u32 vcc, {c}, v0
                        s_cbranch_vccz k1_ok{lab}_{c}
                        ds_read_b32 v0, v{VFL}
                        s_waitcnt lgkmcnt(0)
                        s_branch k1_spin{lab}_{c}
                        k1_ok{lab}_{c}:
                        """)
                        if SHARE: limit = max(limit, c + 5)
                        elif c >= 3: limit = c + 6
                        if c == 1:
                            a(f"ds_read_b128 v[{PFD}:{PFD+3}], v5")
                        if SHARE and 3 <= c <= 14:
                            fi = 2*(c + 1) + (1 - ch)
                            a(f"v_add_u32 v0, s49, v{VPF}")
                            a(f"ds_read_b128 v[{A0+4*fi}:{A0+4*fi+3}], v0 offset:{((c-2) % 4)*1024}")
                        if c == 6:
                            a(f"""
                            s_mov_b32 s57, 0
                            k1_nn{lab}:
                            v_readfirstlane_b32 s6, v5
                            s_cmp_lg_u32 s6, 0
                            s_cbranch_scc1 k1_nh{lab}
                            s_add_u32 s57, s57, 1
                            s_cmp_ge_u32 s57, 0x8000
                            s_cbranch_scc1 k1_nh{lab}
                            v_mov_b32 v5, 0
                            global_load_dword v5, v5, s[68:69] sc1
                            s_waitcnt vmcnt(0)
                            s_branch k1_nn{lab}
                            k1_nh{lab}:
                            """)
                            if ch == 0:
                                a(f"""
                                s_cmp_eq_u32 s3, 0
                                s_cbranch_scc0 k1_nofy
                                s_lshl_b32 s57, s2, 4
                                s_add_u32 s57, s57, {WS_FL + 16384}
                                v_mov_b32 v6, 0
                                s_mov_b64 exec, 1
                                buffer_store_dword v5, v6, s[40:43], s57 offen sc1
                                s_mov_b64 exec, -1
                                k1_nofy:
                                """)
                    reads(i + 1, buf ^ 1)
                    a(f"s_waitcnt lgkmcnt({NR})")
                else:
                    a("s_waitcnt lgkmcnt(0)")
            if not SHARE:
                seq = p2_seq(i + 1) if i + 1 < 32 else []
            else:
                seq = p2_seq(i + 1) if i + 1 < 8 else []
                if 1 <= c <= 12:
                    fo = 2*(c + 3) + ch
                    o_ = [p2(fo, r) for r in (2*s_, 2*s_ + 1)]
                    seq = seq + [o_[0][0], o_[0][1], o_[1][0], o_[1][1], o_[0][2], o_[0][3], o_[1][2], o_[1][3], o_[0][4], o_[1][4]]
                    if s_ == 1:
                        seq = seq + [f"v_add_u32 v{PT}, s48, v{VPF}", f"ds_write_b128 v{PT}, v[{A0+4*fo}:{A0+4*fo+3}] offset:{(c % 4)*1024}"]
            per = (len(seq) + NT - 1) // NT if seq else 1
            for k in range(NT):
                mfma(i, buf, k)
                for ins in seq[k*per:(k+1)*per]: a(ins)
                if k in (0, 2) and pend and pend[0][0] <= limit:
                    dma_one(*pend.pop(0))
                if PREF and k == 1 and i >= PFS and npf < 10 and (i - PFS) % PFSTR == 0:
                    if npf < 7:
                        a.vmem(f"buffer_load_dwordx4 v[{PFD}:{PFD+3}], v{VPF}, s[28:31], s62 offen offset:{(npf % 4)*1024}", "pf")
                        if npf == 3: a("s_add_u32 s62, s62, 4096")
                    else:
                        a.vmem(f"buffer_load_dwordx4 v[{PFD}:{PFD+3}], v{VPF}, s[32:35], s63 offen offset:{(npf-7)*1024}", "pf")
                    npf += 1
            if ch == 0:
                TB = 524288
                CL_ = [(cE1+4*q, "s72", TE1+q*1024) for q in range(4)] + [(cT1+4*q, "s73", q*1024) for q in range(2)] + \
                      [(cE2+4*q, "s16", q*1024) for q in range(4)] + [(cE3+4*q, "s17", q*1024) for q in range(4)] + \
                      [(cT2+4*q, "s24", q*1024) for q in range(2)] + [(cE4+4*q, "s25", q*1024) for q in range(4)]
                if i == 3:
                    a(f"""
                    s_mov_b32 s72, {TB}
                    s_lshl_b32 s57, s3, 11
                    s_add_u32 s73, s57, {TB + TT1}
                    s_add_u32 s24, s57, {TB + TT2}
                    s_lshl_b32 s57, s3, 12
                    s_add_u32 s16, s57, {TB + TE2}
                    s_add_u32 s17, s57, {TB + TE3}
                    s_mov_b32 s25, {TB + TE4}
                    """)
                if 4 <= i < 24:
                    d_, so, of = CL_[i - 4]
                    assert (d_ - A0) // 4 <= i
                    a.vmem(f"buffer_load_dwordx4 v[{d_}:{d_+3}], v{VPF}, s[32:35], {so} offen offset:{of}", "ct")
                X_ = ACC + 48
                if i == 21:
                    a(f"s_mov_b32 s57, {WS_FL + 16384}")
                    for q in range(4):
                        a.vmem(f"buffer_load_dword v{X_+q}, v{VPF}, s[40:43], s57 offen offset:{q*1024} sc1", "fy")
                    a(f"""
                    v_and_b32 v{X_+4}, 15, v2
                    v_lshlrev_b32 v{X_+4}, 6, v{X_+4}
                    v_lshrrev_b32 v{X_+5}, 4, v2
                    v_lshl_add_u32 v{X_+4}, v{X_+5}, 4, v{X_+4}
                    v_lshlrev_b32 v{X_+5}, 5, v2
                    s_lshl_b32 s72, s2, 13
                    s_lshl_b32 s73, s3, 10
                    s_add_u32 s16, s72, s73
                    s_add_u32 s16, s16, {WS_Y}
                    s_add_u32 s17, s16, 4096
                    s_lshl_b32 s73, s3, 11
                    s_add_u32 s72, s72, s73
                    s_add_u32 s72, s72, {WS_W}
                    s_add_u32 s73, s73, {WS_W + 256*8192}
                    """)
                if i == 25:
                    a.wait_vm("fy")
                    a(f"""
                    s_mov_b32 s56, 0
                    s_mov_b32 s57, {WS_FL + 16384}
                    k1_fys:
                    v_xor_b32 v{X_}, s6, v{X_}
                    v_xor_b32 v{X_+1}, s6, v{X_+1}
                    v_xor_b32 v{X_+2}, s6, v{X_+2}
                    v_xor_b32 v{X_+3}, s6, v{X_+3}
                    v_or3_b32 v{X_}, v{X_}, v{X_+1}, v{X_+2}
                    v_or_b32 v{X_}, v{X_}, v{X_+3}
                    v_cmp_ne_u32 vcc, 0, v{X_}
                    s_cbranch_vccz k1_fyok
                    s_add_u32 s56, s56, 1
                    s_cmp_ge_u32 s56, 0x4000
                    s_cbranch_scc1 k1_fyok
                    s_sleep 16
                    buffer_load_dword v{X_}, v{VPF}, s[40:43], s57 offen sc1
                    buffer_load_dword v{X_+1}, v{VPF}, s[40:43], s57 offen offset:1024 sc1
                    buffer_load_dword v{X_+2}, v{VPF}, s[40:43], s57 offen offset:2048 sc1
                    buffer_load_dword v{X_+3}, v{VPF}, s[40:43], s57 offen offset:3072 sc1
                    s_waitcnt vmcnt(0)
                    s_branch k1_fys
                    k1_fyok:
                    """)
                    a.vmem(f"buffer_load_dwordx4 v[{cYR}:{cYR+3}], v{X_+4}, s[40:43], s16 offen sc1", "ct")
                    a.vmem(f"buffer_load_dwordx4 v[{cYI}:{cYI+3}], v{X_+4}, s[40:43], s17 offen sc1", "ct")
                if i == 26:
                    a.vmem(f"buffer_load_dwordx4 v[{cWW}:{cWW+3}], v{X_+5}, s[40:43], s72 offen sc1", "ct")
                    a.vmem(f"buffer_load_dwordx4 v[{cWW+4}:{cWW+7}], v{X_+5}, s[40:43], s72 offen offset:16 sc1", "ct")
                if i == 30:
                    a(f"""
                    s_cmp_eq_u32 s2, 0
                    s_cbranch_scc0 k1_nosp3
                    buffer_load_dwordx4 v[{cWW+8}:{cWW+11}], v{X_+5}, s[40:43], s73 offen sc1
                    buffer_load_dwordx4 v[{cWW+12}:{cWW+15}], v{X_+5}, s[40:43], s73 offen offset:16 sc1
                    s_add_u32 s73, s73, 8192
                    buffer_load_dwordx4 v[{cWM}:{cWM+3}], v{X_+5}, s[40:43], s73 offen sc1
                    buffer_load_dwordx4 v[{cWM+4}:{cWM+7}], v{X_+5}, s[40:43], s73 offen offset:16 sc1
                    s_add_u32 s73, s73, 8192
                    buffer_load_dwordx4 v[{cWM+8}:{cWM+11}], v{X_+5}, s[40:43], s73 offen sc1
                    buffer_load_dwordx4 v[{cWM+12}:{cWM+15}], v{X_+5}, s[40:43], s73 offen offset:16 sc1
                    k1_nosp3:
                    """)
            if i % 8 == 7 and i < 31: a.stamp()
        assert not pend
        a(f"""
        s_mul_i32 s50, s22, 112
        s_mul_i32 s51, s19, 7
        s_add_u32 s50, s50, s51
        s_add_u32 s50, s50, {3*ch}
        s_lshl_b32 s50, s50, 10
        s_add_u32 s50, s50, {WS_H}
        v_mov_b32 v10, v{VRI}
        v_mov_b32 v11, v{VRI}
        s_nop 7
        """)
        a.stamp()
        for k in range(NT):
            G = ACC + k*16; U = G + 8
            O = BF + k*4; Q = (ACC + 56) if ch == 0 else (A0 + k*8)
            for p in range(8):
                a(f"v_pk_mul_f32 v[{G+2*p}:{G+2*p+1}], v[{G+2*p}:{G+2*p+1}], v[10:11]")
            for p in range(8):
                a(f"v_max_f32 v{G+p}, 0, v{G+p}")
            for p in range(8):
                a(f"v_cvt_pk_bf16_f32 v{Q+p}, v{G+2*p}, v{G+2*p+1}")
            for p in range(8):
                a(f"v_lshlrev_b32 v{G+2*p}, 16, v{Q+p}")
                a(f"v_and_b32 v{G+2*p+1}, s27, v{Q+p}")
            for p in range(4):
                a(f"v_pk_mul_f32 v[{G+2*p}:{G+2*p+1}], v[{G+2*p}:{G+2*p+1}], v[{U+2*p}:{U+2*p+1}]")
            for p in range(4):
                a(f"v_cvt_pk_bf16_f32 v{O+p}, v{G+2*p}, v{G+2*p+1}")
            a(f"buffer_store_dwordx4 v[{O}:{O+3}], v{VPF}, s[40:43], s50 offen offset:{k*1024} sc1")
        a.stamp()
        a.stamp_store(0)
        a("s_branch ph2")
    a("""
    s_cmp_eq_u32 s21, 0
    s_cbranch_scc0 k1_ch1
    """)
    mainloop(0)
    a.raw("k1_ch1:")
    mainloop(1)
    a.raw("k1_end:")
    a("s_endpgm")
    return a.text()

TE1, TE2, TE3, TE4, TT1, TT2, TCS, TSZ = 0, 4096, 20480, 36864, 40960, 49152, 57344, 59392
def small_tables():
    buf = np.zeros(TSZ // 2, np.uint16)
    l = np.arange(64); c = l % 16; g = l // 16; j = np.arange(8)
    for t in range(2):
        ang = -2*np.pi*((8*g[:,None]+j[None,:])*(16*t+c)[:,None] % 32)/32
        buf[(TE1 + (0*2+t)*1024)//2:][:512] = f16(np.cos(ang)/8).ravel()
        buf[(TE1 + (1*2+t)*1024)//2:][:512] = f16(np.sin(ang)/8).ravel()
    for w in range(4):
        for st in range(2):
            ang = -2*np.pi*((32*st+8*g[:,None]+j[None,:])*(16*w+c)[:,None] % 64)/64
            buf[(TE2 + ((w*2+0)*2+st)*1024)//2:][:512] = f16(np.cos(ang)/8).ravel()
            buf[(TE2 + ((w*2+1)*2+st)*1024)//2:][:512] = f16(np.sin(ang)/8).ravel()
            buf[(TE3 + ((w*2+0)*2+st)*1024)//2:][:512] = bf16(np.cos(-ang)/8).ravel()
            buf[(TE3 + ((w*2+1)*2+st)*1024)//2:][:512] = bf16(np.sin(-ang)/8).ravel()
    sig = 16*(j[None,:]//4) + 4*g[:,None] + (j[None,:] % 4)
    for tp in range(2):
        ang = 2*np.pi*((sig*(16*tp+c)[:,None]) % 32)/32
        buf[(TE4 + (0*2+tp)*1024)//2:][:512] = bf16(np.cos(ang)/8).ravel()
        buf[(TE4 + (1*2+tp)*1024)//2:][:512] = bf16(np.sin(ang)/8).ravel()
    for w in range(4):
        for e in range(8):
            t, i = e // 4, e % 4
            a1 = -2*np.pi*(((16*w+4*g+i)*(16*t+c)) % 2048)/2048
            a2 = 2*np.pi*(((16*w+c)*(16*t+4*g+i)) % 2048)/2048
            for (base, an) in ((TT1, a1), (TT2, a2)):
                o = (base + (w*2 + e//4)*1024)//2 + l*8 + (e % 4)*2
                buf[o] = f16(np.cos(an)); buf[o+1] = f16(np.sin(an))
    jj = np.arange(512); c1 = bf16(np.cos(2*np.pi*jj/512) / 16); c1[np.abs(np.cos(2*np.pi*jj/512)) < 1e-9] = 0
    cf = (c1.astype(np.uint32) << 16).view(np.float32).astype(np.float64)
    cs = np.zeros(512)
    for n in range(512):
        kk, off = (256, 0) if n == 1 else (n >> 1, 128*(n & 1))
        cs[n] = cf[(jj*kk + off) & 511].sum()
    buf.view(np.float32)[TCS//4:TCS//4+512] = cs.astype(np.float32)
    return buf

K3_NS = 5
CSTR = int(os.environ.get('CSTR','2'))
NUP = int(os.environ.get('NUP','16'))
ZSC = os.environ.get('ZSC','sc1')
HSC = os.environ.get('HSC','sc1')
MPRE = int(os.environ.get('MPRE','16'))
PSLEEP = int(os.environ.get('PSLEEP','8'))
GLAG = int(os.environ.get('GLAG','5'))
GOLD = int(os.environ.get('GOLD','3'))
CPRE = True
ZSLEEP = int(os.environ.get('ZSLEEP','12'))
ZMIN = int(os.environ.get('ZMIN','30'))
POLLD = int(os.environ.get('POLLD','4'))
HDIST = int(os.environ.get('HDIST','12'))
ZSTART = int(os.environ.get('ZSTART','28'))
ZTAIL = int(os.environ.get('ZTAIL','0'))
NIDLE = int(os.environ.get('NIDLE','2'))
NZB = int(os.environ.get('NZB','1'))
LOADALL = os.environ.get('LOADALL','1') == '1'
CPRIO = int(os.environ.get('CPRIO','2'))
LATEC = int(os.environ.get('LATEC','1'))
def gen_k23_main():
    a = Asm()
    if MERGE:
        a.raw("ph2:")
        a(f"""
        s_load_dwordx4 s[8:11], s[0:1], 48
        s_load_dwordx2 s[14:15], s[0:1], 72
        s_waitcnt vmcnt(0) lgkmcnt(0)
        s_barrier
        s_cmp_eq_u32 s3, 4
        s_cbranch_scc0 ph2_nopub
        s_lshl_b32 s26, s2, 4
        s_add_u32 s26, s26, {WS_FL + 8192}
        v_mov_b32 v7, 0
        v_mov_b32 v23, s6
        s_mov_b64 exec, 1
        buffer_store_dword v23, v7, s[40:43], s26 offen sc1
        s_mov_b64 exec, -1
        ph2_nopub:
        {"s_memrealtime s[94:95]" if DIAG else "s_nop 0"}
        {"s_mov_b32 s100, s70" if DIAG else "s_nop 0"}
        s_lshl_b32 s26, s3, 6
        v_add_u32 v0, s26, v2
        """)
    else:
        a.raw(".p2align 8\nk23_kernel:")
        a("""
        s_cmp_ge_u32 s2, 256
        s_cbranch_scc1 k23_end
        s_load_dwordx2 s[4:5], s[0:1], 0
        s_load_dwordx4 s[8:11], s[0:1], 48
        s_load_dwordx2 s[14:15], s[0:1], 72
        v_lshrrev_b32 v1, 6, v0
        v_and_b32 v2, 63, v0
        s_mov_b32 s6, 1
        v_readfirstlane_b32 s3, v1
        """)
    a("""
    v_and_b32 v3, 15, v2
    v_lshrrev_b32 v4, 4, v2
    s_mov_b32 s48, 0x80008000
    s_mov_b32 s49, 0xffff0000
    s_cmp_lt_u32 s3, 4
    s_cbranch_scc1 k23_conv
    """)
    SB = 131072
    NCB = 5 + NIDLE + NZB
    a("s_and_b32 s7, s3, 3")
    getpc_tab(a, 24, "tab_G")
    srd(a, 44, "s24", "s25", 524288)
    if os.environ.get("K3_MAP", "1") == "0":
        a("""
    s_and_b32 s16, s2, 7
    s_lshr_b32 s17, s2, 3
    s_lshr_b32 s18, s16, 1
    s_lshl_b32 s18, s18, 3
    s_and_b32 s19, s17, 7
    s_add_u32 s18, s18, s19
    s_lshl_b32 s58, s19, 1
    s_and_b32 s19, s16, 1
    s_lshl_b32 s19, s19, 2
    s_lshr_b32 s20, s17, 3
    s_add_u32 s19, s19, s20
    s_lshl_b32 s20, s20, 2
    s_add_u32 s58, s58, s20
    """)
    else:
        a("""
    s_and_b32 s16, s2, 7
    s_lshr_b32 s17, s2, 3
    s_lshl_b32 s18, s16, 2
    s_and_b32 s19, s17, 3
    s_add_u32 s18, s18, s19
    s_lshl_b32 s58, s19, 2
    s_lshr_b32 s19, s17, 2
    s_lshl_b32 s20, s19, 1
    s_add_u32 s58, s58, s20
    """)
    a.sb = 92; a.maxst = 5
    XR = 8; PV = 16; VO, VF, VW, VZ, VH = 20, 21, 22, 23, 24
    VPG, VFA, VFL, VFV = 25, 26, 27, 28
    TRW = 29
    TRZ = 37
    GFR = 39
    VW2, VZ2 = 41, 42
    ACG, ACS = 44, 60
    FB = 76
    HB = 136; NHB = 28
    PW = SB + 28672
    NCH = 36
    a(f"""
    s_cmp_ge_u32 s58, 14
    s_cselect_b32 s20, 14, 0
    s_sub_u32 s58, s58, s20
    s_lshl_b32 s58, s58, 1
    s_add_u32 s12, s18, s19
    s_and_b32 s12, s12, 7
    s_and_b32 s20, s7, 1
    s_lshr_b32 s21, s7, 1
    s_lshl_b32 s22, s18, 1
    s_add_u32 s22, s22, s21
    v_lshlrev_b32 v{VF}, 4, v2
    v_lshrrev_b32 v6, 3, v2
    v_and_b32 v5, 7, v2
    v_lshrrev_b32 v5, 1, v5
    v_lshrrev_b32 v1, 1, v6
    v_xor_b32 v5, v5, v1
    v_lshlrev_b32 v5, 5, v5
    v_and_b32 v1, 1, v2
    v_lshl_add_u32 v5, v1, 4, v5
    v_lshl_add_u32 v{VW}, v6, 10, v5
    v_lshl_add_u32 v{VZ}, v6, 12, v5
    s_lshl_b32 s27, s19, 7
    v_add_u32 v{VW}, s27, v{VW}
    s_lshl_b32 s27, s18, 7
    s_add_u32 s27, s27, {WS_Z}
    v_add_u32 v{VZ}, s27, v{VZ}
    v_add_u32 v{VW2}, 8192, v{VW}
    v_add_u32 v{VZ2}, 32768, v{VZ}
    v_lshlrev_b32 v{VH}, 9, v4
    v_lshl_add_u32 v{VH}, v3, 4, v{VH}
    s_mul_i32 s50, s22, 112
    s_lshl_b32 s50, s50, 10
    s_lshl_b32 s27, s20, 8
    s_add_u32 s50, s50, s27
    s_add_u32 s50, s50, {WS_H}
    s_lshl_b32 s51, s19, 1
    s_add_u32 s51, s51, s21
    s_lshl_b32 s51, s51, 5
    s_lshl_b32 s27, s20, 1
    s_add_u32 s51, s51, s27
    s_lshl_b32 s51, s51, 10
    s_lshl_b32 s52, s7, 11
    s_lshl_b32 s54, s7, 14
    s_lshl_b32 s55, s7, 16
    s_mov_b32 s59, {WS_FL}
    s_lshl_b32 s27, s7, 2
    s_add_u32 s27, s27, {PW}
    v_mov_b32 v{VFA}, s27
    v_mov_b32 v{VPG}, 0
    v_and_b32 v{VFL}, 3, v2
    v_lshlrev_b32 v{VFL}, 2, v{VFL}
    v_add_u32 v{VFL}, {PW}, v{VFL}
    v_lshlrev_b32 v5, 2, v3
    v_add_u32 v5, {PW}, v5
    ds_write_b32 v5, v{VPG}
    s_waitcnt lgkmcnt(0)
    """)
    a.stamp()
    srd(a, 40, "s14", "s15", WS_SIZE)
    srd(a, 32, "s8", "s9", 1792*1024)
    isd = lambda c: c < 28
    upos = {}; p_ = 0
    for c in range(NCH):
        upos[c] = p_ % 16; p_ += 1 if isd(c) else 2
    ustart = {}; p_ = 0
    for c in range(NCH):
        ustart[c] = p_; p_ += 1 if isd(c) else 2
    uend = lambda c: ustart[c] + (1 if isd(c) else 2)
    a(f"""
    v_add_u32 v{VW}, s54, v{VW}
    v_add_u32 v{VW2}, s54, v{VW2}
    v_add_u32 v43, s50, v{VH}
    s_lshl_b32 s64, s58, 12
    """)
    def tab(c):
        a(f"s_add_u32 s{64+c}, s{63+c}, 4096")
        a(f"s_cmp_eq_u32 s{64+c}, {28*4096}")
        a(f"s_cselect_b32 s{64+c}, 0, s{64+c}")
    def dma_one(c, u):
        if isd(c):
            a(f"s_add_u32 m0, s52, {upos[c]*8192 + u*1024}")
            if u == 0: a(f"s_lshl_b32 s63, s{64+c}, 4")
            else: a("s_nop 0")
            a.vmem(f"buffer_load_dwordx4 v{VW if u == 0 else VW2}, s[32:35], s63 offen lds", f"c{c}")
            return
        if u == 0:
            a(f"s_xor_b32 s57, s12, {c-28}")
            a(f"s_lshl_b32 s62, s57, 12"); a(f"s_add_u32 s62, s62, s51")
            a(f"s_lshl_b32 s63, s57, 18"); a(f"s_add_u32 s63, s63, s55")
        if u < 2:
            a(f"s_add_u32 m0, s52, {upos[c]*8192 + u*1024}")
            a("s_nop 0")
            a.vmem(f"buffer_load_dwordx4 v{VZ if u == 0 else VZ2}, s[40:43], s63 offen {ZSC} lds", f"c{c}")
        else:
            if u == 2:
                a(f"s_add_u32 m0, s52, {((upos[c]+1) % 16)*8192}")
                a("s_nop 0")
            else:
                a(f"s_add_u32 m0, s52, {((upos[c]+1) % 16)*8192}")
                a("s_nop 0")
            a.vmem(f"buffer_load_dwordx4 v{VF}, s[44:47], s62 offen offset:{(u-2)*1024} lds", f"c{c}")
    def hload(j):
        c, s_ = j // 2, j % 2
        hb = HB + (j % NHB) * 4
        a.vmem(f"buffer_load_dwordx4 v[{hb}:{hb+3}], v43, s[40:43], s{64+c} offen offset:{s_*2048} {HSC}", f"h{j}")
    tab(1)
    pend = [(c, u) for c in range(NCH) for u in range(2 if isd(c) else 4)]
    hp = [0]
    if MERGE:
        a("s_barrier")
        for c in range(2, 28): tab(c)
        for c in range(MPRE):
            for u in range(2): dma_one(*pend.pop(0))
    else:
        for c in range(2):
            for u in range(2): dma_one(*pend.pop(0))
            for _ in range(2): hload(hp[0]); hp[0] += 1
        for c in range(2, 28): tab(c)
        a("s_barrier")
        for c in range(NUP // 4):
            for u in range(2): dma_one(*pend.pop(0))
            for _ in range(2): hload(hp[0]); hp[0] += 1
    srd(a, 36, "s10", "s11", 2048*1024)
    srd(a, 28, "s4", "s5", 2048*1024)
    a(f"""
    v_lshrrev_b32 v{PV}, 2, v3
    v_and_b32 v{PV+1}, 3, v3
    v_lshrrev_b32 v{PV+2}, 1, v4
    v_lshlrev_b32 v{PV+2}, 4, v{PV+2}
    v_and_b32 v{PV+3}, 1, v4
    v_lshl_add_u32 v{PV+2}, v{PV+3}, 2, v{PV+2}
    v_add_u32 v{PV+2}, v{PV+2}, v{PV}
    v_lshlrev_b32 v{PV+2}, 7, v{PV+2}
    v_lshl_add_u32 v{PV+2}, v{PV+1}, 3, v{PV+2}
    v_lshrrev_b32 v{PV}, 1, v{PV}
    v_lshl_add_u32 v{PV}, v{PV+3}, 1, v{PV}
    """)
    for dt in range(4):
        a(f"v_xor_b32 v{PV+1}, {dt}, v{PV}")
        a(f"v_lshl_add_u32 v{TRW+dt}, v{PV+1}, 5, v{PV+2}")
        a(f"v_add_u32 v{TRW+4+dt}, 0x10000, v{TRW+dt}")
    a(f"""
    v_xor_b32 v{PV+1}, s7, v{PV}
    v_lshl_add_u32 v{TRZ}, v{PV+1}, 5, v{PV+2}
    v_add_u32 v{TRZ+1}, 0x10000, v{TRZ}
    v_mov_b32 v{GFR}, v{VH}
    v_add_u32 v{GFR+1}, 0x10000, v{VH}
    v_lshrrev_b32 v1, 3, v2
    v_and_b32 v{VO}, 7, v2
    v_lshlrev_b32 v{VO}, 4, v{VO}
    v_lshl_add_u32 v{VO}, v1, 16, v{VO}
    s_lshl_b32 s23, s22, 10
    s_lshl_b32 s26, s19, 7
    s_add_u32 s23, s23, s26
    s_lshl_b32 s26, s20, 20
    s_add_u32 s23, s23, s26
    s_add_u32 s13, s23, 0x80000
    """)
    if MERGE:
        a(f"""
        s_cmp_eq_u32 s7, 0
        s_cbranch_scc0 ph2_ggo
        s_lshr_b32 s26, s18, 1
        s_lshr_b32 s27, s26, 3
        s_and_b32 s26, s26, 7
        s_lshl_b32 s26, s26, 3
        s_add_u32 s26, s26, s27
        s_lshl_b32 s26, s26, 4
        s_add_u32 s26, s26, {WS_FL + 8192}
        v_lshrrev_b32 v{PV}, 2, v3
        v_and_b32 v{PV+1}, 3, v3
        v_lshlrev_b32 v{PV}, 5, v{PV}
        v_lshl_add_u32 v{PV}, v{PV+1}, 10, v{PV}
        s_mov_b32 s27, 0
        ph2_gpoll:
        buffer_load_dword v{PV+1}, v{PV}, s[40:43], s26 offen sc1
        s_waitcnt vmcnt(0)
        v_cmp_ne_u32 vcc, s6, v{PV+1}
        s_cbranch_vccz ph2_ggo
        s_add_u32 s27, s27, 1
        s_cmp_ge_u32 s27, 0x8000
        s_cbranch_scc1 ph2_ggo
        s_sleep {PSLEEP}
        s_branch ph2_gpoll
        ph2_ggo:
        {"s_memrealtime s[96:97]" if DIAG else "s_nop 0"}
        s_waitcnt vmcnt(0) lgkmcnt(0)
        """)
        a.vm = []
    DEPTH = 3
    NST = NCH * 2
    LAG = GLAG
    pubs = []
    def full_issued():
        return (pend[0][0] - 1) if pend else NCH - 1
    def arrive(want, rdone):
        q = min(want, full_issued(), NCH - 1)
        for cc in range(q, -1, -1):
            if f"c{cc}" in a.vm:
                a.wait_vm(f"c{cc}"); break
        pubs.append((q, rdone))
        a(f"v_mov_b32 v{VPG}, {len(pubs)}")
        a.lds(f"ds_write_b32 v{VFA}, v{VPG}", "pw")
    nspin = [0]
    checked = [0]
    fvp = [False]
    def check(k):
        n = nspin[0]; nspin[0] += 1
        if not fvp[0]:
            a.lds(f"ds_read_b32 v{VFV}, v{VFL}", "fv")
        fvp[0] = False
        a.wait_lds("fv")
        a(f"""
        k23_gs{n}:
        v_cmp_gt_u32 vcc, {k}, v{VFV}
        s_cbranch_vccz k23_go{n}
        {"s_sleep 1" if n == 0 else "s_nop 0"}
        ds_read_b32 v{VFV}, v{VFL}
        s_waitcnt lgkmcnt(0)
        s_branch k23_gs{n}
        k23_go{n}:
        """)
        checked[0] = k
        rd = pubs[k-1][1]
        if rd >= 0: ulimit[0] = max(ulimit[0], uend(rd) + 16)
    ulimit = [16]
    def reads(i):
        c, s_ = i // 2, i % 2
        if s_ == 0:
            have = pubs[checked[0]-1][0] if checked[0] else -1
            if have < c or c % 2 == 0:
                need = min(c + 1, NCH - 1) if c % 2 == 0 else c
                ks = [k+1 for k, (q, r) in enumerate(pubs) if q >= need]
                if not ks: ks = [k+1 for k, (q, r) in enumerate(pubs) if q >= c]
                assert ks, ("no publish covers chunk", c, pubs)
                old_ = [k+1 for k, (q, r) in enumerate(pubs) if r <= c - 4]
                k = max([ks[0], checked[0]] + old_)
                if k > checked[0]: check(k)
            if c in (0, 12, 28): a.stamp()
            if c % 2 == 1 and c + 1 < NCH and c >= 3:
                a.lds(f"ds_read_b32 v{VFV}, v{VFL}", "fv"); fvp[0] = True
        fb = FB + (i % DEPTH) * 20
        u0 = upos[c] * 8192
        w0, b0 = u0 >> 16, u0 & 0xffff
        if isd(c):
            for dt in range(4):
                for t in range(2):
                    a.lds(f"ds_read_b64_tr_b16 v[{fb+4*dt+2*t}:{fb+4*dt+2*t+1}], v{TRW+4*w0+dt} offset:{b0 + (32*s_ + 8*t)*128}", f"g{i}")
        else:
            for t in range(2):
                a.lds(f"ds_read_b64_tr_b16 v[{fb+16+2*t}:{fb+17+2*t}], v{TRZ+w0} offset:{b0 + (32*s_ + 8*t)*128}", f"g{i}")
            u1 = ((upos[c] + 1) % 16) * 8192
            w1, b1 = u1 >> 16, u1 & 0xffff
            for dt in range(4):
                a.lds(f"ds_read_b128 v[{fb+4*dt}:{fb+4*dt+3}], v{GFR+w1} offset:{b1 + (dt>>1)*4096 + s_*2048 + (dt&1)*256}", f"g{i}")
    def mfma(i, dt):
        c, s_ = i // 2, i % 2
        fb = FB + (i % DEPTH) * 20
        if isd(c):
            hb = HB + (i % NHB) * 4
            cin = "0" if i == 0 else f"v[{ACG+4*dt}:{ACG+4*dt+3}]"
            a(f"v_mfma_f32_16x16x32_bf16 v[{ACG+4*dt}:{ACG+4*dt+3}], v[{fb+4*dt}:{fb+4*dt+3}], v[{hb}:{hb+3}], {cin}")
        else:
            cin = "0" if i == 56 else f"v[{ACS+4*dt}:{ACS+4*dt+3}]"
            a(f"v_mfma_f32_16x16x32_bf16 v[{ACS+4*dt}:{ACS+4*dt+3}], v[{fb+4*dt}:{fb+4*dt+3}], v[{fb+16}:{fb+19}], {cin}")
    def silu():
        G_ = ACG; T_ = HB
        for p in range(8): a(f"v_cvt_pk_bf16_f32 v{T_+p}, v{G_+2*p}, v{G_+2*p+1}")
        yield
        for p in range(8):
            a(f"v_lshlrev_b32 v{G_+2*p}, 16, v{T_+p}")
            a(f"v_and_b32 v{G_+2*p+1}, s49, v{T_+p}")
            if p % 4 == 3: yield
        for p in range(16):
            a(f"v_mul_f32 v{T_+p}, 0xbfb8aa3b, v{G_+p}")
            if p % 8 == 7: yield
        for p in range(16):
            a(f"v_exp_f32 v{T_+p}, v{T_+p}")
            if p % 4 == 3: yield
        for p in range(16):
            a(f"v_add_f32 v{T_+p}, 1.0, v{T_+p}")
            if p % 8 == 7: yield
        for p in range(16):
            a(f"v_rcp_f32 v{T_+p}, v{T_+p}")
            if p % 4 == 3: yield
        for p in range(16):
            a(f"v_mul_f32 v{G_+p}, v{G_+p}, v{T_+p}")
            if p % 8 == 7: yield
        for p in range(8): a(f"v_cvt_pk_bf16_f32 v{T_+p}, v{G_+2*p}, v{G_+2*p+1}")
        yield
        for p in range(8):
            a(f"v_lshlrev_b32 v{G_+2*p}, 16, v{T_+p}")
            a(f"v_and_b32 v{G_+2*p+1}, s49, v{T_+p}")
            if p % 4 == 3: yield
    sl = silu()
    polled = False
    arrive(MPRE - 1, -1)
    check(1)
    for _ in range(HDIST): hload(hp[0]); hp[0] += 1
    early = []
    for k in range(DEPTH - 1): reads(k)
    for i in range(NST):
        c, s_ = i // 2, i % 2
        if early: arrive(early.pop(0), -1)
        if i + DEPTH - 1 < NST: reads(i + DEPTH - 1)
        a.wait_lds(f"g{i}")
        if isd(c): a.wait_vm(f"h{i}")
        if s_ == 1 and c < NCH - 1 and pubs[-1][0] < NCH - 1 and (c % 2 == 0 or c >= 24):
            arrive(c + LAG, c)
        for dt in range(4):
            mfma(i, dt)
            if dt in (0, 2):
                if pend:
                    pc, pu = pend[0]
                    need = ustart[pc] + (1 if pu < 2 else 2)
                    if need <= ulimit[0] and len(a.vm) < 56 and not (pc >= 28 and i < ZMIN):
                        if pend[0] == (28, 0):
                            a(f"""
                            v_mov_b32 v{PV+1}, {PW + 48}
                            s_cmp_eq_u32 s3, 4
                            s_cbranch_scc0 k23_zw
                            s_mov_b32 s27, 0
                            k23_spin:
                            buffer_load_dword v{PV}, v{VF}, s[40:43], s59 offen sc1
                            buffer_load_dword v{PV+1}, v{VF}, s[40:43], s59 offen offset:1024 sc1
                            buffer_load_dword v{PV+2}, v{VF}, s[40:43], s59 offen offset:2048 sc1
                            buffer_load_dword v{PV+3}, v{VF}, s[40:43], s59 offen offset:3072 sc1
                            s_waitcnt vmcnt(0)
                            v_xor_b32 v{PV}, s6, v{PV}
                            v_xor_b32 v{PV+1}, s6, v{PV+1}
                            v_xor_b32 v{PV+2}, s6, v{PV+2}
                            v_xor_b32 v{PV+3}, s6, v{PV+3}
                            v_or3_b32 v{PV}, v{PV}, v{PV+1}, v{PV+2}
                            v_or_b32 v{PV}, v{PV}, v{PV+3}
                            v_cmp_ne_u32 vcc, 0, v{PV}
                            s_cbranch_vccz k23_go
                            s_add_u32 s27, s27, 1
                            s_cmp_ge_u32 s27, 0x4000
                            s_cbranch_scc1 k23_go
                            s_sleep {ZSLEEP}
                            s_branch k23_spin
                            k23_go:
                            v_mov_b32 v{PV+1}, {PW + 48}
                            v_mov_b32 v{PV}, 1
                            ds_write_b32 v{PV+1}, v{PV}
                            k23_zw:
                            ds_read_b32 v{PV}, v{PV+1}
                            s_waitcnt lgkmcnt(0)
                            v_cmp_ne_u32 vcc, 1, v{PV}
                            s_cbranch_vccz k23_zgo
                            s_sleep 2
                            s_branch k23_zw
                            k23_zgo:
                            """)
                            a.lq = []
                            print("Z issue at step", i, file=sys.stderr)
                        dma_one(*pend.pop(0))
            if dt in (1, 3):
                if hp[0] < 56 and hp[0] - NHB < i and len(a.vm) < 56 and hp[0] <= i + HDIST:
                    hload(hp[0]); hp[0] += 1
            if i >= 58: next(sl, None)
        if i == 50:
            a.vmem(f"buffer_load_dwordx4 v[{XR}:{XR+3}], v{VO}, s[28:31], s23 offen", "x")
            a.vmem(f"buffer_load_dwordx4 v[{XR+4}:{XR+7}], v{VO}, s[28:31], s13 offen", "x")
    assert not pend and hp[0] == 56
    for _ in sl: a("s_nop 0")
    a("s_nop 7")
    O = HB + 16; SV = ACS; GV = ACG; Q = HB + 24
    for p in range(8):
        a(f"v_cvt_pk_bf16_f32 v{Q+p}, v{SV+2*p}, v{SV+2*p+1}")
    for p in range(8):
        a(f"v_lshlrev_b32 v{SV+2*p}, 16, v{Q+p}")
        a(f"v_and_b32 v{SV+2*p+1}, s49, v{Q+p}")
    for p in range(16):
        a(f"v_mul_f32 v{SV+p}, v{SV+p}, v{GV+p}")
    for p in range(8):
        a(f"v_cvt_pk_bf16_f32 v{O+p}, v{SV+2*p}, v{SV+2*p+1}")
    a(f"""
    v_lshrrev_b32 v5, 1, v4
    v_and_b32 v6, 7, v2
    v_xor_b32 v5, v5, v6
    v_and_b32 v7, 1, v4
    v_lshlrev_b32 v7, 3, v7
    v_lshl_add_u32 v7, v3, 7, v7
    s_lshl_b32 s26, s7, 11
    s_add_u32 s26, s26, {SB}
    v_add_u32 v7, s26, v7
    s_barrier
    """)
    for dt in range(4):
        a(f"v_xor_b32 v1, {2*dt}, v5")
        a(f"v_lshl_add_u32 v1, v1, 4, v7")
        a(f"ds_write_b64 v1, v[{O+2*dt}:{O+2*dt+1}]")
    a(f"""
    v_lshrrev_b32 v4, 3, v2
    v_xor_b32 v6, v6, v4
    v_lshlrev_b32 v6, 4, v6
    v_lshl_add_u32 v6, v4, 7, v6
    v_add_u32 v6, s26, v6
    s_waitcnt lgkmcnt(0)
    ds_read_b128 v[{Q}:{Q+3}], v6
    ds_read_b128 v[{Q+4}:{Q+7}], v6 offset:1024
    """)
    a.wait_vm_all()
    for p in range(8):
        a(f"v_lshlrev_b32 v{GV+2*p}, 16, v{XR+p}")
        a(f"v_and_b32 v{GV+2*p+1}, s49, v{XR+p}")
    a("s_waitcnt lgkmcnt(0)")
    for p in range(8):
        a(f"v_lshlrev_b32 v{SV+2*p}, 16, v{Q+p}")
        a(f"v_and_b32 v{SV+2*p+1}, s49, v{Q+p}")
    for p in range(16):
        a(f"v_add_f32 v{SV+p}, v{SV+p}, v{GV+p}")
    for p in range(8):
        a(f"v_cvt_pk_bf16_f32 v{O+p}, v{SV+2*p}, v{SV+2*p+1}")
    a(f"buffer_store_dwordx4 v[{O}:{O+3}], v{VO}, s[36:39], s23 offen {OSP}")
    a(f"buffer_store_dwordx4 v[{O+4}:{O+7}], v{VO}, s[36:39], s13 offen {OSP}")
    a.stamp()
    if STAMP: a("s_waitcnt vmcnt(0)")
    a.stamp()
    a.stamp_store(1)
    if DIAG:
        a(f"""
        s_waitcnt vmcnt(0)
        s_memrealtime s[98:99]
        s_load_dwordx2 s[60:61], s[0:1], 64
        s_waitcnt lgkmcnt(0)
        s_cmp_eq_u32 s3, 4
        s_cbranch_scc0 dg_skip
        s_and_b32 s26, s2, 63
        s_cmp_eq_u32 s26, 1
        s_cbranch_scc0 dg_skip
        s_lshr_b32 s26, s2, 6
        s_cmp_ge_u32 s26, 3
        s_cbranch_scc1 dg_skip
        s_lshl_b32 s26, s26, 4
        s_add_u32 s26, s26, 4
        s_mov_b32 s62, 256
        s_mov_b32 s63, 0x20000
        s_sub_u32 s92, s92, s100
        s_sub_u32 s94, s94, s100
        s_sub_u32 s96, s96, s100
        s_sub_u32 s98, s98, s100
        v_mov_b32 v0, 0
        v_mov_b32 v4, s92
        v_mov_b32 v5, s94
        v_mov_b32 v6, s96
        v_mov_b32 v7, s98
        buffer_store_dword v4, v0, s[60:63], s26 offen
        buffer_store_dword v5, v0, s[60:63], s26 offen offset:4
        buffer_store_dword v6, v0, s[60:63], s26 offen offset:8
        buffer_store_dword v7, v0, s[60:63], s26 offen offset:12
        dg_skip:
        """)
    a("s_endpgm")

    a.raw("k23_conv:")
    a.vm = []; a.lq = []; a.nst = 0; a.sb = 74; a.maxst = 0
    YR, YI, E1, T1, E2, WW, E3, T2, E4, WM = cYR, cYI, cE1, cT1, cE2, cWW, cE3, cT2, cE4, cWM
    D = 8; F = 24; N = 56; TMP = 64; PQ = 80; VL = 7
    for tg_ in ("y", "e1", "t1", "e2", "w", "e3", "t2", "e4"): a.issued.add(tg_)
    a(f"""
    s_barrier
    s_mov_b32 s13, s3
    s_lshl_b32 s60, s2, 13
    s_lshl_b32 s61, s13, 10
    s_add_u32 s60, s60, s61
    s_add_u32 s60, s60, {WS_Y}
    s_add_u32 s61, s60, 4096
    s_lshl_b32 s27, s13, 9
    v_lshlrev_b32 v1, 7, v4
    v_add3_u32 v1, v1, v3, s27
    s_movk_i32 s27, 144
    v_mul_lo_u32 v6, v3, s27
    v_add_u32 v6, {SB}, v6
    v_lshl_add_u32 v5, v4, 3, v6
    s_lshl_b32 s27, s13, 5
    v_add_u32 v5, s27, v5
    v_lshl_add_u32 v6, v4, 4, v6
    """)
    UB, XB, MB = 0, 9216, 18432
    PL = 4608
    def R(x): return f"v[{x}:{x+3}]"
    def fr(pl, t, st): return F + ((pl*2+t)*2+st)*4
    def cmul_tw(tw):
        for e in range(8):
            r = D + e; im = D + 8 + e; tq = tw + e
            t = TMP + 2*(e % 4)
            a(f"""
            v_fma_mix_f32 v{t}, v{im}, v{tq}, 0 op_sel:[0,1,0] op_sel_hi:[0,1,0]
            v_fma_mix_f32 v{t+1}, v{r}, v{tq}, 0 op_sel:[0,1,0] op_sel_hi:[0,1,0]
            """)
            if e % 4 == 3:
                for e2 in range(e-3, e+1):
                    r = D + e2; im = D + 8 + e2; tq = tw + e2
                    t = TMP + 2*(e2 % 4)
                    a(f"""
                    v_fma_mix_f32 v{r}, v{r}, v{tq}, -v{t} op_sel:[0,0,0] op_sel_hi:[0,1,0]
                    v_fma_mix_f32 v{im}, v{im}, v{tq}, v{t+1} op_sel:[0,0,0] op_sel_hi:[0,1,0]
                    """)
    def pack(cvt, dst):
        for e in range(8):
            a(f"{cvt} v{dst+e}, v{D+2*e}, v{D+2*e+1}")
    def lds_write(base, src):
        for pl in range(2):
            for t in range(2):
                a(f"ds_write_b64 v5, v[{src+pl*4+t*2}:{src+pl*4+t*2+1}] offset:{base + pl*PL + t*16*144}")
    def lds_read(base):
        for pl in range(2):
            for t in range(2):
                for st in range(2):
                    f_ = fr(pl, t, st)
                    a(f"ds_read_b128 v[{f_}:{f_+3}], v6 offset:{base + pl*PL + t*16*144 + st*64}")
    nbar = [0]
    CA, CL, CV = 112, 113, 114
    def bar(tag=""):
        nbar[0] += 1
        p = nbar[0]
        a(f"""
        v_mov_b32 v{CV}, {p}
        s_waitcnt lgkmcnt(0)
        ds_write_b32 v{CA}, v{CV}
        """)
        a(f"""
        k23_cs{p}{tag}:
        ds_read_b32 v{CV}, v{CL}
        s_waitcnt lgkmcnt(0)
        v_cmp_gt_u32 vcc, {p}, v{CV}
        s_cbranch_vccnz k23_cs{p}{tag}
        """)
        a.stamp()
    a(f"""
    s_setprio {CPRIO}
    s_lshl_b32 s27, s13, 2
    s_add_u32 s27, s27, {PW + 16}
    v_mov_b32 v{CA}, s27
    v_mov_b32 v{CV}, 0
    v_and_b32 v{CL}, 3, v2
    v_lshlrev_b32 v{CL}, 2, v{CL}
    v_add_u32 v{CL}, {PW + 16}, v{CL}
    """)
    a.wait_vm("e1")
    for r in range(4):
        a(f"v_xor_b32 v{N+r}, s48, v{YI+r}")
    a("s_nop 1")
    for t in range(2):
        er = E1 + 4*t; ei = E1 + 8 + 4*t
        a(f"v_mfma_f32_16x16x32_f16 {R(D+4*t)}, {R(YR)}, {R(er)}, 0")
        a(f"v_mfma_f32_16x16x32_f16 {R(D+8+4*t)}, {R(YR)}, {R(ei)}, 0")
    for t in range(2):
        er = E1 + 4*t; ei = E1 + 8 + 4*t
        a(f"v_mfma_f32_16x16x32_f16 {R(D+4*t)}, {R(N)}, {R(ei)}, {R(D+4*t)}")
        a(f"v_mfma_f32_16x16x32_f16 {R(D+8+4*t)}, {R(YI)}, {R(er)}, {R(D+8+4*t)}")
    a.wait_vm("t1")
    a("s_nop 7")
    cmul_tw(T1)
    pack("v_cvt_pk_f16_f32", TMP + 8)
    lds_write(UB, TMP + 8)
    bar()
    lds_read(UB)
    a.wait_vm("e2")
    for r in range(8):
        a(f"v_xor_b32 v{N+r}, s48, v{E2+8+r}")
    a("s_waitcnt lgkmcnt(0)")
    for st in range(2):
        for t in range(2):
            cr = "0" if st == 0 else R(D+4*t); ci = "0" if st == 0 else R(D+8+4*t)
            a(f"v_mfma_f32_16x16x32_f16 {R(D+4*t)}, {R(E2+4*st)}, {R(fr(0,t,st))}, {cr}")
            a(f"v_mfma_f32_16x16x32_f16 {R(D+8+4*t)}, {R(E2+8+4*st)}, {R(fr(0,t,st))}, {ci}")
        for t in range(2):
            a(f"v_mfma_f32_16x16x32_f16 {R(D+4*t)}, {R(N+4*st)}, {R(fr(1,t,st))}, {R(D+4*t)}")
            a(f"v_mfma_f32_16x16x32_f16 {R(D+8+4*t)}, {R(E2+4*st)}, {R(fr(1,t,st))}, {R(D+8+4*t)}")
    a("""
    s_cmp_eq_u32 s2, 0
    s_cbranch_scc1 k2_special
    """)
    vm_keep = list(a.vm)
    a.wait_vm("w")
    a("s_nop 7")
    for e in range(8):
        r = D + e; im = D + 8 + e
        t = TMP + 4*(e % 2)
        a(f"""
        v_lshlrev_b32 v{t+2}, 16, v{WW+e}
        v_and_b32 v{t+3}, s49, v{WW+e}
        v_mul_f32 v{t}, v{im}, v{t+3}
        v_mul_f32 v{t+1}, v{r}, v{t+3}
        v_fma_f32 v{r}, v{r}, v{t+2}, -v{t}
        v_fma_f32 v{im}, v{im}, v{t+2}, v{t+1}
        """)
    a("s_branch k2_join")
    a.raw("k2_special:")
    a.vm = vm_keep
    a.wait_vm("w")
    TA_ = cE1
    for e in range(8):
        q = PQ + 4*e; t = TA_ + 4*e
        a(f"""
        v_lshlrev_b32 v{q}, 16, v{WW+e}
        v_and_b32 v{q+1}, s49, v{WW+e}
        v_lshlrev_b32 v{q+2}, 16, v{WM+e}
        v_and_b32 v{q+3}, s49, v{WM+e}
        v_lshlrev_b32 v{t}, 16, v{WW+8+e}
        v_and_b32 v{t+1}, s49, v{WW+8+e}
        v_lshlrev_b32 v{t+2}, 16, v{WM+8+e}
        v_and_b32 v{t+3}, s49, v{WM+8+e}
        """)
    for e in range(8):
        q = PQ + 4*e; t = TA_ + 4*e
        a(f"""
        v_add_f32 v{q}, v{q}, v{q+2}
        v_sub_f32 v{q+1}, v{q+1}, v{q+3}
        v_add_f32 v{t}, v{t}, v{t+2}
        v_sub_f32 v{t+1}, v{t+1}, v{t+3}
        """)
    for e in range(8):
        q = PQ + 4*e; t = TA_ + 4*e
        a(f"""
        v_sub_f32 v{q+2}, v{q}, v{t}
        v_sub_f32 v{q+3}, v{q+1}, v{t+1}
        v_add_f32 v{q}, v{q}, v{t}
        v_add_f32 v{q+1}, v{q+1}, v{t+1}
        """)
    for e in range(32):
        a(f"v_mul_f32 v{PQ+e}, 0x3e800000, v{PQ+e}")
    for e in range(8):
        t, i = e // 4, e % 4
        q = TMP + 2*(e % 2)
        a(f"""
        v_cvt_pk_f16_f32 v{q}, v{D+e}, v{D+8+e}
        v_add_u32 v{q+1}, {32*i+16*t+(SB+MB)//4}, v1
        v_lshlrev_b32 v{q+1}, 2, v{q+1}
        ds_write_b32 v{q+1}, v{q}
        """)
    for e in range(8):
        r = D + e; q = PQ + 4*e; t = F + 8 + 2*e
        a(f"v_mul_f32 v{t}, v{r}, v{q}")
        a(f"v_mul_f32 v{t+1}, v{r}, v{q+1}")
    for e in range(8):
        im = D + 8 + e; q = PQ + 4*e; t = F + 8 + 2*e
        a(f"v_fma_f32 v{t}, -v{im}, v{q+1}, v{t}")
        a(f"v_fma_f32 v{t+1}, v{im}, v{q}, v{t+1}")
    nst_keep = a.nst
    bar("s")
    a.nst = nst_keep
    for e in range(8):
        t, i = e // 4, e % 4
        a(f"""
        v_add_u32 v{TMP+4}, {32*i+16*t}, v1
        v_sub_u32 v{TMP+4}, 2048, v{TMP+4}
        v_and_b32 v{TMP+4}, 2047, v{TMP+4}
        v_lshlrev_b32 v{TMP+4}, 2, v{TMP+4}
        v_add_u32 v{TMP+4}, {SB+MB}, v{TMP+4}
        ds_read_b32 v{F+e}, v{TMP+4}
        """)
    a("s_waitcnt lgkmcnt(0)")
    for e in range(8):
        xm = F + e; q = PQ + 4*e; t = F + 8 + 2*e
        a(f"""
        v_fma_mix_f32 v{t}, v{q+2}, v{xm}, v{t} op_sel:[0,0,0] op_sel_hi:[0,1,0]
        v_fma_mix_f32 v{t+1}, v{q+3}, v{xm}, v{t+1} op_sel:[0,0,0] op_sel_hi:[0,1,0]
        """)
    for e in range(8):
        r = D + e; im = D + 8 + e
        xm = F + e; q = PQ + 4*e; t = F + 8 + 2*e
        a(f"""
        v_fma_mix_f32 v{r}, v{q+3}, v{xm}, v{t} op_sel:[0,1,0] op_sel_hi:[0,1,0]
        v_fma_mix_f32 v{im}, -v{q+2}, v{xm}, v{t+1} op_sel:[0,1,0] op_sel_hi:[0,1,0]
        """)
    a.raw("k2_join:")
    a.stamp()
    pack("v_cvt_pk_bf16_f32", TMP + 8)
    lds_write(XB, TMP + 8)
    bar()
    lds_read(XB)
    a.wait_vm("e3")
    for r in range(8):
        a(f"v_xor_b32 v{N+r}, s48, v{E3+8+r}")
    a("s_waitcnt lgkmcnt(0)")
    for st in range(2):
        for t in range(2):
            cr = "0" if st == 0 else R(D+4*t); ci = "0" if st == 0 else R(D+8+4*t)
            a(f"v_mfma_f32_16x16x32_bf16 {R(D+4*t)}, {R(fr(0,t,st))}, {R(E3+4*st)}, {cr}")
            a(f"v_mfma_f32_16x16x32_bf16 {R(D+8+4*t)}, {R(fr(0,t,st))}, {R(E3+8+4*st)}, {ci}")
        for t in range(2):
            a(f"v_mfma_f32_16x16x32_bf16 {R(D+4*t)}, {R(fr(1,t,st))}, {R(N+4*st)}, {R(D+4*t)}")
            a(f"v_mfma_f32_16x16x32_bf16 {R(D+8+4*t)}, {R(fr(1,t,st))}, {R(E3+4*st)}, {R(D+8+4*t)}")
    a.wait_vm("t2")
    a("s_nop 7")
    cmul_tw(T2)
    pack("v_cvt_pk_bf16_f32", TMP + 8)
    VR, VI = TMP + 8, TMP + 12
    for r in range(4):
        a(f"v_xor_b32 v{N+r}, s48, v{VI+r}")
    a.wait_vm("e4")
    a("s_nop 1")
    for tp in range(2):
        a(f"v_mfma_f32_16x16x32_bf16 {R(D+4*tp)}, {R(E4+4*tp)}, {R(VR)}, 0")
        a(f"v_mfma_f32_16x16x32_bf16 {R(D+8+4*tp)}, {R(E4+8+4*tp)}, {R(VR)}, 0")
    for tp in range(2):
        a(f"v_mfma_f32_16x16x32_bf16 {R(D+4*tp)}, {R(E4+8+4*tp)}, {R(N)}, {R(D+4*tp)}")
        a(f"v_mfma_f32_16x16x32_bf16 {R(D+8+4*tp)}, {R(E4+4*tp)}, {R(VI)}, {R(D+8+4*tp)}")
    a(f"""
    v_lshlrev_b32 v5, 6, v3
    v_and_b32 v1, 1, v4
    v_lshl_add_u32 v5, v1, 5, v5
    v_lshrrev_b32 v1, 1, v4
    v_lshl_add_u32 v5, v1, 4, v5
    s_add_u32 s60, s60, {WS_Z - WS_Y}
    s_add_u32 s61, s61, {WS_Z - WS_Y}
    s_nop 3
    """)
    pack("v_cvt_pk_bf16_f32", TMP + 8)
    a("s_nop 1")
    for pl in range(2):
        b = TMP + 8 + pl*4
        a(f"v_permlane16_swap_b32 v{b}, v{b+2}")
        a(f"v_permlane16_swap_b32 v{b+1}, v{b+3}")
    for pl in range(2):
        b = TMP + 8 + pl*4
        a.vmem(f"buffer_store_dwordx4 v[{b}:{b+3}], v5, s[40:43], s{60+pl} offen sc1", "z")
    a.stamp()
    a.wait_vm_all()
    bar()
    a(f"""
    s_cmp_eq_u32 s13, 0
    s_cbranch_scc0 k23_nosig
    s_lshl_b32 s26, s2, 4
    s_add_u32 s26, s26, {WS_FL}
    v_mov_b32 v1, s6
    v_mov_b32 v7, 0
    s_mov_b64 exec, 1
    buffer_store_dword v1, v7, s[40:43], s26 offen sc1
    s_mov_b64 exec, -1
    k23_nosig:
    """)
    a.raw("k23_end:")
    a("s_endpgm")
    return a.text()

def tables_asm():
    o = []
    j = np.arange(512)
    c1 = bf16(np.cos(2*np.pi*j/512) / 16); c2 = bf16(np.cos(2*np.pi*j/512) / 8)
    c1[np.abs(np.cos(2*np.pi*j/512)) < 1e-9] = 0; c2[np.abs(np.cos(2*np.pi*j/512)) < 1e-9] = 0
    for i in range(512):
        o.append(f".set CA{i}, 0x{c1[i]:04x}")
        o.append(f".set CB{i}, 0x{c2[i]:04x}")
    o.append(".altmacro")
    o.append(""".macro f8 a,b,c,d,e,f,g,h
.short CA\\a, CA\\b, CA\\c, CA\\d, CA\\e, CA\\f, CA\\g, CA\\h
.endm
.macro g8 a,b,c,d,e,f,g,h
.short CB\\a, CB\\b, CB\\c, CB\\d, CB\\e, CB\\f, CB\\g, CB\\h
.endm
.macro g8s a,b,c,d,e,f,g,h
.short CA\\a, CA\\b, CB\\c, CB\\d, CB\\e, CB\\f, CB\\g, CB\\h
.endm
.macro flane k, o, d
f8 %((\\d*\\k+\\o)&511), %(((\\d+1)*\\k+\\o)&511), %(((\\d+2)*\\k+\\o)&511), %(((\\d+3)*\\k+\\o)&511), %(((\\d+4)*\\k+\\o)&511), %(((\\d+5)*\\k+\\o)&511), %(((\\d+6)*\\k+\\o)&511), %(((\\d+7)*\\k+\\o)&511)
.endm
.macro fhalf n0, d
.set nn, \\n0
.rept 32
flane %((nn>>1)-256*(nn==1)), %(128*(nn&1)*(1+(nn==1))), \\d
.set nn, nn+1
.endr
.endm
.macro ftile n0
.set dd, 0
.rept 64
fhalf \\n0, %dd
.set dd, dd+8
.endr
.endm
.section .rodata,"a"
.p2align 8
tab_F:
.set tt, 0
.rept 16
ftile %(32*tt)
.set tt, tt+1
.endr
""")
    o.append(""".macro glane d, k
g8 %((\\d*\\k)&511), %((\\d*\\k+128)&511), %((\\d*(\\k+1))&511), %((\\d*(\\k+1)+128)&511), %((\\d*(\\k+4))&511), %((\\d*(\\k+4)+128)&511), %((\\d*(\\k+5))&511), %((\\d*(\\k+5)+128)&511)
.endm
.macro glane0 d
g8s 0, %((\\d*256)&511), %((\\d*1)&511), %((\\d+128)&511), %((\\d*4)&511), %((\\d*4+128)&511), %((\\d*5)&511), %((\\d*5+128)&511)
.endm
.macro ghalf d0, k
.set ll, 0
.rept 32
glane %(\\d0+ll), \\k
.set ll, ll+1
.endr
.endm
.macro ghalf0 d0
.set ll, 0
.rept 32
glane0 %(\\d0+ll)
.set ll, ll+1
.endr
.endm
.macro gtile d0
ghalf0 \\d0
ghalf \\d0, 2
.set gg, 1
.rept 31
ghalf \\d0, %(8*gg)
ghalf \\d0, %(8*gg+2)
.set gg, gg+1
.endr
.endm
.p2align 8
tab_G:
.set tt, 0
.rept 16
gtile %(32*tt)
.set tt, tt+1
.endr
.noaltmacro
.p2align 8
tab_S:
""")
    st = small_tables().view(np.uint64)
    for i in range(0, len(st), 8):
        o.append(".quad " + ",".join(f"0x{v:x}" for v in st[i:i+8]))
    return "\n".join(o) + "\n"

if MERGE:
    hdr = f"""; fused LN + GFNet spectral filter + ReGLU, single persistent launch (256 co-resident workgroups)
; @launch {LK}grid=(256,1,1) block=(512,1,1) lds=163840
.amdgcn_target "amdgcn-amd-amdhsa--gfx950"
.text
.globl {KNAME}
.type {KNAME},@function
"""
    src = hdr + gen_k1() + gen_k23_main() + "code_end:\n" + tables_asm()
    src += '.section .rodata,"a"\n.p2align 6\n' + kd(KNAME, 256)
else:
    hdr = """; fused LN + GFNet spectral filter + ReGLU, 2 launches
; @launch kernel=k1_kernel grid=(256,1,1) block=(512,1,1) lds=163840
; @launch kernel=k23_kernel grid=(256,1,1) block=(512,1,1) lds=163840
.amdgcn_target "amdgcn-amd-amdhsa--gfx950"
.text
.globl k1_kernel
.type k1_kernel,@function
.globl k23_kernel
.type k23_kernel,@function
"""
    src = hdr + gen_k1() + gen_k23_main() + "code_end:\n" + tables_asm()
    src += '.section .rodata,"a"\n.p2align 6\n' + kd("k1_kernel", 256) + ".p2align 6\n" + kd("k23_kernel", 256)
open(OUT, "w").write(src)
print("wrote", OUT, len(src))
```

```python
import numpy as np, sys, math

OUT = sys.argv[1] if len(sys.argv) > 1 else "recurrent_scan__spectral_gfnet__glu_gated_reglu__prompt.s"

WS_H = 0
WS_Y = 8 << 20
WS_Z = 10 << 20
WS_W = 12 << 20
WS_SIZE = 268435456
WS_FL = 15 << 20

def bf16(x):
    u = np.asarray(x, np.float32).view(np.uint32).astype(np.uint64)
    r = ((u + 0x7fff + ((u >> 16) & 1)) >> 16).astype(np.uint16)
    return r
def f16(x):
    return np.asarray(x, np.float64).astype(np.float16).view(np.uint16)

import os
STAMP = os.environ.get("STAMP", "0") == "1"
MERGE = os.environ.get('MERGE','1') == '1'
DIAG = os.environ.get('DIAG','0') == '1'
LK = '' if os.environ.get('PLAIN','0')=='1' else 'kernel=recurrent_scan__spectral_gfnet__glu_gated_reglu__prompt_kernel '
KNAME = 'recurrent_scan__spectral_gfnet__glu_gated_reglu__prompt_kernel'
WS_ST = 16 << 20
class Asm:
    def __init__(self):
        self.lines = []
        self.vm = []
        self.nst = 0
        self.issued = set()
        self.lq = []
        self.sb = 74
        self.maxst = 14
    def stamp(self):
        if not STAMP or self.nst >= self.maxst: return
        self(f"s_memtime s[{self.sb+2*self.nst}:{self.sb+1+2*self.nst}]")
        self("s_waitcnt lgkmcnt(0)")
        self.lq = []
        self.nst += 1
    def stamp_store(self, kidx, wavereg="s3"):
        if not STAMP: return
        self("s_waitcnt lgkmcnt(0)")
        self(f"s_lshl_b32 s62, s2, 4")
        self(f"s_add_u32 s62, s62, {wavereg}")
        self(f"s_lshl_b32 s62, s62, 7")
        self(f"s_add_u32 s62, s62, {WS_ST + kidx*(1<<20)}")
        self("v_mov_b32 v0, 0")
        for i in range(self.nst):
            self(f"v_mov_b32 v1, s{self.sb+2*i}")
            self(f"buffer_store_dword v1, v0, s[40:43], s62 offen offset:{4*i}")
    def __call__(self, s):
        for ln in s.strip("\n").split("\n"):
            self.lines.append("  " + ln.strip() if not ln.strip().endswith(":") else ln.strip())
    def raw(self, s):
        self.lines.append(s)
    def vmem(self, s, tag):
        self(s); self.vm.append(tag); self.issued.add(tag)
        assert len(self.vm) <= 63, "vmcnt overflow"
    def wait_vm(self, tag):
        assert tag in self.issued, tag
        if tag not in self.vm: return
        idx = max(i for i, t in enumerate(self.vm) if t == tag)
        n = len(self.vm) - 1 - idx
        self(f"s_waitcnt vmcnt({n})")
        self.vm = self.vm[idx + 1:]
    def lds(self, s, tag):
        self(s); self.lq.append(tag)
    def wait_lds(self, tag):
        if tag not in self.lq: return
        idx = max(i for i, t in enumerate(self.lq) if t == tag)
        n = min(len(self.lq) - 1 - idx, 15)
        self(f"s_waitcnt lgkmcnt({n})")
        self.lq = self.lq[len(self.lq) - n:] if n else []
    def wait_lds_all(self):
        self("s_waitcnt lgkmcnt(0)"); self.lq = []
    def wait_vm_all(self):
        self("s_waitcnt vmcnt(0)"); self.vm = []
    def text(self):
        return "\n".join(self.lines) + "\n"

def srd(a, s, lo, hi, nbytes):
    a(f"s_mov_b32 s{s}, {lo}")
    a(f"s_mov_b32 s{s+1}, {hi}")
    a(f"s_mov_b32 s{s+2}, {nbytes}")
    a(f"s_mov_b32 s{s+3}, 0x20000")

def getpc_tab(a, s, sym):
    a(f"s_getpc_b64 s[{s}:{s+1}]")
    a(f"s_add_u32 s{s}, s{s}, {sym}@rel32@lo+4")
    a(f"s_addc_u32 s{s+1}, s{s+1}, {sym}@rel32@hi+12")

def kd(name, vgpr, sgpr=102):
    acc = min((vgpr + 3) // 4 * 4, 256)
    return f""".amdhsa_kernel {name}
  .amdhsa_next_free_vgpr {vgpr}
  .amdhsa_next_free_sgpr {sgpr}
  .amdhsa_accum_offset {acc}
  .amdhsa_group_segment_fixed_size 0
  .amdhsa_kernarg_size 80
  .amdhsa_user_sgpr_count 2
  .amdhsa_user_sgpr_kernarg_segment_ptr 1
  .amdhsa_system_sgpr_workgroup_id_x 1
.end_amdhsa_kernel
"""

K1_NS = 5
PREF = os.environ.get('PREF','1') == '1'
K1_PRE = int(os.environ.get('K1_PRE','2'))
K1_PRE2 = int(os.environ.get('K1_PRE2','2'))
P1BAR = int(os.environ.get('P1BAR','11'))
CODEPF = int(os.environ.get('CODEPF','5'))
PFS = int(os.environ.get('PFS','16'))
BWARM = int(os.environ.get('BWARM','0'))
SHARE = os.environ.get('SHARE','0') == '1'
FLATE = os.environ.get('FLATE','1') == '1'
PFSTR = int(os.environ.get('PFSTR','1'))
TLBW = os.environ.get('TLBW','0') == '1'
STP = os.environ.get('STP','sc1')
OSP = os.environ.get('OSP','sc1')
BNREV = os.environ.get('BNREV','1') == '1'
X_NOP2 = os.environ.get('X_NOP2','0')=='1'
X_NODMA = os.environ.get('X_NODMA','0')=='1'
X_NOBAR = os.environ.get('X_NOBAR','0')=='1'
cE1, cT1, cE2, cE3, cT2, cE4, cYR, cYI, cWW, cWM = 128, 144, 152, 168, 184, 192, 208, 212, 216, 232
def gen_k1():
    a = Asm()
    A0 = 128; ACC = 64; BF = 32
    PT = 24; TR = 16; PFD = 12
    VD, VFL, VD2, VNM, VRI, VPF, VPG, VFA = 1, 3, 4, 7, 8, 9, 10, 11
    a.raw(".p2align 8\n" + KNAME + ":\nk1_kernel:")
    a("""
    s_cmp_ge_u32 s2, 256
    s_cbranch_scc1 k1_end
    s_load_dwordx2 s[4:5], s[0:1], 0
    s_load_dwordx4 s[8:11], s[0:1], 8
    s_load_dwordx4 s[12:15], s[0:1], 32
    s_load_dwordx2 s[6:7], s[0:1], 72
    s_load_dwordx2 s[60:61], s[0:1], 48
    s_load_dwordx2 s[68:69], s[0:1], 64
    s_load_dwordx2 s[74:75], s[0:1], 56
    s_memrealtime s[70:71]
    v_lshrrev_b32 v1, 6, v0
    v_and_b32 v2, 63, v0
    s_nop 0
    v_readfirstlane_b32 s3, v1
    """)
    a(f"""
    s_and_b32 s16, s2, 7
    s_lshr_b32 s17, s2, 3
    s_and_b32 s18, s16, 1
    s_lshl_b32 s18, s18, 3
    s_and_b32 s58, s17, 7
    s_add_u32 s18, s18, s58
    s_lshr_b32 s19, s16, 1
    s_lshl_b32 s19, s19, 2
    s_lshr_b32 s20, s17, 3
    s_add_u32 s19, s19, s20
    s_lshl_b32 s59, s20, 2
    s_and_b32 s20, s3, 3
    s_lshr_b32 s21, s3, 2
    s_lshl_b32 s22, s18, 2
    s_add_u32 s22, s22, s20
    v_lshlrev_b32 v{VPF}, 4, v2
    """)
    getpc_tab(a, 64, "k1_kernel")
    a(f"""
    s_mov_b32 s66, code_end-k1_kernel
    s_mov_b32 s67, 0x20000
    s_lshl_b32 s57, s17, 1
    s_add_u32 s57, s57, s3
    s_lshl_b32 s57, s57, 10
    s_cmp_lt_u32 s3, 2
    s_cselect_b32 s57, s57, 0x7f000000
    """)
    a.vmem(f"buffer_load_dwordx4 v[{PFD}:{PFD+3}], v{VPF}, s[64:67], s57 offen", "cpf")
    getpc_tab(a, 24, "tab_F")
    a("""
    s_mov_b32 s26, 524288
    s_mov_b32 s27, 0x20000
    s_lshl_b32 s50, s21, 4
    s_lshl_b32 s51, s50, 6
    s_add_u32 s51, s51, s22
    s_lshl_b32 s51, s51, 10
    s_lshl_b32 s52, s20, 5
    s_add_u32 s52, s52, s50
    s_lshl_b32 s52, s52, 10
    s_lshl_b32 s53, s58, 3
    v_xor_b32 v3, s53, v2
    s_waitcnt lgkmcnt(0)
    """)
    a.stamp()
    srd(a, 28, "s4", "s5", 2048*1024)
    for u in range(16):
        a(f"""
        s_xor_b32 s54, s59, {u}
        v_xor_b32 v4, s54, v3
        v_lshlrev_b32 v4, 4, v4
        s_lshl_b32 s55, s54, 10
        s_add_u32 m0, s52, s55
        s_lshl_b32 s55, s54, 16
        s_add_u32 s53, s51, s55
        """)
        a.vmem("buffer_load_dwordx4 v4, s[28:31], s53 offen lds", "x")
    if TLBW:
        a(f"""
        v_and_b32 v4, 15, v2
        v_lshlrev_b32 v5, 20, v4
        v_and_b32 v4, 1, v2
        v_lshlrev_b32 v4, 20, v4
        global_load_dword v{PFD}, v5, s[6:7]
        global_load_dword v{PFD+1}, v4, s[12:13]
        global_load_dword v{PFD+2}, v4, s[14:15]
        global_load_dword v{PFD+3}, v4, s[60:61]
        global_load_dword v{PFD}, v4, s[74:75]
        global_load_dword v{PFD+1}, v4, s[24:25]
        """)
        for _ in range(6): a.vm.append("tw")
    RR = 131072
    a(f"""
    s_xor_b32 s54, s3, s58
    s_lshl_b32 s54, s54, 12
    s_lshl_b32 s55, s19, 15
    s_add_u32 s54, s54, s55
    s_lshl_b32 s55, s3, 12
    s_add_u32 m0, s55, {RR}
    s_nop 0
    """)
    if not FLATE:
        for u in range(4):
            a.vmem(f"buffer_load_dwordx4 v{VPF}, s[24:27], s54 offen offset:{u*1024} lds", "x")
    else:
        a("s_mov_b32 s72, s54")
        a("s_mov_b32 s73, m0")
        a("s_mov_b32 s64, s24"); a("s_mov_b32 s65, s25"); a("s_mov_b32 s66, 524288")
    srd(a, 32, "s8", "s9", 2048*514)
    srd(a, 36, "s10", "s11", 2048*514)
    WL = ACC + 32
    a(f"""
    s_lshr_b32 s62, s2, 2
    s_lshl_b32 s62, s62, 2
    s_lshr_b32 s63, s3, 1
    s_add_u32 s62, s62, s63
    s_lshr_b32 s63, s62, 4
    s_lshl_b32 s63, s63, 7
    s_and_b32 s62, s62, 15
    s_add_u32 s63, s63, s62
    s_and_b32 s62, s3, 1
    s_lshl_b32 s62, s62, 4
    s_add_u32 s63, s63, s62
    s_mul_i32 s63, s63, 514
    s_and_b32 s62, s2, 3
    s_lshl_b32 s62, s62, 7
    s_add_u32 s63, s63, s62
    v_lshlrev_b32 v5, 1, v2
    """)
    for i in range(4):
        if i: a(f"s_add_u32 s63, s63, {32*514}")
        a.vmem(f"buffer_load_ushort v{WL+i}, v5, s[32:35], s63 offen", "w")
        a.vmem(f"buffer_load_ushort v{WL+4+i}, v5, s[36:39], s63 offen", "w")
    a(f"""
    v_mov_b32 v{WL+10}, 0x7fffff00
    s_cmp_eq_u32 s3, 7
    s_cbranch_scc0 k1_nosp1
    s_lshr_b32 s62, s2, 4
    s_lshl_b32 s62, s62, 7
    s_and_b32 s63, s2, 15
    s_add_u32 s62, s62, s63
    v_and_b32 v4, 3, v2
    v_lshlrev_b32 v4, 5, v4
    v_and_b32 v5, 4, v2
    v_lshl_add_u32 v4, v5, 2, v4
    v_add_u32 v4, s62, v4
    s_movk_i32 s63, 514
    v_mul_lo_u32 v5, v4, s63
    v_lshrrev_b32 v6, 3, v2
    v_cmp_eq_u32 vcc, 1, v6
    v_add_u32 v30, 512, v5
    s_nop 0
    v_cndmask_b32 v5, v30, v5, vcc
    v_mov_b32 v30, 0x7fffff00
    v_cmp_gt_u32 vcc, 24, v2
    s_nop 1
    v_cndmask_b32 v5, v30, v5, vcc
    buffer_load_ushort v{WL+8}, v5, s[32:35], 0 offen
    buffer_load_ushort v{WL+9}, v5, s[36:39], 0 offen
    v_sub_u32 v5, 2048, v4
    v_and_b32 v5, 2047, v5
    v_cmp_eq_u32 s[62:63], 0, v6
    s_nop 1
    v_cndmask_b32 v4, v5, v4, s[62:63]
    v_lshrrev_b32 v5, 7, v4
    v_lshlrev_b32 v5, 9, v5
    v_and_b32 v31, 15, v4
    v_lshl_add_u32 v5, v31, 5, v5
    v_and_b32 v31, 16, v4
    v_add_u32 v5, v5, v31
    v_bfe_u32 v31, v4, 5, 2
    v_lshl_add_u32 v5, v31, 2, v5
    v_lshl_add_u32 v5, v6, 13, v5
    v_add_u32 v5, {WS_W + 256*8192}, v5
    v_cndmask_b32 v{WL+10}, v30, v5, vcc
    k1_nosp1:
    """)
    srd(a, 40, "s6", "s7", WS_SIZE)
    CS = ACC + 48
    getpc_tab(a, 32, "tab_G")
    a(f"""
    s_mov_b32 s34, {524288 + TSZ}
    s_lshl_b32 s62, s19, 7
    s_lshl_b32 s63, s21, 6
    s_add_u32 s62, s62, s63
    s_add_u32 s62, s62, {524288 + TCS}
    v_lshrrev_b32 v5, 5, v2
    v_lshlrev_b32 v5, 4, v5
    """)
    a.vmem(f"buffer_load_dwordx4 v[{CS}:{CS+3}], v5, s[32:35], s62 offen", "cs")
    a.vmem(f"buffer_load_dwordx4 v[{CS+4}:{CS+7}], v5, s[32:35], s62 offen offset:32", "cs")
    a(f"""
    s_and_b32 s23, s3, 1
    s_cmp_eq_u32 s23, 0
    s_cselect_b32 s44, s12, s14
    s_cselect_b32 s45, s13, s15
    s_mov_b32 s46, 1835008
    s_mov_b32 s47, 0x20000
    s_movk_i32 s48, 3584
    s_mul_i32 s49, s19, 224
    v_lshrrev_b32 v8, 4, v2
    v_and_b32 v6, 15, v2
    v_lshrrev_b32 v6, 1, v6
    v_lshlrev_b32 v10, 1, v8
    v_xor_b32 v6, v6, v10
    v_xor_b32 v6, s23, v6
    v_lshlrev_b32 v6, 5, v6
    v_and_b32 v10, 1, v2
    v_lshlrev_b32 v10, 4, v10
    v_add_u32 v6, v6, v10
    v_mul_lo_u32 v8, v8, s48
    v_add_u32 v6, v6, v8
    v_add_u32 v{VD}, s49, v6
    s_lshr_b32 s50, s3, 1
    s_lshl_b32 s50, s50, 3
    s_mul_i32 s52, s50, s48
    s_lshl_b32 s53, s50, 8
    s_lshl_b32 s54, s23, 13
    s_add_u32 s53, s53, s54
    s_lshl_b32 s54, s48, 2
    s_lshl_b32 s55, s48, 5
    s_lshl_b32 s58, s58, 1
    v_add_u32 v{VD}, s52, v{VD}
    v_add_u32 v{VD2}, s54, v{VD}
    """)
    RING = [0, 1, 2, 3, 6, 7, 8] if SHARE else [0, 1, 2, 3, 6, 7, 8, 9]
    NRG = len(RING)
    SPARE = 65536
    YT = SPARE + 512
    def dma_one(c, u):
        if u == 0:
            a(f"s_xor_b32 s56, s58, {c}")
        a(f"s_add_u32 m0, s53, {RING[c % NRG]*16384 + u*1024}")
        if u == 0: a("s_mul_i32 s56, s56, s55")
        else: a("s_nop 0")
        a.vmem(f"buffer_load_dwordx4 v{VD if u == 0 else VD2}, s[44:47], s56 offen lds", f"c{c}")
    a(f"""
    v_lshrrev_b32 v10, 4, v2
    v_and_b32 v6, 15, v2
    v_lshrrev_b32 v31, 2, v6
    v_and_b32 v6, 3, v6
    v_lshrrev_b32 v30, 1, v10
    v_lshlrev_b32 v30, 3, v30
    v_add_u32 v30, v30, v31
    v_lshlrev_b32 v30, 8, v30
    v_lshl_add_u32 v30, v6, 3, v30
    v_and_b32 v10, 1, v10
    v_lshl_add_u32 v30, v10, 13, v30
    v_lshlrev_b32 v31, 1, v31
    v_xor_b32 v31, v31, v10
    s_mul_i32 s57, s21, 3
    """)
    for k in range(4):
        a(f"""
        v_xor_b32 v10, s57, v31
        v_lshl_add_u32 v{TR+k}, v10, 5, v30
        v_add_u32 v{TR+4+k}, 98304, v{TR+k}
        s_add_u32 s57, s57, 1
        """)
    a(f"""
    v_and_b32 v10, 31, v2
    v_lshrrev_b32 v6, 5, v2
    v_and_b32 v31, 15, v2
    v_xor_b32 v6, v6, v31
    s_lshl_b32 s57, s20, 15
    v_lshlrev_b32 v10, 10, v10
    v_add_u32 v10, s57, v10
    """)
    for tt in range(8):
        a(f"v_xor_b32 v31, {2*tt}, v6")
        a(f"v_lshl_add_u32 v{ACC+16+tt}, v31, 4, v10")
    a(f"""
    s_mov_b32 s26, 0x3f803f80
    s_mov_b32 s27, 0xffff0000
    v_mov_b32 v24, 0
    v_mov_b32 v25, 0
    v_mov_b32 v26, 0
    v_mov_b32 v27, 0
    s_lshl_b32 s57, s21, 6
    s_lshl_b32 s62, s21, 14
    s_add_u32 s62, s62, {RR}
    v_add_u32 v5, s62, v{VPF}
    """)
    for c in range(BWARM):
        a(f"s_xor_b32 s56, s58, {c}")
        a("s_mul_i32 s56, s56, s55")
        a.vmem(f"buffer_load_dwordx4 v[{PFD}:{PFD+3}], v{VD}, s[44:47], s56 offen", "bw")
        a.vmem(f"buffer_load_dwordx4 v[{PFD}:{PFD+3}], v{VD2}, s[44:47], s56 offen", "bw")
    a.stamp()
    a.wait_vm("x")
    a("s_barrier")
    a.stamp()
    if FLATE:
        a("s_mov_b32 m0, s73")
        a("s_nop 0")
        for u in range(4):
            a.vmem(f"buffer_load_dwordx4 v{VPF}, s[64:67], s72 offen offset:{u*1024} lds", "f")
    for t in range(32):
        a(f"ds_read_b128 v[{A0+4*t}:{A0+4*t+3}], v{ACC + 16 + t%8} offset:{(t//8)*256}")
    a.wait_vm("w")
    for i in range(4):
        a(f"v_lshl_or_b32 v{WL+12+i}, v{WL+4+i}, 16, v{WL+i}")
    a(f"""
    s_cmp_eq_u32 s3, 7
    s_cbranch_scc0 k1_nosp2
    v_lshl_or_b32 v{WL+8}, v{WL+9}, 16, v{WL+8}
    buffer_store_dword v{WL+8}, v{WL+10}, s[40:43], 0 offen sc1
    v_mov_b32 v30, 0
    v_mov_b32 v31, 0x7fffff00
    v_cmp_eq_u32 vcc, 0, v2
    s_lshl_b32 s51, s2, 4
    s_add_u32 s51, s51, {WS_FL}
    v_cndmask_b32 v31, v31, v30, vcc
    buffer_store_dword v30, v31, s[40:43], s51 offen sc1
    s_add_u32 s51, s51, 8192
    buffer_store_dword v30, v31, s[40:43], s51 offen sc1
    s_add_u32 s51, s51, 8192
    buffer_store_dword v30, v31, s[40:43], s51 offen sc1
    s_cmp_eq_u32 s2, 0
    s_cbranch_scc0 k1_nosp2
    s_or_b32 s70, s70, 1
    v_mov_b32 v31, s70
    s_mov_b64 exec, 1
    global_store_dword v30, v31, s[68:69] sc1
    s_mov_b64 exec, -1
    k1_nosp2:
    """)
    a("s_waitcnt lgkmcnt(14)")
    a("s_set_gpr_idx_on s57, gpr_idx(SRC0,SRC1)")
    for t in range(16):
        if t % 2 == 0 and t > 0 and t <= P1BAR:
            a(f"s_waitcnt lgkmcnt({max(14 - t, 0)})")
        for r in range(4):
            reg = A0 + 4*t + r
            a(f"v_dot2_f32_bf16 v{24 + r%2}, v{reg}, s26, v{24 + r%2}")
            a(f"v_dot2_f32_bf16 v{26 + r%2}, v{reg}, v{reg}, v{26 + r%2}")
        if t == P1BAR:
            if FLATE: a.wait_vm("f")
            a("s_waitcnt lgkmcnt(0)")
            a("s_barrier")
            a("s_set_gpr_idx_off")
            pend = [(c, u) for c in range(16) for u in range(2)]
            for _ in range(2*K1_PRE): dma_one(*pend.pop(0))
            for tt in range(8):
                a(f"ds_read_b128 v[{BF+4*tt}:{BF+4*tt+3}], v5 offset:{tt*1024}")
            a("s_set_gpr_idx_on s57, gpr_idx(SRC0,SRC1)")
    a("s_set_gpr_idx_off")
    a.stamp()
    def mini(ch):
        for t in range(16):
            fb = BF + 4*(t % 8)
            if t < 8: a(f"s_waitcnt lgkmcnt({7})" if t > 0 else "s_waitcnt lgkmcnt(0)")
            else: a(f"s_waitcnt lgkmcnt({15 - t})")
            ar = A0 + 4*(16*ch + t)
            cin = "0" if t == 0 else f"v[{ACC}:{ACC+15}]"
            a(f"v_mfma_f32_32x32x16_bf16 v[{ACC}:{ACC+15}], v[{fb}:{fb+3}], v[{ar}:{ar+3}], {cin}")
            if t < 8:
                a(f"ds_read_b128 v[{fb}:{fb+3}], v5 offset:{(t+8)*1024}")
    a("s_cmp_eq_u32 s21, 0")
    a("s_cbranch_scc0 k1_mini1")
    mini(0)
    a("s_branch k1_minid")
    a.raw("k1_mini1:")
    mini(1)
    a.raw("k1_minid:")
    for _ in range(2*K1_PRE2): dma_one(*pend.pop(0))
    a(f"""
    v_add_f32 v24, v24, v25
    v_add_f32 v25, v26, v27
    v_mov_b32 v26, v24
    v_mov_b32 v27, v25
    s_lshl_b32 s57, s3, 9
    s_add_u32 s57, s57, {SPARE + 4096}
    v_lshlrev_b32 v10, 3, v2
    v_permlane32_swap_b32 v24, v26
    v_permlane32_swap_b32 v25, v27
    v_add_u32 v10, s57, v10
    v_add_f32 v24, v24, v26
    v_add_f32 v25, v25, v27
    v_xor_b32 v6, 0x800, v10
    ds_write_b64 v10, v[24:25]
    s_lshl_b32 s57, s3, 2
    s_add_u32 s57, s57, {SPARE}
    v_mov_b32 v{VFA}, s57
    v_mov_b32 v{VPG}, 0
    ds_write_b32 v{VFA}, v{VPG}
    v_and_b32 v{VFL}, 7, v2
    v_xor_b32 v30, s3, v{VFL}
    v_lshlrev_b32 v30, 4, v30
    v_lshl_add_u32 v30, v2, 7, v30
    v_add_u32 v30, {SPARE + 8192}, v30
    ds_write_b128 v30, v[{WL+12}:{WL+15}]
    v_lshlrev_b32 v{VFL}, 2, v{VFL}
    v_add_u32 v{VFL}, {SPARE}, v{VFL}
    s_lshl_b32 s57, s3, 11
    s_add_u32 s57, s57, {SPARE + 16384}
    v_add_u32 v30, s57, v{VPF}
    v_xor_b32 v31, 0x2000, v30
    s_cmp_eq_u32 s21, 0
    s_cbranch_scc0 k1_px1
    ds_write_b128 v30, v[{ACC+8}:{ACC+11}]
    ds_write_b128 v30, v[{ACC+12}:{ACC+15}] offset:1024
    s_branch k1_pxd
    k1_px1:
    ds_write_b128 v30, v[{ACC}:{ACC+3}]
    ds_write_b128 v30, v[{ACC+4}:{ACC+7}] offset:1024
    """)
    for r in range(8): a(f"v_mov_b32 v{ACC+r}, v{ACC+8+r}")
    a(f"""
    k1_pxd:
    s_mov_b32 s28, s60
    s_mov_b32 s29, s61
    s_mov_b32 s30, {1792*1024}
    s_lshr_b32 s50, s2, 3
    s_lshl_b32 s50, s50, 3
    s_add_u32 s50, s50, s3
    s_mul_i32 s62, s50, 7168
    s_mul_i32 s63, s50, 3072
    v_lshrrev_b32 v28, 3, v2
    v_and_b32 v5, 7, v2
    v_xor_b32 v29, v28, v5
    v_lshlrev_b32 v29, 4, v29
    v_lshl_add_u32 v29, v28, 7, v29
    s_lshl_b32 s57, s3, 10
    s_add_u32 s57, s57, {SPARE + 8192}
    v_add_u32 v29, s57, v29
    v_lshlrev_b32 v5, 4, v5
    v_lshl_add_u32 v5, v28, 13, v5
    s_and_b32 s57, s2, 3
    s_lshl_b32 s57, s57, 3
    s_add_u32 s57, s57, s3
    s_lshl_b32 s57, s57, 16
    s_lshr_b32 s51, s2, 2
    s_lshl_b32 s51, s51, 7
    s_add_u32 s57, s57, s51
    s_add_u32 s51, s57, {WS_W}
    """)
    a.stamp()
    a.wait_vm("c1")
    a("s_waitcnt lgkmcnt(0)")
    a("s_barrier")
    a.stamp()
    YT = RR + 16384 + 8192
    a(f"""
    ds_read_b64 v[26:27], v6
    ds_read_b128 v[{WL}:{WL+3}], v29
    ds_read_b128 v[{ACC+8}:{ACC+11}], v31
    ds_read_b128 v[{ACC+12}:{ACC+15}], v31 offset:1024
    s_waitcnt lgkmcnt(2)
    v_add_f32 v24, v24, v26
    v_add_f32 v25, v25, v27
    v_mul_f32 v24, 0x3b000000, v24
    v_mul_f32 v25, 0x3b000000, v25
    v_fma_f32 v{VRI}, -v24, v24, v25
    v_cvt_pk_bf16_f32 v27, v24, v24
    v_lshlrev_b32 v27, 16, v27
    v_sub_f32 v{VNM}, 0, v27
    v_mul_f32 v29, v24, v24
    v_mul_f32 v30, 0x43800000, v{VRI}
    v_cmp_gt_f32 vcc, v29, v30
    """)
    a.vmem(f"buffer_store_dwordx4 v[{WL}:{WL+3}], v5, s[40:43], s51 offen sc1", "ws")
    a(f"""
    s_cbranch_vccz k1_fast
    v_mov_b32 v28, 0
    v_mov_b32 v29, 0
    s_mov_b32 s56, 0
    k1_slow:
    s_set_gpr_idx_on s56, gpr_idx(SRC1)
    v_lshlrev_b32 v30, 16, v{A0}
    v_and_b32 v31, s27, v{A0}
    s_set_gpr_idx_off
    v_add_f32 v30, v{VNM}, v30
    v_add_f32 v31, v{VNM}, v31
    v_fma_f32 v28, v30, v30, v28
    v_fma_f32 v29, v31, v31, v29
    s_add_u32 s56, s56, 1
    s_cmp_lt_u32 s56, 128
    s_cbranch_scc1 k1_slow
    v_add_f32 v28, v28, v29
    v_mov_b32 v29, v28
    v_sub_f32 v26, v24, v27
    s_nop 0
    v_permlane32_swap_b32 v28, v29
    v_add_f32 v28, v28, v29
    v_mul_f32 v28, 0x3b000000, v28
    v_fma_f32 v{VRI}, -v26, v26, v28
    k1_fast:
    v_max_f32 v28, 0, v{VRI}
    v_cvt_pk_bf16_f32 v28, v28, v28
    v_lshlrev_b32 v28, 16, v28
    v_add_f32 v28, 0x3727c5ac, v28
    v_cvt_pk_bf16_f32 v28, v28, v28
    v_lshlrev_b32 v28, 16, v28
    v_sqrt_f32 v28, v28
    v_and_b32 v30, 31, v2
    v_cvt_pk_bf16_f32 v28, v28, v28
    v_lshlrev_b32 v28, 16, v28
    v_rcp_f32 v{VRI}, v28
    v_lshlrev_b32 v30, 1, v30
    v_lshrrev_b32 v31, 5, v2
    v_lshl_add_u32 v30, v31, 10, v30
    s_lshl_b32 s57, s20, 6
    s_lshl_b32 s56, s21, 12
    s_add_u32 s57, s57, s56
    s_add_u32 s57, s57, {YT}
    v_add_u32 v30, s57, v30
    s_waitcnt lgkmcnt(0)
    """)
    a.wait_vm("cs")
    for r in range(8): a(f"v_add_f32 v{ACC+r}, v{ACC+r}, v{ACC+8+r}")
    for r in range(8): a(f"v_fma_f32 v{ACC+r}, v{VNM}, v{CS+r}, v{ACC+r}")
    for r in range(8): a(f"v_mul_f32 v{ACC+r}, v{VRI}, v{ACC+r}")
    for r in range(8): a(f"v_cvt_f16_f32 v{ACC+r}, v{ACC+r}")
    for r in range(8):
        a(f"ds_write_b16 v30, v{ACC+r} offset:{(8*(r//4) + r%4)*256}")
    a(f"""
    s_lshl_b32 s57, s3, 10
    s_add_u32 s57, s57, {YT}
    v_add_u32 v5, s57, v{VPF}
    v_lshrrev_b32 v6, 4, v2
    v_lshlrev_b32 v6, 12, v6
    v_and_b32 v31, 15, v2
    v_lshl_add_u32 v6, v31, 4, v6
    s_lshl_b32 s51, s19, 5
    s_lshl_b32 s57, s3, 2
    s_add_u32 s51, s51, s57
    s_lshl_b32 s51, s51, 12
    s_lshl_b32 s57, s18, 8
    s_add_u32 s51, s51, s57
    s_add_u32 s51, s51, {WS_Y}
    """)
    if DIAG: a("s_memrealtime s[92:93]"); a("s_waitcnt lgkmcnt(0)")
    if SHARE:
        a(f"""
        s_lshl_b32 s48, s3, 12
        s_add_u32 s48, s48, {SPARE + 4096}
        s_cmp_eq_u32 s3, 7
        s_cselect_b32 s48, {RR + 16384}, s48
        s_xor_b32 s57, s3, 4
        s_lshl_b32 s49, s57, 12
        s_add_u32 s49, s49, {SPARE + 4096}
        s_cmp_eq_u32 s57, 7
        s_cselect_b32 s49, {RR + 16384}, s49
        """)
    vm_save = list(a.vm); nst_save = a.nst; pend_save = list(pend)

    def p2(i, r):
        reg = A0 + i*4 + r
        t0, t1 = PT + 2*r, PT + 2*r + 1
        return [f"v_lshlrev_b32 v{t0}, 16, v{reg}", f"v_and_b32 v{t1}, s27, v{reg}",
                f"v_add_f32 v{t0}, v{VNM}, v{t0}", f"v_add_f32 v{t1}, v{VNM}, v{t1}",
                f"v_cvt_pk_bf16_f32 v{reg}, v{t0}, v{t1}"]
    def p2_seq(i):
        o = [p2(i, r) for r in range(4)]
        return [o[0][0], o[0][1], o[1][0], o[1][1], o[2][0], o[2][1], o[3][0], o[3][1], o[0][2], o[0][3],
                o[1][2], o[1][3], o[2][2], o[2][3], o[3][2], o[3][3], o[0][4], o[1][4], o[2][4], o[3][4]]

    def mainloop(ch):
        NT = 3 + ch
        a.vm = list(vm_save); a.nst = nst_save
        pend = list(pend_save)
        lab = str(ch)
        NR = 2 * NT
        def reads(i, buf):
            c, s_ = i // 2, i % 2
            pos = RING[c % NRG] * 16384
            win = 1 if pos >= 98304 else 0
            base = pos - 98304 * win
            for k in range(NT):
                fr = BF + buf*16 + k*4
                for t in range(2):
                    a(f"ds_read_b64_tr_b16 v[{fr+2*t}:{fr+2*t+1}], v{TR+4*win+k} offset:{base + (16*s_ + 4*t)*256}")
        def mfma(i, buf, k):
            areg = A0 + 4*i
            fr = BF + buf*16 + k*4
            acc = ACC + k*16
            cin = "0" if i == 0 else f"v[{acc}:{acc+15}]"
            a(f"v_mfma_f32_32x32x16_bf16 v[{acc}:{acc+15}], v[{fr}:{fr+3}], v[{areg}:{areg+3}], {cin}")
        reads(0, 0)
        for ins in p2_seq(0): a(ins)
        a.stamp()
        limit = 6
        npf = 0
        for i in range(32):
            c, s_ = i // 2, i % 2
            buf = i & 1
            if s_ == 0:
                if c >= 1 and c < 15: a(f"ds_read_b32 v0, v{VFL}")
                reads(i + 1, buf ^ 1)
                a(f"s_waitcnt lgkmcnt({NR})")
                if c == 2:
                    a.vmem(f"buffer_store_dwordx4 v[{PFD}:{PFD+3}], v6, s[40:43], s51 offen sc1", "ys")
                    a("v_mov_b32 v5, 0")
                    a.vmem("global_load_dword v5, v5, s[68:69] sc1", "nonce")
                if c + 2 < 16:
                    assert not pend or pend[0][0] > c + 2
                    a.wait_vm(f"c{c+2}")
                    if c == 5: a.wait_vm("nonce")
                    a(f"v_mov_b32 v{VPG}, {c+1}")
                    a(f"ds_write_b32 v{VFA}, v{VPG}")
            else:
                if i + 1 < 32:
                    if c >= 1:
                        a(f"""
                        k1_spin{lab}_{c}:
                        v_cmp_gt_u32 vcc, {c}, v0
                        s_cbranch_vccz k1_ok{lab}_{c}
                        ds_read_b32 v0, v{VFL}
                        s_waitcnt lgkmcnt(0)
                        s_branch k1_spin{lab}_{c}
                        k1_ok{lab}_{c}:
                        """)
                        if SHARE: limit = max(limit, c + 5)
                        elif c >= 3: limit = c + 6
                        if c == 1:
                            a(f"ds_read_b128 v[{PFD}:{PFD+3}], v5")
                        if SHARE and 3 <= c <= 14:
                            fi = 2*(c + 1) + (1 - ch)
                            a(f"v_add_u32 v0, s49, v{VPF}")
                            a(f"ds_read_b128 v[{A0+4*fi}:{A0+4*fi+3}], v0 offset:{((c-2) % 4)*1024}")
                        if c == 6:
                            a(f"""
                            s_mov_b32 s57, 0
                            k1_nn{lab}:
                            v_readfirstlane_b32 s6, v5
                            s_cmp_lg_u32 s6, 0
                            s_cbranch_scc1 k1_nh{lab}
                            s_add_u32 s57, s57, 1
                            s_cmp_ge_u32 s57, 0x8000
                            s_cbranch_scc1 k1_nh{lab}
                            v_mov_b32 v5, 0
                            global_load_dword v5, v5, s[68:69] sc1
                            s_waitcnt vmcnt(0)
                            s_branch k1_nn{lab}
                            k1_nh{lab}:
                            """)
                            if ch == 0:
                                a(f"""
                                s_cmp_eq_u32 s3, 0
                                s_cbranch_scc0 k1_nofy
                                s_lshl_b32 s57, s2, 4
                                s_add_u32 s57, s57, {WS_FL + 16384}
                                v_mov_b32 v6, 0
                                s_mov_b64 exec, 1
                                buffer_store_dword v5, v6, s[40:43], s57 offen sc1
                                s_mov_b64 exec, -1
                                k1_nofy:
                                """)
                    reads(i + 1, buf ^ 1)
                    a(f"s_waitcnt lgkmcnt({NR})")
                else:
                    a("s_waitcnt lgkmcnt(0)")
            if not SHARE:
                seq = p2_seq(i + 1) if i + 1 < 32 else []
            else:
                seq = p2_seq(i + 1) if i + 1 < 8 else []
                if 1 <= c <= 12:
                    fo = 2*(c + 3) + ch
                    o_ = [p2(fo, r) for r in (2*s_, 2*s_ + 1)]
                    seq = seq + [o_[0][0], o_[0][1], o_[1][0], o_[1][1], o_[0][2], o_[0][3], o_[1][2], o_[1][3], o_[0][4], o_[1][4]]
                    if s_ == 1:
                        seq = seq + [f"v_add_u32 v{PT}, s48, v{VPF}", f"ds_write_b128 v{PT}, v[{A0+4*fo}:{A0+4*fo+3}] offset:{(c % 4)*1024}"]
            per = (len(seq) + NT - 1) // NT if seq else 1
            for k in range(NT):
                mfma(i, buf, k)
                for ins in seq[k*per:(k+1)*per]: a(ins)
                if k in (0, 2) and pend and pend[0][0] <= limit:
                    dma_one(*pend.pop(0))
                if PREF and k == 1 and i >= PFS and npf < 10 and (i - PFS) % PFSTR == 0:
                    if npf < 7:
                        a.vmem(f"buffer_load_dwordx4 v[{PFD}:{PFD+3}], v{VPF}, s[28:31], s62 offen offset:{(npf % 4)*1024}", "pf")
                        if npf == 3: a("s_add_u32 s62, s62, 4096")
                    else:
                        a.vmem(f"buffer_load_dwordx4 v[{PFD}:{PFD+3}], v{VPF}, s[32:35], s63 offen offset:{(npf-7)*1024}", "pf")
                    npf += 1
            if ch == 0:
                TB = 524288
                CL_ = [(cE1+4*q, "s72", TE1+q*1024) for q in range(4)] + [(cT1+4*q, "s73", q*1024) for q in range(2)] + \
                      [(cE2+4*q, "s16", q*1024) for q in range(4)] + [(cE3+4*q, "s17", q*1024) for q in range(4)] + \
                      [(cT2+4*q, "s24", q*1024) for q in range(2)] + [(cE4+4*q, "s25", q*1024) for q in range(4)]
                if i == 3:
                    a(f"""
                    s_mov_b32 s72, {TB}
                    s_lshl_b32 s57, s3, 11
                    s_add_u32 s73, s57, {TB + TT1}
                    s_add_u32 s24, s57, {TB + TT2}
                    s_lshl_b32 s57, s3, 12
                    s_add_u32 s16, s57, {TB + TE2}
                    s_add_u32 s17, s57, {TB + TE3}
                    s_mov_b32 s25, {TB + TE4}
                    """)
                if 4 <= i < 24:
                    d_, so, of = CL_[i - 4]
                    assert (d_ - A0) // 4 <= i
                    a.vmem(f"buffer_load_dwordx4 v[{d_}:{d_+3}], v{VPF}, s[32:35], {so} offen offset:{of}", "ct")
                X_ = ACC + 48
                if i == 21:
                    a(f"s_mov_b32 s57, {WS_FL + 16384}")
                    for q in range(4):
                        a.vmem(f"buffer_load_dword v{X_+q}, v{VPF}, s[40:43], s57 offen offset:{q*1024} sc1", "fy")
                    a(f"""
                    v_and_b32 v{X_+4}, 15, v2
                    v_lshlrev_b32 v{X_+4}, 6, v{X_+4}
                    v_lshrrev_b32 v{X_+5}, 4, v2
                    v_lshl_add_u32 v{X_+4}, v{X_+5}, 4, v{X_+4}
                    v_lshlrev_b32 v{X_+5}, 5, v2
                    s_lshl_b32 s72, s2, 13
                    s_lshl_b32 s73, s3, 10
                    s_add_u32 s16, s72, s73
                    s_add_u32 s16, s16, {WS_Y}
                    s_add_u32 s17, s16, 4096
                    s_lshl_b32 s73, s3, 11
                    s_add_u32 s72, s72, s73
                    s_add_u32 s72, s72, {WS_W}
                    s_add_u32 s73, s73, {WS_W + 256*8192}
                    """)
                if i == 25:
                    a.wait_vm("fy")
                    a(f"""
                    s_mov_b32 s56, 0
                    s_mov_b32 s57, {WS_FL + 16384}
                    k1_fys:
                    v_xor_b32 v{X_}, s6, v{X_}
                    v_xor_b32 v{X_+1}, s6, v{X_+1}
                    v_xor_b32 v{X_+2}, s6, v{X_+2}
                    v_xor_b32 v{X_+3}, s6, v{X_+3}
                    v_or3_b32 v{X_}, v{X_}, v{X_+1}, v{X_+2}
                    v_or_b32 v{X_}, v{X_}, v{X_+3}
                    v_cmp_ne_u32 vcc, 0, v{X_}
                    s_cbranch_vccz k1_fyok
                    s_add_u32 s56, s56, 1
                    s_cmp_ge_u32 s56, 0x4000
                    s_cbranch_scc1 k1_fyok
                    s_sleep 16
                    buffer_load_dword v{X_}, v{VPF}, s[40:43], s57 offen sc1
                    buffer_load_dword v{X_+1}, v{VPF}, s[40:43], s57 offen offset:1024 sc1
                    buffer_load_dword v{X_+2}, v{VPF}, s[40:43], s57 offen offset:2048 sc1
                    buffer_load_dword v{X_+3}, v{VPF}, s[40:43], s57 offen offset:3072 sc1
                    s_waitcnt vmcnt(0)
                    s_branch k1_fys
                    k1_fyok:
                    """)
                    a.vmem(f"buffer_load_dwordx4 v[{cYR}:{cYR+3}], v{X_+4}, s[40:43], s16 offen sc1", "ct")
                    a.vmem(f"buffer_load_dwordx4 v[{cYI}:{cYI+3}], v{X_+4}, s[40:43], s17 offen sc1", "ct")
                if i == 26:
                    a.vmem(f"buffer_load_dwordx4 v[{cWW}:{cWW+3}], v{X_+5}, s[40:43], s72 offen sc1", "ct")
                    a.vmem(f"buffer_load_dwordx4 v[{cWW+4}:{cWW+7}], v{X_+5}, s[40:43], s72 offen offset:16 sc1", "ct")
                if i == 30:
                    a(f"""
                    s_cmp_eq_u32 s2, 0
                    s_cbranch_scc0 k1_nosp3
                    buffer_load_dwordx4 v[{cWW+8}:{cWW+11}], v{X_+5}, s[40:43], s73 offen sc1
                    buffer_load_dwordx4 v[{cWW+12}:{cWW+15}], v{X_+5}, s[40:43], s73 offen offset:16 sc1
                    s_add_u32 s73, s73, 8192
                    buffer_load_dwordx4 v[{cWM}:{cWM+3}], v{X_+5}, s[40:43], s73 offen sc1
                    buffer_load_dwordx4 v[{cWM+4}:{cWM+7}], v{X_+5}, s[40:43], s73 offen offset:16 sc1
                    s_add_u32 s73, s73, 8192
                    buffer_load_dwordx4 v[{cWM+8}:{cWM+11}], v{X_+5}, s[40:43], s73 offen sc1
                    buffer_load_dwordx4 v[{cWM+12}:{cWM+15}], v{X_+5}, s[40:43], s73 offen offset:16 sc1
                    k1_nosp3:
                    """)
            if i % 8 == 7 and i < 31: a.stamp()
        assert not pend
        a(f"""
        s_mul_i32 s50, s22, 112
        s_mul_i32 s51, s19, 7
        s_add_u32 s50, s50, s51
        s_add_u32 s50, s50, {3*ch}
        s_lshl_b32 s50, s50, 10
        s_add_u32 s50, s50, {WS_H}
        v_mov_b32 v10, v{VRI}
        v_mov_b32 v11, v{VRI}
        s_nop 7
        """)
        a.stamp()
        for k in range(NT):
            G = ACC + k*16; U = G + 8
            O = BF + k*4; Q = (ACC + 56) if ch == 0 else (A0 + k*8)
            for p in range(8):
                a(f"v_pk_mul_f32 v[{G+2*p}:{G+2*p+1}], v[{G+2*p}:{G+2*p+1}], v[10:11]")
            for p in range(8):
                a(f"v_max_f32 v{G+p}, 0, v{G+p}")
            for p in range(8):
                a(f"v_cvt_pk_bf16_f32 v{Q+p}, v{G+2*p}, v{G+2*p+1}")
            for p in range(8):
                a(f"v_lshlrev_b32 v{G+2*p}, 16, v{Q+p}")
                a(f"v_and_b32 v{G+2*p+1}, s27, v{Q+p}")
            for p in range(4):
                a(f"v_pk_mul_f32 v[{G+2*p}:{G+2*p+1}], v[{G+2*p}:{G+2*p+1}], v[{U+2*p}:{U+2*p+1}]")
            for p in range(4):
                a(f"v_cvt_pk_bf16_f32 v{O+p}, v{G+2*p}, v{G+2*p+1}")
            a(f"buffer_store_dwordx4 v[{O}:{O+3}], v{VPF}, s[40:43], s50 offen offset:{k*1024} sc1")
        a.stamp()
        a.stamp_store(0)
        a("s_branch ph2")
    a("""
    s_cmp_eq_u32 s21, 0
    s_cbranch_scc0 k1_ch1
    """)
    mainloop(0)
    a.raw("k1_ch1:")
    mainloop(1)
    a.raw("k1_end:")
    a("s_endpgm")
    return a.text()

TE1, TE2, TE3, TE4, TT1, TT2, TCS, TSZ = 0, 4096, 20480, 36864, 40960, 49152, 57344, 59392
def small_tables():
    buf = np.zeros(TSZ // 2, np.uint16)
    l = np.arange(64); c = l % 16; g = l // 16; j = np.arange(8)
    for t in range(2):
        ang = -2*np.pi*((8*g[:,None]+j[None,:])*(16*t+c)[:,None] % 32)/32
        buf[(TE1 + (0*2+t)*1024)//2:][:512] = f16(np.cos(ang)/8).ravel()
        buf[(TE1 + (1*2+t)*1024)//2:][:512] = f16(np.sin(ang)/8).ravel()
    for w in range(4):
        for st in range(2):
            ang = -2*np.pi*((32*st+8*g[:,None]+j[None,:])*(16*w+c)[:,None] % 64)/64
            buf[(TE2 + ((w*2+0)*2+st)*1024)//2:][:512] = f16(np.cos(ang)/8).ravel()
            buf[(TE2 + ((w*2+1)*2+st)*1024)//2:][:512] = f16(np.sin(ang)/8).ravel()
            buf[(TE3 + ((w*2+0)*2+st)*1024)//2:][:512] = bf16(np.cos(-ang)/8).ravel()
            buf[(TE3 + ((w*2+1)*2+st)*1024)//2:][:512] = bf16(np.sin(-ang)/8).ravel()
    sig = 16*(j[None,:]//4) + 4*g[:,None] + (j[None,:] % 4)
    for tp in range(2):
        ang = 2*np.pi*((sig*(16*tp+c)[:,None]) % 32)/32
        buf[(TE4 + (0*2+tp)*1024)//2:][:512] = bf16(np.cos(ang)/8).ravel()
        buf[(TE4 + (1*2+tp)*1024)//2:][:512] = bf16(np.sin(ang)/8).ravel()
    for w in range(4):
        for e in range(8):
            t, i = e // 4, e % 4
            a1 = -2*np.pi*(((16*w+4*g+i)*(16*t+c)) % 2048)/2048
            a2 = 2*np.pi*(((16*w+c)*(16*t+4*g+i)) % 2048)/2048
            for (base, an) in ((TT1, a1), (TT2, a2)):
                o = (base + (w*2 + e//4)*1024)//2 + l*8 + (e % 4)*2
                buf[o] = f16(np.cos(an)); buf[o+1] = f16(np.sin(an))
    jj = np.arange(512); c1 = bf16(np.cos(2*np.pi*jj/512) / 16); c1[np.abs(np.cos(2*np.pi*jj/512)) < 1e-9] = 0
    cf = (c1.astype(np.uint32) << 16).view(np.float32).astype(np.float64)
    cs = np.zeros(512)
    for n in range(512):
        kk, off = (256, 0) if n == 1 else (n >> 1, 128*(n & 1))
        cs[n] = cf[(jj*kk + off) & 511].sum()
    buf.view(np.float32)[TCS//4:TCS//4+512] = cs.astype(np.float32)
    return buf

K3_NS = 5
CSTR = int(os.environ.get('CSTR','2'))
NUP = int(os.environ.get('NUP','16'))
ZSC = os.environ.get('ZSC','sc1')
HSC = os.environ.get('HSC','sc1')
MPRE = int(os.environ.get('MPRE','16'))
PSLEEP = int(os.environ.get('PSLEEP','8'))
GLAG = int(os.environ.get('GLAG','5'))
GOLD = int(os.environ.get('GOLD','3'))
CPRE = True
ZSLEEP = int(os.environ.get('ZSLEEP','12'))
ZMIN = int(os.environ.get('ZMIN','30'))
POLLD = int(os.environ.get('POLLD','4'))
HDIST = int(os.environ.get('HDIST','12'))
ZSTART = int(os.environ.get('ZSTART','28'))
ZTAIL = int(os.environ.get('ZTAIL','0'))
NIDLE = int(os.environ.get('NIDLE','2'))
NZB = int(os.environ.get('NZB','1'))
LOADALL = os.environ.get('LOADALL','1') == '1'
CPRIO = int(os.environ.get('CPRIO','2'))
LATEC = int(os.environ.get('LATEC','1'))
def gen_k23_main():
    a = Asm()
    if MERGE:
        a.raw("ph2:")
        a(f"""
        s_load_dwordx4 s[8:11], s[0:1], 48
        s_load_dwordx2 s[14:15], s[0:1], 72
        s_waitcnt vmcnt(0) lgkmcnt(0)
        s_barrier
        s_cmp_eq_u32 s3, 4
        s_cbranch_scc0 ph2_nopub
        s_lshl_b32 s26, s2, 4
        s_add_u32 s26, s26, {WS_FL + 8192}
        v_mov_b32 v7, 0
        v_mov_b32 v23, s6
        s_mov_b64 exec, 1
        buffer_store_dword v23, v7, s[40:43], s26 offen sc1
        s_mov_b64 exec, -1
        ph2_nopub:
        {"s_memrealtime s[94:95]" if DIAG else "s_nop 0"}
        {"s_mov_b32 s100, s70" if DIAG else "s_nop 0"}
        s_lshl_b32 s26, s3, 6
        v_add_u32 v0, s26, v2
        """)
    else:
        a.raw(".p2align 8\nk23_kernel:")
        a("""
        s_cmp_ge_u32 s2, 256
        s_cbranch_scc1 k23_end
        s_load_dwordx2 s[4:5], s[0:1], 0
        s_load_dwordx4 s[8:11], s[0:1], 48
        s_load_dwordx2 s[14:15], s[0:1], 72
        v_lshrrev_b32 v1, 6, v0
        v_and_b32 v2, 63, v0
        s_mov_b32 s6, 1
        v_readfirstlane_b32 s3, v1
        """)
    a("""
    v_and_b32 v3, 15, v2
    v_lshrrev_b32 v4, 4, v2
    s_mov_b32 s48, 0x80008000
    s_mov_b32 s49, 0xffff0000
    s_cmp_lt_u32 s3, 4
    s_cbranch_scc1 k23_conv
    """)
    SB = 131072
    NCB = 5 + NIDLE + NZB
    a("s_and_b32 s7, s3, 3")
    getpc_tab(a, 24, "tab_G")
    srd(a, 44, "s24", "s25", 524288)
    if os.environ.get("K3_MAP", "1") == "0":
        a("""
    s_and_b32 s16, s2, 7
    s_lshr_b32 s17, s2, 3
    s_lshr_b32 s18, s16, 1
    s_lshl_b32 s18, s18, 3
    s_and_b32 s19, s17, 7
    s_add_u32 s18, s18, s19
    s_lshl_b32 s58, s19, 1
    s_and_b32 s19, s16, 1
    s_lshl_b32 s19, s19, 2
    s_lshr_b32 s20, s17, 3
    s_add_u32 s19, s19, s20
    s_lshl_b32 s20, s20, 2
    s_add_u32 s58, s58, s20
    """)
    else:
        a("""
    s_and_b32 s16, s2, 7
    s_lshr_b32 s17, s2, 3
    s_lshl_b32 s18, s16, 2
    s_and_b32 s19, s17, 3
    s_add_u32 s18, s18, s19
    s_lshl_b32 s58, s19, 2
    s_lshr_b32 s19, s17, 2
    s_lshl_b32 s20, s19, 1
    s_add_u32 s58, s58, s20
    """)
    a.sb = 92; a.maxst = 5
    XR = 8; PV = 16; VO, VF, VW, VZ, VH = 20, 21, 22, 23, 24
    VPG, VFA, VFL, VFV = 25, 26, 27, 28
    TRW = 29
    TRZ = 37
    GFR = 39
    VW2, VZ2 = 41, 42
    ACG, ACS = 44, 60
    FB = 76
    HB = 136; NHB = 28
    PW = SB + 28672
    NCH = 36
    a(f"""
    s_cmp_ge_u32 s58, 14
    s_cselect_b32 s20, 14, 0
    s_sub_u32 s58, s58, s20
    s_lshl_b32 s58, s58, 1
    s_add_u32 s12, s18, s19
    s_and_b32 s12, s12, 7
    s_and_b32 s20, s7, 1
    s_lshr_b32 s21, s7, 1
    s_lshl_b32 s22, s18, 1
    s_add_u32 s22, s22, s21
    v_lshlrev_b32 v{VF}, 4, v2
    v_lshrrev_b32 v6, 3, v2
    v_and_b32 v5, 7, v2
    v_lshrrev_b32 v5, 1, v5
    v_lshrrev_b32 v1, 1, v6
    v_xor_b32 v5, v5, v1
    v_lshlrev_b32 v5, 5, v5
    v_and_b32 v1, 1, v2
    v_lshl_add_u32 v5, v1, 4, v5
    v_lshl_add_u32 v{VW}, v6, 10, v5
    v_lshl_add_u32 v{VZ}, v6, 12, v5
    s_lshl_b32 s27, s19, 7
    v_add_u32 v{VW}, s27, v{VW}
    s_lshl_b32 s27, s18, 7
    s_add_u32 s27, s27, {WS_Z}
    v_add_u32 v{VZ}, s27, v{VZ}
    v_add_u32 v{VW2}, 8192, v{VW}
    v_add_u32 v{VZ2}, 32768, v{VZ}
    v_lshlrev_b32 v{VH}, 9, v4
    v_lshl_add_u32 v{VH}, v3, 4, v{VH}
    s_mul_i32 s50, s22, 112
    s_lshl_b32 s50, s50, 10
    s_lshl_b32 s27, s20, 8
    s_add_u32 s50, s50, s27
    s_add_u32 s50, s50, {WS_H}
    s_lshl_b32 s51, s19, 1
    s_add_u32 s51, s51, s21
    s_lshl_b32 s51, s51, 5
    s_lshl_b32 s27, s20, 1
    s_add_u32 s51, s51, s27
    s_lshl_b32 s51, s51, 10
    s_lshl_b32 s52, s7, 11
    s_lshl_b32 s54, s7, 14
    s_lshl_b32 s55, s7, 16
    s_mov_b32 s59, {WS_FL}
    s_lshl_b32 s27, s7, 2
    s_add_u32 s27, s27, {PW}
    v_mov_b32 v{VFA}, s27
    v_mov_b32 v{VPG}, 0
    v_and_b32 v{VFL}, 3, v2
    v_lshlrev_b32 v{VFL}, 2, v{VFL}
    v_add_u32 v{VFL}, {PW}, v{VFL}
    v_lshlrev_b32 v5, 2, v3
    v_add_u32 v5, {PW}, v5
    ds_write_b32 v5, v{VPG}
    s_waitcnt lgkmcnt(0)
    """)
    a.stamp()
    srd(a, 40, "s14", "s15", WS_SIZE)
    srd(a, 32, "s8", "s9", 1792*1024)
    isd = lambda c: c < 28
    upos = {}; p_ = 0
    for c in range(NCH):
        upos[c] = p_ % 16; p_ += 1 if isd(c) else 2
    ustart = {}; p_ = 0
    for c in range(NCH):
        ustart[c] = p_; p_ += 1 if isd(c) else 2
    uend = lambda c: ustart[c] + (1 if isd(c) else 2)
    a(f"""
    v_add_u32 v{VW}, s54, v{VW}
    v_add_u32 v{VW2}, s54, v{VW2}
    v_add_u32 v43, s50, v{VH}
    s_lshl_b32 s64, s58, 12
    """)
    def tab(c):
        a(f"s_add_u32 s{64+c}, s{63+c}, 4096")
        a(f"s_cmp_eq_u32 s{64+c}, {28*4096}")
        a(f"s_cselect_b32 s{64+c}, 0, s{64+c}")
    def dma_one(c, u):
        if isd(c):
            a(f"s_add_u32 m0, s52, {upos[c]*8192 + u*1024}")
            if u == 0: a(f"s_lshl_b32 s63, s{64+c}, 4")
            else: a("s_nop 0")
            a.vmem(f"buffer_load_dwordx4 v{VW if u == 0 else VW2}, s[32:35], s63 offen lds", f"c{c}")
            return
        if u == 0:
            a(f"s_xor_b32 s57, s12, {c-28}")
            a(f"s_lshl_b32 s62, s57, 12"); a(f"s_add_u32 s62, s62, s51")
            a(f"s_lshl_b32 s63, s57, 18"); a(f"s_add_u32 s63, s63, s55")
        if u < 2:
            a(f"s_add_u32 m0, s52, {upos[c]*8192 + u*1024}")
            a("s_nop 0")
            a.vmem(f"buffer_load_dwordx4 v{VZ if u == 0 else VZ2}, s[40:43], s63 offen {ZSC} lds", f"c{c}")
        else:
            if u == 2:
                a(f"s_add_u32 m0, s52, {((upos[c]+1) % 16)*8192}")
                a("s_nop 0")
            else:
                a(f"s_add_u32 m0, s52, {((upos[c]+1) % 16)*8192}")
                a("s_nop 0")
            a.vmem(f"buffer_load_dwordx4 v{VF}, s[44:47], s62 offen offset:{(u-2)*1024} lds", f"c{c}")
    def hload(j):
        c, s_ = j // 2, j % 2
        hb = HB + (j % NHB) * 4
        a.vmem(f"buffer_load_dwordx4 v[{hb}:{hb+3}], v43, s[40:43], s{64+c} offen offset:{s_*2048} {HSC}", f"h{j}")
    tab(1)
    pend = [(c, u) for c in range(NCH) for u in range(2 if isd(c) else 4)]
    hp = [0]
    if MERGE:
        a("s_barrier")
        for c in range(2, 28): tab(c)
        for c in range(MPRE):
            for u in range(2): dma_one(*pend.pop(0))
    else:
        for c in range(2):
            for u in range(2): dma_one(*pend.pop(0))
            for _ in range(2): hload(hp[0]); hp[0] += 1
        for c in range(2, 28): tab(c)
        a("s_barrier")
        for c in range(NUP // 4):
            for u in range(2): dma_one(*pend.pop(0))
            for _ in range(2): hload(hp[0]); hp[0] += 1
    srd(a, 36, "s10", "s11", 2048*1024)
    srd(a, 28, "s4", "s5", 2048*1024)
    a(f"""
    v_lshrrev_b32 v{PV}, 2, v3
    v_and_b32 v{PV+1}, 3, v3
    v_lshrrev_b32 v{PV+2}, 1, v4
    v_lshlrev_b32 v{PV+2}, 4, v{PV+2}
    v_and_b32 v{PV+3}, 1, v4
    v_lshl_add_u32 v{PV+2}, v{PV+3}, 2, v{PV+2}
    v_add_u32 v{PV+2}, v{PV+2}, v{PV}
    v_lshlrev_b32 v{PV+2}, 7, v{PV+2}
    v_lshl_add_u32 v{PV+2}, v{PV+1}, 3, v{PV+2}
    v_lshrrev_b32 v{PV}, 1, v{PV}
    v_lshl_add_u32 v{PV}, v{PV+3}, 1, v{PV}
    """)
    for dt in range(4):
        a(f"v_xor_b32 v{PV+1}, {dt}, v{PV}")
        a(f"v_lshl_add_u32 v{TRW+dt}, v{PV+1}, 5, v{PV+2}")
        a(f"v_add_u32 v{TRW+4+dt}, 0x10000, v{TRW+dt}")
    a(f"""
    v_xor_b32 v{PV+1}, s7, v{PV}
    v_lshl_add_u32 v{TRZ}, v{PV+1}, 5, v{PV+2}
    v_add_u32 v{TRZ+1}, 0x10000, v{TRZ}
    v_mov_b32 v{GFR}, v{VH}
    v_add_u32 v{GFR+1}, 0x10000, v{VH}
    v_lshrrev_b32 v1, 3, v2
    v_and_b32 v{VO}, 7, v2
    v_lshlrev_b32 v{VO}, 4, v{VO}
    v_lshl_add_u32 v{VO}, v1, 16, v{VO}
    s_lshl_b32 s23, s22, 10
    s_lshl_b32 s26, s19, 7
    s_add_u32 s23, s23, s26
    s_lshl_b32 s26, s20, 20
    s_add_u32 s23, s23, s26
    s_add_u32 s13, s23, 0x80000
    """)
    if MERGE:
        a(f"""
        s_cmp_eq_u32 s7, 0
        s_cbranch_scc0 ph2_ggo
        s_lshr_b32 s26, s18, 1
        s_lshr_b32 s27, s26, 3
        s_and_b32 s26, s26, 7
        s_lshl_b32 s26, s26, 3
        s_add_u32 s26, s26, s27
        s_lshl_b32 s26, s26, 4
        s_add_u32 s26, s26, {WS_FL + 8192}
        v_lshrrev_b32 v{PV}, 2, v3
        v_and_b32 v{PV+1}, 3, v3
        v_lshlrev_b32 v{PV}, 5, v{PV}
        v_lshl_add_u32 v{PV}, v{PV+1}, 10, v{PV}
        s_mov_b32 s27, 0
        ph2_gpoll:
        buffer_load_dword v{PV+1}, v{PV}, s[40:43], s26 offen sc1
        s_waitcnt vmcnt(0)
        v_cmp_ne_u32 vcc, s6, v{PV+1}
        s_cbranch_vccz ph2_ggo
        s_add_u32 s27, s27, 1
        s_cmp_ge_u32 s27, 0x8000
        s_cbranch_scc1 ph2_ggo
        s_sleep {PSLEEP}
        s_branch ph2_gpoll
        ph2_ggo:
        {"s_memrealtime s[96:97]" if DIAG else "s_nop 0"}
        s_waitcnt vmcnt(0) lgkmcnt(0)
        """)
        a.vm = []
    DEPTH = 3
    NST = NCH * 2
    LAG = GLAG
    pubs = []
    def full_issued():
        return (pend[0][0] - 1) if pend else NCH - 1
    def arrive(want, rdone):
        q = min(want, full_issued(), NCH - 1)
        for cc in range(q, -1, -1):
            if f"c{cc}" in a.vm:
                a.wait_vm(f"c{cc}"); break
        pubs.append((q, rdone))
        a(f"v_mov_b32 v{VPG}, {len(pubs)}")
        a.lds(f"ds_write_b32 v{VFA}, v{VPG}", "pw")
    nspin = [0]
    checked = [0]
    fvp = [False]
    def check(k):
        n = nspin[0]; nspin[0] += 1
        if not fvp[0]:
            a.lds(f"ds_read_b32 v{VFV}, v{VFL}", "fv")
        fvp[0] = False
        a.wait_lds("fv")
        a(f"""
        k23_gs{n}:
        v_cmp_gt_u32 vcc, {k}, v{VFV}
        s_cbranch_vccz k23_go{n}
        {"s_sleep 1" if n == 0 else "s_nop 0"}
        ds_read_b32 v{VFV}, v{VFL}
        s_waitcnt lgkmcnt(0)
        s_branch k23_gs{n}
        k23_go{n}:
        """)
        checked[0] = k
        rd = pubs[k-1][1]
        if rd >= 0: ulimit[0] = max(ulimit[0], uend(rd) + 16)
    ulimit = [16]
    def reads(i):
        c, s_ = i // 2, i % 2
        if s_ == 0:
            have = pubs[checked[0]-1][0] if checked[0] else -1
            if have < c or c % 2 == 0:
                need = min(c + 1, NCH - 1) if c % 2 == 0 else c
                ks = [k+1 for k, (q, r) in enumerate(pubs) if q >= need]
                if not ks: ks = [k+1 for k, (q, r) in enumerate(pubs) if q >= c]
                assert ks, ("no publish covers chunk", c, pubs)
                old_ = [k+1 for k, (q, r) in enumerate(pubs) if r <= c - 4]
                k = max([ks[0], checked[0]] + old_)
                if k > checked[0]: check(k)
            if c in (0, 12, 28): a.stamp()
            if c % 2 == 1 and c + 1 < NCH and c >= 3:
                a.lds(f"ds_read_b32 v{VFV}, v{VFL}", "fv"); fvp[0] = True
        fb = FB + (i % DEPTH) * 20
        u0 = upos[c] * 8192
        w0, b0 = u0 >> 16, u0 & 0xffff
        if isd(c):
            for dt in range(4):
                for t in range(2):
                    a.lds(f"ds_read_b64_tr_b16 v[{fb+4*dt+2*t}:{fb+4*dt+2*t+1}], v{TRW+4*w0+dt} offset:{b0 + (32*s_ + 8*t)*128}", f"g{i}")
        else:
            for t in range(2):
                a.lds(f"ds_read_b64_tr_b16 v[{fb+16+2*t}:{fb+17+2*t}], v{TRZ+w0} offset:{b0 + (32*s_ + 8*t)*128}", f"g{i}")
            u1 = ((upos[c] + 1) % 16) * 8192
            w1, b1 = u1 >> 16, u1 & 0xffff
            for dt in range(4):
                a.lds(f"ds_read_b128 v[{fb+4*dt}:{fb+4*dt+3}], v{GFR+w1} offset:{b1 + (dt>>1)*4096 + s_*2048 + (dt&1)*256}", f"g{i}")
    def mfma(i, dt):
        c, s_ = i // 2, i % 2
        fb = FB + (i % DEPTH) * 20
        if isd(c):
            hb = HB + (i % NHB) * 4
            cin = "0" if i == 0 else f"v[{ACG+4*dt}:{ACG+4*dt+3}]"
            a(f"v_mfma_f32_16x16x32_bf16 v[{ACG+4*dt}:{ACG+4*dt+3}], v[{fb+4*dt}:{fb+4*dt+3}], v[{hb}:{hb+3}], {cin}")
        else:
            cin = "0" if i == 56 else f"v[{ACS+4*dt}:{ACS+4*dt+3}]"
            a(f"v_mfma_f32_16x16x32_bf16 v[{ACS+4*dt}:{ACS+4*dt+3}], v[{fb+4*dt}:{fb+4*dt+3}], v[{fb+16}:{fb+19}], {cin}")
    def silu():
        G_ = ACG; T_ = HB
        for p in range(8): a(f"v_cvt_pk_bf16_f32 v{T_+p}, v{G_+2*p}, v{G_+2*p+1}")
        yield
        for p in range(8):
            a(f"v_lshlrev_b32 v{G_+2*p}, 16, v{T_+p}")
            a(f"v_and_b32 v{G_+2*p+1}, s49, v{T_+p}")
            if p % 4 == 3: yield
        for p in range(16):
            a(f"v_mul_f32 v{T_+p}, 0xbfb8aa3b, v{G_+p}")
            if p % 8 == 7: yield
        for p in range(16):
            a(f"v_exp_f32 v{T_+p}, v{T_+p}")
            if p % 4 == 3: yield
        for p in range(16):
            a(f"v_add_f32 v{T_+p}, 1.0, v{T_+p}")
            if p % 8 == 7: yield
        for p in range(16):
            a(f"v_rcp_f32 v{T_+p}, v{T_+p}")
            if p % 4 == 3: yield
        for p in range(16):
            a(f"v_mul_f32 v{G_+p}, v{G_+p}, v{T_+p}")
            if p % 8 == 7: yield
        for p in range(8): a(f"v_cvt_pk_bf16_f32 v{T_+p}, v{G_+2*p}, v{G_+2*p+1}")
        yield
        for p in range(8):
            a(f"v_lshlrev_b32 v{G_+2*p}, 16, v{T_+p}")
            a(f"v_and_b32 v{G_+2*p+1}, s49, v{T_+p}")
            if p % 4 == 3: yield
    sl = silu()
    polled = False
    arrive(MPRE - 1, -1)
    check(1)
    for _ in range(HDIST): hload(hp[0]); hp[0] += 1
    early = []
    for k in range(DEPTH - 1): reads(k)
    for i in range(NST):
        c, s_ = i // 2, i % 2
        if early: arrive(early.pop(0), -1)
        if i + DEPTH - 1 < NST: reads(i + DEPTH - 1)
        a.wait_lds(f"g{i}")
        if isd(c): a.wait_vm(f"h{i}")
        if s_ == 1 and c < NCH - 1 and pubs[-1][0] < NCH - 1 and (c % 2 == 0 or c >= 24):
            arrive(c + LAG, c)
        for dt in range(4):
            mfma(i, dt)
            if dt in (0, 2):
                if pend:
                    pc, pu = pend[0]
                    need = ustart[pc] + (1 if pu < 2 else 2)
                    if need <= ulimit[0] and len(a.vm) < 56 and not (pc >= 28 and i < ZMIN):
                        if pend[0] == (28, 0):
                            a(f"""
                            v_mov_b32 v{PV+1}, {PW + 48}
                            s_cmp_eq_u32 s3, 4
                            s_cbranch_scc0 k23_zw
                            s_mov_b32 s27, 0
                            k23_spin:
                            buffer_load_dword v{PV}, v{VF}, s[40:43], s59 offen sc1
                            buffer_load_dword v{PV+1}, v{VF}, s[40:43], s59 offen offset:1024 sc1
                            buffer_load_dword v{PV+2}, v{VF}, s[40:43], s59 offen offset:2048 sc1
                            buffer_load_dword v{PV+3}, v{VF}, s[40:43], s59 offen offset:3072 sc1
                            s_waitcnt vmcnt(0)
                            v_xor_b32 v{PV}, s6, v{PV}
                            v_xor_b32 v{PV+1}, s6, v{PV+1}
                            v_xor_b32 v{PV+2}, s6, v{PV+2}
                            v_xor_b32 v{PV+3}, s6, v{PV+3}
                            v_or3_b32 v{PV}, v{PV}, v{PV+1}, v{PV+2}
                            v_or_b32 v{PV}, v{PV}, v{PV+3}
                            v_cmp_ne_u32 vcc, 0, v{PV}
                            s_cbranch_vccz k23_go
                            s_add_u32 s27, s27, 1
                            s_cmp_ge_u32 s27, 0x4000
                            s_cbranch_scc1 k23_go
                            s_sleep {ZSLEEP}
                            s_branch k23_spin
                            k23_go:
                            v_mov_b32 v{PV+1}, {PW + 48}
                            v_mov_b32 v{PV}, 1
                            ds_write_b32 v{PV+1}, v{PV}
                            k23_zw:
                            ds_read_b32 v{PV}, v{PV+1}
                            s_waitcnt lgkmcnt(0)
                            v_cmp_ne_u32 vcc, 1, v{PV}
                            s_cbranch_vccz k23_zgo
                            s_sleep 2
                            s_branch k23_zw
                            k23_zgo:
                            """)
                            a.lq = []
                            print("Z issue at step", i, file=sys.stderr)
                        dma_one(*pend.pop(0))
            if dt in (1, 3):
                if hp[0] < 56 and hp[0] - NHB < i and len(a.vm) < 56 and hp[0] <= i + HDIST:
                    hload(hp[0]); hp[0] += 1
            if i >= 58: next(sl, None)
        if i == 50:
            a.vmem(f"buffer_load_dwordx4 v[{XR}:{XR+3}], v{VO}, s[28:31], s23 offen", "x")
            a.vmem(f"buffer_load_dwordx4 v[{XR+4}:{XR+7}], v{VO}, s[28:31], s13 offen", "x")
    assert not pend and hp[0] == 56
    for _ in sl: a("s_nop 0")
    a("s_nop 7")
    O = HB + 16; SV = ACS; GV = ACG; Q = HB + 24
    for p in range(8):
        a(f"v_cvt_pk_bf16_f32 v{Q+p}, v{SV+2*p}, v{SV+2*p+1}")
    for p in range(8):
        a(f"v_lshlrev_b32 v{SV+2*p}, 16, v{Q+p}")
        a(f"v_and_b32 v{SV+2*p+1}, s49, v{Q+p}")
    for p in range(16):
        a(f"v_mul_f32 v{SV+p}, v{SV+p}, v{GV+p}")
    for p in range(8):
        a(f"v_cvt_pk_bf16_f32 v{O+p}, v{SV+2*p}, v{SV+2*p+1}")
    a(f"""
    v_lshrrev_b32 v5, 1, v4
    v_and_b32 v6, 7, v2
    v_xor_b32 v5, v5, v6
    v_and_b32 v7, 1, v4
    v_lshlrev_b32 v7, 3, v7
    v_lshl_add_u32 v7, v3, 7, v7
    s_lshl_b32 s26, s7, 11
    s_add_u32 s26, s26, {SB}
    v_add_u32 v7, s26, v7
    s_barrier
    """)
    for dt in range(4):
        a(f"v_xor_b32 v1, {2*dt}, v5")
        a(f"v_lshl_add_u32 v1, v1, 4, v7")
        a(f"ds_write_b64 v1, v[{O+2*dt}:{O+2*dt+1}]")
    a(f"""
    v_lshrrev_b32 v4, 3, v2
    v_xor_b32 v6, v6, v4
    v_lshlrev_b32 v6, 4, v6
    v_lshl_add_u32 v6, v4, 7, v6
    v_add_u32 v6, s26, v6
    s_waitcnt lgkmcnt(0)
    ds_read_b128 v[{Q}:{Q+3}], v6
    ds_read_b128 v[{Q+4}:{Q+7}], v6 offset:1024
    """)
    a.wait_vm_all()
    for p in range(8):
        a(f"v_lshlrev_b32 v{GV+2*p}, 16, v{XR+p}")
        a(f"v_and_b32 v{GV+2*p+1}, s49, v{XR+p}")
    a("s_waitcnt lgkmcnt(0)")
    for p in range(8):
        a(f"v_lshlrev_b32 v{SV+2*p}, 16, v{Q+p}")
        a(f"v_and_b32 v{SV+2*p+1}, s49, v{Q+p}")
    for p in range(16):
        a(f"v_add_f32 v{SV+p}, v{SV+p}, v{GV+p}")
    for p in range(8):
        a(f"v_cvt_pk_bf16_f32 v{O+p}, v{SV+2*p}, v{SV+2*p+1}")
    a(f"buffer_store_dwordx4 v[{O}:{O+3}], v{VO}, s[36:39], s23 offen {OSP}")
    a(f"buffer_store_dwordx4 v[{O+4}:{O+7}], v{VO}, s[36:39], s13 offen {OSP}")
    a.stamp()
    if STAMP: a("s_waitcnt vmcnt(0)")
    a.stamp()
    a.stamp_store(1)
    if DIAG:
        a(f"""
        s_waitcnt vmcnt(0)
        s_memrealtime s[98:99]
        s_load_dwordx2 s[60:61], s[0:1], 64
        s_waitcnt lgkmcnt(0)
        s_cmp_eq_u32 s3, 4
        s_cbranch_scc0 dg_skip
        s_and_b32 s26, s2, 63
        s_cmp_eq_u32 s26, 1
        s_cbranch_scc0 dg_skip
        s_lshr_b32 s26, s2, 6
        s_cmp_ge_u32 s26, 3
        s_cbranch_scc1 dg_skip
        s_lshl_b32 s26, s26, 4
        s_add_u32 s26, s26, 4
        s_mov_b32 s62, 256
        s_mov_b32 s63, 0x20000
        s_sub_u32 s92, s92, s100
        s_sub_u32 s94, s94, s100
        s_sub_u32 s96, s96, s100
        s_sub_u32 s98, s98, s100
        v_mov_b32 v0, 0
        v_mov_b32 v4, s92
        v_mov_b32 v5, s94
        v_mov_b32 v6, s96
        v_mov_b32 v7, s98
        buffer_store_dword v4, v0, s[60:63], s26 offen
        buffer_store_dword v5, v0, s[60:63], s26 offen offset:4
        buffer_store_dword v6, v0, s[60:63], s26 offen offset:8
        buffer_store_dword v7, v0, s[60:63], s26 offen offset:12
        dg_skip:
        """)
    a("s_endpgm")

    a.raw("k23_conv:")
    a.vm = []; a.lq = []; a.nst = 0; a.sb = 74; a.maxst = 0
    YR, YI, E1, T1, E2, WW, E3, T2, E4, WM = cYR, cYI, cE1, cT1, cE2, cWW, cE3, cT2, cE4, cWM
    D = 8; F = 24; N = 56; TMP = 64; PQ = 80; VL = 7
    for tg_ in ("y", "e1", "t1", "e2", "w", "e3", "t2", "e4"): a.issued.add(tg_)
    a(f"""
    s_barrier
    s_mov_b32 s13, s3
    s_lshl_b32 s60, s2, 13
    s_lshl_b32 s61, s13, 10
    s_add_u32 s60, s60, s61
    s_add_u32 s60, s60, {WS_Y}
    s_add_u32 s61, s60, 4096
    s_lshl_b32 s27, s13, 9
    v_lshlrev_b32 v1, 7, v4
    v_add3_u32 v1, v1, v3, s27
    s_movk_i32 s27, 144
    v_mul_lo_u32 v6, v3, s27
    v_add_u32 v6, {SB}, v6
    v_lshl_add_u32 v5, v4, 3, v6
    s_lshl_b32 s27, s13, 5
    v_add_u32 v5, s27, v5
    v_lshl_add_u32 v6, v4, 4, v6
    """)
    UB, XB, MB = 0, 9216, 18432
    PL = 4608
    def R(x): return f"v[{x}:{x+3}]"
    def fr(pl, t, st): return F + ((pl*2+t)*2+st)*4
    def cmul_tw(tw):
        for e in range(8):
            r = D + e; im = D + 8 + e; tq = tw + e
            t = TMP + 2*(e % 4)
            a(f"""
            v_fma_mix_f32 v{t}, v{im}, v{tq}, 0 op_sel:[0,1,0] op_sel_hi:[0,1,0]
            v_fma_mix_f32 v{t+1}, v{r}, v{tq}, 0 op_sel:[0,1,0] op_sel_hi:[0,1,0]
            """)
            if e % 4 == 3:
                for e2 in range(e-3, e+1):
                    r = D + e2; im = D + 8 + e2; tq = tw + e2
                    t = TMP + 2*(e2 % 4)
                    a(f"""
                    v_fma_mix_f32 v{r}, v{r}, v{tq}, -v{t} op_sel:[0,0,0] op_sel_hi:[0,1,0]
                    v_fma_mix_f32 v{im}, v{im}, v{tq}, v{t+1} op_sel:[0,0,0] op_sel_hi:[0,1,0]
                    """)
    def pack(cvt, dst):
        for e in range(8):
            a(f"{cvt} v{dst+e}, v{D+2*e}, v{D+2*e+1}")
    def lds_write(base, src):
        for pl in range(2):
            for t in range(2):
                a(f"ds_write_b64 v5, v[{src+pl*4+t*2}:{src+pl*4+t*2+1}] offset:{base + pl*PL + t*16*144}")
    def lds_read(base):
        for pl in range(2):
            for t in range(2):
                for st in range(2):
                    f_ = fr(pl, t, st)
                    a(f"ds_read_b128 v[{f_}:{f_+3}], v6 offset:{base + pl*PL + t*16*144 + st*64}")
    nbar = [0]
    CA, CL, CV = 112, 113, 114
    def bar(tag=""):
        nbar[0] += 1
        p = nbar[0]
        a(f"""
        v_mov_b32 v{CV}, {p}
        s_waitcnt lgkmcnt(0)
        ds_write_b32 v{CA}, v{CV}
        """)
        a(f"""
        k23_cs{p}{tag}:
        ds_read_b32 v{CV}, v{CL}
        s_waitcnt lgkmcnt(0)
        v_cmp_gt_u32 vcc, {p}, v{CV}
        s_cbranch_vccnz k23_cs{p}{tag}
        """)
        a.stamp()
    a(f"""
    s_setprio {CPRIO}
    s_lshl_b32 s27, s13, 2
    s_add_u32 s27, s27, {PW + 16}
    v_mov_b32 v{CA}, s27
    v_mov_b32 v{CV}, 0
    v_and_b32 v{CL}, 3, v2
    v_lshlrev_b32 v{CL}, 2, v{CL}
    v_add_u32 v{CL}, {PW + 16}, v{CL}
    """)
    a.wait_vm("e1")
    for r in range(4):
        a(f"v_xor_b32 v{N+r}, s48, v{YI+r}")
    a("s_nop 1")
    for t in range(2):
        er = E1 + 4*t; ei = E1 + 8 + 4*t
        a(f"v_mfma_f32_16x16x32_f16 {R(D+4*t)}, {R(YR)}, {R(er)}, 0")
        a(f"v_mfma_f32_16x16x32_f16 {R(D+8+4*t)}, {R(YR)}, {R(ei)}, 0")
    for t in range(2):
        er = E1 + 4*t; ei = E1 + 8 + 4*t
        a(f"v_mfma_f32_16x16x32_f16 {R(D+4*t)}, {R(N)}, {R(ei)}, {R(D+4*t)}")
        a(f"v_mfma_f32_16x16x32_f16 {R(D+8+4*t)}, {R(YI)}, {R(er)}, {R(D+8+4*t)}")
    a.wait_vm("t1")
    a("s_nop 7")
    cmul_tw(T1)
    pack("v_cvt_pk_f16_f32", TMP + 8)
    lds_write(UB, TMP + 8)
    bar()
    lds_read(UB)
    a.wait_vm("e2")
    for r in range(8):
        a(f"v_xor_b32 v{N+r}, s48, v{E2+8+r}")
    a("s_waitcnt lgkmcnt(0)")
    for st in range(2):
        for t in range(2):
            cr = "0" if st == 0 else R(D+4*t); ci = "0" if st == 0 else R(D+8+4*t)
            a(f"v_mfma_f32_16x16x32_f16 {R(D+4*t)}, {R(E2+4*st)}, {R(fr(0,t,st))}, {cr}")
            a(f"v_mfma_f32_16x16x32_f16 {R(D+8+4*t)}, {R(E2+8+4*st)}, {R(fr(0,t,st))}, {ci}")
        for t in range(2):
            a(f"v_mfma_f32_16x16x32_f16 {R(D+4*t)}, {R(N+4*st)}, {R(fr(1,t,st))}, {R(D+4*t)}")
            a(f"v_mfma_f32_16x16x32_f16 {R(D+8+4*t)}, {R(E2+4*st)}, {R(fr(1,t,st))}, {R(D+8+4*t)}")
    a("""
    s_cmp_eq_u32 s2, 0
    s_cbranch_scc1 k2_special
    """)
    vm_keep = list(a.vm)
    a.wait_vm("w")
    a("s_nop 7")
    for e in range(8):
        r = D + e; im = D + 8 + e
        t = TMP + 4*(e % 2)
        a(f"""
        v_lshlrev_b32 v{t+2}, 16, v{WW+e}
        v_and_b32 v{t+3}, s49, v{WW+e}
        v_mul_f32 v{t}, v{im}, v{t+3}
        v_mul_f32 v{t+1}, v{r}, v{t+3}
        v_fma_f32 v{r}, v{r}, v{t+2}, -v{t}
        v_fma_f32 v{im}, v{im}, v{t+2}, v{t+1}
        """)
    a("s_branch k2_join")
    a.raw("k2_special:")
    a.vm = vm_keep
    a.wait_vm("w")
    TA_ = cE1
    for e in range(8):
        q = PQ + 4*e; t = TA_ + 4*e
        a(f"""
        v_lshlrev_b32 v{q}, 16, v{WW+e}
        v_and_b32 v{q+1}, s49, v{WW+e}
        v_lshlrev_b32 v{q+2}, 16, v{WM+e}
        v_and_b32 v{q+3}, s49, v{WM+e}
        v_lshlrev_b32 v{t}, 16, v{WW+8+e}
        v_and_b32 v{t+1}, s49, v{WW+8+e}
        v_lshlrev_b32 v{t+2}, 16, v{WM+8+e}
        v_and_b32 v{t+3}, s49, v{WM+8+e}
        """)
    for e in range(8):
        q = PQ + 4*e; t = TA_ + 4*e
        a(f"""
        v_add_f32 v{q}, v{q}, v{q+2}
        v_sub_f32 v{q+1}, v{q+1}, v{q+3}
        v_add_f32 v{t}, v{t}, v{t+2}
        v_sub_f32 v{t+1}, v{t+1}, v{t+3}
        """)
    for e in range(8):
        q = PQ + 4*e; t = TA_ + 4*e
        a(f"""
        v_sub_f32 v{q+2}, v{q}, v{t}
        v_sub_f32 v{q+3}, v{q+1}, v{t+1}
        v_add_f32 v{q}, v{q}, v{t}
        v_add_f32 v{q+1}, v{q+1}, v{t+1}
        """)
    for e in range(32):
        a(f"v_mul_f32 v{PQ+e}, 0x3e800000, v{PQ+e}")
    for e in range(8):
        t, i = e // 4, e % 4
        q = TMP + 2*(e % 2)
        a(f"""
        v_cvt_pk_f16_f32 v{q}, v{D+e}, v{D+8+e}
        v_add_u32 v{q+1}, {32*i+16*t+(SB+MB)//4}, v1
        v_lshlrev_b32 v{q+1}, 2, v{q+1}
        ds_write_b32 v{q+1}, v{q}
        """)
    for e in range(8):
        r = D + e; q = PQ + 4*e; t = F + 8 + 2*e
        a(f"v_mul_f32 v{t}, v{r}, v{q}")
        a(f"v_mul_f32 v{t+1}, v{r}, v{q+1}")
    for e in range(8):
        im = D + 8 + e; q = PQ + 4*e; t = F + 8 + 2*e
        a(f"v_fma_f32 v{t}, -v{im}, v{q+1}, v{t}")
        a(f"v_fma_f32 v{t+1}, v{im}, v{q}, v{t+1}")
    nst_keep = a.nst
    bar("s")
    a.nst = nst_keep
    for e in range(8):
        t, i = e // 4, e % 4
        a(f"""
        v_add_u32 v{TMP+4}, {32*i+16*t}, v1
        v_sub_u32 v{TMP+4}, 2048, v{TMP+4}
        v_and_b32 v{TMP+4}, 2047, v{TMP+4}
        v_lshlrev_b32 v{TMP+4}, 2, v{TMP+4}
        v_add_u32 v{TMP+4}, {SB+MB}, v{TMP+4}
        ds_read_b32 v{F+e}, v{TMP+4}
        """)
    a("s_waitcnt lgkmcnt(0)")
    for e in range(8):
        xm = F + e; q = PQ + 4*e; t = F + 8 + 2*e
        a(f"""
        v_fma_mix_f32 v{t}, v{q+2}, v{xm}, v{t} op_sel:[0,0,0] op_sel_hi:[0,1,0]
        v_fma_mix_f32 v{t+1}, v{q+3}, v{xm}, v{t+1} op_sel:[0,0,0] op_sel_hi:[0,1,0]
        """)
    for e in range(8):
        r = D + e; im = D + 8 + e
        xm = F + e; q = PQ + 4*e; t = F + 8 + 2*e
        a(f"""
        v_fma_mix_f32 v{r}, v{q+3}, v{xm}, v{t} op_sel:[0,1,0] op_sel_hi:[0,1,0]
        v_fma_mix_f32 v{im}, -v{q+2}, v{xm}, v{t+1} op_sel:[0,1,0] op_sel_hi:[0,1,0]
        """)
    a.raw("k2_join:")
    a.stamp()
    pack("v_cvt_pk_bf16_f32", TMP + 8)
    lds_write(XB, TMP + 8)
    bar()
    lds_read(XB)
    a.wait_vm("e3")
    for r in range(8):
        a(f"v_xor_b32 v{N+r}, s48, v{E3+8+r}")
    a("s_waitcnt lgkmcnt(0)")
    for st in range(2):
        for t in range(2):
            cr = "0" if st == 0 else R(D+4*t); ci = "0" if st == 0 else R(D+8+4*t)
            a(f"v_mfma_f32_16x16x32_bf16 {R(D+4*t)}, {R(fr(0,t,st))}, {R(E3+4*st)}, {cr}")
            a(f"v_mfma_f32_16x16x32_bf16 {R(D+8+4*t)}, {R(fr(0,t,st))}, {R(E3+8+4*st)}, {ci}")
        for t in range(2):
            a(f"v_mfma_f32_16x16x32_bf16 {R(D+4*t)}, {R(fr(1,t,st))}, {R(N+4*st)}, {R(D+4*t)}")
            a(f"v_mfma_f32_16x16x32_bf16 {R(D+8+4*t)}, {R(fr(1,t,st))}, {R(E3+4*st)}, {R(D+8+4*t)}")
    a.wait_vm("t2")
    a("s_nop 7")
    cmul_tw(T2)
    pack("v_cvt_pk_bf16_f32", TMP + 8)
    VR, VI = TMP + 8, TMP + 12
    for r in range(4):
        a(f"v_xor_b32 v{N+r}, s48, v{VI+r}")
    a.wait_vm("e4")
    a("s_nop 1")
    for tp in range(2):
        a(f"v_mfma_f32_16x16x32_bf16 {R(D+4*tp)}, {R(E4+4*tp)}, {R(VR)}, 0")
        a(f"v_mfma_f32_16x16x32_bf16 {R(D+8+4*tp)}, {R(E4+8+4*tp)}, {R(VR)}, 0")
    for tp in range(2):
        a(f"v_mfma_f32_16x16x32_bf16 {R(D+4*tp)}, {R(E4+8+4*tp)}, {R(N)}, {R(D+4*tp)}")
        a(f"v_mfma_f32_16x16x32_bf16 {R(D+8+4*tp)}, {R(E4+4*tp)}, {R(VI)}, {R(D+8+4*tp)}")
    a(f"""
    v_lshlrev_b32 v5, 6, v3
    v_and_b32 v1, 1, v4
    v_lshl_add_u32 v5, v1, 5, v5
    v_lshrrev_b32 v1, 1, v4
    v_lshl_add_u32 v5, v1, 4, v5
    s_add_u32 s60, s60, {WS_Z - WS_Y}
    s_add_u32 s61, s61, {WS_Z - WS_Y}
    s_nop 3
    """)
    pack("v_cvt_pk_bf16_f32", TMP + 8)
    a("s_nop 1")
    for pl in range(2):
        b = TMP + 8 + pl*4
        a(f"v_permlane16_swap_b32 v{b}, v{b+2}")
        a(f"v_permlane16_swap_b32 v{b+1}, v{b+3}")
    for pl in range(2):
        b = TMP + 8 + pl*4
        a.vmem(f"buffer_store_dwordx4 v[{b}:{b+3}], v5, s[40:43], s{60+pl} offen sc1", "z")
    a.stamp()
    a.wait_vm_all()
    bar()
    a(f"""
    s_cmp_eq_u32 s13, 0
    s_cbranch_scc0 k23_nosig
    s_lshl_b32 s26, s2, 4
    s_add_u32 s26, s26, {WS_FL}
    v_mov_b32 v1, s6
    v_mov_b32 v7, 0
    s_mov_b64 exec, 1
    buffer_store_dword v1, v7, s[40:43], s26 offen sc1
    s_mov_b64 exec, -1
    k23_nosig:
    """)
    a.raw("k23_end:")
    a("s_endpgm")
    return a.text()

def tables_asm():
    o = []
    j = np.arange(512)
    c1 = bf16(np.cos(2*np.pi*j/512) / 16); c2 = bf16(np.cos(2*np.pi*j/512) / 8)
    c1[np.abs(np.cos(2*np.pi*j/512)) < 1e-9] = 0; c2[np.abs(np.cos(2*np.pi*j/512)) < 1e-9] = 0
    for i in range(512):
        o.append(f".set CA{i}, 0x{c1[i]:04x}")
        o.append(f".set CB{i}, 0x{c2[i]:04x}")
    o.append(".altmacro")
    o.append(""".macro f8 a,b,c,d,e,f,g,h
.short CA\\a, CA\\b, CA\\c, CA\\d, CA\\e, CA\\f, CA\\g, CA\\h
.endm
.macro g8 a,b,c,d,e,f,g,h
.short CB\\a, CB\\b, CB\\c, CB\\d, CB\\e, CB\\f, CB\\g, CB\\h
.endm
.macro g8s a,b,c,d,e,f,g,h
.short CA\\a, CA\\b, CB\\c, CB\\d, CB\\e, CB\\f, CB\\g, CB\\h
.endm
.macro flane k, o, d
f8 %((\\d*\\k+\\o)&511), %(((\\d+1)*\\k+\\o)&511), %(((\\d+2)*\\k+\\o)&511), %(((\\d+3)*\\k+\\o)&511), %(((\\d+4)*\\k+\\o)&511), %(((\\d+5)*\\k+\\o)&511), %(((\\d+6)*\\k+\\o)&511), %(((\\d+7)*\\k+\\o)&511)
.endm
.macro fhalf n0, d
.set nn, \\n0
.rept 32
flane %((nn>>1)-256*(nn==1)), %(128*(nn&1)*(1+(nn==1))), \\d
.set nn, nn+1
.endr
.endm
.macro ftile n0
.set dd, 0
.rept 64
fhalf \\n0, %dd
.set dd, dd+8
.endr
.endm
.section .rodata,"a"
.p2align 8
tab_F:
.set tt, 0
.rept 16
ftile %(32*tt)
.set tt, tt+1
.endr
""")
    o.append(""".macro glane d, k
g8 %((\\d*\\k)&511), %((\\d*\\k+128)&511), %((\\d*(\\k+1))&511), %((\\d*(\\k+1)+128)&511), %((\\d*(\\k+4))&511), %((\\d*(\\k+4)+128)&511), %((\\d*(\\k+5))&511), %((\\d*(\\k+5)+128)&511)
.endm
.macro glane0 d
g8s 0, %((\\d*256)&511), %((\\d*1)&511), %((\\d+128)&511), %((\\d*4)&511), %((\\d*4+128)&511), %((\\d*5)&511), %((\\d*5+128)&511)
.endm
.macro ghalf d0, k
.set ll, 0
.rept 32
glane %(\\d0+ll), \\k
.set ll, ll+1
.endr
.endm
.macro ghalf0 d0
.set ll, 0
.rept 32
glane0 %(\\d0+ll)
.set ll, ll+1
.endr
.endm
.macro gtile d0
ghalf0 \\d0
ghalf \\d0, 2
.set gg, 1
.rept 31
ghalf \\d0, %(8*gg)
ghalf \\d0, %(8*gg+2)
.set gg, gg+1
.endr
.endm
.p2align 8
tab_G:
.set tt, 0
.rept 16
gtile %(32*tt)
.set tt, tt+1
.endr
.noaltmacro
.p2align 8
tab_S:
""")
    st = small_tables().view(np.uint64)
    for i in range(0, len(st), 8):
        o.append(".quad " + ",".join(f"0x{v:x}" for v in st[i:i+8]))
    return "\n".join(o) + "\n"

if MERGE:
    hdr = f"""; fused LN + GFNet spectral filter + ReGLU, single persistent launch (256 co-resident workgroups)
; @launch {LK}grid=(256,1,1) block=(512,1,1) lds=163840
.amdgcn_target "amdgcn-amd-amdhsa--gfx950"
.text
.globl {KNAME}
.type {KNAME},@function
"""
    src = hdr + gen_k1() + gen_k23_main() + "code_end:\n" + tables_asm()
    src += '.section .rodata,"a"\n.p2align 6\n' + kd(KNAME, 256)
else:
    hdr = """; fused LN + GFNet spectral filter + ReGLU, 2 launches
; @launch kernel=k1_kernel grid=(256,1,1) block=(512,1,1) lds=163840
; @launch kernel=k23_kernel grid=(256,1,1) block=(512,1,1) lds=163840
.amdgcn_target "amdgcn-amd-amdhsa--gfx950"
.text
.globl k1_kernel
.type k1_kernel,@function
.globl k23_kernel
.type k23_kernel,@function
"""
    src = hdr + gen_k1() + gen_k23_main() + "code_end:\n" + tables_asm()
    src += '.section .rodata,"a"\n.p2align 6\n' + kd("k1_kernel", 256) + ".p2align 6\n" + kd("k23_kernel", 256)
open(OUT, "w").write(src)
print("wrote", OUT, len(src))
```
